```python
import torch

def _softmax(x, axis=-1):
    return torch.softmax(x, dim=axis)
def _gelu(x):
    return torch.nn.functional.gelu(x, approximate="tanh")
def _silu(x):
    return torch.nn.functional.silu(x)
def _sigmoid(x):
    return torch.sigmoid(x)
def _layernorm(x, axis=-1, eps=1e-5):
    m = x.mean(dim=axis, keepdim=True)
    v = x.var(dim=axis, keepdim=True, unbiased=False)
    return (x - m) / torch.sqrt(v + eps)
def _scatter_add(tgt, idx, src, axis=0):
    return tgt.clone().index_add_(axis, idx, src)
def _segment_sum(src, seg, n):
    out = torch.zeros((n,) + src.shape[1:], dtype=src.dtype)
    return out.index_add_(0, seg, src)
def _pad(x, pw):
    flat = tuple(v for pair in reversed(pw) for v in pair)
    return torch.nn.functional.pad(x, flat)

kernel_name = 'standalone__gqa_block_cached__near_ridge'

def setup_inputs():

    _w = (lambda a: (lambda t: t.to(torch.bfloat16) if t.is_floating_point() else t)(torch.as_tensor(a)))
    B, Sq, D = 16, 144, 512
    Hq, Hkv, Sk, Dh = 32, 32, 1024, 128
    assert Hq % Hkv == 0, (Hq, Hkv)
    return {
        "x": _w((lambda *s: torch.randn(*s, dtype=torch.bfloat16) * 0.8)(B, Sq, D)),
        "k_cache": _w((lambda *s: torch.randn(*s, dtype=torch.bfloat16) * 0.8)(B, Hkv, Sk, Dh)),
        "v_cache": _w((lambda *s: torch.randn(*s, dtype=torch.bfloat16) * 0.05)(B, Hkv, Sk, Dh)),
        "wq": _w((lambda *s: torch.randn(*s, dtype=torch.bfloat16) * 0.8)(D, Hq * Dh) * (D ** -0.5)),
        "wo": _w((lambda *s: torch.randn(*s, dtype=torch.bfloat16) * 0.05)(Hq * Dh, D) * ((Hq * Dh) ** -0.5)),
    }

def reference(x, k_cache, v_cache, wq, wo):
    B, Sq, D = x.shape
    Hq, Dh = 32, 128
    Hkv = k_cache.shape[1]
    rep = Hq // Hkv
    q = (lambda x, *d: x.permute(*d))((x @ wq).reshape(B, Sq, Hq, Dh), 0, 2, 1, 3)
    k = (lambda x, n, axis: torch.repeat_interleave(x, n, dim=axis))(k_cache, rep, axis=1)
    v = (lambda x, n, axis: torch.repeat_interleave(x, n, dim=axis))(v_cache, rep, axis=1)
    scores = torch.einsum("bhqd,bhkd->bhqk", q, k) * (Dh ** -0.5)
    p = _softmax(scores, axis=-1)
    o = torch.einsum("bhqk,bhkd->bhqd", p, v)
    return (lambda x, *d: x.permute(*d))(o, 0, 2, 1, 3).reshape(B, Sq, Hq * Dh) @ wo
```

```python
KN = "standalone__gqa_block_cached__near_ridge_kernel"

class A:
    def __init__(self):
        self.l = []
    def __call__(self, s):
        for x in s.strip("\n").split("\n"):
            x = x.strip()
            if not x: continue
            if x.endswith(":") or x.startswith("."):
                self.l.append(x)
            else:
                self.l.append("    " + x)
    def text(self):
        return "\n".join(self.l) + "\n"

def header(launches):
    out = []
    if len(launches) == 1 and launches[0][0] == KN:
        k, g, b, lds = launches[0]
        out.append(f"; @launch grid=({g},1,1) block=({b},1,1) lds={lds}")
    else:
        for k, g, b, lds in launches:
            out.append(f"; @launch kernel={k} grid=({g},1,1) block=({b},1,1) lds={lds}")
    out.append('.amdgcn_target "amdgcn-amd-amdhsa--gfx950"')
    out.append(".text")
    return "\n".join(out) + "\n"

def kstart(name):
    return f".globl {name}\n.p2align 8\n.type {name},@function\n{name}:\n"

def kdesc(name, vgpr, agpr=0, sgpr=102):
    acc = (vgpr + 3) // 4 * 4
    nfv = acc + agpr if agpr else vgpr
    return f""".amdhsa_kernel {name}
  .amdhsa_next_free_vgpr {nfv}
  .amdhsa_next_free_sgpr {sgpr}
  .amdhsa_accum_offset {acc}
  .amdhsa_group_segment_fixed_size 0
  .amdhsa_kernarg_size 64
  .amdhsa_user_sgpr_count 2
  .amdhsa_user_sgpr_kernarg_segment_ptr 1
  .amdhsa_system_sgpr_workgroup_id_x 1
.end_amdhsa_kernel
"""

def rodata(descs):
    s = '.section .rodata,"a"\n'
    for d in descs:
        s += ".p2align 6\n" + d
    return s

def srd(a, sd, sb, nbytes):
    a(f"""s_mov_b32 s{sd}, s{sb}
    s_and_b32 s{sd+1}, s{sb+1}, 0xffff
    s_mov_b32 s{sd+2}, {nbytes}
    s_mov_b32 s{sd+3}, 0x00020000""")
```

```python
import re, sys
def regs(tok):
    tok = tok.strip()
    tok = tok.lstrip("-")
    m = re.fullmatch(r"abs\((.*)\)", tok)
    if m: tok = m.group(1)
    m = re.fullmatch(r"([vas])\[(\d+):(\d+)\]", tok)
    if m: return {(m.group(1), i) for i in range(int(m.group(2)), int(m.group(3)) + 1)}
    m = re.fullmatch(r"([vas])(\d+)", tok)
    if m: return {(m.group(1), int(m.group(2)))}
    if tok == "vcc": return {("s", "vcc")}
    if tok == "m0": return {("s", "m0")}
    if tok == "exec": return {("s", "exec")}
    return set()
TRANS = ("v_exp_f32", "v_log_f32", "v_rcp_f32", "v_rsq_f32", "v_sqrt_f32")
def parse(line):
    line = line.split(";")[0].strip()
    if not line or line.endswith(":") or line.startswith("."): return None
    p = line.split(None, 1)
    op = p[0]; ops = []
    if len(p) > 1:
        ops = [x.strip() for x in re.split(r",(?![^\[]*\])", p[1])]
        last = ops[-1].split()
        if last:
            ops[-1] = last[0]
    d = dict(op=op, line=line, w=set(), r=set(), kind="other", states=1)
    R = [regs(o) for o in ops]
    allr = lambda lst: set().union(*lst) if lst else set()
    if op == "s_nop":
        d["states"] = int(ops[0]) + 1; d["kind"] = "nop"
    elif op.startswith("v_mfma"):
        d["kind"] = "mfma"; d["w"] = R[0]; d["ab"] = R[1] | R[2]; d["c"] = R[3]; d["r"] = R[1] | R[2] | R[3]
        d["pass"] = 4 if "16x16" in op else 2 if "4x4" in op else 8
    elif op.startswith("v_permlane"):
        d["kind"] = "perm"; d["w"] = R[0] | R[1]; d["r"] = R[0] | R[1]
    elif op.startswith("v_readfirstlane") or op.startswith("v_readlane"):
        d["kind"] = "rdlane"; d["w"] = R[0]; d["r"] = allr(R[1:])
    elif op.startswith("v_cmp"):
        d["kind"] = "valu"; d["w"] = R[0]; d["r"] = allr(R[1:])
    elif op.startswith("v_"):
        d["kind"] = "valu"; d["w"] = R[0]; d["r"] = allr(R[1:])
        if op.startswith("v_fmac") or op.startswith("v_pk_fmac"): d["r"] |= R[0]
        if op.startswith("v_add_co") or op.startswith("v_addc_co"): d["w"] |= R[1]
        if op.split("_e32")[0].split("_e64")[0] in TRANS: d["trans"] = True
        if "dpp" in line or "row_" in line or "quad_perm" in line: d["dpp"] = True
    elif op.startswith("ds_read") or op.startswith("ds_bperm"):
        d["kind"] = "mem"; d["w"] = R[0]; d["r"] = allr(R[1:])
    elif op.startswith("ds_"):
        d["kind"] = "mem"; d["r"] = allr(R)
    elif op.startswith("buffer_load") or op.startswith("global_load"):
        d["kind"] = "mem"; d["vmem"] = True
        if line.rstrip().endswith(" lds") or " lds " in line:
            d["r"] = allr(R) | {("s", "m0")}; d["dma"] = True
        else:
            d["w"] = R[0]; d["r"] = allr(R[1:])
    elif op.startswith("buffer_store") or op.startswith("global_store") or op.startswith("buffer_atomic") or op.startswith("global_atomic"):
        d["kind"] = "mem"; d["vmem"] = True; d["r"] = allr(R)
        if "x4" in op or "x3" in op: d["wide"] = R[0]
    elif op.startswith("s_"):
        d["kind"] = "salu"
        if op.startswith("s_cmp") or op.startswith("s_cbranch") or op in ("s_waitcnt", "s_barrier", "s_branch", "s_endpgm", "s_setprio", "s_sleep"):
            d["r"] = allr(R)
        else:
            d["w"] = R[0] if R else set(); d["r"] = allr(R[1:])
            if "saveexec" in op: d["w"] |= {("s", "exec")}
    return d
def check(text, verbose=True):
    ins = [(n, parse(l)) for n, l in enumerate(text.split("\n"), 1)]
    ins = [(n, d) for n, d in ins if d]
    bad = 0
    for i, (n, p) in enumerate(ins):
        dist = 0
        for j in range(i + 1, min(i + 24, len(ins))):
            m, c = ins[j]
            need = 0
            isv = lambda s: {x for x in s if x[0] in "va"}
            iss = lambda s: {x for x in s if x[0] == "s"}
            if p["kind"] == "mfma":
                ps = p["pass"]
                if c["kind"] == "mfma":
                    if p["w"] & c["ab"]: need = max(need, ps + 4)
                    if p["w"] & c["c"] and not (p["w"] == c["c"] and ps == c["pass"]): need = max(need, ps + 2)
                    if p["w"] & c["w"] and not (p["w"] & c["c"]) and False: pass
                elif c["kind"] in ("valu", "perm", "rdlane", "mem"):
                    if p["w"] & (c["r"] | c["w"]): need = max(need, ps + 4)
                    if c["kind"] in ("valu", "perm") and (p["c"] & c["w"]): need = max(need, ps - 1)
            if p["kind"] in ("valu", "perm"):
                if c["kind"] == "mfma" and isv(p["w"]) & c["r"]: need = max(need, 2)
                if c["kind"] == "perm" and isv(p["w"]) & c["r"]: need = max(need, 2)
                if c.get("dpp") and isv(p["w"]) & c["r"]: need = max(need, 2)
                if c["kind"] == "rdlane" and isv(p["w"]) & c["r"]: need = max(need, 1)
                if p.get("trans") and c["kind"] in ("valu", "perm") and not c.get("trans") and p["w"] & c["r"]: need = max(need, 1)
            if p["kind"] in ("valu", "rdlane"):
                if c.get("vmem") and iss(p["w"]) & c["r"]: need = max(need, 5)
                if c["kind"] in ("valu",) and iss(p["w"]) & c["r"]: need = max(need, 2)
            if p["kind"] == "salu" and ("s", "m0") in p["w"] and c.get("dma"): need = max(need, 1)
            if p.get("wide") and c["kind"] in ("valu", "perm") and p["wide"] & c["w"]: need = max(need, 2)
            if p.get("wide") and c["kind"] in ("mem", "mfma") and p["wide"] & c["w"]: need = max(need, 1)
            if need > dist:
                bad += 1
                if verbose: print(f"HAZARD need {need} have {dist}: L{n} `{p['line']}` -> L{m} `{c['line']}`")
            if c["op"] in ("s_branch", "s_endpgm"): break
            dist += c["states"]
            if dist >= 12: break
    return bad
if __name__ == "__main__":
    b = check(open(sys.argv[1]).read())
    print("hazards:", b)
```

```python
import sys, struct
from asmlib import *
import hazard

KA = "attn_kernel"; KB = "oproj_kernel"
SLOT = 17408
HAND = 6 * SLOT
FLAG = 9 * SLOT
LDSA = 163840
CSC = struct.unpack("<I", struct.pack("<f", 1.4426950408889634 * 128 ** -0.5))[0]
THR = 0x4b800000
OOB = 0x80000000
MF = "v_mfma_f32_16x16x32_bf16"

def vr(b, n=4): return f"v[{b}:{b+n-1}]"
def ar(b, n=4): return f"a[{b}:{b+n-1}]"
def sr(b, n=4): return f"s[{b}:{b+n-1}]"

sWAVE = 3
sX, sK, sV, sWQ, sO = 20, 24, 28, 32, 36
sMK, sMV = 40, 46
sOFF, sIT, sCNT, sREDO, sW3072, sROTX, sROTW, sT0, sT1, sT2, sT3, sCS, sSL, sSL2, sKS = 52, 53, 54, 55, 56, 57, 58, 59, 60, 61, 62, 63, 64, 65, 66
sSTAMP = 70
vDK, vDV = 10, 13
vS, vNM, vONE, vMS = 16, 40, 52, 56
vRK, vRV0, vRV1 = 64, 70, 76
vRKb, vRV0b, vRV1b = 82, 83, 84
vDX = 85
vXR, vW0q, vW1q = 88, 91, 94
vL16 = 97
vTMP = 100
vO, vL = 128, 224
aQ, aK, aV = 0, 48, 112
vQA = 128; aXF = 48; aWF = 120
vDW, vDXh, vW0h, vW1h, vXRh, vL16h, vA0, vA1, vA2 = 10, 14, 18, 19, 20, 21, 22, 23, 24
vHACC = 32; aHACC = 0; aHA = 72; aHB = 104; vHT = 248

def S(qt, kt=0): return vS + 8 * qt + 4 * kt
def Kf(p, kt, ks): return aK + 32 * p + 16 * kt + 4 * ks
def Vf(p, dt): return aV + 32 * p + 4 * dt
def Qf(qt, ks): return aQ + 16 * qt + 4 * ks
def Oa(qt, dt): return vO + 32 * qt + 4 * dt

class Gen:
    def __init__(self, opt):
        self.o = opt
        self.a = A()
        self.nst = 0
    def stamp(self, i, who):
        if self.o.get("stamps"):
            self.a(f"s_memrealtime s[{sSTAMP+2*i}:{sSTAMP+2*i+1}]")

    def weave(self, mf, fills):
        a = self.a
        for x in fills.get(-1, []): a(x)
        for i, m in enumerate(mf):
            a(m)
            for x in fills.get(i, []): a(x)

    def prologueA(self):
        a = self.a
        a(f"""
        s_cmp_ge_u32 s2, 256
        s_cbranch_scc1 LA_end
        s_load_dwordx16 s[4:19], s[0:1], 0
        """)
        self.stamp(0, "all")
        a(f"""
        v_and_b32 v1, 63, v0
        v_lshrrev_b32 v2, 6, v0
        s_and_b32 s{sT0}, s2, 7
        v_readfirstlane_b32 s{sWAVE}, v2
        s_lshr_b32 s{sT1}, s2, 3
        s_and_b32 s{sT2}, s{sT0}, 1
        s_lshl_b32 s{sT2}, s{sT2}, 3
        s_and_b32 s{sT3}, s{sT1}, 7
        s_add_u32 s{sT2}, s{sT2}, s{sT3}          ; b
        s_lshr_b32 s{sT0}, s{sT0}, 1
        s_lshl_b32 s{sT0}, s{sT0}, 2
        s_lshr_b32 s{sT1}, s{sT1}, 3
        s_add_u32 s{sT0}, s{sT0}, s{sT1}          ; hp
        s_add_u32 s{sT1}, s{sT0}, s{sT2}
        s_and_b32 s{sT1}, s{sT1}, 1
        s_lshl_b32 s{sROTX}, s{sT1}, 9
        s_lshl_b32 s{sROTW}, s{sT1}, 21           ; rot*262144
        s_mul_i32 s{sW3072}, s{sWAVE}, 3072
        s_mov_b32 s{sCS}, {CSC:#x}
        s_lshl_b32 s{sT1}, s{sT2}, 4
        s_add_u32 s{sT1}, s{sT1}, s{sT0}
        s_waitcnt lgkmcnt(0)
        s_mul_i32 s{sT3}, s{sT2}, 147456
        s_add_u32 s{sX}, s4, s{sT3}
        s_addc_u32 s{sX+1}, s5, 0
        s_and_b32 s{sX+1}, s{sX+1}, 0xffff
        s_mov_b32 s{sX+2}, 147456
        s_mov_b32 s{sX+3}, 0x00020000
        s_lshl_b32 s{sT3}, s{sT1}, 19
        s_add_u32 s{sK}, s6, s{sT3}
        s_addc_u32 s{sK+1}, s7, 0
        s_and_b32 s{sK+1}, s{sK+1}, 0xffff
        s_mov_b32 s{sK+2}, 524288
        s_mov_b32 s{sK+3}, 0x00020000
        s_add_u32 s{sV}, s8, s{sT3}
        s_addc_u32 s{sV+1}, s9, 0
        s_sub_u32 s{sV}, s{sV}, 1024
        s_subb_u32 s{sV+1}, s{sV+1}, 0
        s_and_b32 s{sV+1}, s{sV+1}, 0xffff
        s_mov_b32 s{sV+2}, {524288+1024}
        s_mov_b32 s{sV+3}, 0x00020000
        s_lshl_b32 s{sT3}, s{sT0}, 9
        s_add_u32 s{sWQ}, s10, s{sT3}
        s_addc_u32 s{sWQ+1}, s11, 0
        s_and_b32 s{sWQ+1}, s{sWQ+1}, 0xffff
        s_sub_u32 s{sWQ+2}, 4194304, s{sT3}
        s_mov_b32 s{sWQ+3}, 0x00020000
        s_mul_i32 s{sT3}, s{sT1}, 73728
        s_add_u32 s{sO}, s18, s{sT3}
        s_addc_u32 s{sO+1}, s19, 0
        s_and_b32 s{sO+1}, s{sO+1}, 0xffff
        s_mov_b32 s{sO+2}, 73728
        s_mov_b32 s{sO+3}, 0x00020000
        v_lshrrev_b32 v2, 4, v1
        v_bfe_u32 v3, v1, 2, 2
        v_and_b32 v4, 3, v1
        v_and_b32 v5, 15, v1
        v_lshlrev_b32 v{vL16}, 4, v1
        ; v6 = (g ^ 2(r&1))*16
        v_and_b32 v6, 1, v3
        v_lshlrev_b32 v6, 1, v6
        v_xor_b32 v6, v6, v2
        v_lshlrev_b32 v6, 4, v6
        v_lshl_add_u32 v{vXR}, v5, 6, v6
        v_add_u32 v{vXR+1}, {3*SLOT}, v{vXR}
        v_add_u32 v{vXR+2}, {6*SLOT}, v{vXR}
        v_lshlrev_b32 v7, 11, v2
        v_lshl_add_u32 v7, v3, 6, v7
        v_add_u32 v7, 9216, v7
        v_xor_b32 v9, 2, v4
        v_lshl_add_u32 v8, v9, 4, v7
        v_add_u32 v8, 1024, v8
        v_lshl_add_u32 v7, v4, 4, v7
        s_lshl_b32 s{sT3}, s{sWAVE}, 8
        v_add_u32 v{vW0q}, s{sT3}, v7
        v_add_u32 v{vW1q}, s{sT3}, v8
        v_add_u32 v{vW0q+1}, {3*SLOT}, v{vW0q}
        v_add_u32 v{vW1q+1}, {3*SLOT}, v{vW1q}
        v_add_u32 v{vW0q+2}, {6*SLOT}, v{vW0q}
        v_add_u32 v{vW1q+2}, {6*SLOT}, v{vW1q}
        v_lshrrev_b32 v62, 2, v1
        v_lshlrev_b32 v62, 10, v62
        v_and_b32 v63, 1, v2
        v_lshlrev_b32 v63, 1, v63
        v_xor_b32 v63, v63, v4
        v_lshl_add_u32 v62, v63, 4, v62
        s_mov_b32 s{sIT}, 0
        s_mov_b32 s{sREDO}, 0
        s_cmp_eq_u32 s{sWAVE}, 3
        s_cbranch_scc1 LA_helper
        """)

    def dma(self, v, srd, soff, imm, pol=""):
        return f"buffer_load_dwordx4 v{v}, {sr(srd)}, s{soff} offen offset:{imm} {pol} lds".replace("  ", " ")

    def chunk_ops(self, c, role):
        pos = (c + 2) % 9
        if role == "attn":
            L = [f"s_add_u32 m0, s{sW3072}, {pos*SLOT}", f"s_xor_b32 s{sT0}, s{sROTX}, {c*64}"]
            L += [self.dma(vDX + i, sX, sT0, i * 1024) for i in range(3)]
            return L, 3
        L = []
        for h in range(2):
            L += [f"s_mov_b32 m0, {pos*SLOT + 9216 + h*4096}", f"s_xor_b32 s{sT0}, s{sROTW}, {c*262144 + h*131072}"]
            L += [self.dma(vDW + i, sWQ, sT0, i * 1024) for i in range(4)]
        return L, 8

    def kv_ops(self, u, first=False):
        pol = self.o.get("pol", "nt")
        if first:
            return [f"s_mov_b32 m0, s{sMK+u}", f"s_add_u32 s{sT1}, s{sOFF}, 8192"] + \
                   [self.dma(2 + i, sK, sT1, i * 1024, pol) for i in range(3)] + [f"s_mov_b32 s{sOFF}, s{sT1}"], 3
        L = [f"s_mov_b32 m0, s{sMK+u}", "s_nop 0"] + [self.dma(vDK + i, sK, sOFF, i * 1024, pol) for i in range(3)]
        L += [f"s_mov_b32 m0, s{sMV+u}", "s_nop 0"] + [self.dma(vDV + i, sV, sOFF, i * 1024, pol) for i in range(3)]
        L += [f"s_add_u32 s{sOFF}, s{sOFF}, 8192"]
        return L, 6

    def tables(self):
        a = self.a
        a(f"s_lshl_b32 s{sT0}, s{sIT}, 1")
        for k in range(6):
            a(f"""s_add_u32 s{sT1}, s{sT0}, {k}
            s_cmp_ge_u32 s{sT1}, 6
            s_cselect_b32 s{sT2}, 6, 0
            s_sub_u32 s{sT1}, s{sT1}, s{sT2}
            s_mul_i32 s{sT1}, s{sT1}, {SLOT}
            s_add_u32 s{sMK+k}, s{sT1}, s{sW3072}
            s_add_u32 s{sMV+k}, s{sMK+k}, 8192
            v_add_u32 v{vRK+(k+5)%6}, s{sT1}, v{vRKb}
            v_add_u32 v{vRV0+(k+5)%6}, s{sT1}, v{vRV0b}
            v_add_u32 v{vRV1+(k+5)%6}, s{sT1}, v{vRV1b}""")

    def q0(self, role):
        a = self.a
        q = []
        def issue(L, n, tag):
            for x in L: a(x)
            q.extend([tag] * n)
        def after(tag):
            idx = max(i for i, t in enumerate(q) if t == tag)
            return len(q) - 1 - idx
        for c in range(9):
            L, n = self.chunk_ops(c, role); issue(L, n, ("c", c))
        if role == "attn":
            self.attn_setup()
        def reads(c):
            pos = (c + 2) % 9; grp, o = pos // 3, (pos % 3) * SLOT; p = c & 1
            L = []
            for u in range(2):
                L.append(f"ds_read_b64_tr_b16 {ar(aWF+8*p+4*u,2)}, v{vW0q+grp} offset:{o+8*u}")
                L.append(f"ds_read_b64_tr_b16 {ar(aWF+8*p+4*u+2,2)}, v{vW1q+grp} offset:{o+8*u}")
            for qt in range(9):
                L.append(f"ds_read_b128 {ar(aXF+36*p+4*qt)}, v{vXR+grp} offset:{o+qt*1024}")
            return L
        def mfmas(c):
            p = c & 1; L = []
            for qt in range(9):
                for u in range(2):
                    d = vr(vQA + 8 * qt + 4 * u)
                    L.append(f"{MF} {d}, {ar(aWF+8*p+4*u)}, {ar(aXF+36*p+4*qt)}, {'0' if c == 0 else d}")
            return L
        for c in range(16):
            a(f"s_waitcnt vmcnt({min(63, after(('c', c)))}) lgkmcnt(0)")
            a("s_barrier")
            if c == 0: self.stamp(1, role)
            fl = reads(c)
            extra = []; tags = []
            if 1 <= c <= 7:
                L, n = self.chunk_ops(c + 8, role); extra += L; tags += [("c", c + 8)] * n
            if role == "attn" and 8 <= c <= 13:
                L, n = self.kv_ops(c - 8, first=(c == 8)); extra += L; tags += [("b", c - 8)] * n
            q.extend(tags)
            if c == 0:
                for x in fl: a(x)
                continue
            mf = mfmas(c - 1)
            fills = {}
            items = fl + extra
            g = 0; k = 0
            per = max(1, -(-len(items) // 18))
            while k < len(items):
                fills.setdefault(min(g, 17), []).extend(items[k:k + per]); k += per; g += 1
            self.weave(mf, fills)
        a("s_waitcnt lgkmcnt(0)")
        a("s_barrier")
        self.weave(mfmas(15), {})
        a("s_nop 7")
        a(f"s_lshl_b32 s{sT0}, s{sWAVE}, 10")
        a(f"s_add_u32 s{sT0}, s{sT0}, {HAND}")
        a(f"v_add_u32 v9, s{sT0}, v{vL16}")
        for qt in range(9):
            b = vQA + 8 * qt
            for i in range(8): a(f"v_mul_f32 v{b+i}, s{sCS}, v{b+i}")
            for i in range(4): a(f"v_cvt_pk_bf16_f32 v{b+i}, v{b+2*i}, v{b+2*i+1}")
            a(f"ds_write_b128 v9, {vr(b)} offset:{qt*4096}")
        if role == "attn":
            a(f"s_waitcnt vmcnt({after(('b', 0))}) lgkmcnt(0)")
        else:
            a("s_waitcnt lgkmcnt(0)")
        a("s_barrier")
        self.stamp(2, role)

    def attn_setup(self):
        a = self.a
        a(f"""
        v_lshl_add_u32 v{vRKb}, v3, 10, v6
        v_lshl_add_u32 v{vRKb}, v4, 6, v{vRKb}
        v_lshlrev_b32 v7, 10, v2
        v_lshl_add_u32 v7, v3, 6, v7
        v_lshl_add_u32 v7, v4, 3, v7
        v_add_u32 v7, 9216, v7
        v_and_b32 v8, 1, v2
        v_lshl_add_u32 v{vRV0b}, v8, 5, v7
        v_xor_b32 v8, 1, v8
        v_lshl_add_u32 v{vRV1b}, v8, 5, v7
        v_lshlrev_b32 v7, 8, v3
        v_lshl_add_u32 v7, v2, 6, v7
        v_add_u32 v7, s{sW3072}, v7
        v_xor_b32 v9, 2, v4
        v_lshl_add_u32 v8, v9, 4, v7
        v_lshl_add_u32 v7, v4, 4, v7
        s_and_b32 s{sT0}, s{sWAVE}, 1
        s_cmp_eq_u32 s{sT0}, 1
        s_cselect_b64 vcc, -1, 0
        s_nop 1
        v_cndmask_b32 v9, v7, v8, vcc          ; parity w&1
        v_cndmask_b32 v8, v8, v7, vcc          ; parity (w+1)&1
        v_add_u32 v{vDK}, 8192, v9
        v_add_u32 v{vDK+1}, 8192, v8
        v_add_u32 v{vDK+2}, 8192, v9
        v_mov_b32 v{vDV}, v8
        v_mov_b32 v{vDV+1}, v9
        v_mov_b32 v{vDV+2}, v8
        v_mov_b32 v7, {OOB:#x}
        s_cmp_eq_u32 s{sWAVE}, 2
        s_cselect_b64 vcc, -1, 0
        s_nop 1
        v_cndmask_b32 v{vDK+2}, v{vDK+2}, v7, vcc
        s_cmp_eq_u32 s{sWAVE}, 0
        s_cselect_b64 vcc, -1, 0
        s_nop 1
        v_cndmask_b32 v{vDV}, v{vDV}, v7, vcc
        v_mov_b32 v{vONE}, 0x3f803f80
        v_mov_b32 v{vONE+1}, 0x3f803f80
        v_mov_b32 v{vONE+2}, 0x3f803f80
        v_mov_b32 v{vONE+3}, 0x3f803f80
        v_mov_b32 v{vMS}, 0xff800000
        v_mov_b32 v{vMS+1}, 0xff800000
        v_mov_b32 v{vMS+2}, 0xff800000
        v_subrev_u32 v2, 8192, v{vDK}
        v_subrev_u32 v3, 8192, v{vDK+1}
        v_subrev_u32 v4, 8192, v{vDK+2}
        s_mov_b32 s{sOFF}, {(-8192) & 0xffffffff:#x}
        v_mov_b32 v7, 0
        v_mov_b32 v8, {FLAG}
        ds_write_b32 v8, v7
        """)
        self.tables()

    def kreads(self, u, p):
        return [f"ds_read_b128 {ar(Kf(p,kt,ks))}, v{vRK+u} offset:{kt*4096+ks*256}" for kt in range(2) for ks in range(4)]
    def vreads(self, u, p):
        L = []
        for dt in range(8):
            for h in range(2):
                L.append(f"ds_read_b64_tr_b16 {ar(Vf(p,dt)+2*h,2)}, v{(vRV0 if dt%2==0 else vRV1)+u} offset:{(dt>>1)*256+h*4096}")
        return L
    def qk(self, qt, p, raw=False):
        L = []
        for kt in range(2):
            for ks in range(4):
                d = vr(S(qt, kt))
                c = d if ks else ("0" if raw else vr(vNM + 4 * qt))
                L.append(f"{MF} {d}, {ar(Kf(p,kt,ks))}, {ar(Qf(qt,ks))}, {c}")
        return L
    def pv(self, qt, p, first=False):
        L = []
        for dt in range(8):
            d = vr(Oa(qt, dt))
            L.append(f"{MF} {d}, {ar(Vf(p,dt))}, {vr(S(qt))}, {'0' if first else d}")
        d = vr(vL + 4 * qt)
        L.append(f"{MF} {d}, {vr(vONE)}, {vr(S(qt))}, {'0' if first else d}")
        return L
    def ex(self, qt, i): return f"v_exp_f32 v{S(qt)+i}, v{S(qt)+i}"
    def cv(self, qt, i): return f"v_cvt_pk_bf16_f32 v{S(qt)+i}, v{S(qt)+2*i}, v{S(qt)+2*i+1}"

    def stage(self, u, first=False, tail=[]):
        p = u & 1; pol = self.o.get("pol", "nt")
        mf = self.pv(0, p, first) + self.qk(0, p) + self.pv(1, p, first) + self.qk(1, p) + self.pv(2, p, first) + self.qk(2, p)
        f = {i: [] for i in range(51)}
        kr = self.kreads(u, 1 - p); vrd = self.vreads(u, 1 - p)
        for seg, qt in enumerate((2, 0, 1)):
            b = 17 * seg
            for i in range(8): f[b + 2 * i].append(self.ex(qt, i))
        ki = iter(kr); vi = iter(vrd)
        for seg in range(2):
            for g in (3, 7, 11, 15): f[17 * seg + g].append(next(ki))
        for g in (18, 22, 26, 30, 33, 35, 39):
            f[g] += [next(vi), next(vi)]
        for g in (37, 41): f[g].append(next(vi))
        for seg, qt in enumerate((2, 0, 1)):
            for i in range(4): f[17 * seg + 4 * i + 3].append(self.cv(qt, i))
        f[1] += [self.dma(vDK, sK, sOFF, 0, pol), self.dma(vDK + 1, sK, sOFF, 1024, pol)]
        f[5] += [self.dma(vDK + 2, sK, sOFF, 2048, pol), f"s_mov_b32 m0, s{sMV+u}"]
        f[9] += [self.dma(vDV, sV, sOFF, 0, pol), self.dma(vDV + 1, sV, sOFF, 1024, pol)]
        f[13] += [self.dma(vDV + 2, sV, sOFF, 2048, pol), f"s_add_u32 s{sOFF}, s{sOFF}, 8192"]
        f[43].append(f"s_mov_b32 m0, s{sMK+(u+1)%6}")
        f[47] += tail
        self.weave(mf, f)

    def bar(self, n=24):
        self.a(f"s_waitcnt vmcnt({n}) lgkmcnt(0)")
        self.a("s_barrier")

    def xmax(self, v, t):
        self.a(f"""v_mov_b32 v{t}, v{v}
        s_nop 1
        v_permlane16_swap_b32 v{v}, v{t}
        v_max_f32 v{v}, v{v}, v{t}
        v_mov_b32 v{t}, v{v}
        s_nop 1
        v_permlane32_swap_b32 v{v}, v{t}
        v_max_f32 v{v}, v{v}, v{t}""")

    def stage0(self):
        a = self.a
        L, _ = self.kv_ops(0)
        mf = self.qk(0, 0, True) + self.qk(1, 0, True) + self.qk(2, 0, True)
        items = L + self.kreads(0, 1) + self.vreads(0, 1)
        f = {}
        k = 0
        for g in range(24):
            n = 2 if g < len(items) - 24 else 1
            f[g] = items[k:k + n]; k += n
        assert k >= len(items)
        self.weave(mf, f)
        a(f"s_mov_b32 m0, s{sMK+1}")
        a("s_nop 6")
        for qt in range(3):
            s = S(qt); m = 59 + qt
            a(f"""v_max3_f32 v{m}, v{s}, v{s+1}, v{vMS+qt}
            v_max3_f32 v{m}, v{s+2}, v{s+3}, v{m}
            v_max3_f32 v{m}, v{s+4}, v{s+5}, v{m}
            v_max3_f32 v{m}, v{s+6}, v{s+7}, v{m}""")
            self.xmax(m, 62)
            for i in range(4): a(f"v_sub_f32 v{vNM+4*qt+i}, 0, v{m}")
            for i in range(8): a(f"v_sub_f32 v{s+i}, v{s+i}, v{m}")
        for qt in range(2):
            for i in range(8): a(self.ex(qt, i))
            a("s_nop 0")
            for i in range(4): a(self.cv(qt, i))

    def final(self):
        a = self.a
        a("s_waitcnt lgkmcnt(0)")
        mf = self.pv(0, 0) + self.pv(1, 0) + self.pv(2, 0)
        f = {i: [] for i in range(27)}
        for i in range(8): f[i].append(self.ex(2, i))
        for i in range(4): f[9 + i].append(self.cv(2, i))
        self.weave(mf, f)
        a("s_nop 7")
        a(f"""s_mov_b32 s{sT0}, {THR:#x}
        v_add_f32 v60, v{vL}, v{vL+4}
        v_add_f32 v60, v60, v{vL+8}
        v_cmp_nge_f32 vcc, s{sT0}, v60
        s_cmp_lg_u32 s{sREDO}, 0
        s_cbranch_scc1 LA_noflag
        s_nop 3
        s_cmp_eq_u64 vcc, 0
        s_cbranch_scc1 LA_noflag
        v_mov_b32 v7, 1
        v_mov_b32 v8, {FLAG}
        ds_write_b32 v8, v7
LA_noflag:""")
        a(f"s_mul_i32 s{sT0}, s{sIT}, 36864")
        a(f"s_mul_i32 s{sT1}, s{sWAVE}, 12288")
        a(f"s_add_u32 s{sT0}, s{sT0}, s{sT1}")
        n = 0
        for qt in range(3):
            a(f"v_rcp_f32 v60, v{vL+4*qt}")
            a("s_nop 0")
            a("v_mov_b32 v61, v60")
            for ks in range(4):
                b = Oa(qt, 2 * ks); t = vTMP + 4 * (n % 4); n += 1
                for i in range(4): a(f"v_pk_mul_f32 v[{b+2*i}:{b+2*i+1}], v[{b+2*i}:{b+2*i+1}], v[60:61]")
                for i in range(4): a(f"v_cvt_pk_bf16_f32 v{t+i}, v{b+2*i}, v{b+2*i+1}")
                a(f"buffer_store_dwordx4 {vr(t)}, v{vL16}, {sr(sO)}, s{sT0} offen offset:{ks*1024}")
            a(f"s_add_u32 s{sT0}, s{sT0}, 4096")

    def flagcheck(self, lab):
        self.a(f"""s_waitcnt lgkmcnt(0)
        s_barrier
        v_mov_b32 v8, {FLAG}
        ds_read_b32 v7, v8
        s_waitcnt lgkmcnt(0)
        v_readfirstlane_b32 s{sT0}, v7
        s_cmp_lg_u32 s{sT0}, 0
        s_cbranch_scc1 {lab}""")

    def qload(self):
        a = self.a
        a(f"s_mul_i32 s{sT0}, s{sWAVE}, 12288")
        a(f"s_add_u32 s{sT0}, s{sT0}, {HAND}")
        a(f"v_add_u32 v9, s{sT0}, v{vL16}")
        for qt in range(3):
            for ks in range(4):
                a(f"ds_read_b128 {ar(Qf(qt,ks))}, v9 offset:{(qt*4+ks)*1024}")

    def attention(self):
        a = self.a
        for i in range(3):
            a(f"s_mul_i32 s{sT0}, s{sWAVE}, 49152")
            a(f"s_add_u32 s{sT0}, s{sT0}, {i*15360}")
            a(f"v_add_u32 v{vDX+i}, s{sT0}, v62")
        self.q0("attn")
        self.qload()
        a("LA_kfirst:")
        for x in self.kreads(5, 0): a(x)
        a("LA_item:")
        self.bar(24)
        self.stage0()
        self.bar(24)
        self.stage(1, first=True, tail=[f"s_mov_b32 s{sCNT}, 0"])
        a(".p2align 3\nLA_loop:")
        for u in (2, 3, 4, 5, 0, 1):
            self.bar(24)
            self.stage(u, tail=[f"s_add_u32 s{sCNT}, s{sCNT}, 1", f"s_cmp_lt_u32 s{sCNT}, 5"] if u == 1 else [])
        a("s_cbranch_scc1 LA_loop")
        self.final()
        self.flagcheck("LA_redo")
        self.stamp(4, "attn")
        a(f"""s_add_u32 s{sIT}, s{sIT}, 1
        s_cmp_eq_u32 s{sIT}, 2
        s_cbranch_scc1 LA_done""")
        self.stamp(3, "attn")
        self.qload()
        self.tables()
        a(f"""s_mov_b32 s{sREDO}, 0
        v_mov_b32 v{vMS}, 0xff800000
        v_mov_b32 v{vMS+1}, 0xff800000
        v_mov_b32 v{vMS+2}, 0xff800000
        s_branch LA_item""")
        a(f"""LA_redo:
        s_waitcnt vmcnt(0)
        s_barrier
        v_mov_b32 v7, 0
        v_mov_b32 v8, {FLAG}
        ds_write_b32 v8, v7
        v_subrev_u32 v2, 8192, v{vDK}
        v_subrev_u32 v3, 8192, v{vDK+1}
        v_subrev_u32 v4, 8192, v{vDK+2}
        s_lshl_b32 s{sOFF}, s{sIT}, 18
        s_mov_b32 s{sCNT}, 0
        s_mov_b32 s{sREDO}, 1
LA_mloop:
        s_mov_b32 m0, s{sMK}
        s_nop 0""")
        for i in range(3): a(self.dma(2 + i, sK, sOFF, i * 1024))
        a("s_waitcnt vmcnt(0)\ns_barrier")
        for x in self.kreads(5, 0): a(x)
        a("s_waitcnt lgkmcnt(0)\ns_barrier")
        for x in self.qk(0, 0, True) + self.qk(1, 0, True) + self.qk(2, 0, True): a(x)
        a("s_nop 7")
        for qt in range(3):
            s = S(qt); m = vMS + qt
            for i in range(4): a(f"v_max3_f32 v{m}, v{s+2*i}, v{s+2*i+1}, v{m}")
        a(f"""s_add_u32 s{sOFF}, s{sOFF}, 8192
        s_add_u32 s{sCNT}, s{sCNT}, 1
        s_cmp_lt_u32 s{sCNT}, 32
        s_cbranch_scc1 LA_mloop
        s_lshl_b32 s{sOFF}, s{sIT}, 18
        s_sub_u32 s{sOFF}, s{sOFF}, 8192""")
        for r in range(6):
            L, _ = self.kv_ops(r, first=(r == 0))
            for x in L: a(x)
        a("s_waitcnt vmcnt(30) lgkmcnt(0)\ns_barrier\ns_branch LA_kfirst")
        a("LA_done:")
        self.dump_stamps(0)
        a("s_endpgm")

    def dump_stamps(self, off):
        if not self.o.get("stamps"): return
        a = self.a
        a(f"""s_memrealtime s[{sSTAMP+10}:{sSTAMP+11}]
        s_waitcnt lgkmcnt(0)
        s_mov_b32 s{sO}, s18
        s_and_b32 s{sO+1}, s19, 0xffff
        s_mov_b32 s{sO+2}, 536870912
        s_lshl_b32 s{sT0}, s2, 8
        s_lshl_b32 s{sT1}, s{sWAVE}, 6
        s_add_u32 s{sT0}, s{sT0}, s{sT1}
        s_add_u32 s{sT0}, s{sT0}, {256<<20}
        v_mov_b32 v5, 0""")
        for i in range(12): a(f"v_mov_b32 v{16+i}, s{sSTAMP+i}")
        a("s_mov_b64 exec, 1")
        for i in range(3): a(f"buffer_store_dwordx4 {vr(16+4*i)}, v5, {sr(sO)}, s{sT0} offen offset:{16*i}")

    def hacc(self, t, qt):
        if t < 6: return vr(vHACC + 36 * t + 4 * qt)
        return ar(aHACC + 36 * (t - 6) + 4 * qt)
    def hchunk(self):
        a = self.a
        a(f"""s_lshl_b32 s{sT0}, s{sKS}, 6
        s_xor_b32 s{sT0}, s{sT0}, s{sROTX}
        s_lshl_b32 s{sT1}, s{sKS}, 18
        s_xor_b32 s{sT1}, s{sT1}, s{sROTW}
        s_add_u32 s{sT1}, s{sT1}, 256
        s_cmp_ge_u32 s{sKS}, 16
        s_cselect_b32 s{sT0}, {OOB:#x}, s{sT0}
        s_cselect_b32 s{sT1}, {OOB:#x}, s{sT1}
        s_mov_b32 m0, s{sSL2}
        s_nop 0""")
        for gi, n in ((0, 4), (1, 4), (2, 1)):
            if gi:
                a(f"s_add_u32 m0, s{sSL2}, {gi*4096}\ns_add_u32 s{sT0}, s{sT0}, 65536")
            for i in range(n): a(self.dma(vDXh + i, sX, sT0, i * 1024))
        for h in range(2):
            a(f"s_add_u32 m0, s{sSL2}, {9216 + h*4096}")
            a(f"s_add_u32 s{sT1}, s{sT1}, {131072 if h else 0}")
            for i in range(4): a(self.dma(vDW + i, sWQ, sT1, i * 1024))
        a(f"""s_add_u32 s{sKS}, s{sKS}, 1
        s_add_u32 s{sSL2}, s{sSL2}, {SLOT}
        s_cmp_ge_u32 s{sSL2}, {9*SLOT}
        s_cselect_b32 s{sSL2}, {6*SLOT}, s{sSL2}""")

    def helper(self):
        a = self.a
        a(f"""LA_helper:
        v_lshlrev_b32 v9, 13, v3
        v_lshl_add_u32 v9, v2, 6, v9
        v_lshl_add_u32 v{vDW}, v4, 4, v9
        v_xor_b32 v63, 2, v4
        v_lshl_add_u32 v{vDW+1}, v63, 4, v9
        v_add_u32 v{vDW+2}, {2*31744}, v{vDW}
        v_add_u32 v{vDW+3}, {3*31744}, v{vDW+1}
        v_add_u32 v{vDW+1}, 31744, v{vDW+1}
        v_mov_b32 v{vDXh}, v62
        v_add_u32 v{vDXh+1}, 15360, v62
        v_add_u32 v{vDXh+2}, {2*15360}, v62
        v_add_u32 v{vDXh+3}, {3*15360}, v62
        v_mov_b32 v{vW0h}, v7
        v_mov_b32 v{vW1h}, v8
        v_mov_b32 v{vXRh}, v{vXR}
        v_mov_b32 v{vL16h}, v{vL16}""")
        self.q0("help")
        a(f"""LA_hitem:
        s_cmp_lg_u32 s{sIT}, 0
        s_cbranch_scc1 LA_hidle
        s_barrier
        s_mov_b32 s{sKS}, 0
        s_mov_b32 s{sSL2}, {6*SLOT}
        s_mov_b32 s{sSL}, {6*SLOT}
        s_mov_b32 s{sCNT}, 0""")
        self.hchunk(); self.hchunk()
        for i in range(216): a(f"v_mov_b32 v{vHACC+i}, 0")
        for i in range(72): a(f"v_accvgpr_write_b32 a{aHACC+i}, 0")
        a("s_branch LA_hentry\nLA_hloop:\ns_barrier\nLA_hentry:")
        self.hchunk()
        a(f"""v_add_u32 v{vA0}, s{sSL}, v{vXRh}
        v_add_u32 v{vA1}, s{sSL}, v{vW0h}
        v_add_u32 v{vA2}, s{sSL}, v{vW1h}
        s_add_u32 s{sSL}, s{sSL}, {SLOT}
        s_cmp_ge_u32 s{sSL}, {9*SLOT}
        s_cselect_b32 s{sSL}, {6*SLOT}, s{sSL}
        s_waitcnt vmcnt(34)""")
        for t in range(8):
            ks, u = t >> 1, t & 1
            a(f"ds_read_b64_tr_b16 {ar(aHA+4*t,2)}, v{vA1} offset:{ks*256+8*u}")
            a(f"ds_read_b64_tr_b16 {ar(aHA+4*t+2,2)}, v{vA2} offset:{ks*256+8*u}")
        for qt in range(9):
            a(f"ds_read_b128 {ar(aHB+4*qt)}, v{vA0} offset:{qt*1024}")
        a("s_waitcnt lgkmcnt(0)")
        mf = [f"{MF} {self.hacc(t,qt)}, {ar(aHA+4*t)}, {ar(aHB+4*qt)}, {self.hacc(t,qt)}" for t in range(8) for qt in range(9)]
        ne = self.o.get("hsplit", 24)
        for x in mf[:ne]: a(x)
        a("s_barrier")
        for x in mf[ne:]: a(x)
        a(f"""s_add_u32 s{sCNT}, s{sCNT}, 1
        s_cmp_lt_u32 s{sCNT}, 16
        s_cbranch_scc1 LA_hloop
        s_nop 4
        v_add_u32 v{vA0}, {HAND}, v{vL16h}
        v_mov_b32 v{vA1+1}, s{sCS}
        v_mov_b32 v{vA1+2}, s{sCS}
        s_waitcnt vmcnt(0)""")
        n = 0
        for ks in range(4):
            for qt in range(9):
                if ks < 3:
                    b0 = vHACC + 36 * (2 * ks) + 4 * qt; b1 = b0 + 36
                else:
                    b0 = vHACC + 8 * (qt % 2); b1 = b0 + 4
                    for i in range(4):
                        a(f"v_accvgpr_read_b32 v{b0+i}, a{aHACC+4*qt+i}")
                        a(f"v_accvgpr_read_b32 v{b1+i}, a{aHACC+36+4*qt+i}")
                for b in (b0, b0 + 2, b1, b1 + 2):
                    a(f"v_pk_mul_f32 v[{b}:{b+1}], v[{b}:{b+1}], v[{vA1+1}:{vA1+2}]")
                t = vHT + 4 * (n % 2); n += 1
                for i, b in enumerate((b0, b0 + 2, b1, b1 + 2)):
                    a(f"v_cvt_pk_bf16_f32 v{t+i}, v{b}, v{b+1}")
                a(f"ds_write_b128 v{vA0}, {vr(t)} offset:{(qt*4+ks)*1024}")
        a(f"""s_branch LA_hx
LA_hidle:
        s_mov_b32 s{sCNT}, 0
LA_hidl2:
        s_barrier
        s_add_u32 s{sCNT}, s{sCNT}, 1
        s_cmp_lt_u32 s{sCNT}, 32
        s_cbranch_scc1 LA_hidl2
LA_hx:""")
        self.flagcheck("LA_hredo")
        a(f"""s_add_u32 s{sIT}, s{sIT}, 1
        s_cmp_eq_u32 s{sIT}, 2
        s_cbranch_scc0 LA_hitem""")
        self.dump_stamps(0)
        a(f"""s_endpgm
LA_hredo:
        s_waitcnt vmcnt(0)
        s_mov_b32 s{sCNT}, 0
LA_hr2:
        s_barrier
        s_add_u32 s{sCNT}, s{sCNT}, 1
        s_cmp_lt_u32 s{sCNT}, 66
        s_cbranch_scc1 LA_hr2
        s_branch LA_hitem""")

    def kernelA(self):
        self.a = A()
        self.prologueA()
        self.attention()
        self.helper()
        self.a("LA_end:\ns_endpgm")
        return self.a.text()

    def kernelB(self):
        a = self.a = A()
        D = 6
        RING = 8
        sOB, sWO, sOUT = 20, 24, 28
        sW, sJ, sHALF, sB, sLB, sOo, sWo = 3, 40, 41, 42, 43, 44, 45
        vOo = 10
        vWo = 16
        vA0_, vA1_ = 20, 21
        vACC = 24
        vAF = 104
        aOF = 0
        a(f"""
        s_cmp_ge_u32 s2, 256
        s_cbranch_scc1 LB_end
        s_load_dwordx4 s[12:15], s[0:1], 32
        s_load_dwordx2 s[18:19], s[0:1], 56
        v_and_b32 v1, 63, v0
        v_lshrrev_b32 v2, 6, v0
        s_and_b32 s46, s2, 7
        v_readfirstlane_b32 s{sW}, v2
        s_lshr_b32 s47, s2, 3
        s_lshl_b32 s{sB}, s46, 1
        s_and_b32 s46, s47, 1
        s_add_u32 s{sB}, s{sB}, s46
        s_bfe_u32 s{sHALF}, s47, 0x10001
        s_lshr_b32 s{sJ}, s47, 2
        s_waitcnt lgkmcnt(0)
        s_mul_i32 s46, s{sB}, {32*36864}
        s_mul_i32 s47, s{sHALF}, 20480
        s_add_u32 s46, s46, s47
        s_add_u32 s{sOB}, s18, s46
        s_addc_u32 s{sOB+1}, s19, 0
        s_and_b32 s{sOB+1}, s{sOB+1}, 0xffff
        s_sub_u32 s{sOB+2}, {32*36864}, s47
        s_mov_b32 s{sOB+3}, 0x00020000
        s_lshl_b32 s46, s{sJ}, 7
        s_add_u32 s{sWO}, s12, s46
        s_addc_u32 s{sWO+1}, s13, 0
        s_and_b32 s{sWO+1}, s{sWO+1}, 0xffff
        s_sub_u32 s{sWO+2}, 4194304, s46
        s_mov_b32 s{sWO+3}, 0x00020000
        s_mul_i32 s47, s{sB}, 147456
        s_add_u32 s46, s46, s47
        s_mul_i32 s47, s{sHALF}, 81920
        s_add_u32 s46, s46, s47
        s_add_u32 s{sOUT}, s14, s46
        s_addc_u32 s{sOUT+1}, s15, 0
        s_and_b32 s{sOUT+1}, s{sOUT+1}, 0xffff
        s_mov_b32 s47, {63*1024+128}
        s_cmp_eq_u32 s{sHALF}, 0
        s_cselect_b32 s{sOUT+2}, {79*1024+128}, s47
        s_mov_b32 s{sOUT+3}, 0x00020000
        v_lshlrev_b32 v{vOo}, 4, v1
        v_add_u32 v{vOo+1}, 4096, v{vOo}
        v_add_u32 v{vOo+2}, 8192, v{vOo}
        v_add_u32 v{vOo+3}, 12288, v{vOo}
        v_add_u32 v{vOo+4}, 16384, v{vOo}
        v_mov_b32 v2, {OOB:#x}
        s_cselect_b64 vcc, 0, -1
        s_mul_i32 s{sLB}, s{sW}, 32768
        v_cndmask_b32 v{vOo+4}, v{vOo+4}, v2, vcc
        v_lshrrev_b32 v2, 5, v1
        v_bfe_u32 v3, v1, 2, 3
        v_and_b32 v4, 3, v1
        v_bfe_u32 v5, v1, 4, 1
        v_lshlrev_b32 v5, 1, v5
        v_xor_b32 v5, v5, v4
        v_lshlrev_b32 v6, 10, v3
        v_lshl_add_u32 v6, v2, 6, v6
        v_lshl_add_u32 v{vWo}, v5, 4, v6
        v_add_u32 v{vWo+1}, 7168, v{vWo}
        v_add_u32 v{vWo+2}, {2*7168}, v{vWo}
        v_add_u32 v{vWo+3}, {3*7168}, v{vWo}
        v_lshrrev_b32 v2, 4, v1
        v_bfe_u32 v3, v1, 2, 2
        v_and_b32 v5, 1, v2
        v_lshrrev_b32 v6, 1, v2
        v_lshlrev_b32 v6, 10, v6
        v_lshl_add_u32 v6, v5, 8, v6
        v_lshl_add_u32 v6, v3, 6, v6
        v_lshl_add_u32 v6, v4, 3, v6
        v_add_u32 v6, s{sLB}, v6
        v_lshl_add_u32 v{vA0_}, v5, 5, v6
        v_xor_b32 v5, 1, v5
        v_lshl_add_u32 v{vA1_}, v5, 5, v6
        s_lshl_b32 s48, s{sW}, 3
        """)
        def issue(n):
            i, ks = n >> 2, n & 3
            L = []
            if ks == 0:
                L += [f"s_add_u32 s46, s{sJ}, {i}", "s_and_b32 s46, s46, 7", "s_add_u32 s46, s46, s48",
                      f"s_mul_i32 s{sOo}, s46, 36864", f"s_lshl_b32 s{sWo}, s46, 17"]
            L += [f"s_add_u32 m0, s{sLB}, {(n % RING)*4096}", f"s_add_u32 s47, s{sWo}, {ks*32768}"]
            L += [f"buffer_load_dwordx4 v{vWo+j}, {sr(sWO)}, s47 offen offset:{j*1024} lds" for j in range(4)]
            L += [f"buffer_load_dwordx4 {ar(aOF+20*(n%RING)+4*qt)}, v{vOo+qt}, {sr(sOB)}, s{sOo} offen offset:{ks*1024}" for qt in range(5)]
            return L
        def areads(n):
            L = []
            for nt in range(4):
                for h in range(2):
                    L.append(f"ds_read_b64_tr_b16 {vr(vAF+16*(n&1)+4*nt+2*h,2)}, v{vA0_ if nt%2==0 else vA1_} offset:{(n%RING)*4096+h*2048+(nt>>1)*512}")
            return L
        for n in range(D):
            for x in issue(n): a(x)
        a(f"s_waitcnt vmcnt({9*(D-1)+5})")
        for x in areads(0): a(x)
        for n in range(32):
            rem = min(D - 1, 31 - n)
            if n + 1 < 32:
                cnt = 9 * (rem - 1) + 5
            else:
                cnt = 0
            a(f"s_waitcnt vmcnt({cnt}) lgkmcnt(0)")
            mf = []
            for qt in range(5):
                for nt in range(4):
                    d = vr(vACC + 16 * qt + 4 * nt)
                    mf.append(f"{MF} {d}, {vr(vAF+16*(n&1)+4*nt)}, {ar(aOF+20*(n%RING)+4*qt)}, {'0' if n == 0 else d}")
            items = (areads(n + 1) if n + 1 < 32 else []) + (issue(n + D) if n + D < 32 else [])
            f = {}; k = 0
            for g in range(20):
                m = 2 if len(items) - k > 20 - g else 1
                f[g] = items[k:k + m]; k += m
            assert k >= len(items)
            self.weave(mf, f)
        PW = 80 * 272
        a(f"""s_barrier
        v_and_b32 v2, 15, v1
        v_lshrrev_b32 v3, 4, v1
        v_mul_u32_u24 v2, 272, v2
        v_lshl_add_u32 v2, v3, 4, v2
        s_mul_i32 s46, s{sW}, {PW}
        v_add_u32 v2, s46, v2
        s_nop 2""")
        for qt in range(5):
            for nt in range(4):
                a(f"ds_write_b128 v2, {vr(vACC+16*qt+4*nt)} offset:{qt*16*272+nt*64}")
        a(f"""s_waitcnt lgkmcnt(0)
        s_barrier
        v_lshrrev_b32 v2, 3, v0
        v_and_b32 v3, 7, v0
        v_mul_u32_u24 v4, 272, v2
        v_lshl_add_u32 v4, v3, 5, v4
        v_add_u32 v5, {2*PW}, v4
        v_lshlrev_b32 v6, 10, v2
        v_lshl_add_u32 v6, v3, 4, v6""")
        for i in range(3):
            for w in range(4):
                for h in range(2):
                    a(f"ds_read_b128 {vr(vACC+32*i+8*w+4*h)}, v{4+(w>>1)} offset:{(w&1)*PW+i*32*272+h*16}")
        for i in range(3):
            a(f"s_waitcnt lgkmcnt({min(15, 8*(2-i))})")
            b = vACC + 32 * i
            for e in range(0, 8, 2):
                a(f"v_pk_add_f32 v[{b+e}:{b+e+1}], v[{b+e}:{b+e+1}], v[{b+8+e}:{b+9+e}]")
                a(f"v_pk_add_f32 v[{b+16+e}:{b+17+e}], v[{b+16+e}:{b+17+e}], v[{b+24+e}:{b+25+e}]")
            for e in range(0, 8, 2):
                a(f"v_pk_add_f32 v[{b+e}:{b+e+1}], v[{b+e}:{b+e+1}], v[{b+16+e}:{b+17+e}]")
            for e in range(4):
                a(f"v_cvt_pk_bf16_f32 v{b+e}, v{b+2*e}, v{b+2*e+1}")
            a(f"s_mov_b32 s46, {i*32768}")
            a(f"buffer_store_dwordx4 {vr(b)}, v6, {sr(sOUT)}, s46 offen")
        a("LB_end:\ns_endpgm")
        return a.text()

def build(opt):
    g = Gen(opt)
    ta = g.kernelA(); tb = g.kernelB()
    src = open("standalone__gqa_block_cached__near_ridge.s.ref").read().split("; Override launch")[0]
    launches = [(KA, 256, 256, LDSA), (KB, 256, 256, 131072)]
    if opt.get("only_a"): launches = launches[:1]
    txt = src + header(launches) + kstart(KA) + ta + kstart(KB) + tb + rodata([kdesc(KA, 256, 256), kdesc(KB, 256, 160)])
    return txt

if __name__ == "__main__":
    opt = {}
    out = sys.argv[1]
    for x in sys.argv[2:]:
        k, _, v = x.partition("=")
        opt[k] = int(v) if v.lstrip("-").isdigit() else (v if v else True)
    t = build(opt)
    open(out, "w").write(t)
    print("hazards:", hazard.check(t), "bytes:", len(t))
```

```python
import sys, struct
from asmlib import *
import hazard

SLOT = 16384
CH = 17408
STG = 6 * SLOT
QPOS = [STG, STG + CH, STG + 2 * CH, 49152, 49152 + CH]
HAND0 = 49152
HAND1 = STG
FLAG = 163836
LDS = 163840
FLG_OFF = 32 << 20
CSC = struct.unpack("<I", struct.pack("<f", 1.4426950408889634 * 128 ** -0.5))[0]
THR = 0x4b800000
OOB = 0x80000000
NS = 9
SPIN = 1 << 20
MF = "v_mfma_f32_16x16x32_bf16"

def vr(b, n=4): return f"v[{b}:{b+n-1}]"
def ar(b, n=4): return f"a[{b}:{b+n-1}]"
def sr(b, n=4): return f"s[{b}:{b+n-1}]"

sWAVE = 3
sX, sK, sV, sWQ, sO, sOB, sWO, sOUT, sFL, sDB = 20, 24, 28, 32, 36, 40, 44, 48, 52, 56
(sOFF, sIT, sCNT, sREDO, sROT, sT0, sT1, sT2, sT3, sCS, sSL, sKS, sFP, sFC, sRS, sRT, sM, sLB, sSO, sSW, sHALF, sT4) = range(60, 82)
sSTAMP = 84
vOo, vWo, vTA0, vTA1 = 4, 9, 13, 14
vS, vNM, vONE, vMS = 16, 40, 52, 56
vRK, vRV0, vRV1 = 64, 70, 76
vRKb, vRV0b, vRV1b = 82, 83, 84
vDX = 85
vXR, vW0q, vW1q = 88, 90, 92
vL16 = 97
vTMP = 100
vO, vL = 128, 224
aQ, aK, aV = 0, 48, 112
vQA = 128; aXF = 48; aWF = 120
vKV = 2
vDW, vDXh, vW0h, vW1h, vXRh, vL16h, vSC = 16, 20, 24, 25, 26, 27, 28
vHACC = 32; aHACC = 0; aHF = 72; vHT = 248
vACC = 16; vOR = 96; aSO = 0; aSA = 160

def S(qt, kt=0): return vS + 8 * qt + 4 * kt
def Kf(p, kt, ks): return aK + 32 * p + 16 * kt + 4 * ks
def Vf(p, dt): return aV + 32 * p + 4 * dt
def Qf(qt, ks): return aQ + 16 * qt + 4 * ks
def Oa(qt, dt): return vO + 32 * qt + 4 * dt
def isvm(x): return x.startswith("buffer_")

class Gen:
    def __init__(self, opt):
        self.o = opt
        self.a = A()
        self.LA = opt.get("la", 2)
        self.NK = opt.get("nk", 48)
        self.S0 = opt.get("s0", 5)
        self.R = (64 - self.NK) // 4
        self.pol = opt.get("pol", "nt")
        self.osc = opt.get("osc", "sc1")
        self.rot1 = f"s{sROT}" if opt.get("rot1") else "0"
    def stamp(self, i, q0=False):
        if self.o.get("q0st") and not q0 and i in (3, 4, 5, 6): return
        if self.o.get("acct") and i >= 4: return
        if self.o.get("stamps"):
            op = "s_memtime" if self.o.get("stamps") == 2 else "s_memrealtime"
            self.a(f"{op} s[{sSTAMP+2*i}:{sSTAMP+2*i+1}]")
    def emit(self, L):
        for x in L: self.a(x)
    def weave(self, mf, fills):
        a = self.a
        for x in fills.get(-1, []): a(x)
        for i, m in enumerate(mf):
            a(m)
            for x in fills.get(i, []): a(x)
    def spread(self, mf, items):
        if not mf:
            self.emit(items); return
        n = len(mf); f = {}
        for k, x in enumerate(items):
            f.setdefault(min(n - 1, k * n // max(1, len(items))), []).append(x)
        self.weave(mf, f)
    def mksrd(self, d, lo, off, nrec):
        self.a(f"""s_add_u32 s{d}, s{lo}, {off}
        s_addc_u32 s{d+1}, s{lo+1}, 0
        s_and_b32 s{d+1}, s{d+1}, 0xffff
        s_mov_b32 s{d+2}, {nrec}
        s_mov_b32 s{d+3}, 0x00020000""")
    def dma(self, v, srd, soff, imm, pol=""):
        return f"buffer_load_dwordx4 v{v}, {sr(srd)}, s{soff} offen offset:{imm} {pol} lds".replace("  ", " ")

    def prologue(self):
        a = self.a
        a(f"""
        s_cmp_ge_u32 s2, 256
        s_cbranch_scc1 L_end
        s_load_dwordx16 s[4:19], s[0:1], 0
        """)
        self.stamp(0)
        a(f"""
        v_and_b32 v1, 63, v0
        v_lshrrev_b32 v2, 6, v0
        s_and_b32 s{sT0}, s2, 7
        v_readfirstlane_b32 s{sWAVE}, v2
        s_lshr_b32 s{sT1}, s2, 3
        s_and_b32 s{sT2}, s{sT0}, 1
        s_lshl_b32 s{sT2}, s{sT2}, 3
        s_and_b32 s{sT3}, s{sT1}, 7
        s_add_u32 s{sT2}, s{sT2}, s{sT3}          ; b
        s_lshl_b32 s{sROT}, s{sT3}, 1
        s_lshr_b32 s{sT3}, s{sT1}, 3
        s_lshl_b32 s{sT4}, s{sT3}, 2
        s_add_u32 s{sROT}, s{sROT}, s{sT4}
        s_lshr_b32 s{sT0}, s{sT0}, 1
        s_lshl_b32 s{sT0}, s{sT0}, 2
        s_add_u32 s{sT0}, s{sT0}, s{sT3}          ; hp
        s_lshl_b32 s{sT1}, s{sT2}, 4
        s_add_u32 s{sT1}, s{sT1}, s{sT0}          ; b*16+hp
        s_lshl_b32 s{sFP}, s{sT2}, 8
        s_lshl_b32 s{sT3}, s{sT0}, 2
        s_add_u32 s{sFP}, s{sFP}, s{sT3}
        s_mov_b32 s{sCS}, {CSC:#x}
        v_lshrrev_b32 v2, 4, v1
        v_bfe_u32 v3, v1, 2, 2
        v_and_b32 v4, 3, v1
        v_and_b32 v5, 15, v1
        v_lshrrev_b32 v62, 2, v1
        v_lshlrev_b32 v62, 10, v62
        v_and_b32 v63, 1, v2
        v_lshlrev_b32 v63, 1, v63
        v_xor_b32 v63, v63, v4
        v_lshl_add_u32 v62, v63, 4, v62
        s_mul_i32 s{sT3}, s{sT2}, 147456
        s_waitcnt lgkmcnt(0)""")
        self.mksrd(sX, 4, f"s{sT3}", 147456)
        a(f"s_lshl_b32 s{sT3}, s{sT0}, 9")
        self.mksrd(sWQ, 10, f"s{sT3}", 4194304 - 7680)
        a(f"""s_mov_b32 s{sIT}, 0
        s_mov_b32 s{sREDO}, 0
        s_cmp_eq_u32 s{sWAVE}, 3
        s_cbranch_scc1 L_helper""")

    def setup2(self):
        a = self.a
        a(f"s_lshl_b32 s{sT3}, s{sT1}, 19")
        self.mksrd(sK, 6, f"s{sT3}", 524288)
        self.mksrd(sV, 8, f"s{sT3}", 524288)
        a(f"s_mul_i32 s{sT3}, s{sT1}, 73728")
        self.mksrd(sO, 18, f"s{sT3}", 73728)
        self.mksrd(sFL, 18, FLG_OFF, 8192)
        self.mksrd(sDB, 16, 0, 256)
        a(f"""s_and_b32 s{sT2}, s2, 7
        s_lshl_b32 s{sT2}, s{sT2}, 1
        s_bfe_u32 s{sT3}, s2, 0x10003
        s_add_u32 s{sT2}, s{sT2}, s{sT3}          ; b'
        s_bfe_u32 s{sHALF}, s2, 0x10004
        s_lshl_b32 s{sT3}, s{sT3}, 1
        s_add_u32 s{sT3}, s{sT3}, s{sHALF}        ; q = 2*(b'&1)+half
        s_lshr_b32 s{sT4}, s2, 5                  ; j
        s_lshl_b32 s{sRS}, s{sT4}, 3
        s_lshl_b32 s{sRT}, s{sT3}, 1
        s_add_u32 s{sRS}, s{sRS}, s{sRT}
        s_lshl_b32 s{sRT}, s{sRT}, 1
        s_lshl_b32 s{sT3}, s{sT4}, 1
        s_add_u32 s{sRT}, s{sRT}, s{sT3}
        {"" if self.o.get("rots") else f"s_mov_b32 s{sRS}, 0"}
        {"" if self.o.get("rott", 1) else f"s_mov_b32 s{sRT}, 0"}
        s_lshl_b32 s{sFC}, s{sT2}, 8
        s_mul_i32 s{sT3}, s{sT2}, {32*36864}
        s_mul_i32 s{sM}, s{sHALF}, 20480
        s_add_u32 s{sT3}, s{sT3}, s{sM}""")
        self.mksrd(sOB, 18, f"s{sT3}", 32 * 36864)
        a(f"""s_sub_u32 s{sOB+2}, s{sOB+2}, s{sM}
        s_lshl_b32 s{sT4}, s{sT4}, 7""")
        self.mksrd(sWO, 12, f"s{sT4}", 4194304 - 896)
        a(f"""s_mul_i32 s{sT3}, s{sT2}, 147456
        s_add_u32 s{sT3}, s{sT3}, s{sT4}
        s_mul_i32 s{sM}, s{sHALF}, 81920
        s_add_u32 s{sT3}, s{sT3}, s{sM}""")
        self.mksrd(sOUT, 14, f"s{sT3}", 79 * 1024 + 128)
        a(f"""s_lshl_b32 s{sM}, s{sHALF}, 14
        s_sub_u32 s{sOUT+2}, s{sOUT+2}, s{sM}
        s_mul_i32 s{sLB}, s{sWAVE}, 40960
        v_lshlrev_b32 v{vL16}, 4, v1
        ; v6 = (g ^ 2(r&1))*16
        v_and_b32 v6, 1, v3
        v_lshlrev_b32 v6, 1, v6
        v_xor_b32 v6, v6, v2
        v_lshlrev_b32 v6, 4, v6
        v_lshl_add_u32 v60, v5, 6, v6
        v_add_u32 v{vXR}, {STG}, v60
        v_add_u32 v{vXR+1}, 49152, v60
        v_lshlrev_b32 v7, 11, v2
        v_lshl_add_u32 v7, v3, 6, v7
        v_add_u32 v7, {9216+STG}, v7
        v_xor_b32 v9, 2, v4
        v_lshl_add_u32 v8, v9, 4, v7
        v_add_u32 v8, 1024, v8
        v_lshl_add_u32 v7, v4, 4, v7
        s_lshl_b32 s{sT3}, s{sWAVE}, 8
        v_add_u32 v{vW0q}, s{sT3}, v7
        v_add_u32 v{vW1q}, s{sT3}, v8
        v_subrev_u32 v{vW0q+1}, {STG-49152}, v{vW0q}
        v_subrev_u32 v{vW1q+1}, {STG-49152}, v{vW1q}""")

    def oproj_regs(self, base):
        self.a(f"""
        v_lshlrev_b32 v{vOo}, 4, v1
        v_add_u32 v{vOo+1}, 4096, v{vOo}
        v_add_u32 v{vOo+2}, 8192, v{vOo}
        v_add_u32 v{vOo+3}, 12288, v{vOo}
        s_lshl_b32 s{sT3}, s{sHALF}, 31
        s_add_u32 s{sT3}, s{sT3}, 16384
        v_add_u32 v{vOo+4}, s{sT3}, v{vOo}
        v_lshrrev_b32 v59, 5, v1
        v_bfe_u32 v60, v1, 2, 3
        v_and_b32 v61, 3, v1
        v_bfe_u32 v62, v1, 4, 1
        v_lshlrev_b32 v63, 1, v62
        v_xor_b32 v63, v63, v61
        v_lshlrev_b32 v60, 10, v60
        v_lshl_add_u32 v60, v59, 6, v60
        v_lshl_add_u32 v{vWo}, v63, 4, v60
        v_add_u32 v{vWo+1}, 7168, v{vWo}
        v_add_u32 v{vWo+2}, {2*7168}, v{vWo}
        v_add_u32 v{vWo+3}, {3*7168}, v{vWo}
        v_bfe_u32 v60, v1, 2, 2
        v_lshlrev_b32 v59, 10, v59
        v_lshl_add_u32 v59, v62, 8, v59
        v_lshl_add_u32 v59, v60, 6, v59
        v_lshl_add_u32 v59, v61, 3, v59
        v_add_u32 v59, {base}, v59
        v_lshl_add_u32 v{vTA0}, v62, 5, v59
        v_xor_b32 v62, 1, v62
        v_lshl_add_u32 v{vTA1}, v62, 5, v59""")

    def ks_ops(self, c, tx, tw):
        L = [f"s_add_u32 s{sT4}, s{sROT}, {c}", f"s_and_b32 s{sT4}, s{sT4}, 15"]
        if tx is not None: L.append(f"s_lshl_b32 s{tx}, s{sT4}, 6")
        if tw is not None: L.append(f"s_lshl_b32 s{tw}, s{sT4}, 18")
        if self.o.get("q0oob"): L.append(f"s_mov_b32 s{sT0}, {OOB:#x}")
        return L
    def q0chunk(self, c, role):
        pos = QPOS[(c + 2) % 5]
        if role == "attn":
            L = self.ks_ops(c, sT0, None) + [f"s_add_u32 m0, s{sSL}, {pos}", "s_nop 0"]
            return L + [self.dma(vDX + i, sX, sT0, i * 1024, self.o.get('cpol', '')) for i in range(3)]
        L = self.ks_ops(c, None, sT0)
        for h in range(2):
            L += [f"s_mov_b32 m0, {pos + 9216 + h*4096}", f"s_add_u32 s{sT0}, s{sT0}, {131072 if h else 0}"]
            L += [self.dma(vDW + i, sWQ, sT0, i * 1024, self.o.get('cpol', '')) for i in range(4)]
        return L
    def x_groups(self, base):
        pre = [f"s_add_u32 s{sT4}, {self.rot1}, s{sKS}", f"s_and_b32 s{sT4}, s{sT4}, 15", f"s_lshl_b32 s{sT2}, s{sT4}, 6",
               f"s_cmp_ge_u32 s{sKS}, 16", f"s_cselect_b32 s{sT2}, {OOB:#x}, s{sT2}"]
        G = []
        for gi, n in ((0, 4), (1, 4), (2, 1)):
            g = (pre if gi == 0 else [f"s_add_u32 s{sT2}, s{sT2}, 65536"])
            g = g + [f"s_mov_b32 m0, {base + gi*4096}", "s_nop 0"] + [self.dma(vDXh + i, sX, sT2, i * 1024, self.o.get('xpol', '')) for i in range(n)]
            G.append(g)
        return G
    def w_groups(self, base):
        pre = [f"s_add_u32 s{sT4}, {self.rot1}, s{sKS}", f"s_and_b32 s{sT4}, s{sT4}, 15", f"s_lshl_b32 s{sT2}, s{sT4}, 18",
               f"s_add_u32 s{sT2}, s{sT2}, 256", f"s_add_u32 s{sKS}, s{sKS}, 1"]
        G = []
        for h in range(2):
            g = (pre if h == 0 else [f"s_add_u32 s{sT2}, s{sT2}, 131072"])
            g = g + [f"s_mov_b32 m0, {base + 9216 + h*4096}", "s_nop 0"] + [self.dma(vDW + i, sWQ, sT2, i * 1024, self.o.get('hpol', '')) for i in range(4)]
            G.append(g)
        return G
    def kv_groups(self, konly=False):
        G = []
        for h in range(2):
            G.append([f"s_add_u32 m0, s{sSL}, {h*4096}", f"s_add_u32 s{sT0}, s{sOFF}, {h*4096}"] +
                     [self.dma(vKV + (i & 1), sK, sT0, i * 1024, self.pol) for i in range(4)])
        if not konly:
            for h in range(2):
                G.append([f"s_add_u32 m0, s{sSL}, {8192 + h*4096}", f"s_sub_u32 s{sT0}, s{sOFF}, {8192 - h*4096}"] +
                         [self.dma(vKV + (i & 1), sV, sT0, i * 1024, self.pol) for i in range(4)])
        G[-1] = G[-1] + [f"s_add_u32 s{sOFF}, s{sOFF}, {0 if self.o.get('kvfix') else 8192}", f"s_add_u32 s{sSL}, s{sSL}, {SLOT}",
                         f"s_cmp_ge_u32 s{sSL}, {6*SLOT}", f"s_cselect_b32 s{sSL}, 0, s{sSL}"]
        return G
    def mix(self, kv, other):
        L = []; other = list(other)
        for i, g in enumerate(kv):
            take = -(-len(other) // (len(kv) - i))
            if i == 0 and len(kv) > 1: take = min(take, 0) if len(other) < len(kv) else take
            for _ in range(take): L += other.pop(0)
            L += g
        assert not other
        return L
    def flat(self, G): return [x for g in G for x in g]

    def q0(self, role):
        a = self.a
        q = []
        def push(L, tag): q.extend([tag] * sum(map(isvm, L)))
        def after(tag):
            idx = max(i for i, t in enumerate(q) if t == tag)
            return min(63, len(q) - 1 - idx)
        for c in range(4):
            L = self.q0chunk(c, role); self.emit(L); push(L, ("c", c))
            if c == 2:
                self.setup2()
                if role == "attn": self.attn_setup(); push(["buffer_"] * 2, "z")
                else: self.help_setup()
        def reads(c):
            pi = (c + 2) % 5; grp = 0 if pi < 3 else 1; o = QPOS[pi] - (STG if grp == 0 else 49152); p = c & 1
            L = []
            for u in range(2):
                L.append(f"ds_read_b64_tr_b16 {ar(aWF+8*p+4*u,2)}, v{vW0q+grp} offset:{o+8*u}")
                L.append(f"ds_read_b64_tr_b16 {ar(aWF+8*p+4*u+2,2)}, v{vW1q+grp} offset:{o+8*u}")
            for qt in range(9):
                L.append(f"ds_read_b128 {ar(aXF+36*p+4*qt)}, v{vXR+grp} offset:{o+qt*1024}")
            return L
        def mfmas(c):
            p = c & 1; L = []
            for qt in range(9):
                for u in range(2):
                    d = vr(vQA + 8 * qt + 4 * u)
                    L.append(f"{MF} {d}, {ar(aWF+8*p+4*u)}, {ar(aXF+36*p+4*qt)}, {'0' if c == 0 else d}")
            return L
        for c in range(16):
            a(f"s_waitcnt vmcnt({after(('c', c))}) lgkmcnt(0)")
            a("s_barrier")
            if c == 0: self.stamp(1)
            if self.o.get("q0st") and c in (4, 8, 12, 15): self.stamp({4: 3, 8: 4, 12: 5, 15: 6}[c], True)
            extra = []
            if c + 4 <= 15:
                L = self.q0chunk(c + 4, role); extra += L; push(L, ("c", c + 4))
            if role == "help":
                if 11 <= c <= 13:
                    L = self.flat(self.kv_groups(konly=(c == 11))); extra += L; push(L, ("b", c - 11))
                if c >= 14:
                    L = self.flat(self.x_groups(QPOS[c - 14]) + self.w_groups(QPOS[c - 14])); extra += L; push(L, ("h", c - 14))
            self.spread(mfmas(c - 1) if c else [], reads(c) + extra)
        a("s_waitcnt lgkmcnt(0)")
        self.emit(mfmas(15))
        a(f"""s_lshl_b32 s{sT0}, s{sWAVE}, 10
        s_add_u32 s{sT0}, s{sT0}, {HAND0}
        v_add_u32 v15, s{sT0}, v{vL16}
        s_nop 4""")
        for qt in range(9):
            b = vQA + 8 * qt
            for i in range(8): a(f"v_mul_f32 v{b+i}, s{sCS}, v{b+i}")
            for i in range(4): a(f"v_cvt_pk_bf16_f32 v{b+i}, v{b+2*i}, v{b+2*i+1}")
            a(f"ds_write_b128 v15, {vr(b)} offset:{qt*4096}")
        if role == "attn":
            a(f"""s_waitcnt vmcnt(0)
            s_cmp_lg_u32 s{sWAVE}, 0
            s_cbranch_scc1 L_noinit
            v_mov_b32 v2, 1
            v_mov_b32 v3, 0
            s_mov_b64 exec, 1
            buffer_atomic_add v2, v3, {sr(sDB)}, 0 offen sc1
            s_mov_b64 exec, -1
L_noinit:
            s_waitcnt lgkmcnt(0)""")
        else:
            a(f"s_waitcnt vmcnt({after(('b', 0))}) lgkmcnt(0)")
        a("s_barrier")
        self.stamp(2)
        return q

    def tables(self):
        a = self.a
        a(f"s_lshl_b32 s{sT0}, s{sIT}, 1")
        for k in range(6):
            a(f"""s_add_u32 s{sT1}, s{sT0}, {k}
            s_cmp_ge_u32 s{sT1}, 6
            s_cselect_b32 s{sT2}, 6, 0
            s_sub_u32 s{sT1}, s{sT1}, s{sT2}
            s_lshl_b32 s{sT1}, s{sT1}, 14
            v_add_u32 v{vRK+(k+5)%6}, s{sT1}, v{vRKb}
            v_add_u32 v{vRV0+(k+5)%6}, s{sT1}, v{vRV0b}
            v_add_u32 v{vRV1+(k+5)%6}, s{sT1}, v{vRV1b}""")

    def attn_setup(self):
        a = self.a
        a(f"""
        v_lshl_add_u32 v{vRKb}, v3, 10, v6
        v_lshl_add_u32 v{vRKb}, v4, 6, v{vRKb}
        v_lshlrev_b32 v7, 10, v2
        v_lshl_add_u32 v7, v3, 6, v7
        v_lshl_add_u32 v7, v4, 3, v7
        v_add_u32 v7, 8192, v7
        v_and_b32 v8, 1, v2
        v_lshl_add_u32 v{vRV0b}, v8, 5, v7
        v_xor_b32 v8, 1, v8
        v_lshl_add_u32 v{vRV1b}, v8, 5, v7
        v_mov_b32 v{vONE}, 0x3f803f80
        v_mov_b32 v{vONE+1}, 0x3f803f80
        v_mov_b32 v{vONE+2}, 0x3f803f80
        v_mov_b32 v{vONE+3}, 0x3f803f80
        v_mov_b32 v{vMS}, 0xff800000
        v_mov_b32 v{vMS+1}, 0xff800000
        v_mov_b32 v{vMS+2}, 0xff800000
        v_mov_b32 v2, 0
        v_mov_b32 v3, {FLAG}
        ds_write_b32 v3, v2
        s_add_u32 s{sT2}, s{sFP}, 4096
        s_mov_b64 exec, 1
        buffer_store_dword v2, v2, {sr(sFL)}, s{sFP} offen sc1
        buffer_store_dword v2, v2, {sr(sFL)}, s{sT2} offen sc1
        s_mov_b64 exec, -1
        """)
        self.tables()
        self.oproj_regs(f"s{sLB}")

    def kreads(self, u, p):
        return [f"ds_read_b128 {ar(Kf(p,kt,ks))}, v{vRK+u} offset:{kt*4096+ks*256}" for kt in range(2) for ks in range(4)]
    def vreads(self, u, p):
        return [f"ds_read_b64_tr_b16 {ar(Vf(p,dt)+2*h,2)}, v{(vRV0 if dt%2==0 else vRV1)+u} offset:{(dt>>1)*256+h*4096}"
                for dt in range(8) for h in range(2)]
    def qk(self, qt, p, raw=False):
        L = []
        for kt in range(2):
            for ks in range(4):
                d = vr(S(qt, kt))
                c = d if ks else ("0" if raw else vr(vNM + 4 * qt))
                L.append(f"{MF} {d}, {ar(Kf(p,kt,ks))}, {ar(Qf(qt,ks))}, {c}")
        return L
    def pv(self, qt, p, first=False):
        L = []
        for dt in range(8):
            d = vr(Oa(qt, dt))
            L.append(f"{MF} {d}, {ar(Vf(p,dt))}, {vr(S(qt))}, {'0' if first else d}")
        d = vr(vL + 4 * qt)
        L.append(f"{MF} {d}, {vr(vONE)}, {vr(S(qt))}, {'0' if first else d}")
        return L
    def ex(self, qt, i): return f"v_exp_f32 v{S(qt)+i}, v{S(qt)+i}"
    def cv(self, qt, i): return f"v_cvt_pk_bf16_f32 v{S(qt)+i}, v{S(qt)+2*i}, v{S(qt)+2*i+1}"

    def stage(self, u, first=False, tail=[]):
        p = u & 1
        mf = self.pv(0, p, first) + self.qk(0, p) + self.pv(1, p, first) + self.qk(1, p) + self.pv(2, p, first) + self.qk(2, p)
        f = {i: [] for i in range(51)}
        ki = iter(self.kreads(u, 1 - p)); vi = iter(self.vreads(u, 1 - p))
        for seg, qt in enumerate((2, 0, 1)):
            for i in range(8): f[17 * seg + 2 * i].append(self.ex(qt, i))
        for seg in range(2):
            for g in (3, 7, 11, 15): f[17 * seg + g].append(next(ki))
        for g in (1, 5, 9, 13, 18, 22, 26, 30): f[g] += [next(vi), next(vi)]
        for seg, qt in enumerate((2, 0, 1)):
            for i in range(4): f[17 * seg + 4 * i + 3].append(self.cv(qt, i))
        f[47] += tail
        self.weave(mf, f)

    def bar(self, vm=False):
        self.a("s_waitcnt vmcnt(0) lgkmcnt(0)" if vm else "s_waitcnt lgkmcnt(0)")
        self.a("s_barrier")

    def xmax(self, v, t):
        self.a(f"""v_mov_b32 v{t}, v{v}
        s_nop 1
        v_permlane16_swap_b32 v{v}, v{t}
        v_max_f32 v{v}, v{v}, v{t}
        v_mov_b32 v{t}, v{v}
        s_nop 1
        v_permlane32_swap_b32 v{v}, v{t}
        v_max_f32 v{v}, v{v}, v{t}""")

    def stage0(self):
        a = self.a
        mf = self.qk(0, 0, True) + self.qk(1, 0, True) + self.qk(2, 0, True)
        self.spread(mf, self.kreads(0, 1) + self.vreads(0, 1))
        a("s_nop 6")
        for qt in range(3):
            s = S(qt); m = 59 + qt
            a(f"""v_max3_f32 v{m}, v{s}, v{s+1}, v{vMS+qt}
            v_max3_f32 v{m}, v{s+2}, v{s+3}, v{m}
            v_max3_f32 v{m}, v{s+4}, v{s+5}, v{m}
            v_max3_f32 v{m}, v{s+6}, v{s+7}, v{m}""")
            self.xmax(m, 62)
            for i in range(4): a(f"v_sub_f32 v{vNM+4*qt+i}, 0, v{m}")
            for i in range(8): a(f"v_sub_f32 v{s+i}, v{s+i}, v{m}")
        for qt in range(2):
            for i in range(8): a(self.ex(qt, i))
            a("s_nop 0")
            for i in range(4): a(self.cv(qt, i))

    def setflag(self, rnd):
        self.a(f"""v_mov_b32 v2, 1
        v_mov_b32 v3, 0
        s_add_u32 s{sT0}, s{sFP}, {4096*rnd}
        s_mov_b64 exec, 1
        buffer_store_dword v2, v3, {sr(sFL)}, s{sT0} offen sc1
        s_mov_b64 exec, -1""")

    def final(self):
        a = self.a
        self.bar()
        a(f"v_mov_b32 v3, 0\nbuffer_load_dword v15, v3, {sr(sDB)}, 0 offen sc1")
        mf = self.pv(0, 0) + self.pv(1, 0) + self.pv(2, 0)
        f = {i: [] for i in range(27)}
        for i in range(8): f[i].append(self.ex(2, i))
        for i in range(4): f[9 + i].append(self.cv(2, i))
        self.weave(mf, f)
        a("s_nop 7")
        a(f"""s_mov_b32 s{sT0}, {THR:#x}
        v_add_f32 v60, v{vL}, v{vL+4}
        v_add_f32 v60, v60, v{vL+8}
        v_cmp_nge_f32 vcc, s{sT0}, v60
        s_cmp_lg_u32 s{sREDO}, 0
        s_cbranch_scc1 L_noflag
        s_nop 3
        s_cmp_eq_u64 vcc, 0
        s_cbranch_scc1 L_noflag
        v_mov_b32 v2, 1
        v_mov_b32 v3, {FLAG}
        ds_write_b32 v3, v2
L_noflag:
        s_mul_i32 s{sT0}, s{sIT}, 36864
        s_mul_i32 s{sT1}, s{sWAVE}, 12288
        s_add_u32 s{sT0}, s{sT0}, s{sT1}""")
        n = 0
        for qt in range(3):
            a(f"v_rcp_f32 v60, v{vL+4*qt}\ns_nop 0\nv_mov_b32 v61, v60")
            for ks in range(4):
                b = Oa(qt, 2 * ks); t = vTMP + 4 * (n % 4); n += 1
                for i in range(4): a(f"v_pk_mul_f32 v[{b+2*i}:{b+2*i+1}], v[{b+2*i}:{b+2*i+1}], v[60:61]")
                for i in range(4): a(f"v_cvt_pk_bf16_f32 v{t+i}, v{b+2*i}, v{b+2*i+1}")
                a(f"buffer_store_dwordx4 {vr(t)}, v{vL16}, {sr(sO)}, s{sT0} offen offset:{ks*1024} {self.osc}")
            a(f"s_add_u32 s{sT0}, s{sT0}, 4096")

    def flagcheck(self, lab):
        self.a(f"""s_waitcnt lgkmcnt(0)
        s_barrier
        v_mov_b32 v15, {FLAG}
        ds_read_b32 v15, v15
        s_waitcnt lgkmcnt(0)
        v_readfirstlane_b32 s{sT0}, v15
        s_cmp_lg_u32 s{sT0}, 0
        s_cbranch_scc1 {lab}""")

    def qload(self, base):
        a = self.a
        a(f"s_mul_i32 s{sT0}, s{sWAVE}, 12288\ns_add_u32 s{sT0}, s{sT0}, {base}\nv_add_u32 v15, s{sT0}, v{vL16}")
        for qt in range(3):
            for ks in range(4):
                a(f"ds_read_b128 {ar(Qf(qt,ks))}, v15 offset:{(qt*4+ks)*1024}")

    def attention(self):
        a = self.a
        a(f"s_mul_i32 s{sSL}, s{sWAVE}, 3072")
        for i in range(3):
            a(f"s_mul_i32 s{sT0}, s{sWAVE}, 49152\ns_add_u32 s{sT0}, s{sT0}, {i*15360}\nv_add_u32 v{vDX+i}, s{sT0}, v62")
        self.q0("attn")
        self.qload(HAND0)
        a("L_kfirst:")
        self.emit(self.kreads(5, 0))
        a("L_item:")
        self.bar()
        self.stage0()
        a(f"""s_cmp_eq_u32 s{sIT}, 0
        s_cbranch_scc1 L_nowait
        s_waitcnt vmcnt(0)
L_nowait:""")
        self.bar()
        a(f"""s_cmp_eq_u32 s{sIT}, 0
        s_cbranch_scc1 L_nopub
        s_cmp_lg_u32 s{sWAVE}, 0
        s_cbranch_scc1 L_nopub""")
        self.setflag(0)
        a("L_nopub:")
        self.stage(1, first=True, tail=[f"s_mov_b32 s{sCNT}, 0"])
        a(".p2align 3\nL_loop:")
        for u in (2, 3, 4, 5, 0, 1):
            self.bar()
            self.stage(u, tail=[f"s_add_u32 s{sCNT}, s{sCNT}, 1", f"s_cmp_lt_u32 s{sCNT}, 5"] if u == 1 else [])
        a("s_cbranch_scc1 L_loop")
        self.final()
        a(f"""s_cmp_lg_u32 s{sIT}, 0
        s_cbranch_scc1 L_last
        s_mov_b32 s{sT1}, 0
        s_waitcnt vmcnt(12)
L_cnt:
        v_readfirstlane_b32 s{sT0}, v15
        s_cmp_eq_u32 s{sT0}, 256
        s_cbranch_scc1 L_cntok
        s_add_u32 s{sT1}, s{sT1}, 1
        s_cmp_ge_u32 s{sT1}, {SPIN}
        s_cbranch_scc1 L_cntok
        v_mov_b32 v3, 0
        buffer_load_dword v15, v3, {sr(sDB)}, 0 offen sc1
        s_waitcnt vmcnt(0)
        s_branch L_cnt
L_cntok:""")
        self.flagcheck("L_redo")
        self.stamp(3)
        self.qload(HAND1)
        a(f"s_mov_b32 s{sIT}, 1")
        self.tables()
        a(f"""s_mov_b32 s{sREDO}, 0
        v_mov_b32 v{vMS}, 0xff800000
        v_mov_b32 v{vMS+1}, 0xff800000
        v_mov_b32 v{vMS+2}, 0xff800000
        s_branch L_item
L_last:""")
        self.tail_pre()
        a(f"s_waitcnt vmcnt({4*self.npre})")
        self.flagcheck("L_redo")
        a(f"""s_cmp_lg_u32 s{sWAVE}, 0
        s_cbranch_scc1 L_zacc""")
        self.setflag(1)
        a("L_zacc:")
        for i in range(80): a(f"v_mov_b32 v{vACC+i}, 0")
        a("s_branch L_tail")
        a(f"""L_redo:
        s_waitcnt vmcnt(0)
        s_barrier
        v_mov_b32 v2, 0
        v_mov_b32 v3, {FLAG}
        ds_write_b32 v3, v2
        s_mov_b32 s{sCNT}, 0
        s_mov_b32 s{sREDO}, 1
L_mloop:
        s_barrier""")
        self.emit(self.kreads(5, 0))
        a("s_waitcnt lgkmcnt(0)\ns_barrier")
        self.emit(self.qk(0, 0, True) + self.qk(1, 0, True) + self.qk(2, 0, True))
        a("s_nop 7")
        for qt in range(3):
            s = S(qt); m = vMS + qt
            for i in range(4): a(f"v_max3_f32 v{m}, v{s+2*i}, v{s+2*i+1}, v{m}")
        a(f"""s_add_u32 s{sCNT}, s{sCNT}, 1
        s_cmp_lt_u32 s{sCNT}, 32
        s_cbranch_scc1 L_mloop
        s_barrier
        s_branch L_kfirst""")

    def help_setup(self):
        self.a(f"""v_mov_b32 v{vDXh}, v62
        v_add_u32 v{vDXh+1}, 15360, v62
        v_add_u32 v{vDXh+2}, {2*15360}, v62
        v_add_u32 v{vDXh+3}, {3*15360}, v62
        v_mov_b32 v{vW0h}, v7
        v_mov_b32 v{vW1h}, v8
        v_mov_b32 v{vXRh}, v{vXR}
        v_mov_b32 v{vL16h}, v{vL16}
        v_mov_b32 v{vSC}, s{sCS}
        v_mov_b32 v{vSC+1}, s{sCS}
        v_lshlrev_b32 v7, 8, v3
        v_lshl_add_u32 v7, v2, 6, v7
        v_xor_b32 v9, 2, v4
        v_lshl_add_u32 v{vKV+1}, v9, 4, v7
        v_lshl_add_u32 v{vKV}, v4, 4, v7
        s_mov_b32 s{sOFF}, 0
        s_mov_b32 s{sSL}, 0
        s_mov_b32 s{sKS}, 0""")
    def hacc(self, t, qt):
        return vr(vHACC + 36 * t + 4 * qt) if t < 6 else ar(aHACC + 36 * (t - 6) + 4 * qt)
    def hreads(self, p):
        o = p * CH; A_ = aHF + 68 * p; L = []
        for t in range(8):
            ks, u = t >> 1, t & 1
            L.append(f"ds_read_b64_tr_b16 {ar(A_+4*t,2)}, v{vW0h} offset:{o+ks*256+8*u}")
            L.append(f"ds_read_b64_tr_b16 {ar(A_+4*t+2,2)}, v{vW1h} offset:{o+ks*256+8*u}")
        for qt in range(9):
            L.append(f"ds_read_b128 {ar(A_+32+4*qt)}, v{vXRh} offset:{o+qt*1024}")
        return L
    def hmf(self, p, half, zero=False):
        A_ = aHF + 68 * p
        return [f"{MF} {self.hacc(t,qt)}, {ar(A_+4*t)}, {ar(A_+32+4*qt)}, {'0' if zero else self.hacc(t,qt)}"
                for t in range(4 * half, 4 * half + 4) for qt in range(9)]
    def acct(self, k):
        if not self.o.get("acct"): return
        base = sSTAMP + 2 + 2 * (k + 3 * self.item)
        self.a(f"""s_memtime s[100:101]
        s_waitcnt lgkmcnt(0)
        s_sub_u32 s{sT1}, s100, s{sSTAMP+14}
        s_add_u32 s{base}, s{base}, s{sT1}
        s_mov_b32 s{sSTAMP+14}, s100""")
    def hbar(self):
        self.a("s_barrier")
        self.acct(2)
    def hwait(self, hist):
        n = sum(hist[-(self.LA - 1):]) if self.LA > 1 else 0
        if self.o.get("acct"): self.a("s_cselect_b32 s82, 1, 0")
        self.acct(0)
        self.a(f"s_waitcnt vmcnt({min(63, n)}) lgkmcnt(0)")
        self.acct(1)
        if self.o.get("acct"): self.a("s_cmp_eq_u32 s82, 1")

    def q1_interval(self, sg, hist, tail=[]):
        c = sg >> 1; odd = sg & 1
        self.item = 0
        self.hbar()
        other = []
        if sg <= 28:
            other = self.w_groups(QPOS[c & 1]) if odd else self.x_groups(QPOS[c & 1])
        items = self.mix(self.kv_groups(), other)
        if odd and sg <= 29:
            if self.LA == 2:
                items = self.hreads((c + 1) & 1) + items
            else:
                vm = [i for i, x in enumerate(items) if isvm(x)]
                k = len(vm) - 4
                cut = vm[k - 1] + 1
                items = items[:cut] + [f"s_waitcnt vmcnt({min(63, 29 + k)})"] + self.hreads((c + 1) & 1) + items[cut:]
        self.spread(self.hmf(c & 1, odd), items + tail)
        hist.append(sum(map(isvm, items)))
        self.hwait(hist)

    def kstep_addr(self):
        return [f"s_and_b32 s{sM}, s{sM}, 63", f"s_lshr_b32 s{sT2}, s{sM}, 2", f"s_and_b32 s{sT3}, s{sM}, 3",
                f"s_mul_i32 s{sSO}, s{sT2}, 73728", f"s_lshl_b32 s{sT4}, s{sT3}, 10", f"s_add_u32 s{sSO}, s{sSO}, s{sT4}",
                f"s_lshl_b32 s{sSW}, s{sT2}, 18", f"s_lshl_b32 s{sT4}, s{sT3}, 15", f"s_add_u32 s{sSW}, s{sSW}, s{sT4}",
                f"s_add_u32 s{sM}, s{sM}, 1"]
    def wo_dma(self): return [self.dma(vWo + j, sWO, sSW, j * 1024, self.o.get('wpol', '')) for j in range(4)]
    def o_loads(self, reg): return [f"buffer_load_dwordx4 {reg(qt)}, v{vOo+qt}, {sr(sOB)}, s{sSO} offen {self.o.get('olpol', 'sc1')}" for qt in range(5)]
    def a_reads(self, reg, off):
        return [f"ds_read_b64_tr_b16 {reg(4*nt+2*h)}, v{vTA0 if nt%2==0 else vTA1} offset:{off+h*2048+(nt>>1)*512}" for nt in range(4) for h in range(2)]
    def o_mf(self, Areg, Breg):
        return [f"{MF} {vr(vACC+16*qt+4*nt)}, {Areg(nt)}, {Breg(qt)}, {vr(vACC+16*qt+4*nt)}" for qt in range(5) for nt in range(4)]

    def sh_interval(self, sg, hist, tail=[]):
        a = self.a
        self.hbar()
        kv = self.kv_groups(); nv = 0
        for h in range(2):
            t = 2 * (sg - self.S0) + h
            ni, nr, nm = t, t - 2 * self.LA, t - 2 * self.LA - 1
            other = []
            if 0 <= ni < self.NK:
                r = ni % 8
                other = [self.kstep_addr() + [f"s_mov_b32 m0, {STG + r*4096}", "s_nop 0"] + self.wo_dma(),
                         self.o_loads(lambda qt: ar(aSO + 20 * r + 4 * qt))]
            items = self.mix(kv[2 * h:2 * h + 2], other)
            if 0 <= nr < self.NK:
                items = self.a_reads(lambda o: ar(aSA + 16 * (nr & 1) + o, 2), (nr % 8) * 4096) + items
            mf = []
            if 0 <= nm < self.NK:
                mf = self.o_mf(lambda nt: ar(aSA + 16 * (nm & 1) + 4 * nt), lambda qt: ar(aSO + 20 * (nm % 8) + 4 * qt))
                if h == 1: a("s_waitcnt lgkmcnt(0)")
            self.spread(mf, items + (tail if h == 1 else []))
            nv += sum(map(isvm, items))
        hist.append(nv)
        self.hwait(hist)

    def helper(self):
        a = self.a
        LA = self.LA
        a(f"""L_helper:
        v_lshlrev_b32 v9, 13, v3
        v_lshl_add_u32 v9, v2, 6, v9
        v_lshl_add_u32 v{vDW}, v4, 4, v9
        v_xor_b32 v63, 2, v4
        v_lshl_add_u32 v{vDW+1}, v63, 4, v9
        v_add_u32 v{vDW+2}, {2*31744}, v{vDW}
        v_add_u32 v{vDW+3}, {3*31744}, v{vDW+1}
        v_add_u32 v{vDW+1}, 31744, v{vDW+1}""")
        assert LA in (2, 3)
        self.q0("help")
        a("L_h0:")
        for i in range(72): a(f"v_mov_b32 v{vHACC+144+i}, 0")
        for i in range(72): a(f"v_accvgpr_write_b32 a{aHACC+i}, 0")
        a("s_waitcnt vmcnt(50)\ns_barrier")
        for _ in range(LA - 1): self.emit(self.flat(self.kv_groups()))
        a(f"s_waitcnt vmcnt({17 + 16*(LA-1)})")
        self.emit(self.hreads(0))
        a("s_waitcnt lgkmcnt(0)")
        self.spread(self.hmf(0, 0, zero=True), self.flat(self.x_groups(QPOS[0])))
        a(f"s_waitcnt vmcnt({9 + 16*(LA-1)})\ns_mov_b32 s{sCNT}, 0")
        hist = [25]
        if self.o.get("acct"):
            for i in range(2, 14): a(f"s_mov_b32 s{sSTAMP+i}, 0")
            a(f"s_memtime s[100:101]\ns_waitcnt lgkmcnt(0)\ns_mov_b32 s{sSTAMP+14}, s100")
        a("L_h0loop:")
        for sg in range(1, 5):
            self.q1_interval(sg, hist, tail=[f"s_add_u32 s{sCNT}, s{sCNT}, 1", f"s_cmp_lt_u32 s{sCNT}, 7"] if sg == 4 else [])
        a("s_cbranch_scc1 L_h0loop")
        for sg in (29, 30, 31): self.q1_interval(sg, hist)
        a(f"s_barrier\nv_add_u32 v15, {HAND1}, v{vL16h}\ns_nop 5")
        n = 0
        for ks in range(4):
            for qt in range(9):
                if ks < 3:
                    b0 = vHACC + 36 * (2 * ks) + 4 * qt; b1 = b0 + 36
                else:
                    b0 = vHACC + 8 * (qt % 2); b1 = b0 + 4
                    for i in range(4):
                        a(f"v_accvgpr_read_b32 v{b0+i}, a{aHACC+4*qt+i}")
                        a(f"v_accvgpr_read_b32 v{b1+i}, a{aHACC+36+4*qt+i}")
                for b in (b0, b0 + 2, b1, b1 + 2):
                    a(f"v_pk_mul_f32 v[{b}:{b+1}], v[{b}:{b+1}], v[{vSC}:{vSC+1}]")
                t = vHT + 4 * (n % 2); n += 1
                for i, b in enumerate((b0, b0 + 2, b1, b1 + 2)):
                    a(f"v_cvt_pk_bf16_f32 v{t+i}, v{b}, v{b+1}")
                a(f"ds_write_b128 v15, {vr(t)} offset:{(qt*4+ks)*1024}")
        self.flagcheck("L_hredo")
        a(f"s_mov_b32 s{sIT}, 1")
        a("L_h1:")
        self.oproj_regs(STG)
        for i in range(80): a(f"v_mov_b32 v{vACC+i}, 0")
        a(f"""s_mov_b32 s{sM}, s{sRS}
        v_and_b32 v96, 15, v1
        v_lshlrev_b32 v96, 2, v96
        s_waitcnt vmcnt({16*(LA-1)})""")
        hist = [16, 16]
        S0 = self.S0
        self.item = 1
        if self.o.get("acct"): a(f"s_memtime s[100:101]\ns_waitcnt lgkmcnt(0)\ns_mov_b32 s{sSTAMP+14}, s100")
        for sg in range(S0):
            self.hbar()
            items = self.flat(self.kv_groups())
            if sg == S0 - LA:
                items = [f"buffer_load_dword v97, v96, {sr(sFL)}, s{sFC} offen sc1"] + items
            self.emit(items)
            hist.append(sum(map(isvm, items)))
            self.hwait(hist)
        a(f"""s_mov_b32 s{sT1}, 0
L_poll0:
        v_cmp_ne_u32 vcc, 1, v97
        s_nop 4
        s_cmp_eq_u64 vcc, 0
        s_cbranch_scc1 L_poll0ok
        s_add_u32 s{sT1}, s{sT1}, 1
        s_cmp_ge_u32 s{sT1}, {SPIN}
        s_cbranch_scc1 L_poll0ok
        buffer_load_dword v97, v96, {sr(sFL)}, s{sFC} offen sc1
        s_waitcnt vmcnt(0)
        s_branch L_poll0
L_poll0ok:""")
        P = LA + 1
        nloop = (self.NK // 2 - P) // 4
        for sg in range(S0, S0 + P): self.sh_interval(sg, hist, tail=[f"s_mov_b32 s{sCNT}, 0"] if sg == S0 + P - 1 else [])
        a("L_h1loop:")
        for sg in range(S0 + P, S0 + P + 4):
            self.sh_interval(sg, hist, tail=[f"s_add_u32 s{sCNT}, s{sCNT}, 1", f"s_cmp_lt_u32 s{sCNT}, {nloop}"] if sg == S0 + P + 3 else [])
        a("s_cbranch_scc1 L_h1loop")
        for sg in range(S0 + P + 4 * nloop, 32): self.sh_interval(sg, hist)
        assert S0 + self.NK // 2 + LA <= 31
        a(f"""s_waitcnt vmcnt(0)
        s_barrier
        s_sub_u32 s{sT0}, s{sLB}, {STG}
        v_add_u32 v{vTA0}, s{sT0}, v{vTA0}
        v_add_u32 v{vTA1}, s{sT0}, v{vTA1}""")
        self.tail_pre()
        self.flagcheck("L_hredo")
        a("s_branch L_tail")
        a(f"""L_hredo:
        s_waitcnt vmcnt(0)
        s_barrier
        s_mov_b32 s{sCNT}, 0
        s_lshl_b32 s{sOFF}, s{sIT}, 18
L_hmloop:
        s_lshl_b32 s{sSL}, s{sIT}, 15""")
        self.emit(self.flat(self.kv_groups(konly=True)))
        a(f"""s_waitcnt vmcnt(0)
        s_barrier
        s_barrier
        s_add_u32 s{sCNT}, s{sCNT}, 1
        s_cmp_lt_u32 s{sCNT}, 32
        s_cbranch_scc1 L_hmloop
        s_lshl_b32 s{sOFF}, s{sIT}, 18
        s_lshl_b32 s{sSL}, s{sIT}, 15""")
        self.emit(self.flat(self.kv_groups(konly=True) + self.kv_groups() + self.kv_groups()))
        a(f"""s_cmp_lg_u32 s{sIT}, 0
        s_cbranch_scc1 L_hredo1
        s_mov_b32 s{sKS}, 0""")
        for c in range(2): self.emit(self.flat(self.x_groups(QPOS[c]) + self.w_groups(QPOS[c])))
        a("""s_waitcnt vmcnt(63)
        s_barrier
        s_branch L_h0
L_hredo1:""")
        for _ in range(LA - 2): self.emit(self.flat(self.kv_groups()))
        a(f"""s_waitcnt vmcnt({16*LA})
        s_barrier
        s_branch L_h1""")

    def tail_addr(self, n):
        R = self.R
        if n < R:
            pre = [f"s_mul_i32 s{sM}, s{sWAVE}, {R}", f"s_add_u32 s{sM}, s{sM}, s{sRS}", f"s_add_u32 s{sM}, s{sM}, {self.NK + n}"]
            return pre + self.kstep_addr()[:-1]
        return [f"s_add_u32 s{sM}, s{sRT}, {n - R}", f"s_and_b32 s{sM}, s{sM}, 15", f"s_lshl_b32 s{sT2}, s{sWAVE}, 4", f"s_add_u32 s{sM}, s{sM}, s{sT2}"] + \
               self.kstep_addr()[1:-1] + [f"s_add_u32 s{sSO}, s{sSO}, 36864", f"s_add_u32 s{sSW}, s{sSW}, 131072"]
    def tail_wo(self, n):
        return self.tail_addr(n) + [f"s_add_u32 m0, s{sLB}, {(n % NS)*4096}", "s_nop 0"] + self.wo_dma()
    def tail_pre(self):
        self.npre = self.o.get("npre", 6)
        for n in range(self.npre): self.emit(self.tail_wo(n))
    def tail(self):
        a = self.a
        R = self.R; T = R + 16
        a("L_tail:")
        self.stamp(4)
        q = []
        def push(L, tag): self.emit(L); q.extend([tag] * sum(map(isvm, L)))
        def after(tag): return min(63, len(q) - 1 - max(i for i, t in enumerate(q) if t == tag))
        for n in range(self.npre): q.extend([("w", n)] * 4)
        Ablk = lambda n: 16 * ((n - R) & 15)
        Oreg = lambda n: vOR + 20 * (n % 8)
        for n in range(R):
            push(self.tail_addr(n) + self.o_loads(lambda qt: vr(Oreg(n) + 4 * qt)), ("o", n))
        for n in range(self.npre, NS): push(self.tail_wo(n), ("w", n))
        for n in range(T):
            a(f"s_waitcnt vmcnt({after(('w', n))})")
            self.emit(self.a_reads(lambda o: ar(Ablk(n) + o, 2), (n % NS) * 4096))
            if n + NS < T or n == R - 1: a("s_waitcnt lgkmcnt(0)")
            if n + NS < T: push(self.tail_wo(n + NS), ("w", n + NS))
            if n == R - 1:
                a(f"s_waitcnt vmcnt({after(('o', R-1))})")
                for m in range(R):
                    self.emit(self.o_mf(lambda nt: ar(Ablk(m) + 4 * nt), lambda qt: vr(Oreg(m) + 4 * qt)))
        self.stamp(5)
        a(f"""v_and_b32 v2, 3, v1
        v_lshlrev_b32 v2, 2, v2
        s_lshl_b32 s{sT0}, s{sWAVE}, 4
        s_add_u32 s{sT0}, s{sT0}, s{sFC}
        s_add_u32 s{sT0}, s{sT0}, 4096
        s_mov_b32 s{sT1}, 0
L_poll1:
        buffer_load_dword v3, v2, {sr(sFL)}, s{sT0} offen sc1
        s_add_u32 s{sT1}, s{sT1}, 1
        s_cmp_ge_u32 s{sT1}, {SPIN}
        s_cbranch_scc1 L_poll1ok
        s_waitcnt vmcnt(0)
        v_cmp_ne_u32 vcc, 1, v3
        s_nop 4
        s_cmp_eq_u64 vcc, 0
        s_cbranch_scc0 L_poll1
L_poll1ok:""")
        self.stamp(6)
        q.clear()
        ol = lambda n: self.tail_addr(n) + self.o_loads(lambda qt: vr(Oreg(n) + 4 * qt))
        for n in range(R, R + 8): push(ol(n), ("o", n))
        for n in range(R, T):
            a(f"s_waitcnt vmcnt({after(('o', n))}) lgkmcnt(0)")
            items = ol(n + 7) if (n > R and n + 7 < T) else []
            q.extend([("o", n + 7)] * sum(map(isvm, items)))
            self.spread(self.o_mf(lambda nt: ar(Ablk(n) + 4 * nt), lambda qt: vr(Oreg(n) + 4 * qt)), items)
        PW = 80 * 272
        a(f"""s_barrier
        v_and_b32 v2, 15, v1
        v_lshrrev_b32 v3, 4, v1
        v_mul_u32_u24 v2, 272, v2
        v_lshl_add_u32 v2, v3, 4, v2
        s_mul_i32 s{sT0}, s{sWAVE}, {PW}
        v_add_u32 v2, s{sT0}, v2
        s_nop 2""")
        for qt in range(5):
            for nt in range(4):
                a(f"ds_write_b128 v2, {vr(vACC+16*qt+4*nt)} offset:{qt*16*272+nt*64}")
        a(f"""s_waitcnt lgkmcnt(0)
        s_barrier
        v_lshrrev_b32 v2, 3, v0
        v_and_b32 v3, 7, v0
        v_mul_u32_u24 v4, 272, v2
        v_lshl_add_u32 v4, v3, 5, v4
        v_add_u32 v5, {2*PW}, v4
        v_lshlrev_b32 v6, 10, v2
        v_lshl_add_u32 v6, v3, 4, v6""")
        for i in range(3):
            for w in range(4):
                for h in range(2):
                    a(f"ds_read_b128 {vr(vACC+32*i+8*w+4*h)}, v{4+(w>>1)} offset:{(w&1)*PW+i*32*272+h*16}")
        for i in range(3):
            a(f"s_waitcnt lgkmcnt({min(15, 8*(2-i))})")
            b = vACC + 32 * i
            for e in range(0, 8, 2):
                a(f"v_pk_add_f32 v[{b+e}:{b+e+1}], v[{b+e}:{b+e+1}], v[{b+8+e}:{b+9+e}]")
                a(f"v_pk_add_f32 v[{b+16+e}:{b+17+e}], v[{b+16+e}:{b+17+e}], v[{b+24+e}:{b+25+e}]")
            for e in range(0, 8, 2):
                a(f"v_pk_add_f32 v[{b+e}:{b+e+1}], v[{b+e}:{b+e+1}], v[{b+16+e}:{b+17+e}]")
            for e in range(4):
                a(f"v_cvt_pk_bf16_f32 v{b+e}, v{b+2*e}, v{b+2*e+1}")
            a(f"s_mov_b32 s{sT0}, {i*32768}")
            a(f"buffer_store_dwordx4 {vr(b)}, v6, {sr(sOUT)}, s{sT0} offen")
        if self.o.get("stamps"):
            a("s_waitcnt vmcnt(0)")
            self.stamp(7)
            a(f"""s_waitcnt lgkmcnt(0)
            s_mov_b32 s{sO}, s18
            s_and_b32 s{sO+1}, s19, 0xffff
            s_mov_b32 s{sO+2}, 536870912
            s_lshl_b32 s{sT0}, s2, 8
            s_lshl_b32 s{sT1}, s{sWAVE}, 6
            s_add_u32 s{sT0}, s{sT0}, s{sT1}
            s_add_u32 s{sT0}, s{sT0}, {256<<20}
            v_mov_b32 v5, 0""")
            for i in range(16): a(f"v_mov_b32 v{16+i}, s{sSTAMP+i}")
            a("s_mov_b64 exec, 1")
            for i in range(4): a(f"buffer_store_dwordx4 {vr(16+4*i)}, v5, {sr(sO)}, s{sT0} offen offset:{16*i}")

    def kernel(self):
        self.prologue()
        self.attention()
        self.helper()
        self.tail()
        self.a("L_end:\ns_endpgm")
        return self.a.text()

def build(opt):
    g = Gen(opt)
    t = g.kernel()
    src = open("standalone__gqa_block_cached__near_ridge.s.ref").read().split("; Override launch")[0]
    return src + header([(KN, 256, 256, LDS)]) + kstart(KN) + t + rodata([kdesc(KN, 256, 256)])

if __name__ == "__main__":
    opt = {}
    out = sys.argv[1]
    for x in sys.argv[2:]:
        k, _, v = x.partition("=")
        opt[k] = int(v) if v.lstrip("-").isdigit() else (v if v else True)
    t = build(opt)
    open(out, "w").write(t)
    print("hazards:", hazard.check(t), "bytes:", len(t))
```

```python
import sys, struct
from asmlib import *
import hazard

SLOT = 16384; NSL = 7; RING = NSL * SLOT
CH = 17408
SYNC = 162560
LAND, PROG, MISC = SYNC, SYNC + 256, SYNC + 1024
PB = 2 * CH
QP = [SYNC - (4 - i) * PB for i in range(4)]
CBX = QP[3]; CBW = CBX + 18432
HAND1 = SYNC - 36864
ST = RING
LDS = 163840
O_OFF = 4096
PT_OFF = 24 << 20
FL_OFF = 40 << 20
CSC = struct.unpack("<I", struct.pack("<f", 1.4426950408889634 * 128 ** -0.5))[0]
THR = 0x4b800000
OOB = 0x80000000
MF = "v_mfma_f32_16x16x32_bf16"

def vr(b, n=4): return f"v[{b}:{b+n-1}]"
def ar(b, n=4): return f"a[{b}:{b+n-1}]"
def sr(b, n=4): return f"s[{b}:{b+n-1}]"

sWAVE = 3
sEB, sK, sV, sEA, sO, sOB, sPT, sOUT, sFL, sDB = 20, 24, 28, 32, 36, 40, 44, 48, 52, 56
(sT0, sT1, sT2, sT3, sT4, sOFF, sSL, sB, sIT, sCNT, sREDO, sROT, sCS, sKS, sPUB, sBUD, sKQ, sC, sBB, sWID,
 sP1, sP2, sP3, sP4) = range(60, 84)
sSTAMP = 84
sP5, sP6 = 100, 101
sS0, sS1, sS2, sS8 = sP1, sP2, sP3, sP4
sPF = sO
sXB, sXA = sDB, sDB + 2
sPO = sPUB
sG = [sO, sO + 1, sO + 2, sO + 3, sPUB]
sQD = sKS
vL16, vLA, vPA = 5, 6, 7
vPR, vLD, vRK, vRV0, vRV1, vRKb, vRV0b, vRV1b = 8, 9, 10, 11, 12, 13, 14, 15
vS, vNM, vONE, vMS = 16, 40, 52, 56
vTMP, vQ, vO, vL = 64, 80, 128, 224
vCT = 240
vXRq, vW0q, vW1q = 16, 18, 19
aK, aV, aQF = 0, 64, 128
vKV = 2
vPV, vPB, vDX, vDW, vW0, vW1, vXR, vSC, vFA, vFV = 8, 9, 10, 19, 23, 24, 25, 26, 28, 29
vORD, vXR1 = 4, 14
aB2 = 208
vHACC = 32; aHACC = 0; aHF = 72; vHT = 248
vTB = 23
vBF, vSEL, vRC, vTA = 32, 96, 112, 176
aTW = 128

def S(qt, kt=0): return vS + 8 * qt + 4 * kt
def Kf(p, kt, ks): return aK + 32 * p + 16 * kt + 4 * ks
def Vf(p, dt): return aV + 32 * p + 4 * dt
def Qf(qt, ks): return vQ + 16 * qt + 4 * ks
def Oa(qt, dt): return vO + 32 * qt + 4 * dt
def isvm(x): return x.startswith("buffer_")

class Gen:
    def __init__(self, opt):
        self.o = opt
        self.a = A()
        self.ool = []
        self.nlab = 0
        self.D = opt.get("d", 5)
        self.S0 = opt.get("s0", 38)
        self.KS = opt.get("ks", 10)
        self.KG = opt.get("kg", 3)
        self.pol = self.P("pol", "nt")
        self.osc = opt.get("osc", "sc1")
        self.dry = False
        self.cnt = {}
    def P(self, k, d=""):
        v = self.o.get(k, d)
        return "" if v == "none" else v.replace("+", " ")
    STM = {"m": "start c0 q0 it0 it1 b3 p1 end", "t": "start it1 b3 p1 d0 mf p2 end", "q": "start karg iss bar c0 c8 q0 end", "u": "start it1 b1 b2 ack b3 p1 end",
           "g": "start g00 g03 g06 g10 g13 g16 end", "s": "start c15i G4 G8 G12 G16 G20 g00", "r": "start g06 G128 G136 G144 s0 it0 g10", "e": "start g16 G260 w4 it1 b1 b3 end",
           "c": "start c0 c1 c2 c3 c4 c6 c12"}
    def stamp(self, name):
        names = self.STM[self.o.get("sm", "m")].split()
        if self.o.get("sm") == "g" and not self.inh: names = "start q0 it0 it1 b3 p1 mf end".split()
        if self.o.get("sm") == "s" and not self.inh: names = "start c0 c8 q0 k0 st0 it0 x".split()
        if self.o.get("sm") == "c" and not self.inh: names = "start c0 c4 c8 c12 q0 k0 st0".split()
        if self.o.get("sm") == "r" and not self.inh: names = "start fin epi it0 st0 ofl st1 x".split()
        if self.o.get("sm") == "e" and not self.inh: names = "start fin it1 b1 ack b2 b3 end".split()
        if name not in names: return
        i = names.index(name)
        if self.o.get("stamps") == 3 and not self.dry:
            self.a(f"s_sub_u32 s{sSTAMP+2*i}, {1 << 22}, s{sBUD}\ns_mov_b32 s{sSTAMP+2*i+1}, 0" if i else f"s_mov_b64 s[{sSTAMP}:{sSTAMP+1}], 0")
        elif self.o.get("stamps") and not self.dry:
            op = "s_memtime" if self.o.get("stamps") == 2 else "s_memrealtime"
            self.a(f"{op} s[{sSTAMP+2*i}:{sSTAMP+2*i+1}]")
    def emit(self, L):
        if self.dry: return
        for x in L: self.a(x)
    def e(self, s):
        if not self.dry: self.a(s)
    def lab(self, p):
        self.nlab += 1
        return f"L_{p}{self.nlab}"
    def weave(self, mf, fills):
        L = list(fills.get(-1, []))
        for i, m in enumerate(mf):
            L.append(m); L += fills.get(i, [])
        self.emit(L)
    def spread(self, mf, items):
        if not mf:
            self.emit(items); return
        n = len(mf); f = {}
        for k, x in enumerate(items):
            f.setdefault(min(n - 1, k * n // max(1, len(items))), []).append(x)
        self.weave(mf, f)
    def srd(self, d, lo, off, nrec):
        return [f"s_add_u32 s{d}, s{lo}, {off}", f"s_addc_u32 s{d+1}, s{lo+1}, 0", f"s_and_b32 s{d+1}, s{d+1}, 0xffff",
                f"s_mov_b32 s{d+2}, {nrec}", f"s_mov_b32 s{d+3}, 0x00020000"]
    def dma(self, v, srd, soff, imm, pol=""):
        return " ".join(f"buffer_load_dwordx4 v{v}, {sr(srd)}, s{soff} offen offset:{imm} {pol} lds".split())
    def budget(self, ret):
        return [f"s_sub_i32 s{sBUD}, s{sBUD}, 1", f"s_cmp_lt_i32 s{sBUD}, 0", f"s_cbranch_scc1 {ret}"]

    def prologue(self):
        a = self.a
        a(f"""s_cmp_ge_u32 s2, 256
        s_cbranch_scc1 L_end
        s_load_dwordx16 s[4:19], s[0:1], 0""")
        self.stamp("start")
        a(f"""v_lshrrev_b32 v2, 6, v0
        v_and_b32 v1, 63, v0
        s_bfe_u32 s{sT1}, s2, 0x30003
        v_readfirstlane_b32 s{sWAVE}, v2
        s_and_b32 s{sT0}, s2, 1
        s_lshl_b32 s{sT0}, s{sT0}, 3
        s_add_u32 s{sBB}, s{sT0}, s{sT1}          ; b
        s_lshr_b32 s{sC}, s2, 6                   ; c
        s_bfe_u32 s{sKQ}, s2, 0x20001             ; kq
        s_lshl_b32 s{sT1}, s{sT1}, 1
        s_lshl_b32 s{sT2}, s{sC}, 2
        s_add_u32 s{sROT}, s{sT1}, s{sT2}
        {f"s_mov_b32 s{sROT}, 0" if self.o.get("norot") else ""}
        s_lshl_b32 s{sT2}, s{sKQ}, 2
        s_add_u32 s{sT2}, s{sT2}, s{sC}           ; hp
        s_lshl_b32 s{sWID}, s{sBB}, 4
        s_add_u32 s{sWID}, s{sWID}, s{sT2}        ; b*16 + hp
        v_lshrrev_b32 v2, 4, v1                   ; g
        v_bfe_u32 v3, v1, 2, 2                    ; r
        v_and_b32 v4, 3, v1                       ; c
        s_mov_b32 s{sBUD}, {1 << 22}
        s_cmp_lg_u32 s{sWAVE}, 3
        s_cbranch_scc1 L_attn""")

    def common_srds(self):
        L = self.srd(sFL, 18, FL_OFF, 256 * 8192) + self.srd(sPT, 18, PT_OFF, 256 * 36864)
        L += [f"s_lshl_b32 s{sT0}, s{sBB}, 2", f"s_add_u32 s{sT0}, s{sT0}, s{sKQ}", f"s_mul_i32 s{sT0}, s{sT0}, {8*36864}"]
        L += self.srd(sOB, 18, f"s{sT0}", 8 * 36864 + O_OFF)
        L += [f"s_mul_i32 s{sT0}, s{sBB}, 147456", f"s_lshl_b32 s{sT1}, s{sC}, 8", f"s_add_u32 s{sT0}, s{sT0}, s{sT1}"]
        L += self.srd(sOUT, 14, f"s{sT0}", 147456) + [f"s_sub_u32 s{sOUT+2}, s{sOUT+2}, s{sT1}"]
        L += [f"s_mov_b32 s{sIT}, 0", f"s_mov_b32 s{sREDO}, 0", f"s_mov_b32 s{sCS}, {CSC:#x}"]
        return L
    def wpat(self, t0, t1, w0, w1, base):
        return [f"v_lshrrev_b32 v{t0}, 4, v1", f"v_lshlrev_b32 v{t0}, 11, v{t0}", f"v_bfe_u32 v{t1}, v1, 2, 2", f"v_lshl_add_u32 v{t0}, v{t1}, 6, v{t0}",
                f"v_add_u32 v{t0}, {base}, v{t0}", f"v_and_b32 v{t1}, 3, v1", f"v_lshl_add_u32 v{w0}, v{t1}, 4, v{t0}",
                f"v_xor_b32 v{t1}, 2, v{t1}", f"v_lshl_add_u32 v{w1}, v{t1}, 4, v{t0}", f"v_add_u32 v{w1}, 1024, v{w1}"]
    def xpat(self, t0, t1, d0, d1, base):
        return [f"v_lshrrev_b32 v{t0}, 4, v1", f"v_and_b32 v{t1}, 7, v1", f"v_xor_b32 v{t0}, v{t0}, v{t1}", f"v_lshlrev_b32 v{t0}, 4, v{t0}",
                f"v_and_b32 v{t1}, 15, v1", f"v_lshl_add_u32 v{t0}, v{t1}, 7, v{t0}", f"v_xor_b32 v{t1}, 64, v{t0}",
                f"v_add_u32 v{d0}, {base}, v{t0}", f"v_add_u32 v{d1}, {base}, v{t1}"]
    def opat(self):
        L = [f"s_lshl_b32 s{sT0}, s{sKQ}, 1"]
        for i in range(8):
            L += [f"s_add_u32 s{sT1}, s{sT0}, {i+2}", f"s_and_b32 s{sT1}, s{sT1}, 7", f"s_lshl_b32 s{sT1}, s{sT1}, 12",
                  f"s_add_u32 s{sT1}, s{sT1}, {O_OFF - (i&3)*1024}", f"v_add_u32 v{vDX+i}, s{sT1}, v{vL16}"]
        return L + [f"v_add_u32 v{vDX+8}, {O_OFF + 32768}, v{vL16}"]

    def await_(self, pre=True):
        l = self.lab("sp")
        self.ool += [f"{l}:"] + self.budget(l + "r") + [f"ds_read_b32 v{vLD}, v{vLA}", "s_waitcnt lgkmcnt(0)",
                     f"v_cmp_gt_u32 vcc, v{vLD}, v{vPR}", f"s_cbranch_vccz {l}", f"s_branch {l}r"]
        if pre: self.a(f"ds_read_b32 v{vLD}, v{vLA}\ns_waitcnt lgkmcnt(0)\nv_cmp_gt_u32 vcc, v{vLD}, v{vPR}")
        self.a(f"s_cbranch_vccz {l}\n{l}r:")
    def nextslot(self):
        return [f"s_add_u32 s{sSL}, s{sSL}, {SLOT}", f"s_cmp_eq_u32 s{sSL}, {RING}", f"s_cselect_b32 s{sSL}, 0, s{sSL}"]
    def slotregs(self):
        return [f"v_add_u32 v{vRK}, s{sSL}, v{vRKb}", f"v_add_u32 v{vRV0}, s{sSL}, v{vRV0b}", f"v_add_u32 v{vRV1}, s{sSL}, v{vRV1b}"]
    def kreads(self, p):
        return [f"ds_read_b128 {ar(Kf(p,kt,ks))}, v{vRK} offset:{kt*4096+ks*256}" for kt in range(2) for ks in range(4)]
    def vreads(self, p):
        return [f"ds_read_b64_tr_b16 {ar(Vf(p,dt)+2*h,2)}, v{vRV0 if dt%2==0 else vRV1} offset:{(dt>>1)*256+h*4096}"
                for dt in range(8) for h in range(2)]
    def qk(self, qt, p, raw=False):
        L = []
        for kt in range(2):
            for ks in range(4):
                d = vr(S(qt, kt))
                c = d if ks else ("0" if raw else vr(vNM + 4 * qt))
                L.append(f"{MF} {d}, {ar(Kf(p,kt,ks))}, {vr(Qf(qt,ks))}, {c}")
        return L
    def pv(self, qt, p, first=False):
        L = []
        for dt in range(8):
            d = vr(Oa(qt, dt))
            L.append(f"{MF} {d}, {ar(Vf(p,dt))}, {vr(S(qt))}, {'0' if first else d}")
        d = vr(vL + 4 * qt)
        L.append(f"{MF} {d}, {vr(vONE)}, {vr(S(qt))}, {'0' if first else d}")
        return L
    def ex(self, qt, i): return f"v_exp_f32 v{S(qt)+i}, v{S(qt)+i}"
    def cv(self, qt, i): return f"v_cvt_pk_bf16_f32 v{S(qt)+i}, v{S(qt)+2*i}, v{S(qt)+2*i+1}"
    incpr = f"v_add_u32 v{vPR}, 1, v{vPR}"
    wrpr = f"ds_write_b32 v{vPA}, v{vPR}"
    rdla = f"ds_read_b32 v{vLD}, v{vLA}"
    cmpla = f"v_cmp_gt_u32 vcc, v{vLD}, v{vPR}"

    def stage(self, p, first=False, tail=[]):
        self.await_(pre=False)
        mf = self.pv(0, p, first) + self.qk(0, p) + self.pv(1, p, first) + self.qk(1, p) + self.pv(2, p, first) + self.qk(2, p)
        f = {i: [] for i in range(51)}
        ki = iter(self.kreads(1 - p)); vi = iter(self.vreads(1 - p))
        for seg, qt in enumerate((2, 0, 1)):
            for i in range(8): f[17 * seg + 2 * i].append(self.ex(qt, i))
        for seg in range(2):
            for g in (3, 7, 11, 15): f[17 * seg + g].append(next(ki))
        for g in (1, 5, 9, 13, 18, 22, 26, 30): f[g] += [next(vi), next(vi)]
        for seg, qt in enumerate((2, 0, 1)):
            for i in range(4): f[17 * seg + 4 * i + 3].append(self.cv(qt, i))
        ns = self.nextslot(); sr_ = self.slotregs()
        f[16] += [self.incpr]
        f[33] += [self.wrpr]
        f[35] += ns[:2]
        f[39] += [ns[2], sr_[0]]
        f[41] += [sr_[1]]
        f[43] += [self.rdla, sr_[2]]
        f[47] += tail
        f[50] += ["s_waitcnt lgkmcnt(0)", self.cmpla]
        na = self.o.get("noatt", 0)
        if na & 1: mf = ["s_nop 0"] * 51
        if na & 2: f = {i: [x for x in L if not x.startswith(("v_exp", "v_cvt"))] for i, L in f.items()}
        if na & 4: f = {i: [x for x in L if not x.startswith(("ds_read_b128", "ds_read_b64"))] for i, L in f.items()}
        self.weave(mf, f)

    def xmax(self, v, t):
        self.a(f"""v_mov_b32 v{t}, v{v}
        s_nop 1
        v_permlane16_swap_b32 v{v}, v{t}
        v_max_f32 v{v}, v{v}, v{t}
        v_mov_b32 v{t}, v{v}
        s_nop 1
        v_permlane32_swap_b32 v{v}, v{t}
        v_max_f32 v{v}, v{v}, v{t}""")

    def stage0(self):
        a = self.a
        mf = self.qk(0, 0, True) + self.qk(1, 0, True) + self.qk(2, 0, True)
        self.spread(mf, self.kreads(1) + self.vreads(1))
        self.emit([self.incpr, self.wrpr] + self.nextslot() + self.slotregs())
        for qt in range(3):
            s = S(qt); m = 59 + qt
            a(f"""v_max3_f32 v{m}, v{s}, v{s+1}, v{vMS+qt}
            v_max3_f32 v{m}, v{s+2}, v{s+3}, v{m}
            v_max3_f32 v{m}, v{s+4}, v{s+5}, v{m}
            v_max3_f32 v{m}, v{s+6}, v{s+7}, v{m}""")
            self.xmax(m, 62)
            for i in range(4): a(f"v_sub_f32 v{vNM+4*qt+i}, 0, v{m}")
            for i in range(8): a(f"v_sub_f32 v{s+i}, v{s+i}, v{m}")
        for qt in range(2):
            for i in range(8): a(self.ex(qt, i))
            a(self.rdla if qt else "s_nop 0")
            for i in range(4): a(self.cv(qt, i))

    def oflag(self, rnd):
        self.a(f"""s_and_b32 s{sT0}, s{sWID}, 0xfc
        s_lshl_b32 s{sT0}, s{sT0}, 13
        s_lshl_b32 s{sT1}, s{sC}, 2
        s_add_u32 s{sT1}, s{sT1}, s{sWAVE}
        s_lshl_b32 s{sT1}, s{sT1}, 7
        s_add_u32 s{sT0}, s{sT0}, s{sT1}
        s_add_u32 s{sT0}, s{sT0}, {2048*rnd}
        v_lshlrev_b32 v2, 13, v1
        v_mov_b32 v3, 1
        s_mov_b64 exec, 15
        s_waitcnt vmcnt(0)
        buffer_store_dword v3, v2, {sr(sFL)}, s{sT0} offen sc1
        s_mov_b64 exec, -1""")

    def final(self):
        a = self.a
        a(f"v_mov_b32 v3, 0\nbuffer_load_dword v{vCT}, v3, {sr(sDB)}, 0 offen sc1")
        mf = self.pv(0, 0) + self.pv(1, 0) + self.pv(2, 0)
        f = {i: [] for i in range(27)}
        for i in range(8): f[i].append(self.ex(2, i))
        for i in range(4): f[9 + i].append(self.cv(2, i))
        self.weave(mf, f)
        a(f"""s_mul_i32 s{sT2}, s{sIT}, 36864
        s_mul_i32 s{sT1}, s{sWAVE}, 12288
        s_add_u32 s{sT2}, s{sT2}, s{sT1}
        s_mov_b32 s{sT0}, {THR:#x}
        s_nop 3
        v_add_f32 v60, v{vL}, v{vL+4}
        v_add_f32 v60, v60, v{vL+8}
        v_cmp_nge_f32 vcc, s{sT0}, v60
        s_mov_b32 s{sT4}, 1
        s_cmp_lg_u32 s{sREDO}, 0
        s_cbranch_scc1 L_noflag
        s_cmp_eq_u64 vcc, 0
        s_cselect_b32 s{sT4}, 1, {1 if self.o.get("noatt") else 2}
L_noflag:""")
        n = 0
        for qt in range(3):
            a(f"v_rcp_f32 v60, v{vL+4*qt}\ns_nop 0\nv_mov_b32 v61, v60")
            for ks in range(4):
                b = Oa(qt, 2 * ks); t = vTMP + 4 * (n % 4); n += 1
                for i in range(4): a(f"v_pk_mul_f32 v[{b+2*i}:{b+2*i+1}], v[{b+2*i}:{b+2*i+1}], v[60:61]")
                for i in range(4): a(f"v_cvt_pk_bf16_f32 v{t+i}, v{b+2*i}, v{b+2*i+1}")
                a(f"buffer_store_dwordx4 {vr(t)}, v{vL16}, {sr(sO)}, s{sT2} offen offset:{ks*1024} {self.osc}")
            a(f"s_add_u32 s{sT2}, s{sT2}, 4096")

    def attention(self):
        a = self.a
        a("L_attn:")
        if self.o.get("cpf", 1):
            a(f"""s_getpc_b64 s[{sO}:{sO+1}]
L_pc:
            s_sub_u32 s{sO}, s{sO}, L_pc-{KN}
            s_subb_u32 s{sO+1}, s{sO+1}, 0
            s_and_b32 s{sO+1}, s{sO+1}, 0xffff
            s_mov_b32 s{sO+2}, L_end-{KN}
            s_mov_b32 s{sO+3}, 0x00020000
            s_lshr_b32 s{sT0}, s2, 3
            s_lshl_b32 s{sT0}, s{sT0}, 11
            v_lshlrev_b32 v59, 7, v0
            v_cmp_gt_u32 vcc, 16, v0
            s_and_saveexec_b64 s[{sT2}:{sT2+1}], vcc
            s_cbranch_execz L_nopf
            buffer_load_dword v255, v59, {sr(sO)}, s{sT0} offen
L_nopf:
            s_mov_b64 exec, -1""")
        a(f"""v_lshlrev_b32 v{vL16}, 4, v1
        s_mul_i32 s{sT0}, s{sWAVE}, 6144
        s_add_u32 s{sT0}, s{sT0}, {QP[0]}""")
        self.emit(self.xpat(59, 60, vXRq, vXRq + 1, f"s{sT0}") + self.wpat(59, 60, vW0q, vW1q, QP[0] + 18432))
        a(f"""s_lshl_b32 s{sT0}, s{sWAVE}, 8
        s_add_u32 s{sT0}, s{sT0}, {PROG}
        v_lshl_add_u32 v{vPA}, v1, 2, s{sT0}
        v_mov_b32 v{vLA}, {LAND}
        v_mov_b32 v{vPR}, 0""")
        for i in range(96): a(f"v_mov_b32 v{vO+i}, 0")
        for i in range(44): a(f"v_accvgpr_write_b32 a{aQF+44+i}, 0")
        self.stamp("iss")
        a("s_waitcnt lgkmcnt(0)\ns_barrier")
        self.stamp("bar")
        self.emit(self.common_srds())
        a(f"s_mul_i32 s{sT0}, s{sWID}, 73728\ns_add_u32 s{sT0}, s{sT0}, {O_OFF}")
        self.emit(self.srd(sO, 18, f"s{sT0}", 73728) + self.srd(sDB, 16, 0, 256))
        a(f"""v_and_b32 v59, 1, v3
        v_lshlrev_b32 v59, 1, v59
        v_xor_b32 v59, v59, v2
        v_lshlrev_b32 v59, 4, v59
        v_lshl_add_u32 v{vRKb}, v3, 10, v59
        v_lshl_add_u32 v{vRKb}, v4, 6, v{vRKb}
        v_lshlrev_b32 v59, 10, v2
        v_lshl_add_u32 v59, v3, 6, v59
        v_lshl_add_u32 v59, v4, 3, v59
        v_add_u32 v59, 8192, v59
        v_and_b32 v60, 1, v2
        v_lshl_add_u32 v{vRV0b}, v60, 5, v59
        v_xor_b32 v60, 1, v60
        v_lshl_add_u32 v{vRV1b}, v60, 5, v59
        v_mov_b32 v{vONE}, 0x3f803f80
        v_mov_b32 v{vONE+1}, 0x3f803f80
        v_mov_b32 v{vONE+2}, 0x3f803f80
        v_mov_b32 v{vONE+3}, 0x3f803f80
        v_mov_b32 v{vMS}, 0xff800000
        v_mov_b32 v{vMS+1}, 0xff800000
        v_mov_b32 v{vMS+2}, 0xff800000
        v_mov_b32 v62, s{sCS}
        v_mov_b32 v63, s{sCS}
        s_mov_b32 s{sSL}, 0
        s_cmp_lg_u32 s{sWAVE}, 0
        s_cbranch_scc1 L_noclr
        s_lshl_b32 s{sT0}, s{sWID}, 13
        v_lshlrev_b32 v2, 7, v1
        v_mov_b32 v3, 0
        buffer_store_dword v3, v2, {sr(sFL)}, s{sT0} offen sc1
L_noclr:
        s_mov_b32 s{sQD}, {2*PB}
        s_mov_b32 s{sCNT}, 0""")
        self.emit(self.slotregs())
        def qreads(k):
            ox = (k >> 1 & 1) * PB; o = ox + (k & 1) * 8192; F = aQF + 44 * (k & 1); L = []
            for t in range(8):
                L.append(f"ds_read_b64_tr_b16 {ar(F+4*t,2)}, v{vW0q} offset:{o+(t>>1)*256+8*(t&1)}")
                L.append(f"ds_read_b64_tr_b16 {ar(F+4*t+2,2)}, v{vW1q} offset:{o+(t>>1)*256+8*(t&1)}")
            return L[:4] + [f"ds_read_b128 {ar(F+32+4*qt)}, v{vXRq+(k&1)} offset:{ox+qt*2048}" for qt in range(3)] + L[4:]
        def qmf(k):
            F = aQF + 44 * (k & 1)
            return [f"{MF} {vr(Oa(qt,t))}, {ar(F+4*t)}, {ar(F+32+4*qt)}, {vr(Oa(qt,t))}" for t in range(8) for qt in range(3)]
        a(f"{self.rdla}\ns_waitcnt lgkmcnt(0)\n{self.cmpla}\n.p2align 3\nL_q0:")
        for k in range(4):
            self.await_(pre=False)
            if k == 0 : self.stampq()
            R = qreads(k)
            f = {i: R[2*i:2*i+2] for i in range(10)}
            f[9].append(self.incpr)
            f[10] = [self.wrpr]; f[self.o.get("qla", 14)] = [self.rdla]
            if k == 3:
                f[18] = [f"v_add_u32 v{vXRq+1}, s{sQD}, v{vXRq+1}"]; f[19] = [f"v_add_u32 v{vXRq}, s{sQD}, v{vXRq}"]; f[20] = [f"v_add_u32 v{vW0q}, s{sQD}, v{vW0q}"]
                f[21] = [f"v_add_u32 v{vW1q}, s{sQD}, v{vW1q}", f"s_sub_u32 s{sQD}, 0, s{sQD}"]
                f[22] = [f"s_add_u32 s{sCNT}, s{sCNT}, 1", f"s_cmp_lt_u32 s{sCNT}, 4"]
            f[23] = ["s_waitcnt lgkmcnt(0)", self.cmpla]
            self.weave(qmf(k - 1), f)
        a("s_cbranch_scc1 L_q0")
        self.emit(qmf(15))
        a(f"""s_cmp_lg_u32 s{sWAVE}, 0
        s_cbranch_scc1 L_noinit
        v_mov_b32 v2, 1
        v_mov_b32 v3, 0
        s_mov_b64 exec, 1
        s_waitcnt vmcnt(0)
        buffer_atomic_add v2, v3, {sr(sDB)}, 0 offen sc1
        s_mov_b64 exec, -1
L_noinit:
        s_nop 5""")
        for qt in range(3):
            for ks in range(4):
                b = Oa(qt, 2 * ks)
                for i in range(4): a(f"v_pk_mul_f32 v[{b+2*i}:{b+2*i+1}], v[{b+2*i}:{b+2*i+1}], v[62:63]")
                for i in range(4): a(f"v_cvt_pk_bf16_f32 v{Qf(qt,ks)+i}, v{b+2*i}, v{b+2*i+1}")
        self.stamp("q0")
        a("L_kfirst:")
        self.await_()
        self.emit(self.kreads(0) + [self.incpr, self.wrpr] + self.nextslot() + self.slotregs())
        self.await_()
        self.stamp("k0")
        a("L_item:")
        self.stage0()
        self.cstamp("st0", 0 if self.o.get("sm") in ("s", "c") else 1)
        a(f"""s_cmp_eq_u32 s{sIT}, 0
        s_cbranch_scc1 L_nopub""")
        self.oflag(0)
        self.stamp("ofl")
        a(f"L_nopub:\ns_waitcnt lgkmcnt(0)\n{self.cmpla}")
        self.stage(1, first=True, tail=[f"s_mov_b32 s{sCNT}, 0"])
        self.cstamp("st1", 1)
        a(".p2align 3\nL_loop:")
        self.stage(0)
        self.stage(1, tail=[f"s_add_u32 s{sCNT}, s{sCNT}, 1", f"s_cmp_lt_u32 s{sCNT}, 15"])
        a("s_cbranch_scc1 L_loop")
        self.cstamp("fin", 1 if self.o.get("sm") == "e" else 0)
        self.final()
        self.cstamp("epi", 0)
        a(f"""v_mov_b32 v2, s{sT4}
        s_cmp_lg_u32 s{sIT}, 0
        s_cbranch_scc1 L_last
        s_cmp_lg_u32 s{sWAVE}, 0
        s_cbranch_scc1 L_cntok
        s_waitcnt vmcnt(12)
L_cnt:
        v_readfirstlane_b32 s{sT0}, v{vCT}
        s_and_b32 s{sT0}, s{sT0}, 255
        s_cbranch_scc0 L_cntok""")
        self.emit(self.budget("L_cntok"))
        a(f"""v_mov_b32 v3, 0
        buffer_load_dword v{vCT}, v3, {sr(sDB)}, 0 offen sc1
        s_waitcnt vmcnt(0)
        s_branch L_cnt
L_cntok:
        s_lshl_b32 s{sT0}, s{sWAVE}, 2
        s_add_u32 s{sT0}, s{sT0}, {MISC}
        v_mov_b32 v3, s{sT0}
        ds_write_b32 v3, v2
        v_and_b32 v3, 3, v1
        v_min_u32 v3, 2, v3
        v_lshlrev_b32 v3, 2, v3
        v_add_u32 v3, {MISC}, v3""")
        self.await_()
        a("L_done:")
        self.emit(self.budget("L_doneok"))
        a(f"""ds_read_b32 v2, v3
        s_waitcnt lgkmcnt(0)
        v_cmp_eq_u32 vcc, 0, v2
        s_cbranch_vccnz L_done
L_doneok:
        v_cmp_eq_u32 vcc, 2, v2
        s_cbranch_vccnz L_redo""")
        self.stamp("it0")
        a(f"s_mul_i32 s{sT0}, s{sWAVE}, 12288\ns_add_u32 s{sT0}, s{sT0}, {HAND1}\nv_add_u32 v2, s{sT0}, v{vL16}")
        for qt in range(3):
            for ks in range(4): a(f"ds_read_b128 {vr(Qf(qt,ks))}, v2 offset:{(qt*4+ks)*1024}")
        a(f"""s_mov_b32 s{sIT}, 1
        s_mov_b32 s{sREDO}, 0
        v_mov_b32 v{vMS}, 0xff800000
        v_mov_b32 v{vMS+1}, 0xff800000
        v_mov_b32 v{vMS+2}, 0xff800000
        s_waitcnt lgkmcnt(0)
        s_branch L_item
L_last:
        s_cmp_eq_u32 s{sT4}, 1
        s_cbranch_scc1 L_ok1
        v_mov_b32 v3, {MISC+16}
        ds_write_b32 v3, v2
L_ok1:""")
        self.stamp("it1")
        a(f"v_mov_b32 v{vPR}, {16+68}")
        self.emit(self.tail_wregs())
        self.await_()
        self.emit(self.pulls(0))
        self.b1("L_redo")
        self.emit(self.tail_regs())
        if self.o.get("fb2", 1): self.oflag(1); self.stamp("ack")
        a("s_barrier")
        self.stamp("b2")
        self.emit(self.pulls(1))
        a(f"""s_mul_i32 s{sT0}, s{sWAVE}, 18432
        s_add_u32 s{sT0}, s{sT0}, {ST}
        s_cmp_eq_u32 s{sWAVE}, 2
        s_cselect_b32 s{sT0}, 49152, s{sT0}
        v_add_u32 v2, s{sT0}, v{vL16}""")
        for f in range(18): a(f"ds_read_b128 {vr(vTA+4*f)}, v2 offset:{f*1024}")
        if not self.o.get("fb2", 1): self.oflag(1); self.stamp("ack")
        a("s_branch L_tail")
        a(f"""L_redo:
        s_waitcnt vmcnt(0)
        s_barrier
        v_mov_b32 v2, 0
        v_lshlrev_b32 v3, 2, v1
        v_add_u32 v3, {MISC}, v3
        ds_write_b32 v3, v2
        s_lshl_b32 s{sT0}, s{sIT}, 5
        s_add_u32 s{sT0}, s{sT0}, 16
        v_mov_b32 v{vPR}, s{sT0}
        v_mov_b32 v{vRK}, v{vRKb}
        {self.wrpr}
        s_mov_b32 s{sCNT}, 0
        s_mov_b32 s{sREDO}, 1
        v_mov_b32 v{vMS}, 0xff800000
        v_mov_b32 v{vMS+1}, 0xff800000
        v_mov_b32 v{vMS+2}, 0xff800000
L_mloop:
        s_barrier""")
        self.emit(self.kreads(0))
        a("s_waitcnt lgkmcnt(0)\ns_barrier")
        self.emit(self.qk(0, 0, True) + self.qk(1, 0, True) + self.qk(2, 0, True))
        a("s_nop 7")
        for qt in range(3):
            s = S(qt); m = vMS + qt
            for i in range(4): a(f"v_max3_f32 v{m}, v{s+2*i}, v{s+2*i+1}, v{m}")
        a(f"""s_add_u32 s{sCNT}, s{sCNT}, 1
        s_cmp_lt_u32 s{sCNT}, 32
        s_cbranch_scc1 L_mloop
        s_lshl_b32 s{sSL}, s{sIT}, 16""")
        self.emit(self.slotregs())
        a("s_branch L_kfirst")
    def cstamp(self, name, it):
        if self.o.get("stamps"):
            l = self.lab("cs")
            self.a(f"s_cmp_lg_u32 s{sIT}, {it}\ns_cbranch_scc1 {l}")
            self.stamp(name)
            self.a(l + ":")
    def stampq(self):
        if self.o.get("stamps"):
            self.a(f"s_cmp_lg_u32 s{sCNT}, 0\ns_cbranch_scc1 L_nost1")
            self.stamp("c0")
            self.a(f"L_nost1:\ns_cmp_lg_u32 s{sCNT}, 2\ns_cbranch_scc1 L_nost2")
            self.stamp("c8")
            self.a(f"L_nost2:\ns_cmp_lg_u32 s{sCNT}, 1\ns_cbranch_scc1 L_nost3")
            self.stamp("c4")
            self.a(f"L_nost3:\ns_cmp_lg_u32 s{sCNT}, 3\ns_cbranch_scc1 L_nost4")
            self.stamp("c12")
            self.a("L_nost4:")
    def b1(self, lab):
        self.a(f"""s_waitcnt lgkmcnt(0)
        s_barrier
        v_mov_b32 v4, {MISC+16}
        ds_read_b32 v4, v4
        s_waitcnt lgkmcnt(0)
        v_cmp_ne_u32 vcc, 0, v4
        s_cbranch_vccnz {lab}""")
        self.stamp("b1")

    def q_push(self, L, tag):
        self.q += [tag] * sum(map(isvm, L))
        return L
    def q_wait(self, loc, tag):
        if self.dry:
            idx = [i for i, t in enumerate(self.q) if (t in tag if isinstance(tag, list) else t == tag)]
            n = len(self.q) - 1 - idx[-1] if idx else 63
            self.cnt[loc] = min(self.cnt.get(loc, 63), n)
            return []
        return [f"s_waitcnt vmcnt({self.cnt[loc]})"]
    def pub_abs(self, val):
        self.pub = val
        return [f"v_mov_b32 v{vPB}, {val}", f"ds_write_b32 v{vLA}, v{vPB}"]
    def pub_inc(self, val):
        if self.dry: assert self.pub is None or val == self.pub + 1, (val, self.pub)
        self.pub = val
        return [f"v_add_u32 v{vPB}, 1, v{vPB}", f"ds_write_b32 v{vLA}, v{vPB}"]
    rdpr = f"ds_read_b32 v{vPV}, v{vPA}"
    def pcheck(self, need, redo=False):
        if self.dry: return []
        l = self.lab("pc")
        o = [f"{l}:"] + self.budget(l + "r")
        if redo: o += [f"v_and_b32 v30, 3, v1", f"v_lshlrev_b32 v30, 2, v30", f"v_add_u32 v30, {MISC}, v30", "ds_read_b32 v30, v30"]
        o += [self.rdpr, "s_waitcnt lgkmcnt(0)"]
        if redo: o += ["v_cmp_eq_u32 vcc, 2, v30", "s_cbranch_vccnz L_hredo"]
        o += [f"v_cmp_gt_u32 vcc, {need}, v{vPV}", f"s_cbranch_vccnz {l}", f"s_branch {l}r"]
        self.ool += o
        return ["s_waitcnt lgkmcnt(0)", f"v_cmp_gt_u32 vcc, {need}, v{vPV}", f"s_cbranch_vccnz {l}", f"{l}r:"]
    def kv_m0(self, j): return f"s_add_u32 m0, s{sSL}, {j*4096}"
    def kv_so(self, j): return f"s_add_u32 s{sT0}, s{sOFF}, {j*4096}" if j < 2 else f"s_sub_u32 s{sT0}, s{sOFF}, {16384 - j*4096}"
    def kv_d(self, j): return [self.dma(vKV + (i & 1), sK if j < 2 else sV, sT0, i * 1024, self.pol) for i in range(4)]
    def kv_adv(self): return [f"s_add_u32 s{sOFF}, s{sOFF}, {0 if self.o.get('kvfix') else 8192}", f"s_add_u32 s{sB}, s{sB}, 1"] + self.nextslot()
    def position(self, loc, cg=None, tag=None, pre=[], fill=None, check=True, late=[], fill2=None):
        G = self.G; j = G & 3; nj = (G + 1) & 3
        if G in (4, 8, 12, 16, 128, 136, 144) and (G < 20 or loc[0] in ("f0", ("pl", 34), ("pl", 36))): self.stamp(f"G{G}")
        g = [[] for _ in range(12)]
        g[0] += pre
        D = self.q_push(self.kv_d(j), ("g", G))
        for i in range(4): g[i].append(D[i])
        small = self.kv_adv() if j == 3 else []
        if cg:
            if cg[0]: g[3].append(cg[0])
            for i, x in enumerate(self.q_push(cg[1], tag)): g[4 + i].append(x)
        self.G += 1
        at = [0, 1, 2, 5, 5]
        for x in small: g[at.pop(0)].append(x)
        g[6].append(self.kv_so(nj))
        if nj == 0 and check: g[8].append(self.rdpr)
        g[8].append(self.kv_m0(nj))
        gd = G - self.D
        if gd >= 0:
            g[9] += self.q_wait(loc, ("g", gd))
            if gd & 3 == 3 and self.pubok:
                P = self.pub_inc(17 + (gd >> 2)); g[9].append(P[0]); g[10].append(P[1])
        g[10] += late
        if nj == 0 and check: g[11] += self.pcheck(f"s{sB}")
        for fill in (fill, fill2):
            for i in range(11 if nj == 0 and check else 12):
                while fill and len(g[i]) < 2:
                    x = fill.pop(0)
                    if x.startswith("ds_") and g[i] and not g[i][0].startswith(("ds_", "buffer_", "s_waitcnt")): g[i].insert(0, x)
                    else: g[i].append(x)
        return g
    def flat(self, G):
        L = []
        for x in (x for g in G for x in g):
            if isvm(x) and L and " m0," in L[-1]: L.append("s_nop 0")
            L.append(x)
        return L + (["s_nop 0"] if L and " m0," in L[-1] else [])
    def plain(self, loc, extra=[], check=True):
        n = len(extra)
        for j in range(4):
            self.emit(self.flat(self.position((loc, j), check=check, late=extra[j * n // 4:(j + 1) * n // 4])))
    def chunk_addr(self, h):
        a_ = sXA + h
        L = [f"s_add_u32 s{sT4}, s{sROT}, s{sKS}", f"s_bfe_u32 s{sT3}, s{sT4}, 0x20002", f"s_and_b32 s{sT4}, s{sT4}, 3"]
        if h == 0: L += [f"s_mul_i32 s{sXB}, s{sT3}, s{sP1}", f"s_mul_i32 s{sT1}, s{sT4}, s{sP2}", f"s_add_u32 s{sXB}, s{sXB}, s{sT1}"]
        L += [f"s_mul_i32 s{a_}, s{sT3}, s{sP3}", f"s_mul_i32 s{sT1}, s{sT4}, s{sP4}", f"s_add_u32 s{a_}, s{a_}, s{sT1}",
              f"s_add_u32 s{a_}, s{a_}, s{sP5}", f"s_add_u32 s{sKS}, s{sKS}, 1"]
        if self.o.get("noeng", 0) & 1 and h == 0: L.append(f"s_mov_b32 s{sXB}, {OOB:#x}")
        if self.o.get("noeng", 0) & 2: L.append(f"s_mov_b32 s{a_}, {OOB:#x}")
        return L
    def bgroups(self, base, so, pol):
        return [(f"s_mov_b32 m0, {base + gi*4096}", [self.dma(vDX + i, sEB, so, i * 1024, pol) for i in range(4 if gi < 4 else 2)]) for gi in range(5)]
    def bgroup(self, gi):
        return self.bgroups(CBX, sXB + 1, self.P("bpol"))[gi], [f"s_add_u32 s{sXB+1}, s{sXB}, s{sG[gi]}"]
    def agroups(self, m0, so, pol, so1=None):
        return [(m0(h), [self.dma(vDW + i, sEA, so1 if h and so1 else so, i * 1024, pol) for i in range(4)]) for h in range(2)]
    poll0 = f"buffer_load_dword v{vFV}, v{vFA}, {sr(sFL)}, s{sT2} offen sc1"
    def hacc(self, t, qt):
        return ar(aHACC + 36 * t + 4 * qt) if t < 2 else vr(vHACC + 36 * (t - 2) + 4 * qt)
    def areads(self, p):
        F = aHF + 68 * p; L = []
        for t in range(8):
            L.append(f"ds_read_b64_tr_b16 {ar(F+4*t,2)}, v{vW0} offset:{p*8192+(t>>1)*256+8*(t&1)}")
            L.append(f"ds_read_b64_tr_b16 {ar(F+4*t+2,2)}, v{vW1} offset:{p*8192+(t>>1)*256+8*(t&1)}")
        return L
    def breads(self, qts):
        return [f"ds_read_b128 {ar((aB2 if e else aHF+32)+4*qt)}, v{vXR1 if e else vXR} offset:{qt*2048}" for qt in qts for e in range(2)]
    def hmf(self, p):
        F = aHF + 68 * p
        return [f"{MF} {self.hacc(t,qt)}, {ar(F+4*t)}, {ar(F+32+4*qt)}, {self.hacc(t,qt)}" for t in range(8) for qt in range(9)]
    def half(self, loc, k, tail=[]):
        h = k & 1
        self.e("s_waitcnt lgkmcnt(0)")
        if loc == "b0" and self.o.get("sm") in ("g", "s", "r", "e") and not self.dry:
            self.e(f"s_lshl_b32 s{sT4}, s{sIT}, 4\ns_add_u32 s{sT4}, s{sT4}, s{sCNT}")
            for ph in range(2):
                for n in (0, 3, 6):
                    self.e(f"s_cmp_lg_u32 s{sT4}, {16*ph+n}\ns_cbranch_scc1 L_gs{ph}{n}")
                    self.stamp(f"g{ph}{n}")
                    self.e(f"L_gs{ph}{n}:")
        G = [None] * 6; T = [None] * 6; X = [[] for _ in range(6)]
        if k < 16:
            A_ = self.agroups(lambda x: f"s_mov_b32 m0, {CBW + h*8192 + x*4096}", sXA + h, self.P("apol"), sT4)
            for x, p in enumerate((2, 4) if h == 0 else (0, 2)):
                G[p] = A_[x]; T[p] = ("ca", self.ph, k)
                if x: X[p] = [f"s_add_u32 s{sT4}, s{sXA+h}, s{sP6}"]
            for p, gi in ((0, 2), (1, 3), (3, 4)) if h == 0 else ((4, 0), (5, 1)):
                G[p], X[p] = self.bgroup(gi); T[p] = ("xa" if gi < 3 else "xb", self.ph, (k + 1) >> 1)
            if h == 0: G[3] = (G[3][0], G[3][1] + [self.poll0])
        Z = []
        if k < 2:
            Z = [f"v_accvgpr_write_b32 a{aHACC+i}, 0" for i in range(36 * k, 36 * k + 36)] + [f"v_mov_b32 v{vHACC+i}, 0" for i in range(108 * k, 108 * k + 108)]
        F = self.chunk_addr(1 - h) if k < 16 else []
        F2 = [f"v_accvgpr_mov_b32 a{aHF+68+32+i}, a{aB2+i}" for i in range(36)] if h == 0 and k >= 2 else []
        gaps = []
        for p in range(6):
            pre = X[p]; late = Z[p * 24:(p + 1) * 24]
            if p == 2: assert not F
            if h and k < 16 and p in (2, 3):
                t = "xa" if p == 2 else "xb"
                pre += self.q_wait((loc, t), (t, self.ph, k >> 1)); F += self.breads(range(6) if p == 2 else range(6, 9))
            if p == 4 and 1 <= k <= 16:
                assert not F
                if h:
                    l = "L_fw" + loc
                    C = [f"v_cmp_ne_u32 vcc, 1, v{vFV}", "s_nop 1", f"v_cndmask_b32 v30, 64, v{vORD}, vcc", f"v_cmp_gt_u32 vcc, s{sKS}, v30", f"s_cbranch_vccnz {l}"]
                    if not self.dry: self.ool += [l + ":"] + self.budget(l + "r") + [self.poll0, "s_waitcnt vmcnt(0)"] + C + [f"s_branch {l}r"]
                    gaps[-2] += self.q_wait((loc, "pw"), ("poll", self.ph, k - 1)) + C[:1] + (["s_nop 0"] if k < 2 or self.o.get("nomf") else [])
                    gaps[-1] += ["s_waitcnt lgkmcnt(0)"] + C[2:] + [l + "r:"]
                pre += self.q_wait((loc, "r"), ("ca", self.ph, k - 1)); F += self.areads(1 - h)
            gaps += self.position((loc, p), G[p], T[p], pre, F, late=late, fill2=F2)
            if h == 0 and p == 3 and k < 16: self.q[-1] = ("poll", self.ph, k)
        gaps[-2] += F + F2
        gaps[-1] += tail
        if k >= 2 and not self.o.get("nomf"): self.weave(self.hmf(h), dict(enumerate(gaps)))
        else: self.emit(self.flat(gaps))
    def engine(self):
        self.e(f"L_eng:\ns_mov_b32 s{sKS}, 0\ns_lshl_b32 s{sT2}, s{sWID}, 13")
        self.emit(self.chunk_addr(0))
        for gi in range(2):
            (m0, D), X = self.bgroup(gi)
            self.emit([m0] + X + self.q_push(D, ("xa", self.ph, 0)))
        self.e(self.kv_m0(0))
        self.half("p0", 0)
        self.half("p1", 1, tail=[f"s_mov_b32 s{sCNT}, 0"])
        self.e(".p2align 3\nL_eloop:")
        for it in range(7 if self.dry else 1):
            self.half("b0", 2 + 2 * it)
            self.half("b1", 3 + 2 * it, tail=[f"s_add_u32 s{sCNT}, s{sCNT}, 1", f"s_cmp_lt_u32 s{sCNT}, 7"])
        self.e("s_cbranch_scc1 L_eloop")
        if not self.dry: self.G += 72; self.pub = None
        self.half("e0", 16)
        self.half("e1", 17)

    def helper(self):
        D = self.D
        self.q = []; self.G = 0; self.pubok = False; self.ph = 0; self.pub = 0
        e = self.e
        e(f"""v_lshrrev_b32 v30, 3, v1
        v_and_b32 v31, 7, v1
        v_xor_b32 v31, v31, v30
        v_lshlrev_b32 v31, 4, v31
        v_lshl_add_u32 v{vDX}, v30, 10, v31
        v_lshlrev_b32 v30, 13, v3
        v_lshl_add_u32 v30, v2, 6, v30
        v_lshl_add_u32 v{vDW}, v4, 4, v30
        v_xor_b32 v31, 2, v4
        v_lshl_add_u32 v{vDW+1}, v31, 4, v30
        s_mul_i32 s{sT0}, s{sBB}, 147456
        s_and_b32 s{sT1}, s{sWID}, 15
        s_lshl_b32 s{sT1}, s{sT1}, 9
        s_mov_b32 s{sP1}, 256
        s_mov_b32 s{sP2}, 64
        s_mov_b32 s{sP3}, {1 << 20}
        s_mov_b32 s{sP4}, {1 << 18}
        s_mov_b32 s{sP5}, 0
        s_mov_b32 s{sP6}, 131072""")
        for i in range(1, 4): e(f"v_add_u32 v{vDX+i}, {i*7168}, v{vDX}")
        e(f"""v_add_u32 v{vDW+2}, {2*31744}, v{vDW}
        v_add_u32 v{vDW+3}, {3*31744}, v{vDW+1}
        v_add_u32 v{vDW+1}, 31744, v{vDW+1}
        s_waitcnt lgkmcnt(0)""")
        self.stamp("karg")
        self.emit(self.srd(sEB, 4, f"s{sT0}", 147456) + self.srd(sEA, 10, f"s{sT1}", 4194304 - 7680))
        def q0x(p):
            G = [[m, f"s_add_u32 s{sT2}, s{sT2}, 32768"] + D for m, D in self.bgroups(QP[p & 3], sT2, self.P("cpol"))]
            G[0] = [f"s_add_u32 s{sT4}, s{sROT}, {2*p}", f"s_and_b32 s{sT4}, s{sT4}, 15", G[0][0], f"s_lshl_b32 s{sT2}, s{sT4}, 6"] + G[0][2:]
            return [(("x", p), g) for g in G]
        def q0w(c):
            ad = [f"s_add_u32 s{sT4}, s{sROT}, {c}", f"s_and_b32 s{sT4}, s{sT4}, 15", f"s_lshl_b32 s{sT3}, s{sT4}, 18"]
            G = self.agroups(lambda x: f"s_mov_b32 m0, {QP[c >> 1 & 3] + 18432 + (c & 1)*8192 + x*4096}", sT3, self.P("cpol"), sT4)
            return [(("w", c), ad[:2] + [G[0][0], ad[2]] + G[0][1]), (("w", c), [G[1][0], f"s_add_u32 s{sT4}, s{sT3}, s{sP6}"] + G[1][1])]
        seq = []
        for p in range(8): seq += (["chk%d" % (2 * p - 6)] if p >= 4 else []) + q0x(p) + q0w(2 * p) + q0w(2 * p + 1)
        NI = self.o.get("ni", 9)
        for t, g in seq[:NI]: self.emit(self.q_push(g, t))
        e(f"""v_lshlrev_b32 v{vL16}, 4, v1
        v_mov_b32 v248, 0
        v_mov_b32 v249, 0
        v_mov_b32 v250, 0
        v_mov_b32 v251, 0
        v_add_u32 v30, {SYNC+256}, v{vL16}
        v_lshlrev_b32 v{vLA}, 2, v1
        v_add_u32 v{vLA}, {LAND}, v{vLA}
        ds_write_b128 v30, v[248:251]
        ds_write_b32 v{vLA}, v248""")
        e(f"s_lshl_b32 s{sT0}, s{sWID}, 19")
        self.emit(self.srd(sK, 6, f"s{sT0}", 524288) + self.srd(sV, 8, f"s{sT0}", 524288))
        e(f"""v_lshlrev_b32 v30, 8, v3
        v_lshl_add_u32 v30, v2, 6, v30
        v_xor_b32 v31, 2, v4
        v_min_u32 v{vPA}, 2, v4
        v_lshl_add_u32 v{vKV+1}, v31, 4, v30
        v_lshl_add_u32 v{vKV}, v4, 4, v30
        v_lshlrev_b32 v{vPA}, 8, v{vPA}
        v_add_u32 v{vPA}, {PROG}, v{vPA}
        s_mov_b32 s{sOFF}, 0
        s_mov_b32 s{sSL}, 0
        s_mov_b32 s{sB}, 10
        v_mov_b32 v{vORD}, 64""")
        self.stamp("iss")
        e("s_waitcnt lgkmcnt(0)\ns_barrier")
        self.stamp("bar")
        setup = self.common_srds() + self.xpat(30, 31, vXR, vXR1, CBX) + self.wpat(30, 31, vW0, vW1, CBW) + \
                [f"v_mov_b32 v{vSC}, s{sCS}", f"v_mov_b32 v{vSC+1}, s{sCS}", "v_and_b32 v30, 3, v1", "v_min_u32 v30, 2, v30", "v_and_b32 v31, 12, v1",
                 "v_add_u32 v30, v30, v31", f"v_lshlrev_b32 v{vFA}, 7, v30"]
        self.emit(setup)
        done = [0]
        def q0pub(W):
            while done[0] < 16:
                c = done[0]
                idx = [i for i, t in enumerate(self.q) if t == ("w", c)]
                if len(idx) < 8 or len(self.q) - 1 - idx[-1] < W: break
                self.emit(self.q_wait(("q0", c), ("w", c)) + self.pub_abs(c + 1))
                self.stamp(f"c{c}")
                done[0] += 1
        WQ = self.o.get("wq", 40)
        for it in seq[NI:]:
            if False: pass
            elif isinstance(it, str):
                assert done[0] >= int(it[3:])
                self.emit([self.rdpr] + self.pcheck(int(it[3:])))
            else:
                self.emit(self.q_push(it[1], it[0])); q0pub(WQ)
        self.stamp("c15i")
        pf = self.o.get("pf", 3); st = 7
        if pf & 1:
            e(f"""s_lshr_b32 s{sT1}, s2, 3
            s_lshl_b32 s{sPO}, s{sT1}, 17
            s_lshl_b32 s{sT0}, s{sKQ}, 11""")
            e(f"""v_lshrrev_b32 v30, 3, v1
            v_lshlrev_b32 v30, 13, v30
            v_bfe_u32 v31, v1, 1, 2
            v_lshl_add_u32 v30, v31, 9, v30
            v_and_b32 v31, 1, v1
            v_lshl_add_u32 v30, v31, 7, v30
            v_add_u32 v30, 256, v30""")
            L = self.srd(sPF, 10, f"s{sT0}", 4194304 - 6144)
            for i in range(4 >> (st - 6)): L += [f"buffer_load_dword v{vHT+1}, v30, {sr(sPF)}, s{sPO} offen", f"s_add_u32 s{sPO}, s{sPO}, {512 << st}"]
            self.emit(self.q_push(L, "pf")); q0pub(WQ)
        if pf & 2:
            half = self.o.get("pfh", 1)
            e(f"""s_lshl_b32 s{sT0}, s{sKQ}, 20
            s_lshr_b32 s{sT1}, s2, 3
            s_lshl_b32 s{sT1}, s{sT1}, 15
            s_add_u32 s{sT0}, s{sT0}, s{sT1}
            s_and_b32 s{sPO}, s2, {half}
            s_lshl_b32 s{sPO}, s{sPO}, 14
            v_lshlrev_b32 v30, 7, v1""")
            L = self.srd(sPF, 12, f"s{sT0}", 32768)
            for i in range(4 >> half): L += [f"buffer_load_dword v{vHT+1}, v30, {sr(sPF)}, s{sPO} offen", f"s_add_u32 s{sPO}, s{sPO}, 8192"]
            self.emit(self.q_push(L, "pf")); q0pub(WQ)
        q0pub(self.o.get("wq2", 24))
        self.emit([self.kv_m0(0), self.kv_so(0), f"s_mov_b32 s{sP5}, 256"] + [f"s_mov_b32 s{sG[i]}, {i*32768}" for i in range(5)])
        while self.G < 20:
            if self.G & 3 == 3: assert done[0] >= (self.G >> 2) + 11
            self.emit(self.flat(self.position(("q0p", self.G))))
            q0pub(max(4, WQ - 8 * self.G))
            if done[0] == 16 and not self.pubok:
                assert self.G - 1 - D < 3
                self.pubok = True; self.stamp("q0")
        self.stamp("G20")
        self.emit(self.pcheck(16))
        self.engine()
        e(f"s_cmp_lg_u32 s{sIT}, 0\ns_cbranch_scc1 L_wph")
        save = (list(self.q), self.G)
        assert self.G == 128
        F = [f"v_add_u32 v30, {HAND1}, v{vL16}", "s_nop 3"]
        n = 0
        for ks in (1, 2, 3, 0):
            for qt in range(9):
                if ks:
                    b0 = vHACC + 36 * (2 * ks - 2) + 4 * qt; b1 = b0 + 36
                else:
                    b0 = vHACC + 8 * (qt % 2); b1 = b0 + 4
                    for i in range(4): F += [f"v_accvgpr_read_b32 v{b0+i}, a{aHACC+4*qt+i}", f"v_accvgpr_read_b32 v{b1+i}, a{aHACC+36+4*qt+i}"]
                F += [f"v_pk_mul_f32 v[{b}:{b+1}], v[{b}:{b+1}], v[{vSC}:{vSC+1}]" for b in (b0, b0 + 2, b1, b1 + 2)]
                t = vHT + 4 * (n % 2); n += 1
                F += [f"v_cvt_pk_bf16_f32 v{t+i}, v{b}, v{b+1}" for i, b in enumerate((b0, b0 + 2, b1, b1 + 2))]
                F += [f"ds_write_b128 v30, {vr(t)} offset:{(qt*4+ks)*1024}"]
        assert D >= 1
        self.plain("f0", F[:len(F) // 2]); self.plain("f1", F[len(F) // 2:])
        SW = [f"s_lshl_b32 s{sT2}, s{sKQ}, 20", f"s_lshl_b32 s{sT3}, s{sC}, 8", f"s_add_u32 s{sT2}, s{sT2}, s{sT3}"] + self.srd(sEA, 12, f"s{sT2}", 1048576) + \
             [f"s_sub_u32 s{sEA+2}, s{sEA+2}, s{sT3}"] + [f"s_mov_b32 s{sEB+i}, s{sOB+i}" for i in range(3)] + \
             [f"s_mov_b32 s{sP1}, 73728", f"s_mov_b32 s{sP2}, 1024", f"s_mov_b32 s{sP3}, {1 << 18}", f"s_mov_b32 s{sP4}, {1 << 15}",
              f"s_mov_b32 s{sP5}, 0", f"s_mov_b32 s{sP6}, 8192", f"v_add_u32 v{vXR}, {CBX}, v{vL16}", f"v_add_u32 v{vXR1}, {CBX + 1024}, v{vL16}",
              "v_bfe_u32 v30, v1, 2, 2", "v_lshlrev_b32 v30, 10, v30", "v_lshrrev_b32 v31, 4, v1", "v_lshl_add_u32 v30, v31, 6, v30",
              "v_and_b32 v31, 3, v1", f"v_lshl_add_u32 v{vDW}, v31, 4, v30", "v_xor_b32 v31, 2, v31", f"v_lshl_add_u32 v{vDW+1}, v31, 4, v30",
              f"v_add_u32 v{vDW+2}, 2048, v{vDW}", f"v_add_u32 v{vDW+3}, 17408, v{vDW+1}", f"v_add_u32 v{vDW+1}, 15360, v{vDW+1}",
              f"s_lshl_b32 s{sROT}, s{sC}, 2", "v_bfe_u32 v30, v1, 2, 2", f"v_subrev_u32 v30, s{sC}, v30", "v_and_b32 v30, 3, v30", f"v_lshlrev_b32 v{vORD}, 2, v30"]
        SW += [f"v_add_u32 v{vDX+i}, {O_OFF + (i >> 1)*2048}, v{vL16}" for i in range(4)] + [f"s_mov_b32 s{sG[4]}, 32768"]
        for gi in range(4): SW += [f"s_add_u32 s{sT1}, s{sKQ}, {gi+1}", f"s_and_b32 s{sT1}, s{sT1}, 3", f"s_lshl_b32 s{sG[gi]}, s{sT1}, 13"]
        for m in range(34, self.S0): self.plain(("pl", m), SW if m == 34 else [])
        self.stamp("s0")
        e(f"L_s0:\n{self.rdpr}")
        self.emit(self.pcheck(51, redo=True))
        e(f"s_mov_b32 s{sIT}, 1")
        self.stamp("it0")
        e("s_branch L_eng")
        if self.dry:
            self.ph = 1
            self.engine()
        else:
            self.G += 108; self.pub = None
        assert self.G == 4 * (self.S0 + 27) and 35 <= self.S0 <= 38
        e("L_wph:")
        for m in range(self.S0 + 27, 65): self.plain(("pz", m))
        G65 = self.G
        self.stamp("G260")
        def wblock(p, slot=None):
            L = []
            for x in range(2):
                n = 2 * p + x
                m0 = (lambda h: f"s_add_u32 m0, s{sSL}, {x*8192 + h*4096}") if slot is None else (lambda h: f"s_mov_b32 m0, {slot*SLOT + x*8192 + h*4096}")
                G = self.agroups(m0, sT3, self.P("wpol"), sT4)
                o = ((n >> 2) << 18) + ((n & 3) << 15) + 131072
                L += [G[0][0], f"s_mov_b32 s{sT3}, {o}"] + G[0][1] + [G[1][0], f"s_mov_b32 s{sT4}, {o + 8192}"] + G[1][1]
            return L
        HW = [f"v_add_u32 v30, {ST}, v{vL16}", "s_nop 4"] + [f"ds_write_b128 v30, {self.hacc(t, i)} offset:{(t*9+i)*1024}" for t in range(4) for i in range(9)]
        for p in range(7):
            L = ([self.rdpr] + self.pcheck(f"s{sB}") if p else []) + self.q_push(wblock(p), ("w", p)) + [f"s_add_u32 s{sB}, s{sB}, 1"] + self.nextslot()
            if p < 2: L += self.q_wait(("wp", p), ("g", G65 - 5 + 4 * p)) + self.pub_abs(16 + 64 + p)
            if p < 4: L += HW[p * 10:(p + 1) * 10]
            if p == 4: L += self.q_wait(("wp", p), ("w", 3)) + self.pub_abs(16 + 69)
            self.emit(L)
            if p == 4: self.stamp("w4")
        self.stamp("it1")
        self.emit(self.tail_wregs() + self.pulls(0))
        if not self.dry: self.b1("L_hredo")
        self.emit(wblock(7, 2) + [f"v_add_u32 v30, 49152, v{vL16}"] + [f"ds_write_b128 v30, {self.hacc(t, i)} offset:{((t-4)*9+i)*1024}" for t in (4, 5) for i in range(9)])
        self.emit(self.tail_regs())
        e("s_waitcnt vmcnt(0) lgkmcnt(0)\ns_barrier")
        self.emit(self.pulls(1))
        e("s_branch L_tail")
        e(f"""L_hredo:
        s_waitcnt vmcnt(0)
        s_barrier
        s_lshl_b32 s{sB}, s{sIT}, 5
        s_add_u32 s{sB}, s{sB}, 10
        s_add_u32 s{sT0}, s{sB}, {6 - (D + 3) // 4}
        v_mov_b32 v{vPB}, s{sT0}
        ds_write_b32 v{vLA}, v{vPB}
        s_mov_b32 s{sCNT}, 0
        s_lshl_b32 s{sOFF}, s{sIT}, 18
        s_mov_b32 s{sSL}, 0
L_hmloop:""")
        for j in range(2): self.emit([self.kv_m0(j), self.kv_so(j)] + self.kv_d(j))
        e(f"""s_add_u32 s{sOFF}, s{sOFF}, 8192
        s_waitcnt vmcnt(0) lgkmcnt(0)
        s_barrier
        s_barrier
        s_add_u32 s{sCNT}, s{sCNT}, 1
        s_cmp_lt_u32 s{sCNT}, 32
        s_cbranch_scc1 L_hmloop
        s_lshl_b32 s{sOFF}, s{sIT}, 18
        s_lshl_b32 s{sSL}, s{sIT}, 16
        s_cmp_eq_u32 s{sIT}, 0
        s_cselect_b32 s{sCNT}, {self.S0 + 10}, {min(65, self.S0 + 27) + 10}
        {self.kv_m0(0)}
        {self.kv_so(0)}
L_hploop:""")
        self.G = 400; self.q = [("g", g) for g in range(380, 400) for _ in range(4)]; self.pub = None
        self.plain("rp")
        e(f"""s_cmp_lt_u32 s{sB}, s{sCNT}
        s_cbranch_scc1 L_hploop
        s_cmp_lg_u32 s{sIT}, 0
        s_cbranch_scc1 L_wph
        s_branch L_s0""")

    def tail_wregs(self):
        return [f"s_lshl_b32 s{sT0}, s{sWAVE}, 8"] + self.wpat(250, 251, 252, 253, f"s{sT0}") + [f"v_add_u32 v254, 65536, v252", f"v_add_u32 v255, 65536, v253"]
    def pulls(self, half):
        L = []
        for n in range(8 * half, 8 * half + 8):
            slot = (2 + (n >> 1)) % 7
            o = (slot & 3) * SLOT + (n & 1) * 8192; r = 252 + 2 * (slot >> 2)
            for u in range(2):
                L += [f"ds_read_b64_tr_b16 {ar(aTW+8*n+4*u,2)}, v{r} offset:{o+8*u}", f"ds_read_b64_tr_b16 {ar(aTW+8*n+4*u+2,2)}, v{r+1} offset:{o+8*u}"]
        return L
    def tail_regs(self):
        L = self.opat()
        L += [f"v_add_u32 v{vTB+s}, {s*36864}, v{vL16}" for s in range(4)]
        L += ["v_bfe_u32 v19, v1, 2, 2", "v_lshrrev_b32 v20, 4, v1", "v_cmp_eq_u32 vcc, v19, v20", "v_and_b32 v19, 1, v1", "v_lshlrev_b32 v19, 4, v19",
              "v_mov_b32 v20, 0x3f80", "v_lshlrev_b32 v19, v19, v20", "v_cndmask_b32 v19, 0, v19, vcc", "v_and_b32 v20, 2, v1", "v_cmp_eq_u32 vcc, 0, v20",
              f"v_mov_b32 v{vSEL+2}, 0", f"v_mov_b32 v{vSEL+3}, 0", f"v_cndmask_b32 v{vSEL}, 0, v19, vcc", f"v_sub_u32 v{vSEL+1}, v19, v{vSEL}",
              f"v_mov_b32 v{vSEL+4}, 0", f"v_mov_b32 v{vSEL+5}, 0", f"v_mov_b32 v{vSEL+6}, v{vSEL}", f"v_mov_b32 v{vSEL+7}, v{vSEL+1}"]
        for j, s in enumerate((sS0, sS1, sS2)):
            L += [f"s_add_u32 s{sT0}, s{sWID}, {4*(j+1)}", f"s_and_b32 s{sT0}, s{sT0}, 15", f"s_and_b32 s{sT1}, s{sWID}, 0xf0", f"s_add_u32 s{sT0}, s{sT0}, s{sT1}",
                  f"s_mul_i32 s{sT0}, s{sT0}, 36864", f"s_add_u32 s{sT1}, s{sWAVE}, {4*j}", f"s_mul_i32 s{sT1}, s{sT1}, 3072", f"s_add_u32 s{s}, s{sT0}, s{sT1}"]
        L += [f"s_sub_u32 s{sT0}, s{sWAVE}, s{sKQ}", f"s_and_b32 s{sT0}, s{sT0}, 3", f"s_cmp_eq_u32 s{sT0}, 1", f"s_cselect_b32 s{sS8}, s{sS0}, s{sS1}",
              f"s_cmp_eq_u32 s{sT0}, 3", f"s_cselect_b32 s{sS8}, s{sS2}, s{sS8}", f"s_add_u32 s{sS8}, s{sS8}, 2048",
              f"s_cmp_eq_u32 s{sT0}, 0", f"s_cselect_b32 s{sS8}, {OOB:#x}, s{sS8}"]
        L += ["v_and_b32 v19, 3, v1", "v_min_u32 v19, 2, v19", "v_lshlrev_b32 v27, 7, v19",
              f"v_add_u32 v20, s{sKQ}, v19", "v_add_u32 v20, 1, v20", "v_and_b32 v20, 3, v20", "v_lshlrev_b32 v20, 15, v20", "v_add_u32 v28, v20, v27",
              "v_and_b32 v19, 15, v1", "v_lshlrev_b32 v19, 10, v19", "v_lshrrev_b32 v20, 4, v1", "v_lshl_add_u32 v19, v20, 4, v19",
              f"s_lshl_b32 s{sT0}, s{sWAVE}, 6", f"v_add_u32 v29, s{sT0}, v19"]
        return L
    def poll(self, name, line0):
        self.a(f"""s_lshl_b32 s{sT2}, s{sWID}, 13
        s_lshl_b32 s{sT1}, s{sWAVE}, 9
        s_add_u32 s{sT2}, s{sT2}, s{sT1}
{name}:""")
        self.emit(self.budget(name + "ok"))
        self.a(f"""buffer_load_dword v2, v27, {sr(sFL)}, s{sT2} offen offset:{line0*128 & 4095} sc1
        s_waitcnt vmcnt(0)
        v_cmp_ne_u32 vcc, 1, v2
        s_cbranch_vccnz {name}
{name}ok:""")
    def tail(self):
        a = self.a
        a("L_tail:\ns_waitcnt lgkmcnt(0)\ns_barrier")
        self.stamp("b3")
        self.poll("L_poll1", 16)
        self.stamp("p1")
        a(f"""s_mul_i32 s{sT2}, s{sWAVE}, 73728
        s_add_u32 s{sT2}, s{sT2}, 36864
        s_mul_i32 s{sT3}, s{sWAVE}, 36864""")
        for k in range(4):
            for gi, n in ((0, 4), (1, 4), (2, 1)):
                a(f"s_add_u32 m0, s{sT3}, {k*9216 + gi*4096}")
                a(f"s_add_u32 s{sT2}, s{sT2}, 1024" if (k and gi == 0) else "s_nop 0")
                for i in range(n): a(self.dma(vDX + 4 * gi + i, sOB, sT2, i * 1024, self.P("olpol")))
        steps = [(k, i) for k in range(3) for i in range(9)] + [(3, i) for i in (8, 0, 1, 2, 3, 4, 5, 6, 7)]
        rd = lambda j: [f"ds_read_b128 {vr(vBF+16*(j&3)+4*s)}, v{vTB+s} offset:{steps[j][0]*9216+steps[j][1]*1024}" for s in range(4)]
        acc = lambda u, i: vTA + 36 * u + 4 * i
        def send(i, n):
            t = vRC + 4 * (n & 1)
            so = sS8 if i == 8 else (sS0, sS1, sS2)[i >> 1]
            return [f"v_cvt_pk_bf16_f32 v{t+2*u+x}, v{acc(u,i)+2*x}, v{acc(u,i)+2*x+1}" for u in range(2) for x in range(2)] + \
                   [f"buffer_store_dwordx4 {vr(t)}, v{vL16}, {sr(sPT)}, s{so} offen offset:{0 if i == 8 else (i&1)*1024} {self.P('psc', 'sc1')}"]
        a("s_waitcnt vmcnt(27)\ns_barrier")
        self.stamp("d0")
        self.emit(rd(0) + rd(1))
        nst = 0
        for j, (k, i) in enumerate(steps):
            nx = j + 2
            if nx < 36 and nx % 9 == 0:
                a(f"s_waitcnt vmcnt({27 - nx})\ns_barrier")
            a(f"s_waitcnt lgkmcnt({4 if j < 35 else 0})")
            mf = [f"{MF} {vr(acc(u,i))}, {ar(aTW+8*(4*s+k)+4*u)}, {vr(vBF+16*(j&3)+4*s)}, {vr(acc(u,i))}" for s in range(4) for u in range(2)]
            f = {}
            if nx < 36:
                for s, x in enumerate(rd(nx)): f[s] = [x]
            if 28 <= j <= 34:
                X = send(steps[j - 1][1], nst); nst += 1
                f[4] = X[:2]; f[5] = X[2:4]; f[6] = X[4:]
            self.weave(mf, f)
        self.stamp("mf")
        a(f"""s_and_b32 s{sT0}, s{sWID}, 0xf3
        s_lshl_b32 s{sT0}, s{sT0}, 13
        s_lshl_b32 s{sT1}, s{sWAVE}, 9
        s_add_u32 s{sT0}, s{sT0}, s{sT1}
        s_add_u32 s{sT0}, s{sT0}, 4096
        v_mov_b32 v3, 1
        s_mov_b64 exec, 7
        s_waitcnt vmcnt(0)
        buffer_store_dword v3, v28, {sr(sFL)}, s{sT0} offen sc1
        s_mov_b64 exec, -1
        v_add_u32 v27, 4096, v27""")
        self.poll("L_poll2", 0)
        self.stamp("p2")
        a(f"""s_mul_i32 s{sT0}, s{sWID}, 36864
        s_mul_i32 s{sT1}, s{sWAVE}, 3072
        s_add_u32 s{sT0}, s{sT0}, s{sT1}
        s_lshl_b32 s{sT2}, s{sKQ}, 15
        s_cmp_eq_u32 s{sWAVE}, s{sKQ}
        s_cselect_b32 s{sT3}, 0, {OOB:#x}""")
        for j in range(3):
            if j: a(f"s_add_u32 s{sT0}, s{sT0}, 12288")
            a(f"s_or_b32 s{sT1}, s{sT0}, s{sT3}")
            for u in range(3):
                a(f"buffer_load_dwordx4 {vr(vRC+12*j+4*u)}, v{vL16}, {sr(sPT)}, s{sT1 if u == 2 else sT0} offen offset:{u*1024} {self.P('plpol', 'sc1')}")
        for j in range(3):
            a(f"s_waitcnt vmcnt({6-3*j})")
            for u, i in enumerate((6, 7, 8)):
                for x in range(2):
                    a(f"{MF} {vr(acc(x,i))}, {vr(vSEL+4*x)}, {vr(vRC+12*j+4*u)}, {vr(acc(x,i))}")
        a(f"""s_add_u32 s{sT1}, s{sT2}, 16384
        s_or_b32 s{sT3}, s{sT3}, 131072
        s_nop 1""")
        for n, (i, so) in enumerate(((6, sT2), (7, sT1), (8, sT3))):
            t = vBF + 4 * n
            if n == 2: a("s_nop 1")
            for u in range(2):
                for x in range(2): a(f"v_cvt_pk_bf16_f32 v{t+2*u+x}, v{acc(u,i)+2*x}, v{acc(u,i)+2*x+1}")
            a(f"buffer_store_dwordx4 {vr(t)}, v29, {sr(sOUT)}, s{so} offen {self.P('opol')}")
        if self.o.get("stamps"):
            a("s_waitcnt vmcnt(0)")
            if self.o.get("sm") not in ("s", "r", "c"): self.stamp("end")
            a(f"""s_waitcnt lgkmcnt(0)
            s_mov_b32 s{sO}, s18
            s_and_b32 s{sO+1}, s19, 0xffff
            s_mov_b32 s{sO+2}, 536870912
            s_mov_b32 s{sO+3}, 0x00020000
            s_lshl_b32 s{sT0}, s2, 8
            s_lshl_b32 s{sT1}, s{sWAVE}, 6
            s_add_u32 s{sT0}, s{sT0}, s{sT1}
            s_add_u32 s{sT0}, s{sT0}, {256<<20}
            v_mov_b32 v5, 0""")
            for i in range(16): a(f"v_mov_b32 v{16+i}, s{sSTAMP+i}")
            a("s_mov_b64 exec, 1")
            for i in range(4): a(f"buffer_store_dwordx4 {vr(16+4*i)}, v5, {sr(sO)}, s{sT0} offen offset:{16*i}")
        a("s_endpgm")

    def kernel(self):
        self.inh = True
        self.dry = True; self.helper(); self.dry = False
        self.prologue()
        self.helper()
        self.inh = False
        self.attention()
        self.inh = self.o.get("sm") in ("g", "s", "r", "c") and self.o.get("gh", 1)
        self.tail()
        self.emit(self.ool)
        self.a("L_end:\ns_endpgm")
        return self.a.text()

def build(opt):
    g = Gen(opt)
    t = g.kernel()
    if opt.get("v"): print(g.cnt)
    src = open("standalone__gqa_block_cached__near_ridge.s.ref").read().split("; Override launch")[0]
    return src + header([(KN, 256, 256, LDS)]) + kstart(KN) + t + rodata([kdesc(KN, 256, 256)])

if __name__ == "__main__":
    opt = {}
    out = sys.argv[1]
    for x in sys.argv[2:]:
        k, _, v = x.partition("=")
        opt[k] = int(v) if v.lstrip("-").isdigit() else (v if v else True)
    t = build(opt)
    open(out, "w").write(t)
    print("hazards:", hazard.check(t), "bytes:", len(t))
```

```python
import sys, struct
from asmlib import *
import hazard

SLOT = 16384; NSL = 7; RING = NSL * SLOT
CH = 17408
SYNC = 162560
LAND, PROG, MISC = SYNC, SYNC + 256, SYNC + 1024
PB = 2 * CH
QP = [SYNC - (4 - i) * PB for i in range(4)]
CBX = QP[3]; CBW = CBX + 18432
HAND1 = SYNC - 36864
ST = RING
LDS = 163840
O_OFF = 4096
PT_OFF = 24 << 20
FL_OFF = 40 << 20
CSC = struct.unpack("<I", struct.pack("<f", 1.4426950408889634 * 128 ** -0.5))[0]
THR = 0x4b800000
OOB = 0x80000000
MF = "v_mfma_f32_16x16x32_bf16"

def vr(b, n=4): return f"v[{b}:{b+n-1}]"
def ar(b, n=4): return f"a[{b}:{b+n-1}]"
def sr(b, n=4): return f"s[{b}:{b+n-1}]"

sWAVE = 3
sEB, sK, sV, sEA, sO, sOB, sPT, sOUT, sFL, sDB = 20, 24, 28, 32, 36, 40, 44, 48, 52, 56
(sT0, sT1, sT2, sT3, sT4, sOFF, sSL, sB, sIT, sCNT, sREDO, sROT, sCS, sKS, sPUB, sBUD, sKQ, sC, sBB, sWID,
 sP1, sP2, sP3, sP4) = range(60, 84)
sSTAMP = 84
sP5, sP6 = 100, 101
sS0, sS1, sS2, sS8 = sP1, sP2, sP3, sP4
sPF = sO
sXB, sXA = sDB, sDB + 2
sPO = sPUB
sG = [sO, sO + 1, sO + 2, sO + 3, sPUB]
sQD = sKS
vL16, vLA, vPA = 5, 6, 7
vPR, vLD, vRK, vRV0, vRV1, vRKb, vRV0b, vRV1b = 8, 9, 10, 11, 12, 13, 14, 15
vS, vNM, vONE, vMS = 16, 40, 52, 56
vTMP, vQ, vO, vL = 64, 80, 128, 224
vCT = 240
vXRq, vW0q, vW1q = 16, 18, 19
aK, aV, aQF = 0, 64, 128
vKV = 2
vPV, vPB, vDX, vDW, vW0, vW1, vXR, vSC, vFA, vFV = 8, 9, 10, 19, 23, 24, 25, 26, 28, 29
vORD, vXR1 = 4, 14
aB2 = 208
vHACC = 32; aHACC = 0; aHF = 72; vHT = 248
vTB = 23
vBF, vSEL, vRC, vTA = 32, 96, 112, 176
aTW = 128

def S(qt, kt=0): return vS + 8 * qt + 4 * kt
def Kf(p, kt, ks): return aK + 32 * p + 16 * kt + 4 * ks
def Vf(p, dt): return aV + 32 * p + 4 * dt
def Qf(qt, ks): return vQ + 16 * qt + 4 * ks
def Oa(qt, dt): return vO + 32 * qt + 4 * dt
def isvm(x): return x.startswith("buffer_")

class Gen:
    def __init__(self, opt):
        self.o = opt
        self.a = A()
        self.ool = []
        self.nlab = 0
        self.D = opt.get("d", 5)
        self.S0 = opt.get("s0", 38)
        self.KS = opt.get("ks", 10)
        self.KG = opt.get("kg", 3)
        self.pol = self.P("pol", "nt")
        self.osc = opt.get("osc", "sc1")
        self.dry = False
        self.cnt = {}
    def P(self, k, d=""):
        v = self.o.get(k, d)
        return "" if v == "none" else v.replace("+", " ")
    STM = {"m": "start c0 q0 it0 it1 b3 p1 end", "t": "start it1 b3 p1 d0 mf p2 end", "q": "start karg iss bar c0 c8 q0 end", "u": "start it1 b1 b2 ack b3 p1 end",
           "g": "start g00 g03 g06 g10 g13 g16 end", "s": "start c15i G4 G8 G12 G16 G20 g00", "r": "start g06 G128 G136 G144 s0 it0 g10", "e": "start g16 G260 w4 it1 b1 b3 end",
           "c": "start c0 c1 c2 c3 c4 c6 c12"}
    def stamp(self, name):
        names = self.STM[self.o.get("sm", "m")].split()
        if self.o.get("sm") == "g" and not self.inh: names = "start q0 it0 it1 b3 p1 mf end".split()
        if self.o.get("sm") == "s" and not self.inh: names = "start c0 c8 q0 k0 st0 it0 x".split()
        if self.o.get("sm") == "c" and not self.inh: names = "start c0 c4 c8 c12 q0 k0 st0".split()
        if self.o.get("sm") == "r" and not self.inh: names = "start fin epi it0 st0 ofl st1 x".split()
        if self.o.get("sm") == "e" and not self.inh: names = "start fin it1 b1 ack b2 b3 end".split()
        if name not in names: return
        i = names.index(name)
        if self.o.get("stamps") == 3 and not self.dry:
            self.a(f"s_sub_u32 s{sSTAMP+2*i}, {1 << 22}, s{sBUD}\ns_mov_b32 s{sSTAMP+2*i+1}, 0" if i else f"s_mov_b64 s[{sSTAMP}:{sSTAMP+1}], 0")
        elif self.o.get("stamps") and not self.dry:
            op = "s_memtime" if self.o.get("stamps") == 2 else "s_memrealtime"
            self.a(f"{op} s[{sSTAMP+2*i}:{sSTAMP+2*i+1}]")
    def emit(self, L):
        if self.dry: return
        for x in L: self.a(x)
    def e(self, s):
        if not self.dry: self.a(s)
    def lab(self, p):
        self.nlab += 1
        return f"L_{p}{self.nlab}"
    def weave(self, mf, fills):
        L = list(fills.get(-1, []))
        for i, m in enumerate(mf):
            L.append(m); L += fills.get(i, [])
        self.emit(L)
    def spread(self, mf, items):
        if not mf:
            self.emit(items); return
        n = len(mf); f = {}
        for k, x in enumerate(items):
            f.setdefault(min(n - 1, k * n // max(1, len(items))), []).append(x)
        self.weave(mf, f)
    def srd(self, d, lo, off, nrec):
        return [f"s_add_u32 s{d}, s{lo}, {off}", f"s_addc_u32 s{d+1}, s{lo+1}, 0", f"s_and_b32 s{d+1}, s{d+1}, 0xffff",
                f"s_mov_b32 s{d+2}, {nrec}", f"s_mov_b32 s{d+3}, 0x00020000"]
    def dma(self, v, srd, soff, imm, pol=""):
        return " ".join(f"buffer_load_dwordx4 v{v}, {sr(srd)}, s{soff} offen offset:{imm} {pol} lds".split())
    def budget(self, ret):
        return [f"s_sub_i32 s{sBUD}, s{sBUD}, 1", f"s_cmp_lt_i32 s{sBUD}, 0", f"s_cbranch_scc1 {ret}"]

    def prologue(self):
        a = self.a
        a(f"""s_cmp_ge_u32 s2, 256
        s_cbranch_scc1 L_end
        s_load_dwordx16 s[4:19], s[0:1], 0""")
        self.stamp("start")
        a(f"""v_lshrrev_b32 v2, 6, v0
        v_and_b32 v1, 63, v0
        s_bfe_u32 s{sT1}, s2, 0x30003
        v_readfirstlane_b32 s{sWAVE}, v2
        s_and_b32 s{sT0}, s2, 1
        s_lshl_b32 s{sT0}, s{sT0}, 3
        s_add_u32 s{sBB}, s{sT0}, s{sT1}          ; b
        s_lshr_b32 s{sC}, s2, 6                   ; c
        s_bfe_u32 s{sKQ}, s2, 0x20001             ; kq
        s_lshl_b32 s{sT1}, s{sT1}, 1
        s_lshl_b32 s{sT2}, s{sC}, 2
        s_add_u32 s{sROT}, s{sT1}, s{sT2}
        {f"s_mov_b32 s{sROT}, 0" if self.o.get("norot") else ""}
        s_lshl_b32 s{sT2}, s{sKQ}, 2
        s_add_u32 s{sT2}, s{sT2}, s{sC}           ; hp
        s_lshl_b32 s{sWID}, s{sBB}, 4
        s_add_u32 s{sWID}, s{sWID}, s{sT2}        ; b*16 + hp
        v_lshrrev_b32 v2, 4, v1                   ; g
        v_bfe_u32 v3, v1, 2, 2                    ; r
        v_and_b32 v4, 3, v1                       ; c
        s_mov_b32 s{sBUD}, {1 << 22}
        s_cmp_lg_u32 s{sWAVE}, 3
        s_cbranch_scc1 L_attn""")

    def common_srds(self):
        L = self.srd(sFL, 18, FL_OFF, 256 * 8192) + self.srd(sPT, 18, PT_OFF, 256 * 36864)
        L += [f"s_lshl_b32 s{sT0}, s{sBB}, 2", f"s_add_u32 s{sT0}, s{sT0}, s{sKQ}", f"s_mul_i32 s{sT0}, s{sT0}, {8*36864}"]
        L += self.srd(sOB, 18, f"s{sT0}", 8 * 36864 + O_OFF)
        L += [f"s_mul_i32 s{sT0}, s{sBB}, 147456", f"s_lshl_b32 s{sT1}, s{sC}, 8", f"s_add_u32 s{sT0}, s{sT0}, s{sT1}"]
        L += self.srd(sOUT, 14, f"s{sT0}", 147456) + [f"s_sub_u32 s{sOUT+2}, s{sOUT+2}, s{sT1}"]
        L += [f"s_mov_b32 s{sIT}, 0", f"s_mov_b32 s{sREDO}, 0", f"s_mov_b32 s{sCS}, {CSC:#x}"]
        return L
    def wpat(self, t0, t1, w0, w1, base):
        return [f"v_lshrrev_b32 v{t0}, 4, v1", f"v_lshlrev_b32 v{t0}, 11, v{t0}", f"v_bfe_u32 v{t1}, v1, 2, 2", f"v_lshl_add_u32 v{t0}, v{t1}, 6, v{t0}",
                f"v_add_u32 v{t0}, {base}, v{t0}", f"v_and_b32 v{t1}, 3, v1", f"v_lshl_add_u32 v{w0}, v{t1}, 4, v{t0}",
                f"v_xor_b32 v{t1}, 2, v{t1}", f"v_lshl_add_u32 v{w1}, v{t1}, 4, v{t0}", f"v_add_u32 v{w1}, 1024, v{w1}"]
    def xpat(self, t0, t1, d0, d1, base):
        return [f"v_lshrrev_b32 v{t0}, 4, v1", f"v_and_b32 v{t1}, 7, v1", f"v_xor_b32 v{t0}, v{t0}, v{t1}", f"v_lshlrev_b32 v{t0}, 4, v{t0}",
                f"v_and_b32 v{t1}, 15, v1", f"v_lshl_add_u32 v{t0}, v{t1}, 7, v{t0}", f"v_xor_b32 v{t1}, 64, v{t0}",
                f"v_add_u32 v{d0}, {base}, v{t0}", f"v_add_u32 v{d1}, {base}, v{t1}"]
    def opat(self):
        L = [f"s_lshl_b32 s{sT0}, s{sKQ}, 1"]
        for i in range(8):
            L += [f"s_add_u32 s{sT1}, s{sT0}, {i+2}", f"s_and_b32 s{sT1}, s{sT1}, 7", f"s_lshl_b32 s{sT1}, s{sT1}, 12",
                  f"s_add_u32 s{sT1}, s{sT1}, {O_OFF - (i&3)*1024}", f"v_add_u32 v{vDX+i}, s{sT1}, v{vL16}"]
        return L + [f"v_add_u32 v{vDX+8}, {O_OFF + 32768}, v{vL16}"]

    def await_(self, pre=True):
        l = self.lab("sp")
        self.ool += [f"{l}:"] + self.budget(l + "r") + [f"ds_read_b32 v{vLD}, v{vLA}", "s_waitcnt lgkmcnt(0)",
                     f"v_cmp_gt_u32 vcc, v{vLD}, v{vPR}", f"s_cbranch_vccz {l}", f"s_branch {l}r"]
        if pre: self.a(f"ds_read_b32 v{vLD}, v{vLA}\ns_waitcnt lgkmcnt(0)\nv_cmp_gt_u32 vcc, v{vLD}, v{vPR}")
        self.a(f"s_cbranch_vccz {l}\n{l}r:")
    def nextslot(self):
        return [f"s_add_u32 s{sSL}, s{sSL}, {SLOT}", f"s_cmp_eq_u32 s{sSL}, {RING}", f"s_cselect_b32 s{sSL}, 0, s{sSL}"]
    def slotregs(self):
        return [f"v_add_u32 v{vRK}, s{sSL}, v{vRKb}", f"v_add_u32 v{vRV0}, s{sSL}, v{vRV0b}", f"v_add_u32 v{vRV1}, s{sSL}, v{vRV1b}"]
    def kreads(self, p):
        return [f"ds_read_b128 {ar(Kf(p,kt,ks))}, v{vRK} offset:{kt*4096+ks*256}" for kt in range(2) for ks in range(4)]
    def vreads(self, p):
        return [f"ds_read_b64_tr_b16 {ar(Vf(p,dt)+2*h,2)}, v{vRV0 if dt%2==0 else vRV1} offset:{(dt>>1)*256+h*4096}"
                for dt in range(8) for h in range(2)]
    def qk(self, qt, p, raw=False):
        L = []
        for kt in range(2):
            for ks in range(4):
                d = vr(S(qt, kt))
                c = d if ks else ("0" if raw else vr(vNM + 4 * qt))
                L.append(f"{MF} {d}, {ar(Kf(p,kt,ks))}, {vr(Qf(qt,ks))}, {c}")
        return L
    def pv(self, qt, p, first=False):
        L = []
        for dt in range(8):
            d = vr(Oa(qt, dt))
            L.append(f"{MF} {d}, {ar(Vf(p,dt))}, {vr(S(qt))}, {'0' if first else d}")
        d = vr(vL + 4 * qt)
        L.append(f"{MF} {d}, {vr(vONE)}, {vr(S(qt))}, {'0' if first else d}")
        return L
    def ex(self, qt, i): return f"v_exp_f32 v{S(qt)+i}, v{S(qt)+i}"
    def cv(self, qt, i): return f"v_cvt_pk_bf16_f32 v{S(qt)+i}, v{S(qt)+2*i}, v{S(qt)+2*i+1}"
    incpr = f"v_add_u32 v{vPR}, 1, v{vPR}"
    wrpr = f"ds_write_b32 v{vPA}, v{vPR}"
    rdla = f"ds_read_b32 v{vLD}, v{vLA}"
    cmpla = f"v_cmp_gt_u32 vcc, v{vLD}, v{vPR}"

    def stage(self, p, first=False, tail=[]):
        self.await_(pre=False)
        mf = self.pv(0, p, first) + self.qk(0, p) + self.pv(1, p, first) + self.qk(1, p) + self.pv(2, p, first) + self.qk(2, p)
        f = {i: [] for i in range(51)}
        ki = iter(self.kreads(1 - p)); vi = iter(self.vreads(1 - p))
        for seg, qt in enumerate((2, 0, 1)):
            for i in range(8): f[17 * seg + 2 * i].append(self.ex(qt, i))
        for seg in range(2):
            for g in (3, 7, 11, 15): f[17 * seg + g].append(next(ki))
        for g in (1, 5, 9, 13, 18, 22, 26, 30): f[g] += [next(vi), next(vi)]
        for seg, qt in enumerate((2, 0, 1)):
            for i in range(4): f[17 * seg + 4 * i + 3].append(self.cv(qt, i))
        ns = self.nextslot(); sr_ = self.slotregs()
        f[16] += [self.incpr]
        f[33] += [self.wrpr]
        f[35] += ns[:2]
        f[39] += [ns[2], sr_[0]]
        f[41] += [sr_[1]]
        f[43] += [self.rdla, sr_[2]]
        f[47] += tail
        f[50] += ["s_waitcnt lgkmcnt(0)", self.cmpla]
        na = self.o.get("noatt", 0)
        if na & 1: mf = ["s_nop 0"] * 51
        if na & 2: f = {i: [x for x in L if not x.startswith(("v_exp", "v_cvt"))] for i, L in f.items()}
        if na & 4: f = {i: [x for x in L if not x.startswith(("ds_read_b128", "ds_read_b64"))] for i, L in f.items()}
        self.weave(mf, f)

    def xmax(self, v, t):
        self.a(f"""v_mov_b32 v{t}, v{v}
        s_nop 1
        v_permlane16_swap_b32 v{v}, v{t}
        v_max_f32 v{v}, v{v}, v{t}
        v_mov_b32 v{t}, v{v}
        s_nop 1
        v_permlane32_swap_b32 v{v}, v{t}
        v_max_f32 v{v}, v{v}, v{t}""")

    def stage0(self):
        a = self.a
        mf = self.qk(0, 0, True) + self.qk(1, 0, True) + self.qk(2, 0, True)
        self.spread(mf, self.kreads(1) + self.vreads(1))
        self.emit([self.incpr, self.wrpr] + self.nextslot() + self.slotregs())
        for qt in range(3):
            s = S(qt); m = 59 + qt
            a(f"""v_max3_f32 v{m}, v{s}, v{s+1}, v{vMS+qt}
            v_max3_f32 v{m}, v{s+2}, v{s+3}, v{m}
            v_max3_f32 v{m}, v{s+4}, v{s+5}, v{m}
            v_max3_f32 v{m}, v{s+6}, v{s+7}, v{m}""")
            self.xmax(m, 62)
            for i in range(4): a(f"v_sub_f32 v{vNM+4*qt+i}, 0, v{m}")
            for i in range(8): a(f"v_sub_f32 v{s+i}, v{s+i}, v{m}")
        for qt in range(2):
            for i in range(8): a(self.ex(qt, i))
            a(self.rdla if qt else "s_nop 0")
            for i in range(4): a(self.cv(qt, i))

    def oflag(self, rnd):
        self.a(f"""s_and_b32 s{sT0}, s{sWID}, 0xfc
        s_lshl_b32 s{sT0}, s{sT0}, 13
        s_lshl_b32 s{sT1}, s{sC}, 2
        s_add_u32 s{sT1}, s{sT1}, s{sWAVE}
        s_lshl_b32 s{sT1}, s{sT1}, 7
        s_add_u32 s{sT0}, s{sT0}, s{sT1}
        s_add_u32 s{sT0}, s{sT0}, {2048*rnd}
        v_lshlrev_b32 v2, 13, v1
        v_mov_b32 v3, 1
        s_mov_b64 exec, 15
        s_waitcnt vmcnt(0)
        buffer_store_dword v3, v2, {sr(sFL)}, s{sT0} offen sc1
        s_mov_b64 exec, -1""")

    def final(self):
        a = self.a
        a(f"v_mov_b32 v3, 0\nbuffer_load_dword v{vCT}, v3, {sr(sDB)}, 0 offen sc1")
        mf = self.pv(0, 0) + self.pv(1, 0) + self.pv(2, 0)
        f = {i: [] for i in range(27)}
        for i in range(8): f[i].append(self.ex(2, i))
        for i in range(4): f[9 + i].append(self.cv(2, i))
        self.weave(mf, f)
        a(f"""s_mul_i32 s{sT2}, s{sIT}, 36864
        s_mul_i32 s{sT1}, s{sWAVE}, 12288
        s_add_u32 s{sT2}, s{sT2}, s{sT1}
        s_mov_b32 s{sT0}, {THR:#x}
        s_nop 3
        v_add_f32 v60, v{vL}, v{vL+4}
        v_add_f32 v60, v60, v{vL+8}
        v_cmp_nge_f32 vcc, s{sT0}, v60
        s_mov_b32 s{sT4}, 1
        s_cmp_lg_u32 s{sREDO}, 0
        s_cbranch_scc1 L_noflag
        s_cmp_eq_u64 vcc, 0
        s_cselect_b32 s{sT4}, 1, {1 if self.o.get("noatt") else 2}
L_noflag:""")
        n = 0
        for qt in range(3):
            a(f"v_rcp_f32 v60, v{vL+4*qt}\ns_nop 0\nv_mov_b32 v61, v60")
            for ks in range(4):
                b = Oa(qt, 2 * ks); t = vTMP + 4 * (n % 4); n += 1
                for i in range(4): a(f"v_pk_mul_f32 v[{b+2*i}:{b+2*i+1}], v[{b+2*i}:{b+2*i+1}], v[60:61]")
                for i in range(4): a(f"v_cvt_pk_bf16_f32 v{t+i}, v{b+2*i}, v{b+2*i+1}")
                a(f"buffer_store_dwordx4 {vr(t)}, v{vL16}, {sr(sO)}, s{sT2} offen offset:{ks*1024} {self.osc}")
            a(f"s_add_u32 s{sT2}, s{sT2}, 4096")

    def attention(self):
        a = self.a
        a("L_attn:")
        if self.o.get("cpf", 1):
            a(f"""s_getpc_b64 s[{sO}:{sO+1}]
L_pc:
            s_sub_u32 s{sO}, s{sO}, L_pc-{KN}
            s_subb_u32 s{sO+1}, s{sO+1}, 0
            s_and_b32 s{sO+1}, s{sO+1}, 0xffff
            s_mov_b32 s{sO+2}, L_end-{KN}
            s_mov_b32 s{sO+3}, 0x00020000
            s_lshr_b32 s{sT0}, s2, 3
            s_lshl_b32 s{sT0}, s{sT0}, 11
            v_lshlrev_b32 v59, 7, v0
            v_cmp_gt_u32 vcc, 16, v0
            s_and_saveexec_b64 s[{sT2}:{sT2+1}], vcc
            s_cbranch_execz L_nopf
            buffer_load_dword v255, v59, {sr(sO)}, s{sT0} offen
L_nopf:
            s_mov_b64 exec, -1""")
        a(f"""v_lshlrev_b32 v{vL16}, 4, v1
        s_mul_i32 s{sT0}, s{sWAVE}, 6144
        s_add_u32 s{sT0}, s{sT0}, {QP[0]}""")
        self.emit(self.xpat(59, 60, vXRq, vXRq + 1, f"s{sT0}") + self.wpat(59, 60, vW0q, vW1q, QP[0] + 18432))
        a(f"""s_lshl_b32 s{sT0}, s{sWAVE}, 8
        s_add_u32 s{sT0}, s{sT0}, {PROG}
        v_lshl_add_u32 v{vPA}, v1, 2, s{sT0}
        v_mov_b32 v{vLA}, {LAND}
        v_mov_b32 v{vPR}, 0""")
        for i in range(96): a(f"v_mov_b32 v{vO+i}, 0")
        for i in range(44): a(f"v_accvgpr_write_b32 a{aQF+44+i}, 0")
        self.stamp("iss")
        a("s_waitcnt lgkmcnt(0)\ns_barrier")
        self.stamp("bar")
        self.emit(self.common_srds())
        a(f"s_mul_i32 s{sT0}, s{sWID}, 73728\ns_add_u32 s{sT0}, s{sT0}, {O_OFF}")
        self.emit(self.srd(sO, 18, f"s{sT0}", 73728) + self.srd(sDB, 16, 0, 256))
        a(f"""v_and_b32 v59, 1, v3
        v_lshlrev_b32 v59, 1, v59
        v_xor_b32 v59, v59, v2
        v_lshlrev_b32 v59, 4, v59
        v_lshl_add_u32 v{vRKb}, v3, 10, v59
        v_lshl_add_u32 v{vRKb}, v4, 6, v{vRKb}
        v_lshlrev_b32 v59, 10, v2
        v_lshl_add_u32 v59, v3, 6, v59
        v_lshl_add_u32 v59, v4, 3, v59
        v_add_u32 v59, 8192, v59
        v_and_b32 v60, 1, v2
        v_lshl_add_u32 v{vRV0b}, v60, 5, v59
        v_xor_b32 v60, 1, v60
        v_lshl_add_u32 v{vRV1b}, v60, 5, v59
        v_mov_b32 v{vONE}, 0x3f803f80
        v_mov_b32 v{vONE+1}, 0x3f803f80
        v_mov_b32 v{vONE+2}, 0x3f803f80
        v_mov_b32 v{vONE+3}, 0x3f803f80
        v_mov_b32 v{vMS}, 0xff800000
        v_mov_b32 v{vMS+1}, 0xff800000
        v_mov_b32 v{vMS+2}, 0xff800000
        v_mov_b32 v62, s{sCS}
        v_mov_b32 v63, s{sCS}
        s_mov_b32 s{sSL}, 0
        s_cmp_lg_u32 s{sWAVE}, 0
        s_cbranch_scc1 L_noclr
        s_lshl_b32 s{sT0}, s{sWID}, 13
        v_lshlrev_b32 v2, 7, v1
        v_mov_b32 v3, 0
        buffer_store_dword v3, v2, {sr(sFL)}, s{sT0} offen sc1
L_noclr:
        s_mov_b32 s{sQD}, {2*PB}
        s_mov_b32 s{sCNT}, 0""")
        self.emit(self.slotregs())
        def qreads(k):
            ox = (k >> 1 & 1) * PB; o = ox + (k & 1) * 8192; F = aQF + 44 * (k & 1); L = []
            for t in range(8):
                L.append(f"ds_read_b64_tr_b16 {ar(F+4*t,2)}, v{vW0q} offset:{o+(t>>1)*256+8*(t&1)}")
                L.append(f"ds_read_b64_tr_b16 {ar(F+4*t+2,2)}, v{vW1q} offset:{o+(t>>1)*256+8*(t&1)}")
            return L[:4] + [f"ds_read_b128 {ar(F+32+4*qt)}, v{vXRq+(k&1)} offset:{ox+qt*2048}" for qt in range(3)] + L[4:]
        def qmf(k):
            F = aQF + 44 * (k & 1)
            return [f"{MF} {vr(Oa(qt,t))}, {ar(F+4*t)}, {ar(F+32+4*qt)}, {vr(Oa(qt,t))}" for t in range(8) for qt in range(3)]
        a(f"{self.rdla}\ns_waitcnt lgkmcnt(0)\n{self.cmpla}\n.p2align 3\nL_q0:")
        for k in range(4):
            self.await_(pre=False)
            if k == 0 : self.stampq()
            R = qreads(k)
            f = {i: R[2*i:2*i+2] for i in range(10)}
            f[9].append(self.incpr)
            f[10] = [self.wrpr]; f[self.o.get("qla", 14)] = [self.rdla]
            if k == 3:
                f[18] = [f"v_add_u32 v{vXRq+1}, s{sQD}, v{vXRq+1}"]; f[19] = [f"v_add_u32 v{vXRq}, s{sQD}, v{vXRq}"]; f[20] = [f"v_add_u32 v{vW0q}, s{sQD}, v{vW0q}"]
                f[21] = [f"v_add_u32 v{vW1q}, s{sQD}, v{vW1q}", f"s_sub_u32 s{sQD}, 0, s{sQD}"]
                f[22] = [f"s_add_u32 s{sCNT}, s{sCNT}, 1", f"s_cmp_lt_u32 s{sCNT}, 4"]
            f[23] = ["s_waitcnt lgkmcnt(0)", self.cmpla]
            self.weave(qmf(k - 1), f)
        a("s_cbranch_scc1 L_q0")
        self.emit(qmf(15))
        a(f"""s_cmp_lg_u32 s{sWAVE}, 0
        s_cbranch_scc1 L_noinit
        v_mov_b32 v2, 1
        v_mov_b32 v3, 0
        s_mov_b64 exec, 1
        s_waitcnt vmcnt(0)
        buffer_atomic_add v2, v3, {sr(sDB)}, 0 offen sc1
        s_mov_b64 exec, -1
L_noinit:
        s_nop 5""")
        for qt in range(3):
            for ks in range(4):
                b = Oa(qt, 2 * ks)
                for i in range(4): a(f"v_pk_mul_f32 v[{b+2*i}:{b+2*i+1}], v[{b+2*i}:{b+2*i+1}], v[62:63]")
                for i in range(4): a(f"v_cvt_pk_bf16_f32 v{Qf(qt,ks)+i}, v{b+2*i}, v{b+2*i+1}")
        self.stamp("q0")
        a("L_kfirst:")
        self.await_()
        self.emit(self.kreads(0) + [self.incpr, self.wrpr] + self.nextslot() + self.slotregs())
        self.await_()
        self.stamp("k0")
        a("L_item:")
        self.stage0()
        self.cstamp("st0", 0 if self.o.get("sm") in ("s", "c") else 1)
        a(f"""s_cmp_eq_u32 s{sIT}, 0
        s_cbranch_scc1 L_nopub""")
        self.oflag(0)
        self.stamp("ofl")
        a(f"L_nopub:\ns_waitcnt lgkmcnt(0)\n{self.cmpla}")
        self.stage(1, first=True, tail=[f"s_mov_b32 s{sCNT}, 0"])
        self.cstamp("st1", 1)
        a(".p2align 3\nL_loop:")
        self.stage(0)
        self.stage(1, tail=[f"s_add_u32 s{sCNT}, s{sCNT}, 1", f"s_cmp_lt_u32 s{sCNT}, 15"])
        a("s_cbranch_scc1 L_loop")
        self.cstamp("fin", 1 if self.o.get("sm") == "e" else 0)
        self.final()
        self.cstamp("epi", 0)
        a(f"""v_mov_b32 v2, s{sT4}
        s_cmp_lg_u32 s{sIT}, 0
        s_cbranch_scc1 L_last
        s_cmp_lg_u32 s{sWAVE}, 0
        s_cbranch_scc1 L_cntok
        s_waitcnt vmcnt(12)
L_cnt:
        v_readfirstlane_b32 s{sT0}, v{vCT}
        s_and_b32 s{sT0}, s{sT0}, 255
        s_cbranch_scc0 L_cntok""")
        self.emit(self.budget("L_cntok"))
        a(f"""v_mov_b32 v3, 0
        buffer_load_dword v{vCT}, v3, {sr(sDB)}, 0 offen sc1
        s_waitcnt vmcnt(0)
        s_branch L_cnt
L_cntok:
        s_lshl_b32 s{sT0}, s{sWAVE}, 2
        s_add_u32 s{sT0}, s{sT0}, {MISC}
        v_mov_b32 v3, s{sT0}
        ds_write_b32 v3, v2
        v_and_b32 v3, 3, v1
        v_min_u32 v3, 2, v3
        v_lshlrev_b32 v3, 2, v3
        v_add_u32 v3, {MISC}, v3""")
        self.await_()
        a("L_done:")
        self.emit(self.budget("L_doneok"))
        a(f"""ds_read_b32 v2, v3
        s_waitcnt lgkmcnt(0)
        v_cmp_eq_u32 vcc, 0, v2
        s_cbranch_vccnz L_done
L_doneok:
        v_cmp_eq_u32 vcc, 2, v2
        s_cbranch_vccnz L_redo""")
        self.stamp("it0")
        a(f"s_mul_i32 s{sT0}, s{sWAVE}, 12288\ns_add_u32 s{sT0}, s{sT0}, {HAND1}\nv_add_u32 v2, s{sT0}, v{vL16}")
        for qt in range(3):
            for ks in range(4): a(f"ds_read_b128 {vr(Qf(qt,ks))}, v2 offset:{(qt*4+ks)*1024}")
        a(f"""s_mov_b32 s{sIT}, 1
        s_mov_b32 s{sREDO}, 0
        v_mov_b32 v{vMS}, 0xff800000
        v_mov_b32 v{vMS+1}, 0xff800000
        v_mov_b32 v{vMS+2}, 0xff800000
        s_waitcnt lgkmcnt(0)
        s_branch L_item
L_last:
        s_cmp_eq_u32 s{sT4}, 1
        s_cbranch_scc1 L_ok1
        v_mov_b32 v3, {MISC+16}
        ds_write_b32 v3, v2
L_ok1:""")
        self.stamp("it1")
        a(f"v_mov_b32 v{vPR}, {16+68}")
        self.emit(self.tail_wregs())
        self.await_()
        self.emit(self.pulls(0))
        self.b1("L_redo")
        self.emit(self.tail_regs())
        if self.o.get("fb2", 1): self.oflag(1); self.stamp("ack")
        a("s_barrier")
        self.stamp("b2")
        self.emit(self.pulls(1))
        a(f"""s_mul_i32 s{sT0}, s{sWAVE}, 18432
        s_add_u32 s{sT0}, s{sT0}, {ST}
        s_cmp_eq_u32 s{sWAVE}, 2
        s_cselect_b32 s{sT0}, 49152, s{sT0}
        v_add_u32 v2, s{sT0}, v{vL16}""")
        for f in range(18): a(f"ds_read_b128 {vr(vTA+4*f)}, v2 offset:{f*1024}")
        if not self.o.get("fb2", 1): self.oflag(1); self.stamp("ack")
        a("s_branch L_tail")
        a(f"""L_redo:
        s_waitcnt vmcnt(0)
        s_barrier
        v_mov_b32 v2, 0
        v_lshlrev_b32 v3, 2, v1
        v_add_u32 v3, {MISC}, v3
        ds_write_b32 v3, v2
        s_lshl_b32 s{sT0}, s{sIT}, 5
        s_add_u32 s{sT0}, s{sT0}, 16
        v_mov_b32 v{vPR}, s{sT0}
        v_mov_b32 v{vRK}, v{vRKb}
        {self.wrpr}
        s_mov_b32 s{sCNT}, 0
        s_mov_b32 s{sREDO}, 1
        v_mov_b32 v{vMS}, 0xff800000
        v_mov_b32 v{vMS+1}, 0xff800000
        v_mov_b32 v{vMS+2}, 0xff800000
L_mloop:
        s_barrier""")
        self.emit(self.kreads(0))
        a("s_waitcnt lgkmcnt(0)\ns_barrier")
        self.emit(self.qk(0, 0, True) + self.qk(1, 0, True) + self.qk(2, 0, True))
        a("s_nop 7")
        for qt in range(3):
            s = S(qt); m = vMS + qt
            for i in range(4): a(f"v_max3_f32 v{m}, v{s+2*i}, v{s+2*i+1}, v{m}")
        a(f"""s_add_u32 s{sCNT}, s{sCNT}, 1
        s_cmp_lt_u32 s{sCNT}, 32
        s_cbranch_scc1 L_mloop
        s_lshl_b32 s{sSL}, s{sIT}, 16""")
        self.emit(self.slotregs())
        a("s_branch L_kfirst")
    def cstamp(self, name, it):
        if self.o.get("stamps"):
            l = self.lab("cs")
            self.a(f"s_cmp_lg_u32 s{sIT}, {it}\ns_cbranch_scc1 {l}")
            self.stamp(name)
            self.a(l + ":")
    def stampq(self):
        if self.o.get("stamps"):
            self.a(f"s_cmp_lg_u32 s{sCNT}, 0\ns_cbranch_scc1 L_nost1")
            self.stamp("c0")
            self.a(f"L_nost1:\ns_cmp_lg_u32 s{sCNT}, 2\ns_cbranch_scc1 L_nost2")
            self.stamp("c8")
            self.a(f"L_nost2:\ns_cmp_lg_u32 s{sCNT}, 1\ns_cbranch_scc1 L_nost3")
            self.stamp("c4")
            self.a(f"L_nost3:\ns_cmp_lg_u32 s{sCNT}, 3\ns_cbranch_scc1 L_nost4")
            self.stamp("c12")
            self.a("L_nost4:")
    def b1(self, lab):
        self.a(f"""s_waitcnt lgkmcnt(0)
        s_barrier
        v_mov_b32 v4, {MISC+16}
        ds_read_b32 v4, v4
        s_waitcnt lgkmcnt(0)
        v_cmp_ne_u32 vcc, 0, v4
        s_cbranch_vccnz {lab}""")
        self.stamp("b1")

    def q_push(self, L, tag):
        self.q += [tag] * sum(map(isvm, L))
        return L
    def q_wait(self, loc, tag):
        if self.dry:
            idx = [i for i, t in enumerate(self.q) if (t in tag if isinstance(tag, list) else t == tag)]
            n = len(self.q) - 1 - idx[-1] if idx else 63
            self.cnt[loc] = min(self.cnt.get(loc, 63), n)
            return []
        return [f"s_waitcnt vmcnt({self.cnt[loc]})"]
    def pub_abs(self, val):
        self.pub = val
        return [f"v_mov_b32 v{vPB}, {val}", f"ds_write_b32 v{vLA}, v{vPB}"]
    def pub_inc(self, val):
        if self.dry: assert self.pub is None or val == self.pub + 1, (val, self.pub)
        self.pub = val
        return [f"v_add_u32 v{vPB}, 1, v{vPB}", f"ds_write_b32 v{vLA}, v{vPB}"]
    rdpr = f"ds_read_b32 v{vPV}, v{vPA}"
    def pcheck(self, need, redo=False):
        if self.dry: return []
        l = self.lab("pc")
        o = [f"{l}:"] + self.budget(l + "r")
        if redo: o += [f"v_and_b32 v30, 3, v1", f"v_lshlrev_b32 v30, 2, v30", f"v_add_u32 v30, {MISC}, v30", "ds_read_b32 v30, v30"]
        o += [self.rdpr, "s_waitcnt lgkmcnt(0)"]
        if redo: o += ["v_cmp_eq_u32 vcc, 2, v30", "s_cbranch_vccnz L_hredo"]
        o += [f"v_cmp_gt_u32 vcc, {need}, v{vPV}", f"s_cbranch_vccnz {l}", f"s_branch {l}r"]
        self.ool += o
        return ["s_waitcnt lgkmcnt(0)", f"v_cmp_gt_u32 vcc, {need}, v{vPV}", f"s_cbranch_vccnz {l}", f"{l}r:"]
    def kv_m0(self, j): return f"s_add_u32 m0, s{sSL}, {j*4096}"
    def kv_so(self, j): return f"s_add_u32 s{sT0}, s{sOFF}, {j*4096}" if j < 2 else f"s_sub_u32 s{sT0}, s{sOFF}, {16384 - j*4096}"
    def kv_d(self, j): return [self.dma(vKV + (i & 1), sK if j < 2 else sV, sT0, i * 1024, self.pol) for i in range(4)]
    def kv_adv(self): return [f"s_add_u32 s{sOFF}, s{sOFF}, {0 if self.o.get('kvfix') else 8192}", f"s_add_u32 s{sB}, s{sB}, 1"] + self.nextslot()
    def position(self, loc, cg=None, tag=None, pre=[], fill=None, check=True, late=[], fill2=None):
        G = self.G; j = G & 3; nj = (G + 1) & 3
        if G in (4, 8, 12, 16, 128, 136, 144) and (G < 20 or loc[0] in ("f0", ("pl", 34), ("pl", 36))): self.stamp(f"G{G}")
        g = [[] for _ in range(12)]
        g[0] += pre
        D = self.q_push(self.kv_d(j), ("g", G))
        for i in range(4): g[i].append(D[i])
        small = self.kv_adv() if j == 3 else []
        if cg:
            if cg[0]: g[3].append(cg[0])
            for i, x in enumerate(self.q_push(cg[1], tag)): g[4 + i].append(x)
        self.G += 1
        at = [0, 1, 2, 5, 5]
        for x in small: g[at.pop(0)].append(x)
        g[6].append(self.kv_so(nj))
        if nj == 0 and check: g[8].append(self.rdpr)
        g[8].append(self.kv_m0(nj))
        gd = G - self.D
        if gd >= 0:
            g[9] += self.q_wait(loc, ("g", gd))
            if gd & 3 == 3 and self.pubok:
                P = self.pub_inc(17 + (gd >> 2)); g[9].append(P[0]); g[10].append(P[1])
        g[10] += late
        if nj == 0 and check: g[11] += self.pcheck(f"s{sB}")
        for fill in (fill, fill2):
            for i in range(11 if nj == 0 and check else 12):
                while fill and len(g[i]) < 2:
                    x = fill.pop(0)
                    if x.startswith("ds_") and g[i] and not g[i][0].startswith(("ds_", "buffer_", "s_waitcnt")): g[i].insert(0, x)
                    else: g[i].append(x)
        return g
    def flat(self, G):
        L = []
        for x in (x for g in G for x in g):
            if isvm(x) and L and " m0," in L[-1]: L.append("s_nop 0")
            L.append(x)
        return L + (["s_nop 0"] if L and " m0," in L[-1] else [])
    def plain(self, loc, extra=[], check=True):
        n = len(extra)
        for j in range(4):
            self.emit(self.flat(self.position((loc, j), check=check, late=extra[j * n // 4:(j + 1) * n // 4])))
    def chunk_addr(self, h):
        a_ = sXA + h
        L = [f"s_add_u32 s{sT4}, s{sROT}, s{sKS}", f"s_bfe_u32 s{sT3}, s{sT4}, 0x20002", f"s_and_b32 s{sT4}, s{sT4}, 3"]
        if h == 0: L += [f"s_mul_i32 s{sXB}, s{sT3}, s{sP1}", f"s_mul_i32 s{sT1}, s{sT4}, s{sP2}", f"s_add_u32 s{sXB}, s{sXB}, s{sT1}"]
        L += [f"s_mul_i32 s{a_}, s{sT3}, s{sP3}", f"s_mul_i32 s{sT1}, s{sT4}, s{sP4}", f"s_add_u32 s{a_}, s{a_}, s{sT1}",
              f"s_add_u32 s{a_}, s{a_}, s{sP5}", f"s_add_u32 s{sKS}, s{sKS}, 1"]
        if self.o.get("noeng", 0) & 1 and h == 0: L.append(f"s_mov_b32 s{sXB}, {OOB:#x}")
        if self.o.get("noeng", 0) & 2: L.append(f"s_mov_b32 s{a_}, {OOB:#x}")
        return L
    def bgroups(self, base, so, pol):
        return [(f"s_mov_b32 m0, {base + gi*4096}", [self.dma(vDX + i, sEB, so, i * 1024, pol) for i in range(4 if gi < 4 else 2)]) for gi in range(5)]
    def bgroup(self, gi):
        return self.bgroups(CBX, sXB + 1, self.P("bpol"))[gi], [f"s_add_u32 s{sXB+1}, s{sXB}, s{sG[gi]}"]
    def agroups(self, m0, so, pol, so1=None):
        return [(m0(h), [self.dma(vDW + i, sEA, so1 if h and so1 else so, i * 1024, pol) for i in range(4)]) for h in range(2)]
    poll0 = f"buffer_load_dword v{vFV}, v{vFA}, {sr(sFL)}, s{sT2} offen sc1"
    def hacc(self, t, qt):
        return ar(aHACC + 36 * t + 4 * qt) if t < 2 else vr(vHACC + 36 * (t - 2) + 4 * qt)
    def areads(self, p):
        F = aHF + 68 * p; L = []
        for t in range(8):
            L.append(f"ds_read_b64_tr_b16 {ar(F+4*t,2)}, v{vW0} offset:{p*8192+(t>>1)*256+8*(t&1)}")
            L.append(f"ds_read_b64_tr_b16 {ar(F+4*t+2,2)}, v{vW1} offset:{p*8192+(t>>1)*256+8*(t&1)}")
        return L
    def breads(self, qts):
        return [f"ds_read_b128 {ar((aB2 if e else aHF+32)+4*qt)}, v{vXR1 if e else vXR} offset:{qt*2048}" for qt in qts for e in range(2)]
    def hmf(self, p):
        F = aHF + 68 * p
        return [f"{MF} {self.hacc(t,qt)}, {ar(F+4*t)}, {ar(F+32+4*qt)}, {self.hacc(t,qt)}" for t in range(8) for qt in range(9)]
    def half(self, loc, k, tail=[]):
        h = k & 1
        self.e("s_waitcnt lgkmcnt(0)")
        if loc == "b0" and self.o.get("sm") in ("g", "s", "r", "e") and not self.dry:
            self.e(f"s_lshl_b32 s{sT4}, s{sIT}, 4\ns_add_u32 s{sT4}, s{sT4}, s{sCNT}")
            for ph in range(2):
                for n in (0, 3, 6):
                    self.e(f"s_cmp_lg_u32 s{sT4}, {16*ph+n}\ns_cbranch_scc1 L_gs{ph}{n}")
                    self.stamp(f"g{ph}{n}")
                    self.e(f"L_gs{ph}{n}:")
        G = [None] * 6; T = [None] * 6; X = [[] for _ in range(6)]
        if k < 16:
            A_ = self.agroups(lambda x: f"s_mov_b32 m0, {CBW + h*8192 + x*4096}", sXA + h, self.P("apol"), sT4)
            for x, p in enumerate((2, 4) if h == 0 else (0, 2)):
                G[p] = A_[x]; T[p] = ("ca", self.ph, k)
                if x: X[p] = [f"s_add_u32 s{sT4}, s{sXA+h}, s{sP6}"]
            for p, gi in ((0, 2), (1, 3), (3, 4)) if h == 0 else ((4, 0), (5, 1)):
                G[p], X[p] = self.bgroup(gi); T[p] = ("xa" if gi < 3 else "xb", self.ph, (k + 1) >> 1)
            if h == 0: G[3] = (G[3][0], G[3][1] + [self.poll0])
        Z = []
        if k < 2:
            Z = [f"v_accvgpr_write_b32 a{aHACC+i}, 0" for i in range(36 * k, 36 * k + 36)] + [f"v_mov_b32 v{vHACC+i}, 0" for i in range(108 * k, 108 * k + 108)]
        F = self.chunk_addr(1 - h) if k < 16 else []
        F2 = [f"v_accvgpr_mov_b32 a{aHF+68+32+i}, a{aB2+i}" for i in range(36)] if h == 0 and k >= 2 else []
        gaps = []
        for p in range(6):
            pre = X[p]; late = Z[p * 24:(p + 1) * 24]
            if p == 2: assert not F
            if h and k < 16 and p in (2, 3):
                t = "xa" if p == 2 else "xb"
                pre += self.q_wait((loc, t), (t, self.ph, k >> 1)); F += self.breads(range(6) if p == 2 else range(6, 9))
            if p == 4 and 1 <= k <= 16:
                assert not F
                if h:
                    l = "L_fw" + loc
                    C = [f"v_cmp_ne_u32 vcc, 1, v{vFV}", "s_nop 1", f"v_cndmask_b32 v30, 64, v{vORD}, vcc", f"v_cmp_gt_u32 vcc, s{sKS}, v30", f"s_cbranch_vccnz {l}"]
                    if not self.dry: self.ool += [l + ":"] + self.budget(l + "r") + [self.poll0, "s_waitcnt vmcnt(0)"] + C + [f"s_branch {l}r"]
                    gaps[-2] += self.q_wait((loc, "pw"), ("poll", self.ph, k - 1)) + C[:1] + (["s_nop 0"] if k < 2 or self.o.get("nomf") else [])
                    gaps[-1] += ["s_waitcnt lgkmcnt(0)"] + C[2:] + [l + "r:"]
                pre += self.q_wait((loc, "r"), ("ca", self.ph, k - 1)); F += self.areads(1 - h)
            gaps += self.position((loc, p), G[p], T[p], pre, F, late=late, fill2=F2)
            if h == 0 and p == 3 and k < 16: self.q[-1] = ("poll", self.ph, k)
        gaps[-2] += F + F2
        gaps[-1] += tail
        if k >= 2 and not self.o.get("nomf"): self.weave(self.hmf(h), dict(enumerate(gaps)))
        else: self.emit(self.flat(gaps))
    def engine(self):
        self.e(f"L_eng:\ns_mov_b32 s{sKS}, 0\ns_lshl_b32 s{sT2}, s{sWID}, 13")
        self.emit(self.chunk_addr(0))
        for gi in range(2):
            (m0, D), X = self.bgroup(gi)
            self.emit([m0] + X + self.q_push(D, ("xa", self.ph, 0)))
        self.e(self.kv_m0(0))
        self.half("p0", 0)
        self.half("p1", 1, tail=[f"s_mov_b32 s{sCNT}, 0"])
        self.e(".p2align 3\nL_eloop:")
        for it in range(7 if self.dry else 1):
            self.half("b0", 2 + 2 * it)
            self.half("b1", 3 + 2 * it, tail=[f"s_add_u32 s{sCNT}, s{sCNT}, 1", f"s_cmp_lt_u32 s{sCNT}, 7"])
        self.e("s_cbranch_scc1 L_eloop")
        if not self.dry: self.G += 72; self.pub = None
        self.half("e0", 16)
        self.half("e1", 17)

    def helper(self):
        D = self.D
        self.q = []; self.G = 0; self.pubok = False; self.ph = 0; self.pub = 0
        e = self.e
        e(f"""v_lshrrev_b32 v30, 3, v1
        v_and_b32 v31, 7, v1
        v_xor_b32 v31, v31, v30
        v_lshlrev_b32 v31, 4, v31
        v_lshl_add_u32 v{vDX}, v30, 10, v31
        v_lshlrev_b32 v30, 13, v3
        v_lshl_add_u32 v30, v2, 6, v30
        v_lshl_add_u32 v{vDW}, v4, 4, v30
        v_xor_b32 v31, 2, v4
        v_lshl_add_u32 v{vDW+1}, v31, 4, v30
        s_mul_i32 s{sT0}, s{sBB}, 147456
        s_and_b32 s{sT1}, s{sWID}, 15
        s_lshl_b32 s{sT1}, s{sT1}, 9
        s_mov_b32 s{sP1}, 256
        s_mov_b32 s{sP2}, 64
        s_mov_b32 s{sP3}, {1 << 20}
        s_mov_b32 s{sP4}, {1 << 18}
        s_mov_b32 s{sP5}, 0
        s_mov_b32 s{sP6}, 131072""")
        for i in range(1, 4): e(f"v_add_u32 v{vDX+i}, {i*7168}, v{vDX}")
        e(f"""v_add_u32 v{vDW+2}, {2*31744}, v{vDW}
        v_add_u32 v{vDW+3}, {3*31744}, v{vDW+1}
        v_add_u32 v{vDW+1}, 31744, v{vDW+1}
        s_waitcnt lgkmcnt(0)""")
        self.stamp("karg")
        self.emit(self.srd(sEB, 4, f"s{sT0}", 147456) + self.srd(sEA, 10, f"s{sT1}", 4194304 - 7680))
        def q0x(p):
            G = [[m, f"s_add_u32 s{sT2}, s{sT2}, 32768"] + D for m, D in self.bgroups(QP[p & 3], sT2, self.P("cpol"))]
            G[0] = [f"s_add_u32 s{sT4}, s{sROT}, {2*p}", f"s_and_b32 s{sT4}, s{sT4}, 15", G[0][0], f"s_lshl_b32 s{sT2}, s{sT4}, 6"] + G[0][2:]
            return [(("x", p), g) for g in G]
        def q0w(c):
            ad = [f"s_add_u32 s{sT4}, s{sROT}, {c}", f"s_and_b32 s{sT4}, s{sT4}, 15", f"s_lshl_b32 s{sT3}, s{sT4}, 18"]
            G = self.agroups(lambda x: f"s_mov_b32 m0, {QP[c >> 1 & 3] + 18432 + (c & 1)*8192 + x*4096}", sT3, self.P("cpol"), sT4)
            return [(("w", c), ad[:2] + [G[0][0], ad[2]] + G[0][1]), (("w", c), [G[1][0], f"s_add_u32 s{sT4}, s{sT3}, s{sP6}"] + G[1][1])]
        seq = []
        for p in range(8): seq += (["chk%d" % (2 * p - 6)] if p >= 4 else []) + q0x(p) + q0w(2 * p) + q0w(2 * p + 1)
        NI = self.o.get("ni", 9)
        for t, g in seq[:NI]: self.emit(self.q_push(g, t))
        e(f"""v_lshlrev_b32 v{vL16}, 4, v1
        v_mov_b32 v248, 0
        v_mov_b32 v249, 0
        v_mov_b32 v250, 0
        v_mov_b32 v251, 0
        v_add_u32 v30, {SYNC+256}, v{vL16}
        v_lshlrev_b32 v{vLA}, 2, v1
        v_add_u32 v{vLA}, {LAND}, v{vLA}
        ds_write_b128 v30, v[248:251]
        ds_write_b32 v{vLA}, v248""")
        e(f"s_lshl_b32 s{sT0}, s{sWID}, 19")
        self.emit(self.srd(sK, 6, f"s{sT0}", 524288) + self.srd(sV, 8, f"s{sT0}", 524288))
        e(f"""v_lshlrev_b32 v30, 8, v3
        v_lshl_add_u32 v30, v2, 6, v30
        v_xor_b32 v31, 2, v4
        v_min_u32 v{vPA}, 2, v4
        v_lshl_add_u32 v{vKV+1}, v31, 4, v30
        v_lshl_add_u32 v{vKV}, v4, 4, v30
        v_lshlrev_b32 v{vPA}, 8, v{vPA}
        v_add_u32 v{vPA}, {PROG}, v{vPA}
        s_mov_b32 s{sOFF}, 0
        s_mov_b32 s{sSL}, 0
        s_mov_b32 s{sB}, 10
        v_mov_b32 v{vORD}, 64""")
        self.stamp("iss")
        e("s_waitcnt lgkmcnt(0)\ns_barrier")
        self.stamp("bar")
        setup = self.common_srds() + self.xpat(30, 31, vXR, vXR1, CBX) + self.wpat(30, 31, vW0, vW1, CBW) + \
                [f"v_mov_b32 v{vSC}, s{sCS}", f"v_mov_b32 v{vSC+1}, s{sCS}", "v_and_b32 v30, 3, v1", "v_min_u32 v30, 2, v30", "v_and_b32 v31, 12, v1",
                 "v_add_u32 v30, v30, v31", f"v_lshlrev_b32 v{vFA}, 7, v30"]
        self.emit(setup)
        done = [0]
        def q0pub(W):
            while done[0] < 16:
                c = done[0]
                idx = [i for i, t in enumerate(self.q) if t == ("w", c)]
                if len(idx) < 8 or len(self.q) - 1 - idx[-1] < W: break
                self.emit(self.q_wait(("q0", c), ("w", c)) + self.pub_abs(c + 1))
                self.stamp(f"c{c}")
                done[0] += 1
        WQ = self.o.get("wq", 40)
        for it in seq[NI:]:
            if False: pass
            elif isinstance(it, str):
                assert done[0] >= int(it[3:])
                self.emit([self.rdpr] + self.pcheck(int(it[3:])))
            else:
                self.emit(self.q_push(it[1], it[0])); q0pub(WQ)
        self.stamp("c15i")
        pf = self.o.get("pf", 3); st = 7
        if pf & 1:
            e(f"""s_lshr_b32 s{sT1}, s2, 3
            s_lshl_b32 s{sPO}, s{sT1}, 17
            s_lshl_b32 s{sT0}, s{sKQ}, 11""")
            e(f"""v_lshrrev_b32 v30, 3, v1
            v_lshlrev_b32 v30, 13, v30
            v_bfe_u32 v31, v1, 1, 2
            v_lshl_add_u32 v30, v31, 9, v30
            v_and_b32 v31, 1, v1
            v_lshl_add_u32 v30, v31, 7, v30
            v_add_u32 v30, 256, v30""")
            L = self.srd(sPF, 10, f"s{sT0}", 4194304 - 6144)
            for i in range(4 >> (st - 6)): L += [f"buffer_load_dword v{vHT+1}, v30, {sr(sPF)}, s{sPO} offen", f"s_add_u32 s{sPO}, s{sPO}, {512 << st}"]
            self.emit(self.q_push(L, "pf")); q0pub(WQ)
        if pf & 2:
            half = self.o.get("pfh", 1)
            e(f"""s_lshl_b32 s{sT0}, s{sKQ}, 20
            s_lshr_b32 s{sT1}, s2, 3
            s_lshl_b32 s{sT1}, s{sT1}, 15
            s_add_u32 s{sT0}, s{sT0}, s{sT1}
            s_and_b32 s{sPO}, s2, {half}
            s_lshl_b32 s{sPO}, s{sPO}, 14
            v_lshlrev_b32 v30, 7, v1""")
            L = self.srd(sPF, 12, f"s{sT0}", 32768)
            for i in range(4 >> half): L += [f"buffer_load_dword v{vHT+1}, v30, {sr(sPF)}, s{sPO} offen", f"s_add_u32 s{sPO}, s{sPO}, 8192"]
            self.emit(self.q_push(L, "pf")); q0pub(WQ)
        q0pub(self.o.get("wq2", 24))
        self.emit([self.kv_m0(0), self.kv_so(0), f"s_mov_b32 s{sP5}, 256"] + [f"s_mov_b32 s{sG[i]}, {i*32768}" for i in range(5)])
        while self.G < 20:
            if self.G & 3 == 3: assert done[0] >= (self.G >> 2) + 11
            self.emit(self.flat(self.position(("q0p", self.G))))
            q0pub(max(4, WQ - 8 * self.G))
            if done[0] == 16 and not self.pubok:
                assert self.G - 1 - D < 3
                self.pubok = True; self.stamp("q0")
        self.stamp("G20")
        self.emit(self.pcheck(16))
        self.engine()
        e(f"s_cmp_lg_u32 s{sIT}, 0\ns_cbranch_scc1 L_wph")
        save = (list(self.q), self.G)
        assert self.G == 128
        F = [f"v_add_u32 v30, {HAND1}, v{vL16}", "s_nop 3"]
        n = 0
        for ks in (1, 2, 3, 0):
            for qt in range(9):
                if ks:
                    b0 = vHACC + 36 * (2 * ks - 2) + 4 * qt; b1 = b0 + 36
                else:
                    b0 = vHACC + 8 * (qt % 2); b1 = b0 + 4
                    for i in range(4): F += [f"v_accvgpr_read_b32 v{b0+i}, a{aHACC+4*qt+i}", f"v_accvgpr_read_b32 v{b1+i}, a{aHACC+36+4*qt+i}"]
                F += [f"v_pk_mul_f32 v[{b}:{b+1}], v[{b}:{b+1}], v[{vSC}:{vSC+1}]" for b in (b0, b0 + 2, b1, b1 + 2)]
                t = vHT + 4 * (n % 2); n += 1
                F += [f"v_cvt_pk_bf16_f32 v{t+i}, v{b}, v{b+1}" for i, b in enumerate((b0, b0 + 2, b1, b1 + 2))]
                F += [f"ds_write_b128 v30, {vr(t)} offset:{(qt*4+ks)*1024}"]
        assert D >= 1
        self.plain("f0", F[:len(F) // 2]); self.plain("f1", F[len(F) // 2:])
        SW = [f"s_lshl_b32 s{sT2}, s{sKQ}, 20", f"s_lshl_b32 s{sT3}, s{sC}, 8", f"s_add_u32 s{sT2}, s{sT2}, s{sT3}"] + self.srd(sEA, 12, f"s{sT2}", 1048576) + \
             [f"s_sub_u32 s{sEA+2}, s{sEA+2}, s{sT3}"] + [f"s_mov_b32 s{sEB+i}, s{sOB+i}" for i in range(3)] + \
             [f"s_mov_b32 s{sP1}, 73728", f"s_mov_b32 s{sP2}, 1024", f"s_mov_b32 s{sP3}, {1 << 18}", f"s_mov_b32 s{sP4}, {1 << 15}",
              f"s_mov_b32 s{sP5}, 0", f"s_mov_b32 s{sP6}, 8192", f"v_add_u32 v{vXR}, {CBX}, v{vL16}", f"v_add_u32 v{vXR1}, {CBX + 1024}, v{vL16}",
              "v_bfe_u32 v30, v1, 2, 2", "v_lshlrev_b32 v30, 10, v30", "v_lshrrev_b32 v31, 4, v1", "v_lshl_add_u32 v30, v31, 6, v30",
              "v_and_b32 v31, 3, v1", f"v_lshl_add_u32 v{vDW}, v31, 4, v30", "v_xor_b32 v31, 2, v31", f"v_lshl_add_u32 v{vDW+1}, v31, 4, v30",
              f"v_add_u32 v{vDW+2}, 2048, v{vDW}", f"v_add_u32 v{vDW+3}, 17408, v{vDW+1}", f"v_add_u32 v{vDW+1}, 15360, v{vDW+1}",
              f"s_lshl_b32 s{sROT}, s{sC}, 2", "v_bfe_u32 v30, v1, 2, 2", f"v_subrev_u32 v30, s{sC}, v30", "v_and_b32 v30, 3, v30", f"v_lshlrev_b32 v{vORD}, 2, v30"]
        SW += [f"v_add_u32 v{vDX+i}, {O_OFF + (i >> 1)*2048}, v{vL16}" for i in range(4)] + [f"s_mov_b32 s{sG[4]}, 32768"]
        for gi in range(4): SW += [f"s_add_u32 s{sT1}, s{sKQ}, {gi+1}", f"s_and_b32 s{sT1}, s{sT1}, 3", f"s_lshl_b32 s{sG[gi]}, s{sT1}, 13"]
        for m in range(34, self.S0): self.plain(("pl", m), SW if m == 34 else [])
        self.stamp("s0")
        e(f"L_s0:\n{self.rdpr}")
        self.emit(self.pcheck(51, redo=True))
        e(f"s_mov_b32 s{sIT}, 1")
        self.stamp("it0")
        e("s_branch L_eng")
        if self.dry:
            self.ph = 1
            self.engine()
        else:
            self.G += 108; self.pub = None
        assert self.G == 4 * (self.S0 + 27) and 35 <= self.S0 <= 38
        e("L_wph:")
        for m in range(self.S0 + 27, 65): self.plain(("pz", m))
        G65 = self.G
        self.stamp("G260")
        def wblock(p, slot=None):
            L = []
            for x in range(2):
                n = 2 * p + x
                m0 = (lambda h: f"s_add_u32 m0, s{sSL}, {x*8192 + h*4096}") if slot is None else (lambda h: f"s_mov_b32 m0, {slot*SLOT + x*8192 + h*4096}")
                G = self.agroups(m0, sT3, self.P("wpol"), sT4)
                o = ((n >> 2) << 18) + ((n & 3) << 15) + 131072
                L += [G[0][0], f"s_mov_b32 s{sT3}, {o}"] + G[0][1] + [G[1][0], f"s_mov_b32 s{sT4}, {o + 8192}"] + G[1][1]
            return L
        HW = [f"v_add_u32 v30, {ST}, v{vL16}", "s_nop 4"] + [f"ds_write_b128 v30, {self.hacc(t, i)} offset:{(t*9+i)*1024}" for t in range(4) for i in range(9)]
        for p in range(7):
            L = ([self.rdpr] + self.pcheck(f"s{sB}") if p else []) + self.q_push(wblock(p), ("w", p)) + [f"s_add_u32 s{sB}, s{sB}, 1"] + self.nextslot()
            if p < 2: L += self.q_wait(("wp", p), ("g", G65 - 5 + 4 * p)) + self.pub_abs(16 + 64 + p)
            if p < 4: L += HW[p * 10:(p + 1) * 10]
            if p == 4: L += self.q_wait(("wp", p), ("w", 3)) + self.pub_abs(16 + 69)
            self.emit(L)
            if p == 4: self.stamp("w4")
        self.stamp("it1")
        self.emit(self.tail_wregs() + self.pulls(0))
        if not self.dry: self.b1("L_hredo")
        self.emit(wblock(7, 2) + [f"v_add_u32 v30, 49152, v{vL16}"] + [f"ds_write_b128 v30, {self.hacc(t, i)} offset:{((t-4)*9+i)*1024}" for t in (4, 5) for i in range(9)])
        self.emit(self.tail_regs())
        e("s_waitcnt vmcnt(0) lgkmcnt(0)\ns_barrier")
        self.emit(self.pulls(1))
        e("s_branch L_tail")
        e(f"""L_hredo:
        s_waitcnt vmcnt(0)
        s_barrier
        s_lshl_b32 s{sB}, s{sIT}, 5
        s_add_u32 s{sB}, s{sB}, 10
        s_add_u32 s{sT0}, s{sB}, {6 - (D + 3) // 4}
        v_mov_b32 v{vPB}, s{sT0}
        ds_write_b32 v{vLA}, v{vPB}
        s_mov_b32 s{sCNT}, 0
        s_lshl_b32 s{sOFF}, s{sIT}, 18
        s_mov_b32 s{sSL}, 0
L_hmloop:""")
        for j in range(2): self.emit([self.kv_m0(j), self.kv_so(j)] + self.kv_d(j))
        e(f"""s_add_u32 s{sOFF}, s{sOFF}, 8192
        s_waitcnt vmcnt(0) lgkmcnt(0)
        s_barrier
        s_barrier
        s_add_u32 s{sCNT}, s{sCNT}, 1
        s_cmp_lt_u32 s{sCNT}, 32
        s_cbranch_scc1 L_hmloop
        s_lshl_b32 s{sOFF}, s{sIT}, 18
        s_lshl_b32 s{sSL}, s{sIT}, 16
        s_cmp_eq_u32 s{sIT}, 0
        s_cselect_b32 s{sCNT}, {self.S0 + 10}, {min(65, self.S0 + 27) + 10}
        {self.kv_m0(0)}
        {self.kv_so(0)}
L_hploop:""")
        self.G = 400; self.q = [("g", g) for g in range(380, 400) for _ in range(4)]; self.pub = None
        self.plain("rp")
        e(f"""s_cmp_lt_u32 s{sB}, s{sCNT}
        s_cbranch_scc1 L_hploop
        s_cmp_lg_u32 s{sIT}, 0
        s_cbranch_scc1 L_wph
        s_branch L_s0""")

    def tail_wregs(self):
        return [f"s_lshl_b32 s{sT0}, s{sWAVE}, 8"] + self.wpat(250, 251, 252, 253, f"s{sT0}") + [f"v_add_u32 v254, 65536, v252", f"v_add_u32 v255, 65536, v253"]
    def pulls(self, half):
        L = []
        for n in range(8 * half, 8 * half + 8):
            slot = (2 + (n >> 1)) % 7
            o = (slot & 3) * SLOT + (n & 1) * 8192; r = 252 + 2 * (slot >> 2)
            for u in range(2):
                L += [f"ds_read_b64_tr_b16 {ar(aTW+8*n+4*u,2)}, v{r} offset:{o+8*u}", f"ds_read_b64_tr_b16 {ar(aTW+8*n+4*u+2,2)}, v{r+1} offset:{o+8*u}"]
        return L
    def tail_regs(self):
        L = self.opat()
        L += [f"v_add_u32 v{vTB+s}, {s*36864}, v{vL16}" for s in range(4)]
        L += ["v_bfe_u32 v19, v1, 2, 2", "v_lshrrev_b32 v20, 4, v1", "v_cmp_eq_u32 vcc, v19, v20", "v_and_b32 v19, 1, v1", "v_lshlrev_b32 v19, 4, v19",
              "v_mov_b32 v20, 0x3f80", "v_lshlrev_b32 v19, v19, v20", "v_cndmask_b32 v19, 0, v19, vcc", "v_and_b32 v20, 2, v1", "v_cmp_eq_u32 vcc, 0, v20",
              f"v_mov_b32 v{vSEL+2}, 0", f"v_mov_b32 v{vSEL+3}, 0", f"v_cndmask_b32 v{vSEL}, 0, v19, vcc", f"v_sub_u32 v{vSEL+1}, v19, v{vSEL}",
              f"v_mov_b32 v{vSEL+4}, 0", f"v_mov_b32 v{vSEL+5}, 0", f"v_mov_b32 v{vSEL+6}, v{vSEL}", f"v_mov_b32 v{vSEL+7}, v{vSEL+1}"]
        for j, s in enumerate((sS0, sS1, sS2)):
            L += [f"s_add_u32 s{sT0}, s{sWID}, {4*(j+1)}", f"s_and_b32 s{sT0}, s{sT0}, 15", f"s_and_b32 s{sT1}, s{sWID}, 0xf0", f"s_add_u32 s{sT0}, s{sT0}, s{sT1}",
                  f"s_mul_i32 s{sT0}, s{sT0}, 36864", f"s_add_u32 s{sT1}, s{sWAVE}, {4*j}", f"s_mul_i32 s{sT1}, s{sT1}, 3072", f"s_add_u32 s{s}, s{sT0}, s{sT1}"]
        L += [f"s_sub_u32 s{sT0}, s{sWAVE}, s{sKQ}", f"s_and_b32 s{sT0}, s{sT0}, 3", f"s_cmp_eq_u32 s{sT0}, 1", f"s_cselect_b32 s{sS8}, s{sS0}, s{sS1}",
              f"s_cmp_eq_u32 s{sT0}, 3", f"s_cselect_b32 s{sS8}, s{sS2}, s{sS8}", f"s_add_u32 s{sS8}, s{sS8}, 2048",
              f"s_cmp_eq_u32 s{sT0}, 0", f"s_cselect_b32 s{sS8}, {OOB:#x}, s{sS8}"]
        L += ["v_and_b32 v19, 3, v1", "v_min_u32 v19, 2, v19", "v_lshlrev_b32 v27, 7, v19",
              f"v_add_u32 v20, s{sKQ}, v19", "v_add_u32 v20, 1, v20", "v_and_b32 v20, 3, v20", "v_lshlrev_b32 v20, 15, v20", "v_add_u32 v28, v20, v27",
              "v_and_b32 v19, 15, v1", "v_lshlrev_b32 v19, 10, v19", "v_lshrrev_b32 v20, 4, v1", "v_lshl_add_u32 v19, v20, 4, v19",
              f"s_lshl_b32 s{sT0}, s{sWAVE}, 6", f"v_add_u32 v29, s{sT0}, v19"]
        return L
    def poll(self, name, line0):
        self.a(f"""s_lshl_b32 s{sT2}, s{sWID}, 13
        s_lshl_b32 s{sT1}, s{sWAVE}, 9
        s_add_u32 s{sT2}, s{sT2}, s{sT1}
{name}:""")
        self.emit(self.budget(name + "ok"))
        self.a(f"""buffer_load_dword v2, v27, {sr(sFL)}, s{sT2} offen offset:{line0*128 & 4095} sc1
        s_waitcnt vmcnt(0)
        v_cmp_ne_u32 vcc, 1, v2
        s_cbranch_vccnz {name}
{name}ok:""")
    def tail(self):
        a = self.a
        a("L_tail:\ns_waitcnt lgkmcnt(0)\ns_barrier")
        self.stamp("b3")
        self.poll("L_poll1", 16)
        self.stamp("p1")
        a(f"""s_mul_i32 s{sT2}, s{sWAVE}, 73728
        s_add_u32 s{sT2}, s{sT2}, 36864
        s_mul_i32 s{sT3}, s{sWAVE}, 36864""")
        for k in range(4):
            for gi, n in ((0, 4), (1, 4), (2, 1)):
                a(f"s_add_u32 m0, s{sT3}, {k*9216 + gi*4096}")
                a(f"s_add_u32 s{sT2}, s{sT2}, 1024" if (k and gi == 0) else "s_nop 0")
                for i in range(n): a(self.dma(vDX + 4 * gi + i, sOB, sT2, i * 1024, self.P("olpol")))
        steps = [(k, i) for k in range(3) for i in range(9)] + [(3, i) for i in (8, 0, 1, 2, 3, 4, 5, 6, 7)]
        rd = lambda j: [f"ds_read_b128 {vr(vBF+16*(j&3)+4*s)}, v{vTB+s} offset:{steps[j][0]*9216+steps[j][1]*1024}" for s in range(4)]
        acc = lambda u, i: vTA + 36 * u + 4 * i
        def send(i, n):
            t = vRC + 4 * (n & 1)
            so = sS8 if i == 8 else (sS0, sS1, sS2)[i >> 1]
            return [f"v_cvt_pk_bf16_f32 v{t+2*u+x}, v{acc(u,i)+2*x}, v{acc(u,i)+2*x+1}" for u in range(2) for x in range(2)] + \
                   [f"buffer_store_dwordx4 {vr(t)}, v{vL16}, {sr(sPT)}, s{so} offen offset:{0 if i == 8 else (i&1)*1024} {self.P('psc', 'sc1')}"]
        a("s_waitcnt vmcnt(27)\ns_barrier")
        self.stamp("d0")
        self.emit(rd(0) + rd(1))
        nst = 0
        for j, (k, i) in enumerate(steps):
            nx = j + 2
            if nx < 36 and nx % 9 == 0:
                a(f"s_waitcnt vmcnt({27 - nx})\ns_barrier")
            a(f"s_waitcnt lgkmcnt({4 if j < 35 else 0})")
            mf = [f"{MF} {vr(acc(u,i))}, {ar(aTW+8*(4*s+k)+4*u)}, {vr(vBF+16*(j&3)+4*s)}, {vr(acc(u,i))}" for s in range(4) for u in range(2)]
            f = {}
            if nx < 36:
                for s, x in enumerate(rd(nx)): f[s] = [x]
            if 28 <= j <= 34:
                X = send(steps[j - 1][1], nst); nst += 1
                f[4] = X[:2]; f[5] = X[2:4]; f[6] = X[4:]
            self.weave(mf, f)
        self.stamp("mf")
        a(f"""s_and_b32 s{sT0}, s{sWID}, 0xf3
        s_lshl_b32 s{sT0}, s{sT0}, 13
        s_lshl_b32 s{sT1}, s{sWAVE}, 9
        s_add_u32 s{sT0}, s{sT0}, s{sT1}
        s_add_u32 s{sT0}, s{sT0}, 4096
        v_mov_b32 v3, 1
        s_mov_b64 exec, 7
        s_waitcnt vmcnt(0)
        buffer_store_dword v3, v28, {sr(sFL)}, s{sT0} offen sc1
        s_mov_b64 exec, -1
        v_add_u32 v27, 4096, v27""")
        self.poll("L_poll2", 0)
        self.stamp("p2")
        a(f"""s_mul_i32 s{sT0}, s{sWID}, 36864
        s_mul_i32 s{sT1}, s{sWAVE}, 3072
        s_add_u32 s{sT0}, s{sT0}, s{sT1}
        s_lshl_b32 s{sT2}, s{sKQ}, 15
        s_cmp_eq_u32 s{sWAVE}, s{sKQ}
        s_cselect_b32 s{sT3}, 0, {OOB:#x}""")
        for j in range(3):
            if j: a(f"s_add_u32 s{sT0}, s{sT0}, 12288")
            a(f"s_or_b32 s{sT1}, s{sT0}, s{sT3}")
            for u in range(3):
                a(f"buffer_load_dwordx4 {vr(vRC+12*j+4*u)}, v{vL16}, {sr(sPT)}, s{sT1 if u == 2 else sT0} offen offset:{u*1024} {self.P('plpol', 'sc1')}")
        for j in range(3):
            a(f"s_waitcnt vmcnt({6-3*j})")
            for u, i in enumerate((6, 7, 8)):
                for x in range(2):
                    a(f"{MF} {vr(acc(x,i))}, {vr(vSEL+4*x)}, {vr(vRC+12*j+4*u)}, {vr(acc(x,i))}")
        a(f"""s_add_u32 s{sT1}, s{sT2}, 16384
        s_or_b32 s{sT3}, s{sT3}, 131072
        s_nop 1""")
        for n, (i, so) in enumerate(((6, sT2), (7, sT1), (8, sT3))):
            t = vBF + 4 * n
            if n == 2: a("s_nop 1")
            for u in range(2):
                for x in range(2): a(f"v_cvt_pk_bf16_f32 v{t+2*u+x}, v{acc(u,i)+2*x}, v{acc(u,i)+2*x+1}")
            a(f"buffer_store_dwordx4 {vr(t)}, v29, {sr(sOUT)}, s{so} offen {self.P('opol')}")
        if self.o.get("stamps"):
            a("s_waitcnt vmcnt(0)")
            if self.o.get("sm") not in ("s", "r", "c"): self.stamp("end")
            if self.o.get("dbg"):
                a("s_waitcnt lgkmcnt(0)")
                self.emit(self.srd(sDB, 16, 0, 256))
                a(f"""s_cmp_eq_u32 s{sWAVE}, 3
                s_cselect_b32 s{sT0}, 28, 0
                s_mov_b64 exec, 1
                v_mov_b32 v5, 0
                s_add_u32 s{sT1}, s{sWAVE}, 1
                s_and_b32 s{sT1}, s{sT1}, 2
                s_cbranch_scc1 L_nodbg""")
                for i in range(1, 8):
                    a(f"s_sub_u32 s{sT1}, s{sSTAMP+2*i}, s{sSTAMP}\nv_mov_b32 v6, s{sT1}\nbuffer_atomic_add v6, v5, {sr(sDB)}, s{sT0} offen offset:{4*i} sc1")
                a(f"""s_not_b32 s{sT1}, s{sSTAMP}
                v_mov_b32 v6, s{sT1}
                v_mov_b32 v7, s{sSTAMP+14}
                buffer_atomic_umax v6, v5, {sr(sDB)}, 0 offen offset:60 sc1
                s_waitcnt vmcnt(0)
L_nodbg:
                s_endpgm""")
            a(f"""s_waitcnt lgkmcnt(0)
            s_mov_b32 s{sO}, s18
            s_and_b32 s{sO+1}, s19, 0xffff
            s_mov_b32 s{sO+2}, 536870912
            s_mov_b32 s{sO+3}, 0x00020000
            s_lshl_b32 s{sT0}, s2, 8
            s_lshl_b32 s{sT1}, s{sWAVE}, 6
            s_add_u32 s{sT0}, s{sT0}, s{sT1}
            s_add_u32 s{sT0}, s{sT0}, {256<<20}
            v_mov_b32 v5, 0""")
            for i in range(16): a(f"v_mov_b32 v{16+i}, s{sSTAMP+i}")
            a("s_mov_b64 exec, 1")
            for i in range(4): a(f"buffer_store_dwordx4 {vr(16+4*i)}, v5, {sr(sO)}, s{sT0} offen offset:{16*i}")
        a("s_endpgm")

    def kernel(self):
        self.inh = True
        self.dry = True; self.helper(); self.dry = False
        self.prologue()
        self.helper()
        self.inh = False
        self.attention()
        self.inh = self.o.get("sm") in ("g", "s", "r", "c") and self.o.get("gh", 1)
        self.tail()
        self.emit(self.ool)
        self.a("L_end:\ns_endpgm")
        return self.a.text()

def build(opt):
    g = Gen(opt)
    t = g.kernel()
    if opt.get("v"): print(g.cnt)
    src = open("standalone__gqa_block_cached__near_ridge.s.ref").read().split("; Override launch")[0]
    return src + header([(KN, 256, 256, LDS)]) + kstart(KN) + t + rodata([kdesc(KN, 256, 256)])

if __name__ == "__main__":
    opt = {}
    out = sys.argv[1]
    for x in sys.argv[2:]:
        k, _, v = x.partition("=")
        opt[k] = int(v) if v.lstrip("-").isdigit() else (v if v else True)
    t = build(opt)
    open(out, "w").write(t)
    print("hazards:", hazard.check(t), "bytes:", len(t))
```

```python
import sys, struct
from asmlib import *
import hazard

SLOT = 16384; NSL = 7; RING = NSL * SLOT
CH = 17408
SYNC = 162560
LAND, PROG, MISC = SYNC, SYNC + 256, SYNC + 1024
PB = 2 * CH
QP = [SYNC - (4 - i) * PB for i in range(4)]
CBX = QP[3]; CBW = CBX + 18432
HAND1 = SYNC - 36864
ST = RING
LDS = 163840
O_OFF = 4096
PT_OFF = 24 << 20
FL_OFF = 40 << 20
CSC = struct.unpack("<I", struct.pack("<f", 1.4426950408889634 * 128 ** -0.5))[0]
THR = 0x4b800000
OOB = 0x80000000
MF = "v_mfma_f32_16x16x32_bf16"

def vr(b, n=4): return f"v[{b}:{b+n-1}]"
def ar(b, n=4): return f"a[{b}:{b+n-1}]"
def sr(b, n=4): return f"s[{b}:{b+n-1}]"

sWAVE = 3
sEB, sK, sV, sEA, sO, sOB, sPT, sOUT, sFL, sDB = 20, 24, 28, 32, 36, 40, 44, 48, 52, 56
(sT0, sT1, sT2, sT3, sT4, sOFF, sSL, sB, sIT, sCNT, sREDO, sROT, sCS, sKS, sPUB, sBUD, sKQ, sC, sBB, sWID,
 sP1, sP2, sP3, sP4) = range(60, 84)
sSTAMP = 84
sP5, sP6 = 100, 101
sS0, sS1, sS2, sS8 = sP1, sP2, sP3, sP4
sPF = sO
sXB, sXA = sDB, sDB + 2
sPO = sPUB
sG = [sO, sO + 1, sO + 2, sO + 3, sPUB]
sQD = sKS
vL16, vLA, vPA = 5, 6, 7
vPR, vLD, vRK, vRV0, vRV1, vRKb, vRV0b, vRV1b = 8, 9, 10, 11, 12, 13, 14, 15
vS, vNM, vONE, vMS = 16, 40, 52, 56
vTMP, vQ, vO, vL = 64, 80, 128, 224
vCT = 240
vXRq, vW0q, vW1q = 16, 18, 19
aK, aV, aQF = 0, 64, 128
vKV = 2
vPV, vPB, vDX, vDW, vW0, vW1, vXR, vSC, vFA, vFV = 8, 9, 10, 19, 23, 24, 25, 26, 28, 29
vORD, vXR1 = 4, 14
aB2 = 208
vHACC = 32; aHACC = 0; aHF = 72; vHT = 248
vTB = 23
vBF, vSEL, vRC, vTA = 32, 96, 112, 176
aTW = 128

def S(qt, kt=0): return vS + 8 * qt + 4 * kt
def Kf(p, kt, ks): return aK + 32 * p + 16 * kt + 4 * ks
def Vf(p, dt): return aV + 32 * p + 4 * dt
def Qf(qt, ks): return vQ + 16 * qt + 4 * ks
def Oa(qt, dt): return vO + 32 * qt + 4 * dt
def isvm(x): return x.startswith("buffer_")

class Gen:
    def __init__(self, opt):
        self.o = opt
        self.a = A()
        self.ool = []
        self.nlab = 0
        self.D = opt.get("d", 5)
        self.S0 = opt.get("s0", 38)
        self.KS = opt.get("ks", 10)
        self.KG = opt.get("kg", 3)
        self.pol = self.P("pol", "nt")
        self.osc = opt.get("osc", "sc1")
        self.dry = False
        self.cnt = {}
    def P(self, k, d=""):
        v = self.o.get(k, d)
        return "" if v == "none" else v.replace("+", " ")
    STM = {"m": "start c0 q0 it0 it1 b3 p1 end", "t": "start it1 b3 p1 d0 mf p2 end", "q": "start karg iss bar c0 c8 q0 end", "u": "start it1 b1 b2 ack b3 p1 end",
           "g": "start g00 g03 g06 g10 g13 g16 end", "s": "start c15i G4 G8 G12 G16 G20 g00", "r": "start g06 G128 G136 G144 s0 it0 g10", "e": "start g16 G260 w4 it1 b1 b3 end",
           "c": "start c0 c1 c2 c3 c4 c6 c12"}
    def stamp(self, name):
        names = self.STM[self.o.get("sm", "m")].split()
        if self.o.get("sm") == "g" and not self.inh: names = "start q0 it0 it1 b3 p1 mf end".split()
        if self.o.get("sm") == "s" and not self.inh: names = "start c0 c8 q0 k0 st0 it0 x".split()
        if self.o.get("sm") == "c" and not self.inh: names = "start c0 c4 c8 c12 q0 k0 st0".split()
        if self.o.get("sm") == "r" and not self.inh: names = "start fin epi it0 st0 ofl st1 x".split()
        if self.o.get("sm") == "e" and not self.inh: names = "start fin it1 b1 ack b2 b3 end".split()
        if name not in names: return
        i = names.index(name)
        if self.o.get("stamps") == 3 and not self.dry:
            self.a(f"s_sub_u32 s{sSTAMP+2*i}, {1 << 22}, s{sBUD}\ns_mov_b32 s{sSTAMP+2*i+1}, 0" if i else f"s_mov_b64 s[{sSTAMP}:{sSTAMP+1}], 0")
        elif self.o.get("stamps") and not self.dry:
            op = "s_memtime" if self.o.get("stamps") == 2 else "s_memrealtime"
            self.a(f"{op} s[{sSTAMP+2*i}:{sSTAMP+2*i+1}]")
    def emit(self, L):
        if self.dry: return
        for x in L: self.a(x)
    def e(self, s):
        if not self.dry: self.a(s)
    def lab(self, p):
        self.nlab += 1
        return f"L_{p}{self.nlab}"
    def weave(self, mf, fills):
        L = list(fills.get(-1, []))
        for i, m in enumerate(mf):
            L.append(m); L += fills.get(i, [])
        self.emit(L)
    def spread(self, mf, items):
        if not mf:
            self.emit(items); return
        n = len(mf); f = {}
        for k, x in enumerate(items):
            f.setdefault(min(n - 1, k * n // max(1, len(items))), []).append(x)
        self.weave(mf, f)
    def srd(self, d, lo, off, nrec):
        return [f"s_add_u32 s{d}, s{lo}, {off}", f"s_addc_u32 s{d+1}, s{lo+1}, 0", f"s_and_b32 s{d+1}, s{d+1}, 0xffff",
                f"s_mov_b32 s{d+2}, {nrec}", f"s_mov_b32 s{d+3}, 0x00020000"]
    def dma(self, v, srd, soff, imm, pol=""):
        return " ".join(f"buffer_load_dwordx4 v{v}, {sr(srd)}, s{soff} offen offset:{imm} {pol} lds".split())
    def budget(self, ret):
        return [f"s_sub_i32 s{sBUD}, s{sBUD}, 1", f"s_cmp_lt_i32 s{sBUD}, 0", f"s_cbranch_scc1 {ret}"]

    def prologue(self):
        a = self.a
        a(f"""s_cmp_ge_u32 s2, 256
        s_cbranch_scc1 L_end
        s_load_dwordx16 s[4:19], s[0:1], 0""")
        self.stamp("start")
        a(f"""v_lshrrev_b32 v2, 6, v0
        v_and_b32 v1, 63, v0
        s_bfe_u32 s{sT1}, s2, 0x30003
        v_readfirstlane_b32 s{sWAVE}, v2
        s_and_b32 s{sT0}, s2, 1
        s_lshl_b32 s{sT0}, s{sT0}, 3
        s_add_u32 s{sBB}, s{sT0}, s{sT1}          ; b
        s_lshr_b32 s{sC}, s2, 6                   ; c
        s_bfe_u32 s{sKQ}, s2, 0x20001             ; kq
        s_lshl_b32 s{sT1}, s{sT1}, 1
        s_lshl_b32 s{sT2}, s{sC}, 2
        s_add_u32 s{sROT}, s{sT1}, s{sT2}
        {f"s_mov_b32 s{sROT}, 0" if self.o.get("norot") else ""}
        s_lshl_b32 s{sT2}, s{sKQ}, 2
        s_add_u32 s{sT2}, s{sT2}, s{sC}           ; hp
        s_lshl_b32 s{sWID}, s{sBB}, 4
        s_add_u32 s{sWID}, s{sWID}, s{sT2}        ; b*16 + hp
        v_lshrrev_b32 v2, 4, v1                   ; g
        v_bfe_u32 v3, v1, 2, 2                    ; r
        v_and_b32 v4, 3, v1                       ; c
        s_mov_b32 s{sBUD}, {1 << 22}
        s_cmp_lg_u32 s{sWAVE}, 3
        s_cbranch_scc1 L_attn""")

    def common_srds(self):
        L = self.srd(sFL, 18, FL_OFF, 256 * 8192) + self.srd(sPT, 18, PT_OFF, 256 * 36864)
        L += [f"s_lshl_b32 s{sT0}, s{sBB}, 2", f"s_add_u32 s{sT0}, s{sT0}, s{sKQ}", f"s_mul_i32 s{sT0}, s{sT0}, {8*36864}"]
        L += self.srd(sOB, 18, f"s{sT0}", 8 * 36864 + O_OFF)
        L += [f"s_mul_i32 s{sT0}, s{sBB}, 147456", f"s_lshl_b32 s{sT1}, s{sC}, 8", f"s_add_u32 s{sT0}, s{sT0}, s{sT1}"]
        L += self.srd(sOUT, 14, f"s{sT0}", 147456) + [f"s_sub_u32 s{sOUT+2}, s{sOUT+2}, s{sT1}"]
        L += [f"s_mov_b32 s{sIT}, 0", f"s_mov_b32 s{sREDO}, 0", f"s_mov_b32 s{sCS}, {CSC:#x}"]
        return L
    def wpat(self, t0, t1, w0, w1, base):
        return [f"v_lshrrev_b32 v{t0}, 4, v1", f"v_lshlrev_b32 v{t0}, 11, v{t0}", f"v_bfe_u32 v{t1}, v1, 2, 2", f"v_lshl_add_u32 v{t0}, v{t1}, 6, v{t0}",
                f"v_add_u32 v{t0}, {base}, v{t0}", f"v_and_b32 v{t1}, 3, v1", f"v_lshl_add_u32 v{w0}, v{t1}, 4, v{t0}",
                f"v_xor_b32 v{t1}, 2, v{t1}", f"v_lshl_add_u32 v{w1}, v{t1}, 4, v{t0}", f"v_add_u32 v{w1}, 1024, v{w1}"]
    def xpat(self, t0, t1, d0, d1, base):
        return [f"v_lshrrev_b32 v{t0}, 4, v1", f"v_and_b32 v{t1}, 7, v1", f"v_xor_b32 v{t0}, v{t0}, v{t1}", f"v_lshlrev_b32 v{t0}, 4, v{t0}",
                f"v_and_b32 v{t1}, 15, v1", f"v_lshl_add_u32 v{t0}, v{t1}, 7, v{t0}", f"v_xor_b32 v{t1}, 64, v{t0}",
                f"v_add_u32 v{d0}, {base}, v{t0}", f"v_add_u32 v{d1}, {base}, v{t1}"]
    def opat(self):
        L = [f"s_lshl_b32 s{sT0}, s{sKQ}, 1"]
        for i in range(8):
            L += [f"s_add_u32 s{sT1}, s{sT0}, {i+2}", f"s_and_b32 s{sT1}, s{sT1}, 7", f"s_lshl_b32 s{sT1}, s{sT1}, 12",
                  f"s_add_u32 s{sT1}, s{sT1}, {O_OFF - (i&3)*1024}", f"v_add_u32 v{vDX+i}, s{sT1}, v{vL16}"]
        return L + [f"v_add_u32 v{vDX+8}, {O_OFF + 32768}, v{vL16}"]

    def await_(self, pre=True):
        l = self.lab("sp")
        self.ool += [f"{l}:"] + self.budget(l + "r") + [f"ds_read_b32 v{vLD}, v{vLA}", "s_waitcnt lgkmcnt(0)",
                     f"v_cmp_gt_u32 vcc, v{vLD}, v{vPR}", f"s_cbranch_vccz {l}", f"s_branch {l}r"]
        if pre: self.a(f"ds_read_b32 v{vLD}, v{vLA}\ns_waitcnt lgkmcnt(0)\nv_cmp_gt_u32 vcc, v{vLD}, v{vPR}")
        self.a(f"s_cbranch_vccz {l}\n{l}r:")
    def nextslot(self):
        return [f"s_add_u32 s{sSL}, s{sSL}, {SLOT}", f"s_cmp_eq_u32 s{sSL}, {RING}", f"s_cselect_b32 s{sSL}, 0, s{sSL}"]
    def slotregs(self):
        return [f"v_add_u32 v{vRK}, s{sSL}, v{vRKb}", f"v_add_u32 v{vRV0}, s{sSL}, v{vRV0b}", f"v_add_u32 v{vRV1}, s{sSL}, v{vRV1b}"]
    def kreads(self, p):
        return [f"ds_read_b128 {ar(Kf(p,kt,ks))}, v{vRK} offset:{kt*4096+ks*256}" for kt in range(2) for ks in range(4)]
    def vreads(self, p):
        return [f"ds_read_b64_tr_b16 {ar(Vf(p,dt)+2*h,2)}, v{vRV0 if dt%2==0 else vRV1} offset:{(dt>>1)*256+h*4096}"
                for dt in range(8) for h in range(2)]
    def qk(self, qt, p, raw=False):
        L = []
        for kt in range(2):
            for ks in range(4):
                d = vr(S(qt, kt))
                c = d if ks else ("0" if raw else vr(vNM + 4 * qt))
                L.append(f"{MF} {d}, {ar(Kf(p,kt,ks))}, {vr(Qf(qt,ks))}, {c}")
        return L
    def pv(self, qt, p, first=False):
        L = []
        for dt in range(8):
            d = vr(Oa(qt, dt))
            L.append(f"{MF} {d}, {ar(Vf(p,dt))}, {vr(S(qt))}, {'0' if first else d}")
        d = vr(vL + 4 * qt)
        L.append(f"{MF} {d}, {vr(vONE)}, {vr(S(qt))}, {'0' if first else d}")
        return L
    def ex(self, qt, i): return f"v_exp_f32 v{S(qt)+i}, v{S(qt)+i}"
    def cv(self, qt, i): return f"v_cvt_pk_bf16_f32 v{S(qt)+i}, v{S(qt)+2*i}, v{S(qt)+2*i+1}"
    incpr = f"v_add_u32 v{vPR}, 1, v{vPR}"
    wrpr = f"ds_write_b32 v{vPA}, v{vPR}"
    rdla = f"ds_read_b32 v{vLD}, v{vLA}"
    cmpla = f"v_cmp_gt_u32 vcc, v{vLD}, v{vPR}"

    def stage(self, p, first=False, tail=[]):
        self.await_(pre=False)
        mf = self.pv(0, p, first) + self.qk(0, p) + self.pv(1, p, first) + self.qk(1, p) + self.pv(2, p, first) + self.qk(2, p)
        f = {i: [] for i in range(51)}
        ki = iter(self.kreads(1 - p)); vi = iter(self.vreads(1 - p))
        for seg, qt in enumerate((2, 0, 1)):
            for i in range(8): f[17 * seg + 2 * i].append(self.ex(qt, i))
        for seg in range(2):
            for g in (3, 7, 11, 15): f[17 * seg + g].append(next(ki))
        for g in (1, 5, 9, 13, 18, 22, 26, 30): f[g] += [next(vi), next(vi)]
        for seg, qt in enumerate((2, 0, 1)):
            for i in range(4): f[17 * seg + 4 * i + 3].append(self.cv(qt, i))
        ns = self.nextslot(); sr_ = self.slotregs()
        f[16] += [self.incpr]
        f[33] += [self.wrpr]
        f[35] += ns[:2]
        f[39] += [ns[2], sr_[0]]
        f[41] += [sr_[1]]
        f[43] += [self.rdla, sr_[2]]
        f[47] += tail
        f[50] += ["s_waitcnt lgkmcnt(0)", self.cmpla]
        na = self.o.get("noatt", 0)
        if na & 1: mf = ["s_nop 0"] * 51
        if na & 2: f = {i: [x for x in L if not x.startswith(("v_exp", "v_cvt"))] for i, L in f.items()}
        if na & 4: f = {i: [x for x in L if not x.startswith(("ds_read_b128", "ds_read_b64"))] for i, L in f.items()}
        self.weave(mf, f)

    def xmax(self, v, t):
        self.a(f"""v_mov_b32 v{t}, v{v}
        s_nop 1
        v_permlane16_swap_b32 v{v}, v{t}
        v_max_f32 v{v}, v{v}, v{t}
        v_mov_b32 v{t}, v{v}
        s_nop 1
        v_permlane32_swap_b32 v{v}, v{t}
        v_max_f32 v{v}, v{v}, v{t}""")

    def stage0(self):
        a = self.a
        mf = self.qk(0, 0, True) + self.qk(1, 0, True) + self.qk(2, 0, True)
        self.spread(mf, self.kreads(1) + self.vreads(1))
        self.emit([self.incpr, self.wrpr] + self.nextslot() + self.slotregs())
        for qt in range(3):
            s = S(qt); m = 59 + qt
            a(f"""v_max3_f32 v{m}, v{s}, v{s+1}, v{vMS+qt}
            v_max3_f32 v{m}, v{s+2}, v{s+3}, v{m}
            v_max3_f32 v{m}, v{s+4}, v{s+5}, v{m}
            v_max3_f32 v{m}, v{s+6}, v{s+7}, v{m}""")
            self.xmax(m, 62)
            for i in range(4): a(f"v_sub_f32 v{vNM+4*qt+i}, 0, v{m}")
            for i in range(8): a(f"v_sub_f32 v{s+i}, v{s+i}, v{m}")
        for qt in range(2):
            for i in range(8): a(self.ex(qt, i))
            a(self.rdla if qt else "s_nop 0")
            for i in range(4): a(self.cv(qt, i))

    def oflag(self, rnd):
        self.a(f"""s_and_b32 s{sT0}, s{sWID}, 0xfc
        s_lshl_b32 s{sT0}, s{sT0}, 13
        s_lshl_b32 s{sT1}, s{sC}, 2
        s_add_u32 s{sT1}, s{sT1}, s{sWAVE}
        s_lshl_b32 s{sT1}, s{sT1}, 7
        s_add_u32 s{sT0}, s{sT0}, s{sT1}
        s_add_u32 s{sT0}, s{sT0}, {2048*rnd}
        v_lshlrev_b32 v2, 13, v1
        v_mov_b32 v3, 1
        s_mov_b64 exec, 15
        s_waitcnt vmcnt(0)
        buffer_store_dword v3, v2, {sr(sFL)}, s{sT0} offen sc1
        s_mov_b64 exec, -1""")

    def final(self):
        a = self.a
        a(f"v_mov_b32 v3, 0\nbuffer_load_dword v{vCT}, v3, {sr(sDB)}, 0 offen sc1")
        mf = self.pv(0, 0) + self.pv(1, 0) + self.pv(2, 0)
        f = {i: [] for i in range(27)}
        for i in range(8): f[i].append(self.ex(2, i))
        for i in range(4): f[9 + i].append(self.cv(2, i))
        self.weave(mf, f)
        a(f"""s_mul_i32 s{sT2}, s{sIT}, 36864
        s_mul_i32 s{sT1}, s{sWAVE}, 12288
        s_add_u32 s{sT2}, s{sT2}, s{sT1}
        s_mov_b32 s{sT0}, {THR:#x}
        s_nop 3
        v_add_f32 v60, v{vL}, v{vL+4}
        v_add_f32 v60, v60, v{vL+8}
        v_cmp_nge_f32 vcc, s{sT0}, v60
        s_mov_b32 s{sT4}, 1
        s_cmp_lg_u32 s{sREDO}, 0
        s_cbranch_scc1 L_noflag
        s_cmp_eq_u64 vcc, 0
        s_cselect_b32 s{sT4}, 1, {1 if self.o.get("noatt") else 2}
L_noflag:""")
        n = 0
        for qt in range(3):
            a(f"v_rcp_f32 v60, v{vL+4*qt}\ns_nop 0\nv_mov_b32 v61, v60")
            for ks in range(4):
                b = Oa(qt, 2 * ks); t = vTMP + 4 * (n % 4); n += 1
                for i in range(4): a(f"v_pk_mul_f32 v[{b+2*i}:{b+2*i+1}], v[{b+2*i}:{b+2*i+1}], v[60:61]")
                for i in range(4): a(f"v_cvt_pk_bf16_f32 v{t+i}, v{b+2*i}, v{b+2*i+1}")
                a(f"buffer_store_dwordx4 {vr(t)}, v{vL16}, {sr(sO)}, s{sT2} offen offset:{ks*1024} {self.osc}")
            a(f"s_add_u32 s{sT2}, s{sT2}, 4096")

    def attention(self):
        a = self.a
        a("L_attn:")
        if self.o.get("cpf", 1):
            a(f"""s_getpc_b64 s[{sO}:{sO+1}]
L_pc:
            s_sub_u32 s{sO}, s{sO}, L_pc-{KN}
            s_subb_u32 s{sO+1}, s{sO+1}, 0
            s_and_b32 s{sO+1}, s{sO+1}, 0xffff
            s_mov_b32 s{sO+2}, L_end-{KN}
            s_mov_b32 s{sO+3}, 0x00020000
            s_lshr_b32 s{sT0}, s2, 3
            s_lshl_b32 s{sT0}, s{sT0}, 11
            v_lshlrev_b32 v59, 7, v0
            v_cmp_gt_u32 vcc, 16, v0
            s_and_saveexec_b64 s[{sT2}:{sT2+1}], vcc
            s_cbranch_execz L_nopf
            buffer_load_dword v255, v59, {sr(sO)}, s{sT0} offen
L_nopf:
            s_mov_b64 exec, -1""")
        a(f"""v_lshlrev_b32 v{vL16}, 4, v1
        s_mul_i32 s{sT0}, s{sWAVE}, 6144
        s_add_u32 s{sT0}, s{sT0}, {QP[0]}""")
        self.emit(self.xpat(59, 60, vXRq, vXRq + 1, f"s{sT0}") + self.wpat(59, 60, vW0q, vW1q, QP[0] + 18432))
        a(f"""s_lshl_b32 s{sT0}, s{sWAVE}, 8
        s_add_u32 s{sT0}, s{sT0}, {PROG}
        v_lshl_add_u32 v{vPA}, v1, 2, s{sT0}
        v_mov_b32 v{vLA}, {LAND}
        v_mov_b32 v{vPR}, 0""")
        for i in range(96): a(f"v_mov_b32 v{vO+i}, 0")
        for i in range(44): a(f"v_accvgpr_write_b32 a{aQF+44+i}, 0")
        self.stamp("iss")
        a("s_waitcnt lgkmcnt(0)\ns_barrier")
        self.stamp("bar")
        self.emit(self.common_srds())
        a(f"s_mul_i32 s{sT0}, s{sWID}, 73728\ns_add_u32 s{sT0}, s{sT0}, {O_OFF}")
        self.emit(self.srd(sO, 18, f"s{sT0}", 73728) + self.srd(sDB, 16, 0, 256))
        a(f"""v_and_b32 v59, 1, v3
        v_lshlrev_b32 v59, 1, v59
        v_xor_b32 v59, v59, v2
        v_lshlrev_b32 v59, 4, v59
        v_lshl_add_u32 v{vRKb}, v3, 10, v59
        v_lshl_add_u32 v{vRKb}, v4, 6, v{vRKb}
        v_lshlrev_b32 v59, 10, v2
        v_lshl_add_u32 v59, v3, 6, v59
        v_lshl_add_u32 v59, v4, 3, v59
        v_add_u32 v59, 8192, v59
        v_and_b32 v60, 1, v2
        v_lshl_add_u32 v{vRV0b}, v60, 5, v59
        v_xor_b32 v60, 1, v60
        v_lshl_add_u32 v{vRV1b}, v60, 5, v59
        v_mov_b32 v{vONE}, 0x3f803f80
        v_mov_b32 v{vONE+1}, 0x3f803f80
        v_mov_b32 v{vONE+2}, 0x3f803f80
        v_mov_b32 v{vONE+3}, 0x3f803f80
        v_mov_b32 v{vMS}, 0xff800000
        v_mov_b32 v{vMS+1}, 0xff800000
        v_mov_b32 v{vMS+2}, 0xff800000
        v_mov_b32 v62, s{sCS}
        v_mov_b32 v63, s{sCS}
        s_mov_b32 s{sSL}, 0
        s_cmp_lg_u32 s{sWAVE}, 0
        s_cbranch_scc1 L_noclr
        s_lshl_b32 s{sT0}, s{sWID}, 13
        v_lshlrev_b32 v2, 7, v1
        v_mov_b32 v3, 0
        buffer_store_dword v3, v2, {sr(sFL)}, s{sT0} offen sc1
L_noclr:
        s_mov_b32 s{sQD}, {2*PB}
        s_mov_b32 s{sCNT}, 0""")
        self.emit(self.slotregs())
        def qreads(k):
            ox = (k >> 1 & 1) * PB; o = ox + (k & 1) * 8192; F = aQF + 44 * (k & 1); L = []
            for t in range(8):
                L.append(f"ds_read_b64_tr_b16 {ar(F+4*t,2)}, v{vW0q} offset:{o+(t>>1)*256+8*(t&1)}")
                L.append(f"ds_read_b64_tr_b16 {ar(F+4*t+2,2)}, v{vW1q} offset:{o+(t>>1)*256+8*(t&1)}")
            return L[:4] + [f"ds_read_b128 {ar(F+32+4*qt)}, v{vXRq+(k&1)} offset:{ox+qt*2048}" for qt in range(3)] + L[4:]
        def qmf(k):
            F = aQF + 44 * (k & 1)
            return [f"{MF} {vr(Oa(qt,t))}, {ar(F+4*t)}, {ar(F+32+4*qt)}, {vr(Oa(qt,t))}" for t in range(8) for qt in range(3)]
        a(f"{self.rdla}\ns_waitcnt lgkmcnt(0)\n{self.cmpla}\n.p2align 3\nL_q0:")
        for k in range(4):
            self.await_(pre=False)
            if k == 0 : self.stampq()
            R = qreads(k)
            f = {i: R[2*i:2*i+2] for i in range(10)}
            f[9].append(self.incpr)
            f[10] = [self.wrpr]; f[self.o.get("qla", 14)] = [self.rdla]
            if k == 3:
                f[18] = [f"v_add_u32 v{vXRq+1}, s{sQD}, v{vXRq+1}"]; f[19] = [f"v_add_u32 v{vXRq}, s{sQD}, v{vXRq}"]; f[20] = [f"v_add_u32 v{vW0q}, s{sQD}, v{vW0q}"]
                f[21] = [f"v_add_u32 v{vW1q}, s{sQD}, v{vW1q}", f"s_sub_u32 s{sQD}, 0, s{sQD}"]
                f[22] = [f"s_add_u32 s{sCNT}, s{sCNT}, 1", f"s_cmp_lt_u32 s{sCNT}, 4"]
            f[23] = ["s_waitcnt lgkmcnt(0)", self.cmpla]
            self.weave(qmf(k - 1), f)
        a("s_cbranch_scc1 L_q0")
        self.emit(qmf(15))
        a(f"""s_cmp_lg_u32 s{sWAVE}, 0
        s_cbranch_scc1 L_noinit
        v_mov_b32 v2, 1
        v_mov_b32 v3, 0
        s_mov_b64 exec, 1
        s_waitcnt vmcnt(0)
        buffer_atomic_add v2, v3, {sr(sDB)}, 0 offen sc1
        s_mov_b64 exec, -1
L_noinit:
        s_nop 5""")
        for qt in range(3):
            for ks in range(4):
                b = Oa(qt, 2 * ks)
                for i in range(4): a(f"v_pk_mul_f32 v[{b+2*i}:{b+2*i+1}], v[{b+2*i}:{b+2*i+1}], v[62:63]")
                for i in range(4): a(f"v_cvt_pk_bf16_f32 v{Qf(qt,ks)+i}, v{b+2*i}, v{b+2*i+1}")
        self.stamp("q0")
        a("L_kfirst:")
        self.await_()
        self.emit(self.kreads(0) + [self.incpr, self.wrpr] + self.nextslot() + self.slotregs())
        self.await_()
        self.stamp("k0")
        a("L_item:")
        self.stage0()
        self.cstamp("st0", 0 if self.o.get("sm") in ("s", "c") else 1)
        a(f"""s_cmp_eq_u32 s{sIT}, 0
        s_cbranch_scc1 L_nopub""")
        self.oflag(0)
        self.stamp("ofl")
        a(f"L_nopub:\ns_waitcnt lgkmcnt(0)\n{self.cmpla}")
        self.stage(1, first=True, tail=[f"s_mov_b32 s{sCNT}, 0"])
        self.cstamp("st1", 1)
        a(".p2align 3\nL_loop:")
        self.stage(0)
        self.stage(1, tail=[f"s_add_u32 s{sCNT}, s{sCNT}, 1", f"s_cmp_lt_u32 s{sCNT}, 15"])
        a("s_cbranch_scc1 L_loop")
        self.cstamp("fin", 1 if self.o.get("sm") == "e" else 0)
        self.final()
        self.cstamp("epi", 0)
        a(f"""v_mov_b32 v2, s{sT4}
        s_cmp_lg_u32 s{sIT}, 0
        s_cbranch_scc1 L_last
        s_cmp_lg_u32 s{sWAVE}, 0
        s_cbranch_scc1 L_cntok
        s_waitcnt vmcnt(12)
L_cnt:
        v_readfirstlane_b32 s{sT0}, v{vCT}
        s_and_b32 s{sT0}, s{sT0}, 255
        s_cbranch_scc0 L_cntok""")
        self.emit(self.budget("L_cntok"))
        a(f"""v_mov_b32 v3, 0
        buffer_load_dword v{vCT}, v3, {sr(sDB)}, 0 offen sc1
        s_waitcnt vmcnt(0)
        s_branch L_cnt
L_cntok:
        s_lshl_b32 s{sT0}, s{sWAVE}, 2
        s_add_u32 s{sT0}, s{sT0}, {MISC}
        v_mov_b32 v3, s{sT0}
        ds_write_b32 v3, v2
        v_and_b32 v3, 3, v1
        v_min_u32 v3, 2, v3
        v_lshlrev_b32 v3, 2, v3
        v_add_u32 v3, {MISC}, v3""")
        self.await_()
        a("L_done:")
        self.emit(self.budget("L_doneok"))
        a(f"""ds_read_b32 v2, v3
        s_waitcnt lgkmcnt(0)
        v_cmp_eq_u32 vcc, 0, v2
        s_cbranch_vccnz L_done
L_doneok:
        v_cmp_eq_u32 vcc, 2, v2
        s_cbranch_vccnz L_redo""")
        self.stamp("it0")
        a(f"s_mul_i32 s{sT0}, s{sWAVE}, 12288\ns_add_u32 s{sT0}, s{sT0}, {HAND1}\nv_add_u32 v2, s{sT0}, v{vL16}")
        for qt in range(3):
            for ks in range(4): a(f"ds_read_b128 {vr(Qf(qt,ks))}, v2 offset:{(qt*4+ks)*1024}")
        a(f"""s_mov_b32 s{sIT}, 1
        s_mov_b32 s{sREDO}, 0
        v_mov_b32 v{vMS}, 0xff800000
        v_mov_b32 v{vMS+1}, 0xff800000
        v_mov_b32 v{vMS+2}, 0xff800000
        s_waitcnt lgkmcnt(0)
        s_branch L_item
L_last:
        s_cmp_eq_u32 s{sT4}, 1
        s_cbranch_scc1 L_ok1
        v_mov_b32 v3, {MISC+16}
        ds_write_b32 v3, v2
L_ok1:""")
        self.stamp("it1")
        a(f"v_mov_b32 v{vPR}, {16+68}")
        self.emit(self.tail_wregs())
        self.await_()
        self.emit(self.pulls(0))
        self.b1("L_redo")
        self.emit(self.tail_regs())
        if self.o.get("fb2", 1): self.oflag(1); self.stamp("ack")
        a("s_barrier")
        self.stamp("b2")
        self.emit(self.pulls(1))
        a(f"""s_mul_i32 s{sT0}, s{sWAVE}, 18432
        s_add_u32 s{sT0}, s{sT0}, {ST}
        s_cmp_eq_u32 s{sWAVE}, 2
        s_cselect_b32 s{sT0}, 49152, s{sT0}
        v_add_u32 v2, s{sT0}, v{vL16}""")
        for f in range(18): a(f"ds_read_b128 {vr(vTA+4*f)}, v2 offset:{f*1024}")
        if not self.o.get("fb2", 1): self.oflag(1); self.stamp("ack")
        a("s_branch L_tail")
        a(f"""L_redo:
        s_waitcnt vmcnt(0)
        s_barrier
        v_mov_b32 v2, 0
        v_lshlrev_b32 v3, 2, v1
        v_add_u32 v3, {MISC}, v3
        ds_write_b32 v3, v2
        s_lshl_b32 s{sT0}, s{sIT}, 5
        s_add_u32 s{sT0}, s{sT0}, 16
        v_mov_b32 v{vPR}, s{sT0}
        v_mov_b32 v{vRK}, v{vRKb}
        {self.wrpr}
        s_mov_b32 s{sCNT}, 0
        s_mov_b32 s{sREDO}, 1
        v_mov_b32 v{vMS}, 0xff800000
        v_mov_b32 v{vMS+1}, 0xff800000
        v_mov_b32 v{vMS+2}, 0xff800000
L_mloop:
        s_barrier""")
        self.emit(self.kreads(0))
        a("s_waitcnt lgkmcnt(0)\ns_barrier")
        self.emit(self.qk(0, 0, True) + self.qk(1, 0, True) + self.qk(2, 0, True))
        a("s_nop 7")
        for qt in range(3):
            s = S(qt); m = vMS + qt
            for i in range(4): a(f"v_max3_f32 v{m}, v{s+2*i}, v{s+2*i+1}, v{m}")
        a(f"""s_add_u32 s{sCNT}, s{sCNT}, 1
        s_cmp_lt_u32 s{sCNT}, 32
        s_cbranch_scc1 L_mloop
        s_lshl_b32 s{sSL}, s{sIT}, 16""")
        self.emit(self.slotregs())
        a("s_branch L_kfirst")
    def cstamp(self, name, it):
        if self.o.get("stamps"):
            l = self.lab("cs")
            self.a(f"s_cmp_lg_u32 s{sIT}, {it}\ns_cbranch_scc1 {l}")
            self.stamp(name)
            self.a(l + ":")
    def stampq(self):
        if self.o.get("stamps"):
            self.a(f"s_cmp_lg_u32 s{sCNT}, 0\ns_cbranch_scc1 L_nost1")
            self.stamp("c0")
            self.a(f"L_nost1:\ns_cmp_lg_u32 s{sCNT}, 2\ns_cbranch_scc1 L_nost2")
            self.stamp("c8")
            self.a(f"L_nost2:\ns_cmp_lg_u32 s{sCNT}, 1\ns_cbranch_scc1 L_nost3")
            self.stamp("c4")
            self.a(f"L_nost3:\ns_cmp_lg_u32 s{sCNT}, 3\ns_cbranch_scc1 L_nost4")
            self.stamp("c12")
            self.a("L_nost4:")
    def b1(self, lab):
        self.a(f"""s_waitcnt lgkmcnt(0)
        s_barrier
        v_mov_b32 v4, {MISC+16}
        ds_read_b32 v4, v4
        s_waitcnt lgkmcnt(0)
        v_cmp_ne_u32 vcc, 0, v4
        s_cbranch_vccnz {lab}""")
        self.stamp("b1")

    def q_push(self, L, tag):
        self.q += [tag] * sum(map(isvm, L))
        return L
    def q_wait(self, loc, tag):
        if self.dry:
            idx = [i for i, t in enumerate(self.q) if (t in tag if isinstance(tag, list) else t == tag)]
            n = len(self.q) - 1 - idx[-1] if idx else 63
            self.cnt[loc] = min(self.cnt.get(loc, 63), n)
            return []
        return [f"s_waitcnt vmcnt({self.cnt[loc]})"]
    def pub_abs(self, val):
        self.pub = val
        return [f"v_mov_b32 v{vPB}, {val}", f"ds_write_b32 v{vLA}, v{vPB}"]
    def pub_inc(self, val):
        if self.dry: assert self.pub is None or val == self.pub + 1, (val, self.pub)
        self.pub = val
        return [f"v_add_u32 v{vPB}, 1, v{vPB}", f"ds_write_b32 v{vLA}, v{vPB}"]
    rdpr = f"ds_read_b32 v{vPV}, v{vPA}"
    def pcheck(self, need, redo=False):
        if self.dry: return []
        l = self.lab("pc")
        o = [f"{l}:"] + self.budget(l + "r")
        if redo: o += [f"v_and_b32 v30, 3, v1", f"v_lshlrev_b32 v30, 2, v30", f"v_add_u32 v30, {MISC}, v30", "ds_read_b32 v30, v30"]
        o += [self.rdpr, "s_waitcnt lgkmcnt(0)"]
        if redo: o += ["v_cmp_eq_u32 vcc, 2, v30", "s_cbranch_vccnz L_hredo"]
        o += [f"v_cmp_gt_u32 vcc, {need}, v{vPV}", f"s_cbranch_vccnz {l}", f"s_branch {l}r"]
        self.ool += o
        return ["s_waitcnt lgkmcnt(0)", f"v_cmp_gt_u32 vcc, {need}, v{vPV}", f"s_cbranch_vccnz {l}", f"{l}r:"]
    def kv_m0(self, j): return f"s_add_u32 m0, s{sSL}, {j*4096}"
    def kv_so(self, j): return f"s_add_u32 s{sT0}, s{sOFF}, {j*4096}" if j < 2 else f"s_sub_u32 s{sT0}, s{sOFF}, {16384 - j*4096}"
    def kv_d(self, j): return [self.dma(vKV + (i & 1), sK if j < 2 else sV, sT0, i * 1024, self.pol) for i in range(4)]
    def kv_adv(self): return [f"s_add_u32 s{sOFF}, s{sOFF}, {0 if self.o.get('kvfix') else 8192}", f"s_add_u32 s{sB}, s{sB}, 1"] + self.nextslot()
    def position(self, loc, cg=None, tag=None, pre=[], fill=None, check=True, late=[], fill2=None):
        G = self.G; j = G & 3; nj = (G + 1) & 3
        if G in (4, 8, 12, 16, 128, 136, 144) and (G < 20 or loc[0] in ("f0", ("pl", 34), ("pl", 36))): self.stamp(f"G{G}")
        g = [[] for _ in range(12)]
        g[0] += pre
        D = self.q_push(self.kv_d(j), ("g", G))
        for i in range(4): g[i].append(D[i])
        small = self.kv_adv() if j == 3 else []
        if cg:
            if cg[0]: g[3].append(cg[0])
            for i, x in enumerate(self.q_push(cg[1], tag)): g[4 + i].append(x)
        self.G += 1
        at = [0, 1, 2, 5, 5]
        for x in small: g[at.pop(0)].append(x)
        g[6].append(self.kv_so(nj))
        if nj == 0 and check: g[8].append(self.rdpr)
        g[8].append(self.kv_m0(nj))
        gd = G - self.D
        if gd >= 0:
            g[9] += self.q_wait(loc, ("g", gd))
            if gd & 3 == 3 and self.pubok:
                P = self.pub_inc(17 + (gd >> 2)); g[9].append(P[0]); g[10].append(P[1])
        g[10] += late
        if nj == 0 and check: g[11] += self.pcheck(f"s{sB}")
        for fill in (fill, fill2):
            for i in range(11 if nj == 0 and check else 12):
                while fill and len(g[i]) < 2:
                    x = fill.pop(0)
                    if x.startswith("ds_") and g[i] and not g[i][0].startswith(("ds_", "buffer_", "s_waitcnt")): g[i].insert(0, x)
                    else: g[i].append(x)
        return g
    def flat(self, G):
        L = []
        for x in (x for g in G for x in g):
            if isvm(x) and L and " m0," in L[-1]: L.append("s_nop 0")
            L.append(x)
        return L + (["s_nop 0"] if L and " m0," in L[-1] else [])
    def plain(self, loc, extra=[], check=True):
        n = len(extra)
        for j in range(4):
            self.emit(self.flat(self.position((loc, j), check=check, late=extra[j * n // 4:(j + 1) * n // 4])))
    def chunk_addr(self, h):
        a_ = sXA + h
        L = [f"s_add_u32 s{sT4}, s{sROT}, s{sKS}", f"s_bfe_u32 s{sT3}, s{sT4}, 0x20002", f"s_and_b32 s{sT4}, s{sT4}, 3"]
        if h == 0: L += [f"s_mul_i32 s{sXB}, s{sT3}, s{sP1}", f"s_mul_i32 s{sT1}, s{sT4}, s{sP2}", f"s_add_u32 s{sXB}, s{sXB}, s{sT1}"]
        L += [f"s_mul_i32 s{a_}, s{sT3}, s{sP3}", f"s_mul_i32 s{sT1}, s{sT4}, s{sP4}", f"s_add_u32 s{a_}, s{a_}, s{sT1}",
              f"s_add_u32 s{a_}, s{a_}, s{sP5}", f"s_add_u32 s{sKS}, s{sKS}, 1"]
        if self.o.get("noeng", 0) & 1 and h == 0: L.append(f"s_mov_b32 s{sXB}, {OOB:#x}")
        if self.o.get("noeng", 0) & 2: L.append(f"s_mov_b32 s{a_}, {OOB:#x}")
        return L
    def bgroups(self, base, so, pol):
        return [(f"s_mov_b32 m0, {base + gi*4096}", [self.dma(vDX + i, sEB, so, i * 1024, pol) for i in range(4 if gi < 4 else 2)]) for gi in range(5)]
    def bgroup(self, gi):
        return self.bgroups(CBX, sXB + 1, self.P("bpol"))[gi], [f"s_add_u32 s{sXB+1}, s{sXB}, s{sG[gi]}"]
    def agroups(self, m0, so, pol, so1=None):
        return [(m0(h), [self.dma(vDW + i, sEA, so1 if h and so1 else so, i * 1024, pol) for i in range(4)]) for h in range(2)]
    poll0 = f"buffer_load_dword v{vFV}, v{vFA}, {sr(sFL)}, s{sT2} offen sc1"
    def hacc(self, t, qt):
        return ar(aHACC + 36 * t + 4 * qt) if t < 2 else vr(vHACC + 36 * (t - 2) + 4 * qt)
    def areads(self, p):
        F = aHF + 68 * p; L = []
        for t in range(8):
            L.append(f"ds_read_b64_tr_b16 {ar(F+4*t,2)}, v{vW0} offset:{p*8192+(t>>1)*256+8*(t&1)}")
            L.append(f"ds_read_b64_tr_b16 {ar(F+4*t+2,2)}, v{vW1} offset:{p*8192+(t>>1)*256+8*(t&1)}")
        return L
    def breads(self, qts):
        return [f"ds_read_b128 {ar((aB2 if e else aHF+32)+4*qt)}, v{vXR1 if e else vXR} offset:{qt*2048}" for qt in qts for e in range(2)]
    def hmf(self, p):
        F = aHF + 68 * p
        return [f"{MF} {self.hacc(t,qt)}, {ar(F+4*t)}, {ar(F+32+4*qt)}, {self.hacc(t,qt)}" for t in range(8) for qt in range(9)]
    def half(self, loc, k, tail=[]):
        h = k & 1
        self.e("s_waitcnt lgkmcnt(0)")
        if loc == "b0" and self.o.get("sm") in ("g", "s", "r", "e") and not self.dry:
            self.e(f"s_lshl_b32 s{sT4}, s{sIT}, 4\ns_add_u32 s{sT4}, s{sT4}, s{sCNT}")
            for ph in range(2):
                for n in (0, 3, 6):
                    self.e(f"s_cmp_lg_u32 s{sT4}, {16*ph+n}\ns_cbranch_scc1 L_gs{ph}{n}")
                    self.stamp(f"g{ph}{n}")
                    self.e(f"L_gs{ph}{n}:")
        G = [None] * 6; T = [None] * 6; X = [[] for _ in range(6)]
        if k < 16:
            A_ = self.agroups(lambda x: f"s_mov_b32 m0, {CBW + h*8192 + x*4096}", sXA + h, self.P("apol"), sT4)
            for x, p in enumerate((2, 4) if h == 0 else (0, 2)):
                G[p] = A_[x]; T[p] = ("ca", self.ph, k)
                if x: X[p] = [f"s_add_u32 s{sT4}, s{sXA+h}, s{sP6}"]
            for p, gi in ((0, 2), (1, 3), (3, 4)) if h == 0 else ((4, 0), (5, 1)):
                G[p], X[p] = self.bgroup(gi); T[p] = ("xa" if gi < 3 else "xb", self.ph, (k + 1) >> 1)
            if h == 0: G[3] = (G[3][0], G[3][1] + [self.poll0])
        Z = []
        if k < 2:
            Z = [f"v_accvgpr_write_b32 a{aHACC+i}, 0" for i in range(36 * k, 36 * k + 36)] + [f"v_mov_b32 v{vHACC+i}, 0" for i in range(108 * k, 108 * k + 108)]
        F = self.chunk_addr(1 - h) if k < 16 else []
        F2 = [f"v_accvgpr_mov_b32 a{aHF+68+32+i}, a{aB2+i}" for i in range(36)] if h == 0 and k >= 2 else []
        gaps = []
        for p in range(6):
            pre = X[p]; late = Z[p * 24:(p + 1) * 24]
            if p == 2: assert not F
            if h and k < 16 and p in (2, 3):
                t = "xa" if p == 2 else "xb"
                pre += self.q_wait((loc, t), (t, self.ph, k >> 1)); F += self.breads(range(6) if p == 2 else range(6, 9))
            if p == 4 and 1 <= k <= 16:
                assert not F
                if h:
                    l = "L_fw" + loc
                    C = [f"v_cmp_ne_u32 vcc, 1, v{vFV}", "s_nop 1", f"v_cndmask_b32 v30, 64, v{vORD}, vcc", f"v_cmp_gt_u32 vcc, s{sKS}, v30", f"s_cbranch_vccnz {l}"]
                    if not self.dry: self.ool += [l + ":"] + self.budget(l + "r") + [self.poll0, "s_waitcnt vmcnt(0)"] + C + [f"s_branch {l}r"]
                    gaps[-2] += self.q_wait((loc, "pw"), ("poll", self.ph, k - 1)) + C[:1] + (["s_nop 0"] if k < 2 or self.o.get("nomf") else [])
                    gaps[-1] += ["s_waitcnt lgkmcnt(0)"] + C[2:] + [l + "r:"]
                pre += self.q_wait((loc, "r"), ("ca", self.ph, k - 1)); F += self.areads(1 - h)
            gaps += self.position((loc, p), G[p], T[p], pre, F, late=late, fill2=F2)
            if h == 0 and p == 3 and k < 16: self.q[-1] = ("poll", self.ph, k)
        gaps[-2] += F + F2
        gaps[-1] += tail
        if k >= 2 and not self.o.get("nomf"): self.weave(self.hmf(h), dict(enumerate(gaps)))
        else: self.emit(self.flat(gaps))
    def engine(self):
        self.e(f"L_eng:\ns_mov_b32 s{sKS}, 0\ns_lshl_b32 s{sT2}, s{sWID}, 13")
        self.emit(self.chunk_addr(0))
        for gi in range(2):
            (m0, D), X = self.bgroup(gi)
            self.emit([m0] + X + self.q_push(D, ("xa", self.ph, 0)))
        self.e(self.kv_m0(0))
        self.half("p0", 0)
        self.half("p1", 1, tail=[f"s_mov_b32 s{sCNT}, 0"])
        self.e(".p2align 3\nL_eloop:")
        for it in range(7 if self.dry else 1):
            self.half("b0", 2 + 2 * it)
            self.half("b1", 3 + 2 * it, tail=[f"s_add_u32 s{sCNT}, s{sCNT}, 1", f"s_cmp_lt_u32 s{sCNT}, 7"])
        self.e("s_cbranch_scc1 L_eloop")
        if not self.dry: self.G += 72; self.pub = None
        self.half("e0", 16)
        self.half("e1", 17)

    def helper(self):
        D = self.D
        self.q = []; self.G = 0; self.pubok = False; self.ph = 0; self.pub = 0
        e = self.e
        e(f"""v_lshrrev_b32 v30, 3, v1
        v_and_b32 v31, 7, v1
        v_xor_b32 v31, v31, v30
        v_lshlrev_b32 v31, 4, v31
        v_lshl_add_u32 v{vDX}, v30, 10, v31
        v_lshlrev_b32 v30, 13, v3
        v_lshl_add_u32 v30, v2, 6, v30
        v_lshl_add_u32 v{vDW}, v4, 4, v30
        v_xor_b32 v31, 2, v4
        v_lshl_add_u32 v{vDW+1}, v31, 4, v30
        s_mul_i32 s{sT0}, s{sBB}, 147456
        s_and_b32 s{sT1}, s{sWID}, 15
        s_lshl_b32 s{sT1}, s{sT1}, 9
        s_mov_b32 s{sP1}, 256
        s_mov_b32 s{sP2}, 64
        s_mov_b32 s{sP3}, {1 << 20}
        s_mov_b32 s{sP4}, {1 << 18}
        s_mov_b32 s{sP5}, 0
        s_mov_b32 s{sP6}, 131072""")
        for i in range(1, 4): e(f"v_add_u32 v{vDX+i}, {i*7168}, v{vDX}")
        e(f"""v_add_u32 v{vDW+2}, {2*31744}, v{vDW}
        v_add_u32 v{vDW+3}, {3*31744}, v{vDW+1}
        v_add_u32 v{vDW+1}, 31744, v{vDW+1}
        s_waitcnt lgkmcnt(0)""")
        self.stamp("karg")
        self.emit(self.srd(sEB, 4, f"s{sT0}", 147456) + self.srd(sEA, 10, f"s{sT1}", 4194304 - 7680))
        def q0x(p):
            G = [[m, f"s_add_u32 s{sT2}, s{sT2}, 32768"] + D for m, D in self.bgroups(QP[p & 3], sT2, self.P("cpol"))]
            G[0] = [f"s_add_u32 s{sT4}, s{sROT}, {2*p}", f"s_and_b32 s{sT4}, s{sT4}, 15", G[0][0], f"s_lshl_b32 s{sT2}, s{sT4}, 6"] + G[0][2:]
            return [(("x", p), g) for g in G]
        def q0w(c):
            ad = [f"s_add_u32 s{sT4}, s{sROT}, {c}", f"s_and_b32 s{sT4}, s{sT4}, 15", f"s_lshl_b32 s{sT3}, s{sT4}, 18"]
            G = self.agroups(lambda x: f"s_mov_b32 m0, {QP[c >> 1 & 3] + 18432 + (c & 1)*8192 + x*4096}", sT3, self.P("cpol"), sT4)
            return [(("w", c), ad[:2] + [G[0][0], ad[2]] + G[0][1]), (("w", c), [G[1][0], f"s_add_u32 s{sT4}, s{sT3}, s{sP6}"] + G[1][1])]
        seq = []
        for p in range(8): seq += (["chk%d" % (2 * p - 6)] if p >= 4 else []) + q0x(p) + q0w(2 * p) + q0w(2 * p + 1)
        NI = self.o.get("ni", 9)
        for t, g in seq[:NI]: self.emit(self.q_push(g, t))
        e(f"""v_lshlrev_b32 v{vL16}, 4, v1
        v_mov_b32 v248, 0
        v_mov_b32 v249, 0
        v_mov_b32 v250, 0
        v_mov_b32 v251, 0
        v_add_u32 v30, {SYNC+256}, v{vL16}
        v_lshlrev_b32 v{vLA}, 2, v1
        v_add_u32 v{vLA}, {LAND}, v{vLA}
        ds_write_b128 v30, v[248:251]
        ds_write_b32 v{vLA}, v248""")
        e(f"s_lshl_b32 s{sT0}, s{sWID}, 19")
        self.emit(self.srd(sK, 6, f"s{sT0}", 524288) + self.srd(sV, 8, f"s{sT0}", 524288))
        e(f"""v_lshlrev_b32 v30, 8, v3
        v_lshl_add_u32 v30, v2, 6, v30
        v_xor_b32 v31, 2, v4
        v_min_u32 v{vPA}, 2, v4
        v_lshl_add_u32 v{vKV+1}, v31, 4, v30
        v_lshl_add_u32 v{vKV}, v4, 4, v30
        v_lshlrev_b32 v{vPA}, 8, v{vPA}
        v_add_u32 v{vPA}, {PROG}, v{vPA}
        s_mov_b32 s{sOFF}, 0
        s_mov_b32 s{sSL}, 0
        s_mov_b32 s{sB}, 10
        v_mov_b32 v{vORD}, 64""")
        self.stamp("iss")
        e("s_waitcnt lgkmcnt(0)\ns_barrier")
        self.stamp("bar")
        setup = self.common_srds() + self.xpat(30, 31, vXR, vXR1, CBX) + self.wpat(30, 31, vW0, vW1, CBW) + \
                [f"v_mov_b32 v{vSC}, s{sCS}", f"v_mov_b32 v{vSC+1}, s{sCS}", "v_and_b32 v30, 3, v1", "v_min_u32 v30, 2, v30", "v_and_b32 v31, 12, v1",
                 "v_add_u32 v30, v30, v31", f"v_lshlrev_b32 v{vFA}, 7, v30"]
        self.emit(setup)
        done = [0]
        def q0pub(W):
            while done[0] < 16:
                c = done[0]
                idx = [i for i, t in enumerate(self.q) if t == ("w", c)]
                if len(idx) < 8 or len(self.q) - 1 - idx[-1] < W: break
                self.emit(self.q_wait(("q0", c), ("w", c)) + self.pub_abs(c + 1))
                self.stamp(f"c{c}")
                done[0] += 1
        WQ = self.o.get("wq", 40)
        for it in seq[NI:]:
            if False: pass
            elif isinstance(it, str):
                assert done[0] >= int(it[3:])
                self.emit([self.rdpr] + self.pcheck(int(it[3:])))
            else:
                self.emit(self.q_push(it[1], it[0])); q0pub(WQ)
        self.stamp("c15i")
        pf = self.o.get("pf", 3); st = 7
        if pf & 1:
            e(f"""s_lshr_b32 s{sT1}, s2, 3
            s_lshl_b32 s{sPO}, s{sT1}, 17
            s_lshl_b32 s{sT0}, s{sKQ}, 11""")
            e(f"""v_lshrrev_b32 v30, 3, v1
            v_lshlrev_b32 v30, 13, v30
            v_bfe_u32 v31, v1, 1, 2
            v_lshl_add_u32 v30, v31, 9, v30
            v_and_b32 v31, 1, v1
            v_lshl_add_u32 v30, v31, 7, v30
            v_add_u32 v30, 256, v30""")
            L = self.srd(sPF, 10, f"s{sT0}", 4194304 - 6144)
            for i in range(4 >> (st - 6)): L += [f"buffer_load_dword v{vHT+1}, v30, {sr(sPF)}, s{sPO} offen", f"s_add_u32 s{sPO}, s{sPO}, {512 << st}"]
            self.emit(self.q_push(L, "pf")); q0pub(WQ)
        if pf & 2:
            half = self.o.get("pfh", 1)
            e(f"""s_lshl_b32 s{sT0}, s{sKQ}, 20
            s_lshr_b32 s{sT1}, s2, 3
            s_lshl_b32 s{sT1}, s{sT1}, 15
            s_add_u32 s{sT0}, s{sT0}, s{sT1}
            s_and_b32 s{sPO}, s2, {half}
            s_lshl_b32 s{sPO}, s{sPO}, 14
            v_lshlrev_b32 v30, 7, v1""")
            L = self.srd(sPF, 12, f"s{sT0}", 32768)
            for i in range(4 >> half): L += [f"buffer_load_dword v{vHT+1}, v30, {sr(sPF)}, s{sPO} offen", f"s_add_u32 s{sPO}, s{sPO}, 8192"]
            self.emit(self.q_push(L, "pf")); q0pub(WQ)
        q0pub(self.o.get("wq2", 24))
        self.emit([self.kv_m0(0), self.kv_so(0), f"s_mov_b32 s{sP5}, 256"] + [f"s_mov_b32 s{sG[i]}, {i*32768}" for i in range(5)])
        while self.G < 20:
            if self.G & 3 == 3: assert done[0] >= (self.G >> 2) + 11
            self.emit(self.flat(self.position(("q0p", self.G))))
            q0pub(max(4, WQ - 8 * self.G))
            if done[0] == 16 and not self.pubok:
                assert self.G - 1 - D < 3
                self.pubok = True; self.stamp("q0")
        self.stamp("G20")
        self.emit(self.pcheck(16))
        self.engine()
        e(f"s_cmp_lg_u32 s{sIT}, 0\ns_cbranch_scc1 L_wph")
        save = (list(self.q), self.G)
        assert self.G == 128
        F = [f"v_add_u32 v30, {HAND1}, v{vL16}", "s_nop 3"]
        n = 0
        for ks in (1, 2, 3, 0):
            for qt in range(9):
                if ks:
                    b0 = vHACC + 36 * (2 * ks - 2) + 4 * qt; b1 = b0 + 36
                else:
                    b0 = vHACC + 8 * (qt % 2); b1 = b0 + 4
                    for i in range(4): F += [f"v_accvgpr_read_b32 v{b0+i}, a{aHACC+4*qt+i}", f"v_accvgpr_read_b32 v{b1+i}, a{aHACC+36+4*qt+i}"]
                F += [f"v_pk_mul_f32 v[{b}:{b+1}], v[{b}:{b+1}], v[{vSC}:{vSC+1}]" for b in (b0, b0 + 2, b1, b1 + 2)]
                t = vHT + 4 * (n % 2); n += 1
                F += [f"v_cvt_pk_bf16_f32 v{t+i}, v{b}, v{b+1}" for i, b in enumerate((b0, b0 + 2, b1, b1 + 2))]
                F += [f"ds_write_b128 v30, {vr(t)} offset:{(qt*4+ks)*1024}"]
        assert D >= 1
        self.plain("f0", F[:len(F) // 2]); self.plain("f1", F[len(F) // 2:])
        SW = [f"s_lshl_b32 s{sT2}, s{sKQ}, 20", f"s_lshl_b32 s{sT3}, s{sC}, 8", f"s_add_u32 s{sT2}, s{sT2}, s{sT3}"] + self.srd(sEA, 12, f"s{sT2}", 1048576) + \
             [f"s_sub_u32 s{sEA+2}, s{sEA+2}, s{sT3}"] + [f"s_mov_b32 s{sEB+i}, s{sOB+i}" for i in range(3)] + \
             [f"s_mov_b32 s{sP1}, 73728", f"s_mov_b32 s{sP2}, 1024", f"s_mov_b32 s{sP3}, {1 << 18}", f"s_mov_b32 s{sP4}, {1 << 15}",
              f"s_mov_b32 s{sP5}, 0", f"s_mov_b32 s{sP6}, 8192", f"v_add_u32 v{vXR}, {CBX}, v{vL16}", f"v_add_u32 v{vXR1}, {CBX + 1024}, v{vL16}",
              "v_bfe_u32 v30, v1, 2, 2", "v_lshlrev_b32 v30, 10, v30", "v_lshrrev_b32 v31, 4, v1", "v_lshl_add_u32 v30, v31, 6, v30",
              "v_and_b32 v31, 3, v1", f"v_lshl_add_u32 v{vDW}, v31, 4, v30", "v_xor_b32 v31, 2, v31", f"v_lshl_add_u32 v{vDW+1}, v31, 4, v30",
              f"v_add_u32 v{vDW+2}, 2048, v{vDW}", f"v_add_u32 v{vDW+3}, 17408, v{vDW+1}", f"v_add_u32 v{vDW+1}, 15360, v{vDW+1}",
              f"s_lshl_b32 s{sROT}, s{sC}, 2", "v_bfe_u32 v30, v1, 2, 2", f"v_subrev_u32 v30, s{sC}, v30", "v_and_b32 v30, 3, v30", f"v_lshlrev_b32 v{vORD}, 2, v30"]
        SW += [f"v_add_u32 v{vDX+i}, {O_OFF + (i >> 1)*2048}, v{vL16}" for i in range(4)] + [f"s_mov_b32 s{sG[4]}, 32768"]
        for gi in range(4): SW += [f"s_add_u32 s{sT1}, s{sKQ}, {gi+1}", f"s_and_b32 s{sT1}, s{sT1}, 3", f"s_lshl_b32 s{sG[gi]}, s{sT1}, 13"]
        for m in range(34, self.S0): self.plain(("pl", m), SW if m == 34 else [])
        self.stamp("s0")
        e(f"L_s0:\n{self.rdpr}")
        self.emit(self.pcheck(51, redo=True))
        e(f"s_mov_b32 s{sIT}, 1")
        self.stamp("it0")
        e("s_branch L_eng")
        if self.dry:
            self.ph = 1
            self.engine()
        else:
            self.G += 108; self.pub = None
        assert self.G == 4 * (self.S0 + 27) and 35 <= self.S0 <= 38
        e("L_wph:")
        for m in range(self.S0 + 27, 65): self.plain(("pz", m))
        G65 = self.G
        self.stamp("G260")
        def wblock(p, slot=None):
            L = []
            for x in range(2):
                n = 2 * p + x
                m0 = (lambda h: f"s_add_u32 m0, s{sSL}, {x*8192 + h*4096}") if slot is None else (lambda h: f"s_mov_b32 m0, {slot*SLOT + x*8192 + h*4096}")
                G = self.agroups(m0, sT3, self.P("wpol"), sT4)
                o = ((n >> 2) << 18) + ((n & 3) << 15) + 131072
                L += [G[0][0], f"s_mov_b32 s{sT3}, {o}"] + G[0][1] + [G[1][0], f"s_mov_b32 s{sT4}, {o + 8192}"] + G[1][1]
            return L
        HW = [f"v_add_u32 v30, {ST}, v{vL16}", "s_nop 4"] + [f"ds_write_b128 v30, {self.hacc(t, i)} offset:{(t*9+i)*1024}" for t in range(4) for i in range(9)]
        for p in range(7):
            L = ([self.rdpr] + self.pcheck(f"s{sB}") if p else []) + self.q_push(wblock(p), ("w", p)) + [f"s_add_u32 s{sB}, s{sB}, 1"] + self.nextslot()
            if p < 2: L += self.q_wait(("wp", p), ("g", G65 - 5 + 4 * p)) + self.pub_abs(16 + 64 + p)
            if p < 4: L += HW[p * 10:(p + 1) * 10]
            if p == 4: L += self.q_wait(("wp", p), ("w", 3)) + self.pub_abs(16 + 69)
            self.emit(L)
            if p == 4: self.stamp("w4")
        self.stamp("it1")
        self.emit(self.tail_wregs() + self.pulls(0))
        if not self.dry: self.b1("L_hredo")
        self.emit(wblock(7, 2) + [f"v_add_u32 v30, 49152, v{vL16}"] + [f"ds_write_b128 v30, {self.hacc(t, i)} offset:{((t-4)*9+i)*1024}" for t in (4, 5) for i in range(9)])
        self.emit(self.tail_regs())
        e("s_waitcnt vmcnt(0) lgkmcnt(0)\ns_barrier")
        self.emit(self.pulls(1))
        e("s_branch L_tail")
        e(f"""L_hredo:
        s_waitcnt vmcnt(0)
        s_barrier
        s_lshl_b32 s{sB}, s{sIT}, 5
        s_add_u32 s{sB}, s{sB}, 10
        s_add_u32 s{sT0}, s{sB}, {6 - (D + 3) // 4}
        v_mov_b32 v{vPB}, s{sT0}
        ds_write_b32 v{vLA}, v{vPB}
        s_mov_b32 s{sCNT}, 0
        s_lshl_b32 s{sOFF}, s{sIT}, 18
        s_mov_b32 s{sSL}, 0
L_hmloop:""")
        for j in range(2): self.emit([self.kv_m0(j), self.kv_so(j)] + self.kv_d(j))
        e(f"""s_add_u32 s{sOFF}, s{sOFF}, 8192
        s_waitcnt vmcnt(0) lgkmcnt(0)
        s_barrier
        s_barrier
        s_add_u32 s{sCNT}, s{sCNT}, 1
        s_cmp_lt_u32 s{sCNT}, 32
        s_cbranch_scc1 L_hmloop
        s_lshl_b32 s{sOFF}, s{sIT}, 18
        s_lshl_b32 s{sSL}, s{sIT}, 16
        s_cmp_eq_u32 s{sIT}, 0
        s_cselect_b32 s{sCNT}, {self.S0 + 10}, {min(65, self.S0 + 27) + 10}
        {self.kv_m0(0)}
        {self.kv_so(0)}
L_hploop:""")
        self.G = 400; self.q = [("g", g) for g in range(380, 400) for _ in range(4)]; self.pub = None
        self.plain("rp")
        e(f"""s_cmp_lt_u32 s{sB}, s{sCNT}
        s_cbranch_scc1 L_hploop
        s_cmp_lg_u32 s{sIT}, 0
        s_cbranch_scc1 L_wph
        s_branch L_s0""")

    def tail_wregs(self):
        return [f"s_lshl_b32 s{sT0}, s{sWAVE}, 8"] + self.wpat(250, 251, 252, 253, f"s{sT0}") + [f"v_add_u32 v254, 65536, v252", f"v_add_u32 v255, 65536, v253"]
    def pulls(self, half):
        L = []
        for n in range(8 * half, 8 * half + 8):
            slot = (2 + (n >> 1)) % 7
            o = (slot & 3) * SLOT + (n & 1) * 8192; r = 252 + 2 * (slot >> 2)
            for u in range(2):
                L += [f"ds_read_b64_tr_b16 {ar(aTW+8*n+4*u,2)}, v{r} offset:{o+8*u}", f"ds_read_b64_tr_b16 {ar(aTW+8*n+4*u+2,2)}, v{r+1} offset:{o+8*u}"]
        return L
    def tail_regs(self):
        L = self.opat()
        L += [f"v_add_u32 v{vTB+s}, {s*36864}, v{vL16}" for s in range(4)]
        L += ["v_bfe_u32 v19, v1, 2, 2", "v_lshrrev_b32 v20, 4, v1", "v_cmp_eq_u32 vcc, v19, v20", "v_and_b32 v19, 1, v1", "v_lshlrev_b32 v19, 4, v19",
              "v_mov_b32 v20, 0x3f80", "v_lshlrev_b32 v19, v19, v20", "v_cndmask_b32 v19, 0, v19, vcc", "v_and_b32 v20, 2, v1", "v_cmp_eq_u32 vcc, 0, v20",
              f"v_mov_b32 v{vSEL+2}, 0", f"v_mov_b32 v{vSEL+3}, 0", f"v_cndmask_b32 v{vSEL}, 0, v19, vcc", f"v_sub_u32 v{vSEL+1}, v19, v{vSEL}",
              f"v_mov_b32 v{vSEL+4}, 0", f"v_mov_b32 v{vSEL+5}, 0", f"v_mov_b32 v{vSEL+6}, v{vSEL}", f"v_mov_b32 v{vSEL+7}, v{vSEL+1}"]
        for j, s in enumerate((sS0, sS1, sS2)):
            L += [f"s_add_u32 s{sT0}, s{sWID}, {4*(j+1)}", f"s_and_b32 s{sT0}, s{sT0}, 15", f"s_and_b32 s{sT1}, s{sWID}, 0xf0", f"s_add_u32 s{sT0}, s{sT0}, s{sT1}",
                  f"s_mul_i32 s{sT0}, s{sT0}, 36864", f"s_add_u32 s{sT1}, s{sWAVE}, {4*j}", f"s_mul_i32 s{sT1}, s{sT1}, 3072", f"s_add_u32 s{s}, s{sT0}, s{sT1}"]
        L += [f"s_sub_u32 s{sT0}, s{sWAVE}, s{sKQ}", f"s_and_b32 s{sT0}, s{sT0}, 3", f"s_cmp_eq_u32 s{sT0}, 1", f"s_cselect_b32 s{sS8}, s{sS0}, s{sS1}",
              f"s_cmp_eq_u32 s{sT0}, 3", f"s_cselect_b32 s{sS8}, s{sS2}, s{sS8}", f"s_add_u32 s{sS8}, s{sS8}, 2048",
              f"s_cmp_eq_u32 s{sT0}, 0", f"s_cselect_b32 s{sS8}, {OOB:#x}, s{sS8}"]
        L += ["v_and_b32 v19, 3, v1", "v_min_u32 v19, 2, v19", "v_lshlrev_b32 v27, 7, v19",
              f"v_add_u32 v20, s{sKQ}, v19", "v_add_u32 v20, 1, v20", "v_and_b32 v20, 3, v20", "v_lshlrev_b32 v20, 15, v20", "v_add_u32 v28, v20, v27",
              "v_and_b32 v19, 15, v1", "v_lshlrev_b32 v19, 10, v19", "v_lshrrev_b32 v20, 4, v1", "v_lshl_add_u32 v19, v20, 4, v19",
              f"s_lshl_b32 s{sT0}, s{sWAVE}, 6", f"v_add_u32 v29, s{sT0}, v19"]
        return L
    def poll(self, name, line0):
        self.a(f"""s_lshl_b32 s{sT2}, s{sWID}, 13
        s_lshl_b32 s{sT1}, s{sWAVE}, 9
        s_add_u32 s{sT2}, s{sT2}, s{sT1}
{name}:""")
        self.emit(self.budget(name + "ok"))
        self.a(f"""buffer_load_dword v2, v27, {sr(sFL)}, s{sT2} offen offset:{line0*128 & 4095} sc1
        s_waitcnt vmcnt(0)
        v_cmp_ne_u32 vcc, 1, v2
        s_cbranch_vccnz {name}
{name}ok:""")
    def tail(self):
        a = self.a
        a("L_tail:\ns_waitcnt lgkmcnt(0)\ns_barrier")
        self.stamp("b3")
        self.poll("L_poll1", 16)
        self.stamp("p1")
        a(f"""s_mul_i32 s{sT2}, s{sWAVE}, 73728
        s_add_u32 s{sT2}, s{sT2}, 36864
        s_mul_i32 s{sT3}, s{sWAVE}, 36864""")
        for k in range(4):
            for gi, n in ((0, 4), (1, 4), (2, 1)):
                a(f"s_add_u32 m0, s{sT3}, {k*9216 + gi*4096}")
                a(f"s_add_u32 s{sT2}, s{sT2}, 1024" if (k and gi == 0) else "s_nop 0")
                for i in range(n): a(self.dma(vDX + 4 * gi + i, sOB, sT2, i * 1024, self.P("olpol")))
        steps = [(k, i) for k in range(3) for i in range(9)] + [(3, i) for i in (8, 0, 1, 2, 3, 4, 5, 6, 7)]
        rd = lambda j: [f"ds_read_b128 {vr(vBF+16*(j&3)+4*s)}, v{vTB+s} offset:{steps[j][0]*9216+steps[j][1]*1024}" for s in range(4)]
        acc = lambda u, i: vTA + 36 * u + 4 * i
        def send(i, n):
            t = vRC + 4 * (n & 1)
            so = sS8 if i == 8 else (sS0, sS1, sS2)[i >> 1]
            return [f"v_cvt_pk_bf16_f32 v{t+2*u+x}, v{acc(u,i)+2*x}, v{acc(u,i)+2*x+1}" for u in range(2) for x in range(2)] + \
                   [f"buffer_store_dwordx4 {vr(t)}, v{vL16}, {sr(sPT)}, s{so} offen offset:{0 if i == 8 else (i&1)*1024} {self.P('psc', 'sc1')}"]
        a("s_waitcnt vmcnt(27)\ns_barrier")
        self.stamp("d0")
        self.emit(rd(0) + rd(1))
        nst = 0
        for j, (k, i) in enumerate(steps):
            nx = j + 2
            if nx < 36 and nx % 9 == 0:
                a(f"s_waitcnt vmcnt({27 - nx})\ns_barrier")
            a(f"s_waitcnt lgkmcnt({4 if j < 35 else 0})")
            mf = [f"{MF} {vr(acc(u,i))}, {ar(aTW+8*(4*s+k)+4*u)}, {vr(vBF+16*(j&3)+4*s)}, {vr(acc(u,i))}" for s in range(4) for u in range(2)]
            f = {}
            if nx < 36:
                for s, x in enumerate(rd(nx)): f[s] = [x]
            if 28 <= j <= 34:
                X = send(steps[j - 1][1], nst); nst += 1
                f[4] = X[:2]; f[5] = X[2:4]; f[6] = X[4:]
            self.weave(mf, f)
        self.stamp("mf")
        a(f"""s_and_b32 s{sT0}, s{sWID}, 0xf3
        s_lshl_b32 s{sT0}, s{sT0}, 13
        s_lshl_b32 s{sT1}, s{sWAVE}, 9
        s_add_u32 s{sT0}, s{sT0}, s{sT1}
        s_add_u32 s{sT0}, s{sT0}, 4096
        v_mov_b32 v3, 1
        s_mov_b64 exec, 7
        s_waitcnt vmcnt(0)
        buffer_store_dword v3, v28, {sr(sFL)}, s{sT0} offen sc1
        s_mov_b64 exec, -1
        v_add_u32 v27, 4096, v27""")
        self.poll("L_poll2", 0)
        self.stamp("p2")
        a(f"""s_mul_i32 s{sT0}, s{sWID}, 36864
        s_mul_i32 s{sT1}, s{sWAVE}, 3072
        s_add_u32 s{sT0}, s{sT0}, s{sT1}
        s_lshl_b32 s{sT2}, s{sKQ}, 15
        s_cmp_eq_u32 s{sWAVE}, s{sKQ}
        s_cselect_b32 s{sT3}, 0, {OOB:#x}""")
        for j in range(3):
            if j: a(f"s_add_u32 s{sT0}, s{sT0}, 12288")
            a(f"s_or_b32 s{sT1}, s{sT0}, s{sT3}")
            for u in range(3):
                a(f"buffer_load_dwordx4 {vr(vRC+12*j+4*u)}, v{vL16}, {sr(sPT)}, s{sT1 if u == 2 else sT0} offen offset:{u*1024} {self.P('plpol', 'sc1')}")
        for j in range(3):
            a(f"s_waitcnt vmcnt({6-3*j})")
            for u, i in enumerate((6, 7, 8)):
                for x in range(2):
                    a(f"{MF} {vr(acc(x,i))}, {vr(vSEL+4*x)}, {vr(vRC+12*j+4*u)}, {vr(acc(x,i))}")
        a(f"""s_add_u32 s{sT1}, s{sT2}, 16384
        s_or_b32 s{sT3}, s{sT3}, 131072
        s_nop 1""")
        for n, (i, so) in enumerate(((6, sT2), (7, sT1), (8, sT3))):
            t = vBF + 4 * n
            if n == 2: a("s_nop 1")
            for u in range(2):
                for x in range(2): a(f"v_cvt_pk_bf16_f32 v{t+2*u+x}, v{acc(u,i)+2*x}, v{acc(u,i)+2*x+1}")
            a(f"buffer_store_dwordx4 {vr(t)}, v29, {sr(sOUT)}, s{so} offen {self.P('opol')}")
        if self.o.get("stamps"):
            a("s_waitcnt vmcnt(0)")
            if self.o.get("sm") not in ("s", "r", "c"): self.stamp("end")
            if self.o.get("amp"):
                i = self.o["amp"]
                a(f"""s_waitcnt lgkmcnt(0)
                s_cmp_lg_u32 s{sWAVE}, {self.o.get("ampw", 0)}
                s_cbranch_scc1 L_noamp
                s_and_b32 s{sT0}, s2, {self.o.get("ampm", 0)}
                s_cmp_lg_u32 s{sT0}, {self.o.get("ampv", 0)}
                s_cbranch_scc1 L_noamp
                s_sub_u32 s{sT0}, s{sSTAMP+2*i}, s{sSTAMP+2*self.o.get("amp0", 0)}
                s_min_u32 s{sT0}, s{sT0}, 20000
                s_mul_i32 s{sT0}, s{sT0}, {self.o.get("ampk", 10)}
                s_add_u32 s{sT0}, s{sT0}, 10000
L_amp:
                s_memrealtime s[{sT2}:{sT2+1}]
                s_waitcnt lgkmcnt(0)
                s_sub_u32 s{sT1}, s{sT2}, s{sSTAMP}
                s_cmp_lt_u32 s{sT1}, s{sT0}
                s_cbranch_scc1 L_amp
L_noamp:
                s_endpgm""")
            if self.o.get("dbg"):
                a("s_waitcnt lgkmcnt(0)")
                self.emit(self.srd(sDB, 16, 0, 256))
                a(f"""s_cmp_eq_u32 s{sWAVE}, 3
                s_cselect_b32 s{sT0}, 28, 0
                s_mov_b64 exec, 1
                v_mov_b32 v5, 0
                s_add_u32 s{sT1}, s{sWAVE}, 1
                s_and_b32 s{sT1}, s{sT1}, 2
                s_cbranch_scc1 L_nodbg""")
                for i in range(1, 8):
                    a(f"s_sub_u32 s{sT1}, s{sSTAMP+2*i}, s{sSTAMP}\nv_mov_b32 v6, s{sT1}\nbuffer_atomic_add v6, v5, {sr(sDB)}, s{sT0} offen offset:{4*i} sc1")
                a(f"""s_not_b32 s{sT1}, s{sSTAMP}
                v_mov_b32 v6, s{sT1}
                v_mov_b32 v7, s{sSTAMP+14}
                buffer_atomic_umax v6, v5, {sr(sDB)}, 0 offen offset:60 sc1
                s_waitcnt vmcnt(0)
L_nodbg:
                s_endpgm""")
            a(f"""s_waitcnt lgkmcnt(0)
            s_mov_b32 s{sO}, s18
            s_and_b32 s{sO+1}, s19, 0xffff
            s_mov_b32 s{sO+2}, 536870912
            s_mov_b32 s{sO+3}, 0x00020000
            s_lshl_b32 s{sT0}, s2, 8
            s_lshl_b32 s{sT1}, s{sWAVE}, 6
            s_add_u32 s{sT0}, s{sT0}, s{sT1}
            s_add_u32 s{sT0}, s{sT0}, {256<<20}
            v_mov_b32 v5, 0""")
            for i in range(16): a(f"v_mov_b32 v{16+i}, s{sSTAMP+i}")
            a("s_mov_b64 exec, 1")
            for i in range(4): a(f"buffer_store_dwordx4 {vr(16+4*i)}, v5, {sr(sO)}, s{sT0} offen offset:{16*i}")
        a("s_endpgm")

    def kernel(self):
        self.inh = True
        self.dry = True; self.helper(); self.dry = False
        self.prologue()
        self.helper()
        self.inh = False
        self.attention()
        self.inh = self.o.get("sm") in ("g", "s", "r", "c") and self.o.get("gh", 1)
        self.tail()
        self.emit(self.ool)
        self.a("L_end:\ns_endpgm")
        return self.a.text()

def build(opt):
    g = Gen(opt)
    t = g.kernel()
    if opt.get("v"): print(g.cnt)
    src = open("standalone__gqa_block_cached__near_ridge.s.ref").read().split("; Override launch")[0]
    return src + header([(KN, 256, 256, LDS)]) + kstart(KN) + t + rodata([kdesc(KN, 256, 256)])

if __name__ == "__main__":
    opt = {}
    out = sys.argv[1]
    for x in sys.argv[2:]:
        k, _, v = x.partition("=")
        opt[k] = int(v) if v.lstrip("-").isdigit() else (v if v else True)
    t = build(opt)
    open(out, "w").write(t)
    print("hazards:", hazard.check(t), "bytes:", len(t))
```

```python
import sys, struct
from asmlib import *
import hazard

SLOT = 16384; NSL = 7; RING = NSL * SLOT
CH = 17408
SYNC = 162560
LAND, PROG, MISC = SYNC, SYNC + 256, SYNC + 1024
PB = 2 * CH
QP = [SYNC - (4 - i) * PB for i in range(4)]
QC = [QP[2], QP[3], QP[1]]
CBX = QP[3]; CBW = CBX + 18432
HAND1 = SYNC - 36864
ST = RING
LDS = 163840
O_OFF = 4096
PT_OFF = 24 << 20
FL_OFF = 40 << 20
CSC = struct.unpack("<I", struct.pack("<f", 1.4426950408889634 * 128 ** -0.5))[0]
THR = 0x4b800000
OOB = 0x80000000
MF = "v_mfma_f32_16x16x32_bf16"

def vr(b, n=4): return f"v[{b}:{b+n-1}]"
def ar(b, n=4): return f"a[{b}:{b+n-1}]"
def sr(b, n=4): return f"s[{b}:{b+n-1}]"

sWAVE = 3
sEB, sK, sV, sEA, sO, sOB, sPT, sOUT, sFL, sDB = 20, 24, 28, 32, 36, 40, 44, 48, 52, 56
(sT0, sT1, sT2, sT3, sT4, sOFF, sSL, sB, sIT, sCNT, sREDO, sROT, sCS, sKS, sPUB, sBUD, sKQ, sC, sBB, sWID,
 sP1, sP2, sP3, sP4) = range(60, 84)
sSTAMP = 84
sP5, sP6 = 100, 101
sS0, sS1, sS2, sS8 = sP1, sP2, sP3, sP4
sTGT = sPUB
sTK = 4
sPF = sO
sXB, sXA = sDB, sDB + 2
sPO = sPUB
sG = [sO, sO + 1, sO + 2, sO + 3, sPUB]
sQD, sXM, sXS, sEX = sKS, sOFF, sB, sP1
vL16, vLA, vPA = 5, 6, 7
vPR, vLD, vRK, vRV0, vRV1, vRKb, vRV0b, vRV1b = 8, 9, 10, 11, 12, 13, 14, 15
vS, vNM, vONE, vMS = 16, 40, 52, 56
vTMP, vQ, vO, vL = 64, 80, 128, 224
vCT = 240
vQB, vDXq = 24, 19
aK, aV, aQF = 0, 64, 128
vKV = 2
vPV, vPB, vDX, vDW, vW0, vW1, vXR, vSC, vFA, vFV = 8, 9, 10, 19, 23, 24, 25, 26, 28, 16
vORD, vXR1 = 4, 14
aB2 = 208
vHACC = 32; aHACC = 0; aHF = 72; vHT = 248
vTB = 23
vBF, vSEL, vRC, vTA = 32, 96, 112, 176
aTW = 128

def S(qt, kt=0): return vS + 8 * qt + 4 * kt
def Kf(p, kt, ks): return aK + 32 * p + 16 * kt + 4 * ks
def Vf(p, dt): return aV + 32 * p + 4 * dt
def Qf(qt, ks): return vQ + 16 * qt + 4 * ks
def Oa(qt, dt): return vO + 32 * qt + 4 * dt
def isvm(x): return x.startswith("buffer_")

class Gen:
    def __init__(self, opt):
        self.o = opt
        self.a = A()
        self.ool = []
        self.nlab = 0
        self.D = opt.get("d", 5)
        self.S0 = opt.get("s0", 38)
        self.KS = opt.get("ks", 6)
        self.KG = opt.get("kg", 2)
        self.pol = self.P("pol", "nt")
        self.osc = opt.get("osc", "sc1")
        self.dry = False
        self.cnt = {}
    def P(self, k, d=""):
        v = self.o.get(k, d)
        return "" if v == "none" else v.replace("+", " ")
    STM = {"m": "start c0 q0 it0 it1 b3 p1 end", "t": "start it1 b3 p1 d0 mf p2 end", "q": "start karg iss bar c0 c8 q0 end", "u": "start it1 b1 b2 ack b3 p1 end",
           "g": "start g00 g03 g06 g10 g13 g16 end", "s": "start c15i G4 G8 G12 G16 G20 g00", "r": "start g06 G128 G136 G144 s0 it0 g10", "e": "start g16 G260 w4 it1 b1 b3 end",
           "c": "start c0 c1 c2 c3 c4 c6 c12", "p": "start G20 p00 p02 p04 p10 p13 g00", "o": "start s0 p00 p02 p04 p10 p13 g10"}
    def stamp(self, name):
        if self.o.get("sm") in ("k", "l"):
            nm = ("start g00 g06 g10" if self.o["sm"] == "k" else "start g10 g16 end").split()
            if name in nm and not self.dry:
                i = nm.index(name)
                self.a(f"s_memrealtime s[{sSTAMP+2*i}:{sSTAMP+2*i+1}]\ns_memtime s[{sSTAMP+8+2*i}:{sSTAMP+9+2*i}]")
            return
        names = self.STM[self.o.get("sm", "m")].split()
        if self.o.get("sm") == "g" and not self.inh: names = "start q0 it0 it1 b3 p1 mf end".split()
        if self.o.get("sm") == "s" and not self.inh: names = "start c0 c8 q0 k0 st0 it0 x".split()
        if self.o.get("sm") == "c" and not self.inh: names = "start c0 c2 c4 c8 c12 c16 q0".split()
        if self.o.get("sm") in ("p", "o") and not self.inh: names = "start q0 k0 st0 st1 it0 x y".split()
        if self.o.get("sm") == "r" and not self.inh: names = "start fin epi it0 st0 ofl st1 x".split()
        if self.o.get("sm") == "e" and not self.inh: names = "start fin it1 b1 ack b2 b3 end".split()
        if name not in names: return
        i = names.index(name)
        if self.o.get("stamps") == 3 and not self.dry:
            self.a(f"s_sub_u32 s{sSTAMP+2*i}, {1 << 22}, s{sBUD}\ns_mov_b32 s{sSTAMP+2*i+1}, 0" if i else f"s_mov_b64 s[{sSTAMP}:{sSTAMP+1}], 0")
        elif self.o.get("stamps") and not self.dry:
            op = "s_memtime" if self.o.get("stamps") == 2 else "s_memrealtime"
            self.a(f"{op} s[{sSTAMP+2*i}:{sSTAMP+2*i+1}]")
    def emit(self, L):
        if self.dry: return
        for x in L: self.a(x)
    def e(self, s):
        if not self.dry: self.a(s)
    def lab(self, p):
        self.nlab += 1
        return f"L_{p}{self.nlab}"
    def weave(self, mf, fills):
        L = list(fills.get(-1, []))
        for i, m in enumerate(mf):
            L.append(m); L += fills.get(i, [])
        self.emit(L)
    def spread(self, mf, items):
        if not mf:
            self.emit(items); return
        n = len(mf); f = {}
        for k, x in enumerate(items):
            f.setdefault(min(n - 1, k * n // max(1, len(items))), []).append(x)
        self.weave(mf, f)
    def srd(self, d, lo, off, nrec):
        return [f"s_add_u32 s{d}, s{lo}, {off}", f"s_addc_u32 s{d+1}, s{lo+1}, 0", f"s_and_b32 s{d+1}, s{d+1}, 0xffff",
                f"s_mov_b32 s{d+2}, {nrec}", f"s_mov_b32 s{d+3}, 0x00020000"]
    def dma(self, v, srd, soff, imm, pol=""):
        return " ".join(f"buffer_load_dwordx4 v{v}, {sr(srd)}, {'0' if soff is None else f's{soff}'} offen offset:{imm} {pol} lds".split())
    def budget(self, ret):
        return [f"s_sub_i32 s{sBUD}, s{sBUD}, 1", f"s_cmp_lt_i32 s{sBUD}, 0", f"s_cbranch_scc1 {ret}"]

    def prologue(self):
        a = self.a
        a(f"""s_cmp_ge_u32 s2, 256
        s_cbranch_scc1 L_end
        s_load_dwordx16 s[4:19], s[0:1], 0""")
        self.stamp("start")
        if self.o.get("cpf", 1):
            a(f"""s_getpc_b64 s[{sO}:{sO+1}]
            s_lshr_b32 s{sT0}, s2, 3
            s_and_b32 s{sO}, s{sO}, 0xffffff00
            s_and_b32 s{sO+1}, s{sO+1}, 0xffff
            s_mov_b32 s{sO+2}, L_end-{KN}
            s_mov_b32 s{sO+3}, 0x00020000
            s_lshl_b32 s{sT0}, s{sT0}, 11
            v_lshlrev_b32 v1, 7, v0
            v_cmp_gt_u32 vcc, 16, v0
            s_and_saveexec_b64 s[{sT2}:{sT2+1}], vcc
            s_cbranch_execz L_nopf
            buffer_load_dword v255, v1, {sr(sO)}, s{sT0} offen
L_nopf:
            s_mov_b64 exec, -1""")
        a(f"""v_lshrrev_b32 v2, 6, v0
        v_and_b32 v1, 63, v0
        s_bfe_u32 s{sT1}, s2, 0x30003
        v_readfirstlane_b32 s{sWAVE}, v2
        s_and_b32 s{sT0}, s2, 1
        s_lshl_b32 s{sT0}, s{sT0}, 3
        s_add_u32 s{sBB}, s{sT0}, s{sT1}          ; b
        s_lshr_b32 s{sC}, s2, 6                   ; c
        s_bfe_u32 s{sKQ}, s2, 0x20001             ; kq
        s_lshl_b32 s{sT1}, s{sT1}, 1
        s_lshl_b32 s{sT2}, s{sC}, 2
        s_add_u32 s{sROT}, s{sT1}, s{sT2}
        {f"s_mov_b32 s{sROT}, 0" if self.o.get("norot") else ""}
        s_lshl_b32 s{sT2}, s{sKQ}, 2
        s_add_u32 s{sT2}, s{sT2}, s{sC}           ; hp
        s_lshl_b32 s{sWID}, s{sBB}, 4
        s_add_u32 s{sWID}, s{sWID}, s{sT2}        ; b*16 + hp
        v_lshrrev_b32 v2, 4, v1                   ; g
        v_bfe_u32 v3, v1, 2, 2                    ; r
        v_and_b32 v4, 3, v1                       ; c
        s_mov_b32 s{sBUD}, {1 << 22}""")
        a(f"""v_lshrrev_b32 v30, 3, v1
        v_and_b32 v31, 7, v1
        v_xor_b32 v31, v31, v30
        v_lshlrev_b32 v31, 4, v31
        v_lshl_add_u32 v{vDW}, v30, 10, v31
        v_lshlrev_b32 v30, 13, v3
        v_lshl_add_u32 v30, v2, 6, v30
        v_xor_b32 v31, 2, v4
        v_lshl_add_u32 v31, v31, 4, v30
        v_lshl_add_u32 v30, v4, 4, v30
        s_mul_i32 s{sT0}, s{sBB}, 147456
        s_mul_i32 s{sT1}, s{sWAVE}, 49152
        s_add_u32 s{sT0}, s{sT0}, s{sT1}
        s_lshl_b32 s{sT2}, s{sT2}, 9
        s_mul_i32 s{sXM}, s{sWAVE}, 6144
        s_lshr_b32 s{sXS}, s{sROT}, 1
        s_cmp_ge_u32 s{sXS}, 7
        s_cselect_b32 s{sT1}, 6, -1
        s_sub_u32 s{sXS}, s{sXS}, s{sT1}            ; second pair 1 + ((b & 7) + 2c) % 7
        s_add_u32 m0, s{sXM}, {QC[0]}
        s_mov_b32 s{sT4}, 7168
        s_mov_b32 s{sEA+2}, 49152
        s_mov_b32 s{sT1}, 32768
        s_cmp_eq_u32 s{sWAVE}, 3
        s_cselect_b64 vcc, -1, 0
        s_cselect_b32 s{sT0}, s{sT2}, s{sT0}
        s_cselect_b32 s{sT4}, 31744, s{sT4}
        s_cselect_b32 s{sEA+2}, {4194304 - 7680}, s{sEA+2}
        s_cselect_b32 s{sT1}, 131072, s{sT1}
        v_cndmask_b32 v{vDW+1}, v{vDW}, v31, vcc
        v_cndmask_b32 v{vDW}, v{vDW}, v30, vcc
        s_mov_b32 s{sEA+3}, 0x00020000
        v_add_u32 v{vDW+1}, s{sT4}, v{vDW+1}
        s_lshl_b32 s{sT4}, s{sT4}, 1
        v_add_u32 v{vDW+2}, s{sT4}, v{vDW}
        v_add_u32 v{vDW+3}, s{sT4}, v{vDW+1}
        {f"s_mov_b32 s{sEA+2}, 0" if self.o.get("q0oob") else ""}
        s_cmp_eq_u32 s{sWAVE}, 3
        s_waitcnt lgkmcnt(0)
        s_cselect_b32 s{sEA}, s10, s4
        s_cselect_b32 s{sEA+1}, s11, s5
        s_add_u32 s{sEA}, s{sEA}, s{sT0}
        s_addc_u32 s{sEA+1}, s{sEA+1}, 0
        s_and_b32 s{sEA+1}, s{sEA+1}, 0xffff""")
        self.stamp("karg")
        for i in range(4): a(self.dma(vDW + i, sEA, None, i * 1024, self.P("cpol")))
        a(f"s_add_u32 m0, s{sXM}, {QC[0] + 4096}\ns_cmp_lg_u32 s{sWAVE}, 3")
        for i in range(2): a(self.dma(vDW + i, sEA, sT1, i * 1024, self.P("cpol")))
        a("s_cbranch_scc1 L_attn")

    def common_srds(self):
        L = self.srd(sFL, 18, FL_OFF, 256 * 8192) + self.srd(sPT, 18, PT_OFF, 256 * 36864)
        L += [f"s_lshl_b32 s{sT0}, s{sBB}, 2", f"s_add_u32 s{sT0}, s{sT0}, s{sKQ}", f"s_mul_i32 s{sT0}, s{sT0}, {8*36864}"]
        L += self.srd(sOB, 18, f"s{sT0}", 8 * 36864 + O_OFF)
        L += [f"s_mul_i32 s{sT0}, s{sBB}, 147456", f"s_lshl_b32 s{sT1}, s{sC}, 8", f"s_add_u32 s{sT0}, s{sT0}, s{sT1}"]
        L += self.srd(sOUT, 14, f"s{sT0}", 147456) + [f"s_sub_u32 s{sOUT+2}, s{sOUT+2}, s{sT1}"]
        L += [f"s_mov_b32 s{sIT}, 0", f"s_mov_b32 s{sREDO}, 0", f"s_mov_b32 s{sCS}, {CSC:#x}"]
        return L
    def wpat(self, t0, t1, w0, w1, base):
        return [f"v_lshrrev_b32 v{t0}, 4, v1", f"v_lshlrev_b32 v{t0}, 11, v{t0}", f"v_bfe_u32 v{t1}, v1, 2, 2", f"v_lshl_add_u32 v{t0}, v{t1}, 6, v{t0}",
                f"v_add_u32 v{t0}, {base}, v{t0}", f"v_and_b32 v{t1}, 3, v1", f"v_lshl_add_u32 v{w0}, v{t1}, 4, v{t0}",
                f"v_xor_b32 v{t1}, 2, v{t1}", f"v_lshl_add_u32 v{w1}, v{t1}, 4, v{t0}", f"v_add_u32 v{w1}, 1024, v{w1}"]
    def xpat(self, t0, t1, d0, d1, base):
        return [f"v_lshrrev_b32 v{t0}, 4, v1", f"v_and_b32 v{t1}, 7, v1", f"v_xor_b32 v{t0}, v{t0}, v{t1}", f"v_lshlrev_b32 v{t0}, 4, v{t0}",
                f"v_and_b32 v{t1}, 15, v1", f"v_lshl_add_u32 v{t0}, v{t1}, 7, v{t0}", f"v_xor_b32 v{t1}, 64, v{t0}",
                f"v_add_u32 v{d0}, {base}, v{t0}", f"v_add_u32 v{d1}, {base}, v{t1}"]
    def xsrc(self, t0, t1, d):
        return [f"v_lshrrev_b32 v{t0}, 3, v1", f"v_and_b32 v{t1}, 7, v1", f"v_xor_b32 v{t1}, v{t1}, v{t0}", f"v_lshlrev_b32 v{t1}, 4, v{t1}",
                f"v_lshl_add_u32 v{d}, v{t0}, 10, v{t1}"] + [f"v_add_u32 v{d+i}, {i*7168}, v{d}" for i in range(1, 4)]
    def opat(self):
        L = [f"s_lshl_b32 s{sT0}, s{sKQ}, 1"]
        for i in range(8):
            L += [f"s_add_u32 s{sT1}, s{sT0}, {i+2}", f"s_and_b32 s{sT1}, s{sT1}, 7", f"s_lshl_b32 s{sT1}, s{sT1}, 12",
                  f"s_add_u32 s{sT1}, s{sT1}, {O_OFF - (i&3)*1024}", f"v_add_u32 v{vDX+i}, s{sT1}, v{vL16}"]
        return L + [f"v_add_u32 v{vDX+8}, {O_OFF + 32768}, v{vL16}"]

    def await_(self, pre=True, emit=True):
        l = self.lab("sp")
        self.ool += [f"{l}:"] + self.budget(l + "r") + [f"ds_read_b32 v{vLD}, v{vLA}", "s_waitcnt lgkmcnt(0)",
                     f"v_cmp_gt_u32 vcc, v{vLD}, v{vPR}", f"s_cbranch_vccz {l}", f"s_branch {l}r"]
        if pre: self.a(f"ds_read_b32 v{vLD}, v{vLA}\ns_waitcnt lgkmcnt(0)\nv_cmp_gt_u32 vcc, v{vLD}, v{vPR}")
        if not emit: return [f"s_cbranch_vccz {l}", f"{l}r:"]
        self.a(f"s_cbranch_vccz {l}\n{l}r:")
    def nextslot(self):
        return [f"s_add_u32 s{sSL}, s{sSL}, {SLOT}", f"s_cmp_eq_u32 s{sSL}, {RING}", f"s_cselect_b32 s{sSL}, 0, s{sSL}"]
    def slotregs(self):
        return [f"v_add_u32 v{vRK}, s{sSL}, v{vRKb}", f"v_add_u32 v{vRV0}, s{sSL}, v{vRV0b}", f"v_add_u32 v{vRV1}, s{sSL}, v{vRV1b}"]
    def kreads(self, p):
        return [f"ds_read_b128 {ar(Kf(p,kt,ks))}, v{vRK} offset:{kt*4096+ks*256}" for kt in range(2) for ks in range(4)]
    def vreads(self, p):
        return [f"ds_read_b64_tr_b16 {ar(Vf(p,dt)+2*h,2)}, v{vRV0 if dt%2==0 else vRV1} offset:{(dt>>1)*256+h*4096}"
                for dt in range(8) for h in range(2)]
    def qk(self, qt, p, raw=False):
        L = []
        for kt in range(2):
            for ks in range(4):
                d = vr(S(qt, kt))
                c = d if ks else ("0" if raw else vr(vNM + 4 * qt))
                L.append(f"{MF} {d}, {ar(Kf(p,kt,ks))}, {vr(Qf(qt,ks))}, {c}")
        return L
    def pv(self, qt, p, first=False):
        L = []
        for dt in range(8):
            d = vr(Oa(qt, dt))
            L.append(f"{MF} {d}, {ar(Vf(p,dt))}, {vr(S(qt))}, {'0' if first else d}")
        d = vr(vL + 4 * qt)
        L.append(f"{MF} {d}, {vr(vONE)}, {vr(S(qt))}, {'0' if first else d}")
        return L
    def ex(self, qt, i): return f"v_exp_f32 v{S(qt)+i}, v{S(qt)+i}"
    def cv(self, qt, i): return f"v_cvt_pk_bf16_f32 v{S(qt)+i}, v{S(qt)+2*i}, v{S(qt)+2*i+1}"
    incpr = f"v_add_u32 v{vPR}, 1, v{vPR}"
    wrpr = f"ds_write_b32 v{vPA}, v{vPR}"
    rdla = f"ds_read_b32 v{vLD}, v{vLA}"
    cmpla = f"v_cmp_gt_u32 vcc, v{vLD}, v{vPR}"

    def stage(self, p, first=False, tail=[], tail2=[]):
        self.await_(pre=False)
        mf = self.pv(0, p, first) + self.qk(0, p) + self.pv(1, p, first) + self.qk(1, p) + self.pv(2, p, first) + self.qk(2, p)
        f = {i: [] for i in range(51)}
        ki = iter(self.kreads(1 - p)); vi = iter(self.vreads(1 - p))
        for seg, qt in enumerate((2, 0, 1)):
            for i in range(8): f[17 * seg + 2 * i].append(self.ex(qt, i))
        for seg in range(2):
            for g in (3, 7, 11, 15): f[17 * seg + g].append(next(ki))
        for g in (1, 5, 9, 13, 18, 22, 26, 30): f[g] += [next(vi), next(vi)]
        for seg, qt in enumerate((2, 0, 1)):
            for i in range(4): f[17 * seg + 4 * i + 3].append(self.cv(qt, i))
        ns = self.nextslot(); sr_ = self.slotregs()
        f[16] += [self.incpr]
        f[33] += [self.wrpr]
        f[35] += ns[:2]
        f[39] += [ns[2], sr_[0]]
        f[41] += [sr_[1]]
        f[43] += [self.rdla, sr_[2]]
        f[47] += tail
        f[49] += tail2
        f[50] += ["s_waitcnt lgkmcnt(0)", self.cmpla]
        na = self.o.get("noatt", 0)
        if na & 1: mf = ["s_nop 0"] * 51
        if na & 2: f = {i: [x for x in L if not x.startswith(("v_exp", "v_cvt"))] for i, L in f.items()}
        if na & 4: f = {i: [x for x in L if not x.startswith(("ds_read_b128", "ds_read_b64"))] for i, L in f.items()}
        self.weave(mf, f)

    def xmax(self, v, t):
        self.a(f"""v_mov_b32 v{t}, v{v}
        s_nop 1
        v_permlane16_swap_b32 v{v}, v{t}
        v_max_f32 v{v}, v{v}, v{t}
        v_mov_b32 v{t}, v{v}
        s_nop 1
        v_permlane32_swap_b32 v{v}, v{t}
        v_max_f32 v{v}, v{v}, v{t}""")

    def stage0(self):
        a = self.a
        mf = self.qk(0, 0, True) + self.qk(1, 0, True) + self.qk(2, 0, True)
        self.spread(mf, self.kreads(1) + self.vreads(1))
        self.emit([self.incpr, self.wrpr] + self.nextslot() + self.slotregs())
        for qt in range(3):
            s = S(qt); m = 59 + qt
            a(f"""v_max3_f32 v{m}, v{s}, v{s+1}, v{vMS+qt}
            v_max3_f32 v{m}, v{s+2}, v{s+3}, v{m}
            v_max3_f32 v{m}, v{s+4}, v{s+5}, v{m}
            v_max3_f32 v{m}, v{s+6}, v{s+7}, v{m}""")
            self.xmax(m, 62)
            for i in range(4): a(f"v_sub_f32 v{vNM+4*qt+i}, 0, v{m}")
            for i in range(8): a(f"v_sub_f32 v{s+i}, v{s+i}, v{m}")
        for qt in range(2):
            for i in range(8): a(self.ex(qt, i))
            a(self.rdla if qt else "s_nop 0")
            for i in range(4): a(self.cv(qt, i))

    def oflag(self, rnd):
        self.a(f"""s_and_b32 s{sT0}, s{sWID}, 0xfc
        s_lshl_b32 s{sT0}, s{sT0}, 13
        s_lshl_b32 s{sT1}, s{sC}, 2
        s_add_u32 s{sT1}, s{sT1}, s{sWAVE}
        s_lshl_b32 s{sT1}, s{sT1}, 7
        s_add_u32 s{sT0}, s{sT0}, s{sT1}
        s_add_u32 s{sT0}, s{sT0}, {2048*rnd}
        v_lshlrev_b32 v2, 13, v1
        v_mov_b32 v60, s{sTK}
        v_mov_b32 v61, s{sTK+1}
        s_mov_b64 exec, 15
        s_waitcnt vmcnt(0)
        buffer_store_dwordx2 v[60:61], v2, {sr(sFL)}, s{sT0} offen sc1
        s_mov_b64 exec, -1""")

    def final(self):
        a = self.a
        a(f"v_mov_b32 v3, 0\nbuffer_load_dwordx2 v[{vCT}:{vCT+1}], v3, {sr(sDB)}, 0 offen sc1")
        mf = self.pv(0, 0) + self.pv(1, 0) + self.pv(2, 0)
        f = {i: [] for i in range(27)}
        for i in range(8): f[i].append(self.ex(2, i))
        for i in range(4): f[9 + i].append(self.cv(2, i))
        self.weave(mf, f)
        a(f"""s_mul_i32 s{sT2}, s{sIT}, 36864
        s_mul_i32 s{sT1}, s{sWAVE}, 12288
        s_add_u32 s{sT2}, s{sT2}, s{sT1}
        s_mov_b32 s{sT0}, {THR:#x}
        s_nop 3
        v_add_f32 v60, v{vL}, v{vL+4}
        v_add_f32 v60, v60, v{vL+8}
        v_cmp_nge_f32 vcc, s{sT0}, v60
        s_mov_b32 s{sT4}, 1
        s_cmp_lg_u32 s{sREDO}, 0
        s_cbranch_scc1 L_noflag
        s_cmp_eq_u64 vcc, 0
        s_cselect_b32 s{sT4}, 1, {1 if self.o.get("noatt") else 2}
L_noflag:""")
        n = 0
        for qt in range(3):
            a(f"v_rcp_f32 v60, v{vL+4*qt}\ns_nop 0\nv_mov_b32 v61, v60")
            for ks in range(4):
                b = Oa(qt, 2 * ks); t = vTMP + 4 * (n % 4); n += 1
                for i in range(4): a(f"v_pk_mul_f32 v[{b+2*i}:{b+2*i+1}], v[{b+2*i}:{b+2*i+1}], v[60:61]")
                for i in range(4): a(f"v_cvt_pk_bf16_f32 v{t+i}, v{b+2*i}, v{b+2*i+1}")
                a(f"buffer_store_dwordx4 {vr(t)}, v{vL16}, {sr(sO)}, s{sT2} offen offset:{ks*1024} {self.osc}")
            a(f"s_add_u32 s{sT2}, s{sT2}, 4096")

    def attention(self):
        a = self.a
        a("L_attn:")
        a(f"s_lshl_b32 s{sXS}, s{sXS}, 7")
        xadv = [f"s_add_u32 s{sXS}, s{sXS}, 128", f"s_cmp_eq_u32 s{sXS}, 1024", f"s_cselect_b32 s{sXS}, 128, s{sXS}"]
        xd = [self.dma(vDXq + i, sEA, sXS, i * 1024, self.P("cpol")) for i in range(4)] + [self.dma(vDXq + i, sEA, sT1, i * 1024, self.P("cpol")) for i in range(2)]
        a(f"""v_lshlrev_b32 v{vL16}, 4, v1
        s_add_u32 s{sT0}, s{sXM}, {QP[1]}""")
        self.emit(self.xpat(59, 60, vQB, vQB + 1, f"s{sT0}") + self.wpat(59, 60, vQB + 2, vQB + 3, QP[1] + 18432))
        for i in range(4): a(f"v_add_u32 v{vQB+4+i}, {2*PB}, v{vQB+i}")
        a(f"""s_lshl_b32 s{sT0}, s{sWAVE}, 8
        s_add_u32 s{sT0}, s{sT0}, {PROG}
        v_lshl_add_u32 v{vPA}, v1, 2, s{sT0}
        v_mov_b32 v{vLA}, {LAND}
        v_mov_b32 v{vPR}, 0""")
        X1 = [f"s_add_u32 m0, s{sXM}, {QC[1]}", f"s_add_u32 s{sT1}, s{sXS}, 32768"] + xd[:4] + [f"s_add_u32 m0, s{sXM}, {QC[1] + 4096}", xadv[0]] + xd[4:] + xadv[1:]
        x1at = self.o.get("x1at", 2)
        if x1at == 1: self.emit(X1)
        self.emit(self.common_srds())
        a(f"s_mul_i32 s{sT0}, s{sWID}, 73728\ns_add_u32 s{sT0}, s{sT0}, {O_OFF}")
        self.emit(self.srd(sO, 18, f"s{sT0}", 73728) + self.srd(sDB, 16, 0, 256))
        a(f"""v_and_b32 v59, 1, v3
        v_lshlrev_b32 v59, 1, v59
        v_xor_b32 v59, v59, v2
        v_lshlrev_b32 v59, 4, v59
        v_lshl_add_u32 v{vRKb}, v3, 10, v59
        v_lshl_add_u32 v{vRKb}, v4, 6, v{vRKb}
        v_lshlrev_b32 v59, 10, v2
        v_lshl_add_u32 v59, v3, 6, v59
        v_lshl_add_u32 v59, v4, 3, v59
        v_add_u32 v59, 8192, v59
        v_and_b32 v60, 1, v2
        v_lshl_add_u32 v{vRV0b}, v60, 5, v59
        v_xor_b32 v60, 1, v60
        v_lshl_add_u32 v{vRV1b}, v60, 5, v59
        v_mov_b32 v{vONE}, 0x3f803f80
        v_mov_b32 v{vONE+1}, 0x3f803f80
        v_mov_b32 v{vONE+2}, 0x3f803f80
        v_mov_b32 v{vONE+3}, 0x3f803f80
        v_mov_b32 v{vMS}, 0xff800000
        v_mov_b32 v{vMS+1}, 0xff800000
        v_mov_b32 v{vMS+2}, 0xff800000
        v_mov_b32 v62, s{sCS}
        v_mov_b32 v63, s{sCS}
        s_mov_b32 s{sSL}, 0
        s_or_b32 s{sT0}, s2, s{sWAVE}
        s_cselect_b32 s{sTGT}, 64, 0""")
        self.emit(self.slotregs())
        self.stamp("iss")
        a("s_barrier")
        self.stamp("bar")
        if x1at == 2: self.emit(X1)
        def qreads(k):
            q = QC[(k >> 1) % 3]; r = 0 if q < QP[3] else 4; ox = q - (QP[3] if r else QP[1])
            o = ox + (k & 1) * 8192; F = aQF + 44 * (k & 1); L = []
            for t in range(8):
                L.append(f"ds_read_b64_tr_b16 {ar(F+4*t,2)}, v{vQB+r+2} offset:{o+(t>>1)*256+8*(t&1)}")
                L.append(f"ds_read_b64_tr_b16 {ar(F+4*t+2,2)}, v{vQB+r+3} offset:{o+(t>>1)*256+8*(t&1)}")
            return L[:2] + [f"ds_read_b128 {ar(F+32+4*qt)}, v{vQB+r+(k&1)} offset:{ox+qt*2048}" for qt in range(3)] + L[2:]
        def qmf(k):
            F = aQF + 44 * (k & 1)
            return [f"{MF} {vr(Oa(qt,t))}, {ar(F+4*t)}, {ar(F+32+4*qt)}, {vr(Oa(qt,t)) if k else 0}" for t in range(8) for qt in range(3)] if k >= 0 else []
        XL = self.o.get("xl", 1); xs = {k: [] for k in range(16)}
        for p in range(2, 8):
            for i in range(6): xs[max(0, 2 * (p - 2) + (i // 3 if XL < 2 else 0) - min(XL, 1))].append((p, i))
        order = [(1, i) for i in range(6)]
        a(f"{self.rdla}\ns_waitcnt vmcnt(6) lgkmcnt(0)\n{self.cmpla}")
        self.await_(pre=False)
        qa = self.o.get("q0a", 0)
        for k in range(16):
            self.stamp(f"c{k}")
            R = qreads(k); f = {i: [] for i in range(24)}
            for g, n in ((0, 2), (1, 2), (2, 2), (3, 1), (4, 1), (5, 1), (6, 1), (7, 1), (8, 1), (10, 2), (11, 1), (12, 1), (14, 2), (15, 1)):
                f[g] += [R.pop(0) for _ in range(n)]
            f[15].append(self.incpr); f[16] += [self.wrpr]; f[12].append(self.rdla)
            if any(p == (k >> 1) + 3 for p, i in xs[k]): f[8].append("s_waitcnt lgkmcnt(7)")
            dg = [9, 13, 17, 18, 19, 21]; sg = [3, 4, 5, 6, 7]
            for n, (p, i) in enumerate(xs[k]):
                g = dg[n]; pre = []
                if i == 0: pre = [f"s_add_u32 m0, s{sXM}, {QC[p % 3]}", f"s_add_u32 s{sT1}, s{sXS}, 32768"]
                if i == 4:
                    pre = [f"s_add_u32 m0, s{sXM}, {QC[p % 3] + 4096}"]
                    if len(xs[k]) > 3: f[23] += xadv
                    else: f[18] += xadv[:1]; f[19] += xadv[1:]
                while pre:
                    if n == 0: f[sg.pop(0)].append(pre.pop(0))
                    else: f[dg[n-1] if dg[n-1] + 1 == g else g - 2 if len(f[g-2]) < 2 else g - 1].append(pre.pop(0))
                f[g].append(xd[i]); order.append((p, i))
            vm = ""
            if k & 1 and k < 15:
                last = max(n for n, (p, i) in enumerate(order) if p == (k >> 1) + 1)
                vm = f"vmcnt({len(order) - 1 - last}) "
            f[20] += [f"s_waitcnt {vm}lgkmcnt(1)", self.cmpla]
            f[22] += self.await_(pre=False, emit=False)
            if qa & 2: f = {i: [x for x in L if "_tr_" not in x] for i, L in f.items()}
            if qa & 4: f = {i: [x for x in L if "ds_read_b128" not in x] for i, L in f.items()}
            if qa & 8: f = {i: [x for x in L if "buffer_" not in x] for i, L in f.items()}
            if k: self.weave(qmf(k - 1) if not qa & 1 else ["s_nop 0"] * 24, f)
            else: self.emit(self.flat([f[i] for i in range(24)]))
        self.stamp("c16")
        C = []
        for ks in range(4):
            for qt in range(3):
                b = Oa(qt, 2 * ks)
                C += [f"v_pk_mul_f32 v[{b+2*i}:{b+2*i+1}], v[{b+2*i}:{b+2*i+1}], v[62:63]" for i in range(4)]
                C += [f"v_cvt_pk_bf16_f32 v{Qf(qt,ks)+i}, v{b+2*i}, v{b+2*i+1}" for i in range(4)]
        K0 = self.kreads(0) + [self.incpr, self.wrpr] + self.nextslot() + self.slotregs() + [self.rdla]
        f = {}
        for g in range(24):
            f[g] = [K0.pop(0) for _ in range(2) if K0]
        self.weave(qmf(15), f)
        self.emit(C)
        self.stamp("q0")
        a(f"s_waitcnt lgkmcnt(0)\n{self.cmpla}")
        self.await_(pre=False)
        self.stamp("k0")
        a("L_item:")
        self.stage0()
        self.cstamp("st0", 0 if self.o.get("sm") in ("s", "c", "p") else 1)
        a(f"""s_cmp_eq_u32 s{sIT}, 0
        s_cbranch_scc1 L_nopub""")
        self.oflag(0)
        self.stamp("ofl")
        a(f"L_nopub:\ns_waitcnt lgkmcnt(0)\n{self.cmpla}")
        self.stage(1, first=True, tail=[f"s_mov_b32 s{sCNT}, 0"])
        self.cstamp("st1", 0 if self.o.get("sm") == "p" else 1)
        a(".p2align 3\nL_loop:")
        self.ool += f"""L_init:
        v_mov_b32 v4, 0
        s_bitcmp1_b32 s{sTGT}, 5
        s_cbranch_scc1 L_init2
        s_add_u32 s{sTGT}, s{sTGT}, 33
        buffer_load_dwordx2 v[2:3], v4, {sr(sOB)}, 0 offen sc1
        s_branch L_initr
L_init2:
        s_mov_b32 s{sTGT}, 64
        s_waitcnt vmcnt(0)
        v_add_u32 v2, 1, v2
        v_or_b32 v3, 1, v3
        s_mov_b64 exec, 1
        buffer_store_dwordx2 v[2:3], v4, {sr(sOB)}, 0 offen sc1
        buffer_store_dwordx2 v[2:3], v4, {sr(sDB)}, 0 offen sc1
        s_mov_b64 exec, -1
        s_branch L_initr""".split("\n")
        self.stage(0, tail=[f"s_xor_b32 s{sT0}, s{sCNT}, s{sTGT}", f"s_and_b32 s{sT0}, s{sT0}, 0x5f"], tail2=["s_cbranch_scc0 L_init", "L_initr:"])
        self.stage(1, tail=[f"s_add_u32 s{sCNT}, s{sCNT}, 1", f"s_cmp_lt_u32 s{sCNT}, 15"])
        a("s_cbranch_scc1 L_loop")
        self.cstamp("fin", 1 if self.o.get("sm") == "e" else 0)
        self.final()
        self.cstamp("epi", 0)
        a(f"""v_mov_b32 v2, s{sT4}
        s_cmp_lg_u32 s{sIT}, 0
        s_cbranch_scc1 L_last
        s_waitcnt vmcnt(12)
L_cnt:
        v_readfirstlane_b32 s{sTK+1}, v{vCT+1}
        v_readfirstlane_b32 s{sTK}, v{vCT}
        s_cmp_lg_u32 s{sTK+1}, 0
        s_cbranch_scc1 L_cntok""")
        self.emit(self.budget("L_cntok"))
        a(f"""v_mov_b32 v3, 0
        buffer_load_dwordx2 v[{vCT}:{vCT+1}], v3, {sr(sDB)}, 0 offen sc1
        s_waitcnt vmcnt(0)
        s_branch L_cnt
L_cntok:
        v_mov_b32 v3, {MISC+32}
        ds_write_b64 v3, v[{vCT}:{vCT+1}]
        s_lshl_b32 s{sT0}, s{sWAVE}, 2
        s_add_u32 s{sT0}, s{sT0}, {MISC}
        v_mov_b32 v3, s{sT0}
        ds_write_b32 v3, v2
        v_and_b32 v3, 3, v1
        v_min_u32 v3, 2, v3
        v_lshlrev_b32 v3, 2, v3
        v_add_u32 v3, {MISC}, v3""")
        self.await_()
        a("L_done:")
        self.emit(self.budget("L_doneok"))
        a(f"""ds_read_b32 v2, v3
        s_waitcnt lgkmcnt(0)
        v_cmp_eq_u32 vcc, 0, v2
        s_cbranch_vccnz L_done
L_doneok:
        v_cmp_eq_u32 vcc, 2, v2
        s_cbranch_vccnz L_redo""")
        self.stamp("it0")
        a(f"s_mul_i32 s{sT0}, s{sWAVE}, 12288\ns_add_u32 s{sT0}, s{sT0}, {HAND1}\nv_add_u32 v2, s{sT0}, v{vL16}")
        for qt in range(3):
            for ks in range(4): a(f"ds_read_b128 {vr(Qf(qt,ks))}, v2 offset:{(qt*4+ks)*1024}")
        a(f"""s_mov_b32 s{sIT}, 1
        s_mov_b32 s{sREDO}, 0
        v_mov_b32 v{vMS}, 0xff800000
        v_mov_b32 v{vMS+1}, 0xff800000
        v_mov_b32 v{vMS+2}, 0xff800000
        s_waitcnt lgkmcnt(0)
        s_branch L_item
L_last:
        s_cmp_eq_u32 s{sT4}, 1
        s_cbranch_scc1 L_ok1
        v_mov_b32 v3, {MISC+16}
        ds_write_b32 v3, v2
L_ok1:""")
        self.stamp("it1")
        a(f"v_mov_b32 v{vPR}, {16+68}")
        self.emit(self.tail_wregs())
        self.await_()
        self.emit(self.pulls(0))
        self.b1("L_redo")
        self.emit(self.tail_regs())
        if self.o.get("fb2", 1): self.oflag(1); self.stamp("ack")
        a("s_barrier")
        self.stamp("b2")
        self.emit(self.pulls(1))
        a(f"""s_mul_i32 s{sT0}, s{sWAVE}, 18432
        s_add_u32 s{sT0}, s{sT0}, {ST}
        s_cmp_eq_u32 s{sWAVE}, 2
        s_cselect_b32 s{sT0}, 49152, s{sT0}
        v_add_u32 v2, s{sT0}, v{vL16}""")
        for f in range(18): a(f"ds_read_b128 {vr(vTA+4*f)}, v2 offset:{f*1024}")
        if not self.o.get("fb2", 1): self.oflag(1); self.stamp("ack")
        a("s_branch L_tail")
        a(f"""L_redo:
        s_waitcnt vmcnt(0)
        s_barrier
        v_mov_b32 v2, 0
        v_lshlrev_b32 v3, 2, v1
        v_add_u32 v3, {MISC}, v3
        ds_write_b32 v3, v2
        s_lshl_b32 s{sT0}, s{sIT}, 5
        s_add_u32 s{sT0}, s{sT0}, 16
        v_mov_b32 v{vPR}, s{sT0}
        v_mov_b32 v{vRK}, v{vRKb}
        {self.wrpr}
        s_mov_b32 s{sCNT}, 0
        s_mov_b32 s{sREDO}, 1
        v_mov_b32 v{vMS}, 0xff800000
        v_mov_b32 v{vMS+1}, 0xff800000
        v_mov_b32 v{vMS+2}, 0xff800000
L_mloop:
        s_barrier""")
        self.emit(self.kreads(0))
        a("s_waitcnt lgkmcnt(0)\ns_barrier")
        self.emit(self.qk(0, 0, True) + self.qk(1, 0, True) + self.qk(2, 0, True))
        a("s_nop 7")
        for qt in range(3):
            s = S(qt); m = vMS + qt
            for i in range(4): a(f"v_max3_f32 v{m}, v{s+2*i}, v{s+2*i+1}, v{m}")
        a(f"""s_add_u32 s{sCNT}, s{sCNT}, 1
        s_cmp_lt_u32 s{sCNT}, 32
        s_cbranch_scc1 L_mloop
        s_lshl_b32 s{sSL}, s{sIT}, 16""")
        self.emit(self.slotregs())
        self.await_()
        self.emit(self.kreads(0) + [self.incpr, self.wrpr] + self.nextslot() + self.slotregs())
        self.await_()
        a("s_branch L_item")
    def cstamp(self, name, it):
        if self.o.get("stamps"):
            l = self.lab("cs")
            self.a(f"s_cmp_lg_u32 s{sIT}, {it}\ns_cbranch_scc1 {l}")
            self.stamp(name)
            self.a(l + ":")
    def stampq(self):
        if self.o.get("stamps"):
            self.a(f"s_cmp_lg_u32 s{sCNT}, 1\ns_cbranch_scc1 L_nost1")
            self.stamp("c2")
            self.a(f"L_nost1:\ns_cmp_lg_u32 s{sCNT}, 4\ns_cbranch_scc1 L_nost2")
            self.stamp("c8")
            self.a(f"L_nost2:\ns_cmp_lg_u32 s{sCNT}, 2\ns_cbranch_scc1 L_nost3")
            self.stamp("c4")
            self.a(f"L_nost3:\ns_cmp_lg_u32 s{sCNT}, 6\ns_cbranch_scc1 L_nost4")
            self.stamp("c12")
            self.a("L_nost4:")
    def b1(self, lab):
        self.a(f"""s_waitcnt lgkmcnt(0)
        s_barrier
        v_mov_b32 v4, {MISC+16}
        ds_read_b32 v4, v4
        s_waitcnt lgkmcnt(0)
        v_cmp_ne_u32 vcc, 0, v4
        s_cbranch_vccnz {lab}""")
        self.stamp("b1")

    def q_push(self, L, tag):
        self.q += [tag] * sum(map(isvm, L))
        return L
    def q_wait(self, loc, tag):
        if self.dry:
            idx = [i for i, t in enumerate(self.q) if (t in tag if isinstance(tag, list) else t == tag)]
            n = len(self.q) - 1 - idx[-1] if idx else 63
            self.cnt[loc] = min(self.cnt.get(loc, 63), n)
            return []
        return [f"s_waitcnt vmcnt({self.cnt[loc]})"]
    def pub_abs(self, val):
        self.pub = val
        return [f"v_mov_b32 v{vPB}, {val}", f"ds_write_b32 v{vLA}, v{vPB}"]
    def pub_inc(self, val):
        if self.dry: assert self.pub is None or val == self.pub + 1, (val, self.pub)
        self.pub = val
        return [f"v_add_u32 v{vPB}, 1, v{vPB}", f"ds_write_b32 v{vLA}, v{vPB}"]
    rdpr = f"ds_read_b32 v{vPV}, v{vPA}"
    def pcheck(self, need, redo=False):
        if self.dry: return []
        l = self.lab("pc")
        o = [f"{l}:"] + self.budget(l + "r")
        if redo: o += [f"v_and_b32 v30, 3, v1", f"v_lshlrev_b32 v30, 2, v30", f"v_add_u32 v30, {MISC}, v30", "ds_read_b32 v30, v30"]
        o += [self.rdpr, "s_waitcnt lgkmcnt(0)"]
        if redo: o += ["v_cmp_eq_u32 vcc, 2, v30", "s_cbranch_vccnz L_hredo"]
        o += [f"v_cmp_gt_u32 vcc, {need}, v{vPV}", f"s_cbranch_vccnz {l}", f"s_branch {l}r"]
        self.ool += o
        return ["s_waitcnt lgkmcnt(0)", f"v_cmp_gt_u32 vcc, {need}, v{vPV}", f"s_cbranch_vccnz {l}", f"{l}r:"]
    def kv_m0(self, j): return f"s_add_u32 m0, s{sSL}, {j*4096}"
    def kv_so(self, j): return f"s_add_u32 s{sT0}, s{sOFF}, {j*4096}" if j < 2 else f"s_sub_u32 s{sT0}, s{sOFF}, {16384 - j*4096}"
    def kv_d(self, j): return [self.dma(vKV + (i & 1), sK if j < 2 else sV, sT0, i * 1024, self.pol) for i in range(4)]
    def kv_adv(self): return [f"s_add_u32 s{sOFF}, s{sOFF}, {0 if self.o.get('kvfix') else 8192}", f"s_add_u32 s{sB}, s{sB}, 1"] + self.nextslot()
    def position(self, loc, cg=None, tag=None, pre=[], fill=None, check=True, late=[], fill2=None, pace=True):
        G = self.G; j = G & 3; nj = (G + 1) & 3
        if G in (4, 8, 12, 16, 128, 136, 144) and (G < 20 or loc[0] in ("f0", ("pl", 34), ("pl", 36))): self.stamp(f"G{G}")
        g = [[] for _ in range(12)]
        g[0] += pre
        D = self.q_push(self.kv_d(j), ("g", G))
        for i in range(4): g[i].append(D[i])
        small = self.kv_adv() if j == 3 else []
        if cg:
            if cg[0]: g[3].append(cg[0])
            for i, x in enumerate(self.q_push(cg[1], tag)): g[4 + i].append(x)
        self.G += 1
        at = [0, 1, 2, 5, 5]
        for x in small: g[at.pop(0)].append(x)
        g[6].append(self.kv_so(nj))
        if nj == 0 and check: g[8].append(self.rdpr)
        g[8].append(self.kv_m0(nj))
        gd = G - self.D
        if gd >= 0 and pace:
            g[9] += self.q_wait(loc, ("g", gd))
            v = 17 + (gd >> 2)
            if G < 20 and self.pubok and 16 + ((gd + 1) >> 2) > self.pub:
                P = self.pub_abs(16 + ((gd + 1) >> 2)); g[9].append(P[0]); g[10].append(P[1])
            elif gd & 3 == 3 and self.pubok and G >= 20:
                P = self.pub_inc(v); g[9].append(P[0]); g[10].append(P[1])
        g[10] += late
        if nj == 0 and check: g[11] += self.pcheck(f"s{sB}" if check is True else check)
        for fill in (fill, fill2):
            for i in range(11 if nj == 0 and check else 12):
                while fill and len(g[i]) < 2:
                    x = fill.pop(0)
                    if x.startswith("ds_") and g[i] and not g[i][0].startswith(("ds_", "buffer_", "s_waitcnt")): g[i].insert(0, x)
                    else: g[i].append(x)
        return g
    def flat(self, G):
        L = []
        for x in (x for g in G for x in g):
            if isvm(x) and L and " m0," in L[-1]: L.append("s_nop 0")
            L.append(x)
        return L + (["s_nop 0"] if L and " m0," in L[-1] else [])
    def plain(self, loc, extra=[], check=True):
        n = len(extra)
        for j in range(4):
            self.emit(self.flat(self.position((loc, j), check=check, late=extra[j * n // 4:(j + 1) * n // 4])))
    def chunk_addr(self, h):
        a_ = sXA + h
        L = [f"s_add_u32 s{sT4}, s{sROT}, s{sKS}", f"s_bfe_u32 s{sT3}, s{sT4}, 0x20002", f"s_and_b32 s{sT4}, s{sT4}, 3"]
        if h == 0: L += [f"s_mul_i32 s{sXB}, s{sT3}, s{sP1}", f"s_mul_i32 s{sT1}, s{sT4}, s{sP2}", f"s_add_u32 s{sXB}, s{sXB}, s{sT1}"]
        L += [f"s_mul_i32 s{a_}, s{sT3}, s{sP3}", f"s_mul_i32 s{sT1}, s{sT4}, s{sP4}", f"s_add_u32 s{a_}, s{a_}, s{sT1}",
              f"s_add_u32 s{a_}, s{a_}, s{sP5}", f"s_add_u32 s{sKS}, s{sKS}, 1"]
        if self.o.get("noeng", 0) & 1 and h == 0: L.append(f"s_mov_b32 s{sXB}, {OOB:#x}")
        if self.o.get("noeng", 0) & 2: L.append(f"s_mov_b32 s{a_}, {OOB:#x}")
        return L
    def bgroups(self, base, so, pol):
        return [(f"s_mov_b32 m0, {base + gi*4096}", [self.dma(vDX + i, sEB, so, i * 1024, pol) for i in range(4 if gi < 4 else 2)]) for gi in range(5)]
    def bgroup(self, gi):
        return self.bgroups(CBX, sXB + 1, self.P("bpol"))[gi], [f"s_add_u32 s{sXB+1}, s{sXB}, s{sG[gi]}"]
    def agroups(self, m0, so, pol, so1=None):
        return [(m0(h), [self.dma(vDW + i, sEA, so1 if h and so1 else so, i * 1024, pol) for i in range(4)]) for h in range(2)]
    poll0 = f"buffer_load_dwordx2 v[{vFV}:{vFV+1}], v{vFA}, {sr(sFL)}, s{sT2} offen sc1"
    def hacc(self, t, qt):
        return ar(aHACC + 36 * t + 4 * qt) if t < 2 else vr(vHACC + 36 * (t - 2) + 4 * qt)
    def areads(self, p):
        F = aHF + 68 * p; L = []
        for t in range(8):
            L.append(f"ds_read_b64_tr_b16 {ar(F+4*t,2)}, v{vW0} offset:{p*8192+(t>>1)*256+8*(t&1)}")
            L.append(f"ds_read_b64_tr_b16 {ar(F+4*t+2,2)}, v{vW1} offset:{p*8192+(t>>1)*256+8*(t&1)}")
        return L
    def breads(self, qts):
        return [f"ds_read_b128 {ar((aB2 if e else aHF+32)+4*qt)}, v{vXR1 if e else vXR} offset:{qt*2048}" for qt in qts for e in range(2)]
    def hmf(self, p):
        F = aHF + 68 * p
        return [f"{MF} {self.hacc(t,qt)}, {ar(F+4*t)}, {ar(F+32+4*qt)}, {self.hacc(t,qt)}" for t in range(8) for qt in range(9)]
    def half(self, loc, k, tail=[]):
        h = k & 1
        self.e("s_waitcnt lgkmcnt(0)")
        if loc == "b0" and self.o.get("sm") in ("g", "s", "r", "e", "p", "o", "k", "l") and not self.dry:
            self.e(f"s_lshl_b32 s{sT4}, s{sIT}, 4\ns_add_u32 s{sT4}, s{sT4}, s{sCNT}")
            for ph in range(2):
                for n in (0, 3, 6):
                    self.e(f"s_cmp_lg_u32 s{sT4}, {16*ph+n}\ns_cbranch_scc1 L_gs{ph}{n}")
                    self.stamp(f"g{ph}{n}")
                    self.e(f"L_gs{ph}{n}:")
        G = [None] * 6; T = [None] * 6; X = [[] for _ in range(6)]
        if k < 16:
            A_ = self.agroups(lambda x: f"s_mov_b32 m0, {CBW + h*8192 + x*4096}", sXA + h, self.P("apol"), sT4)
            for x, p in enumerate((2, 4) if h == 0 else (0, 2)):
                G[p] = A_[x]; T[p] = ("ca", self.ph, k)
                if x: X[p] = [f"s_add_u32 s{sT4}, s{sXA+h}, s{sP6}"]
            for p, gi in ((0, 2), (1, 3), (3, 4)) if h == 0 else ((4, 0), (5, 1)):
                G[p], X[p] = self.bgroup(gi); T[p] = ("xa" if gi < 3 else "xb", self.ph, (k + 1) >> 1)
            if h == 0: G[3] = (G[3][0], G[3][1] + [self.poll0])
        Z = []
        if k < 2:
            Z = [f"v_accvgpr_write_b32 a{aHACC+i}, 0" for i in range(36 * k, 36 * k + 36)] + [f"v_mov_b32 v{vHACC+i}, 0" for i in range(108 * k, 108 * k + 108)]
        if self.o.get("noz"): Z = []
        F = self.chunk_addr(1 - h) if k < 16 else []
        F2 = [f"v_accvgpr_mov_b32 a{aHF+68+32+i}, a{aB2+i}" for i in range(36)] if h == 0 and k >= 2 else []
        gaps = []
        for p in range(6):
            pre = X[p]; late = Z[p * 24:(p + 1) * 24]
            if p == 2: assert not F
            if h and k < 16 and p in (2, 3):
                t = "xa" if p == 2 else "xb"
                pre += self.q_wait((loc, t), (t, self.ph, k >> 1)); F += self.breads(range(6) if p == 2 else range(6, 9))
            if p == 4 and 1 <= k <= 16:
                assert not F
                if h:
                    l = "L_fw" + loc
                    C = [f"v_cmp_ne_u64 vcc, s[{sTK}:{sTK+1}], v[{vFV}:{vFV+1}]", "s_nop 1", f"v_cndmask_b32 v30, 64, v{vORD}, vcc", f"v_cmp_gt_u32 vcc, s{sKS}, v30", f"s_cbranch_vccnz {l}"]
                    if not self.dry: self.ool += [l + ":"] + self.budget(l + "r") + [self.poll0, "s_waitcnt vmcnt(0)"] + C + [f"s_branch {l}r"]
                    gaps[-2] += self.q_wait((loc, "pw"), ("poll", self.ph, k - 1)) + C[:1] + (["s_nop 0"] if k < 2 or self.o.get("nomf") else [])
                    gaps[-1] += ["s_waitcnt lgkmcnt(0)"] + C[2:] + [l + "r:"]
                pre += self.q_wait((loc, "r"), ("ca", self.ph, k - 1)); F += self.areads(1 - h)
            if loc in ("p0", "p1") and self.o.get("sm") in ("p", "o") and self.o.get("stamps") and not self.dry and f"{loc}{p}" in self.STM["p"]:
                i = self.STM["p"].split().index(f"{loc}{p}"); l = self.lab("hs")
                pre = [f"s_cmp_lg_u32 s{sIT}, {int(self.o['sm'] == 'o')}", f"s_cbranch_scc1 {l}", f"{'s_memtime' if self.o['stamps'] == 2 else 's_memrealtime'} s[{sSTAMP+2*i}:{sSTAMP+2*i+1}]", l + ":"] + pre
            gaps += self.position((loc, p), G[p], T[p], pre, F, late=late, fill2=F2)
            if h == 0 and p == 3 and k < 16: self.q[-1] = ("poll", self.ph, k)
        gaps[-2] += F + F2
        gaps[-1] += tail
        if k >= 2 and not self.o.get("nomf"): self.weave(self.hmf(h), dict(enumerate(gaps)))
        else: self.emit(self.flat(gaps))
    def engine(self):
        self.e(f"L_eng:\ns_mov_b32 s{sKS}, 0\ns_lshl_b32 s{sT2}, s{sWID}, 13")
        self.emit(self.chunk_addr(0))
        for gi in range(2):
            (m0, D), X = self.bgroup(gi)
            self.emit([m0] + X + self.q_push(D, ("xa", self.ph, 0)))
        self.e(self.kv_m0(0))
        self.half("p0", 0)
        self.half("p1", 1, tail=[f"s_mov_b32 s{sCNT}, 0"])
        self.e(".p2align 3\nL_eloop:")
        for it in range(7 if self.dry else 1):
            self.half("b0", 2 + 2 * it)
            self.half("b1", 3 + 2 * it, tail=[f"s_add_u32 s{sCNT}, s{sCNT}, 1", f"s_cmp_lt_u32 s{sCNT}, 7"])
        self.e("s_cbranch_scc1 L_eloop")
        if not self.dry: self.G += 72; self.pub = None
        self.half("e0", 16)
        self.half("e1", 17)

    def helper(self):
        D = self.D
        self.q = []; self.G = 0; self.pubok = False; self.ph = 0; self.pub = 0
        e = self.e
        def q0w(c):
            ad = [f"s_add_u32 s{sT3}, s{sT3}, {1 << 19}", f"s_cmp_eq_u32 s{sT3}, {8 << 19}", f"s_cselect_b32 s{sT3}, {1 << 19}, s{sT3}"] if c > 2 and not c & 1 else []
            G = self.agroups(lambda x: f"s_mov_b32 m0, {QC[(c >> 1) % 3] + 18432 + (c & 1)*8192 + x*4096}", sT4, self.P("cpol"))
            return [(("w", c), (ad if x == 0 else []) + [G[x][0], f"s_add_u32 s{sT4}, s{sT3}, {((c & 1) << 18) + x*131072}"] + G[x][1]) for x in range(2)]
        self.q += [("w", 0)] * 6
        self.emit(self.q_push([self.dma(vDW + i, sEA, sT1, i * 1024, self.P("cpol")) for i in (2, 3)], ("w", 0)) + [f"s_mov_b32 s{sT3}, 0"])
        for t, g in q0w(1): self.emit(self.q_push(g, t))
        e(f"""s_lshl_b32 s{sT3}, s{sXS}, 19
        s_mov_b32 s{sP6}, 131072
        v_lshlrev_b32 v{vL16}, 4, v1
        v_mov_b32 v248, 0
        v_mov_b32 v249, 0
        v_mov_b32 v250, 0
        v_mov_b32 v251, 0
        v_add_u32 v30, {SYNC+256}, v{vL16}
        v_lshlrev_b32 v{vLA}, 2, v1
        v_add_u32 v{vLA}, {LAND}, v{vLA}
        ds_write_b128 v30, v[248:251]
        ds_write_b32 v{vLA}, v248""")
        e(f"s_lshl_b32 s{sT0}, s{sWID}, 19")
        if self.o.get("kvr"):
            e(f"""s_mul_i32 s{sT1}, s2, {self.o["kvr"]}
            s_lshr_b32 s{sT1}, s{sT1}, {self.o.get("kvs", 0)}
            s_and_b32 s{sT1}, s{sT1}, 31
            s_lshl_b32 s{sT1}, s{sT1}, 13
            s_cmp_eq_u32 s{sWID}, 255
            s_cselect_b32 s{sT1}, 0, s{sT1}
            s_add_u32 s{sT0}, s{sT0}, s{sT1}""")
        self.emit(self.srd(sK, 6, f"s{sT0}", 524288) + self.srd(sV, 8, f"s{sT0}", 524288))
        e(f"""v_lshlrev_b32 v30, 8, v3
        v_lshl_add_u32 v30, v2, 6, v30
        v_xor_b32 v31, 2, v4
        v_min_u32 v{vPA}, 2, v4
        v_lshl_add_u32 v{vKV+1}, v31, 4, v30
        v_lshl_add_u32 v{vKV}, v4, 4, v30
        v_lshlrev_b32 v{vPA}, 8, v{vPA}
        v_add_u32 v{vPA}, {PROG}, v{vPA}
        s_mov_b32 s{sOFF}, 0
        s_mov_b32 s{sSL}, 0
        s_mov_b32 s{sB}, 10
        v_mov_b32 v{vORD}, 64
        {["s_mov_b32 s%d, 0" % sROT, "", "s_lshl_b32 s%d, s%d, 2" % (sROT, sC), "s_lshl_b32 s%d, s%d, 1" % (sROT, sBB)][self.o.get("er", 0)]}""")
        setup = [f"s_mul_i32 s{sT0}, s{sBB}, 147456"] + self.srd(sEB, 4, f"s{sT0}", 147456) + self.xsrc(30, 31, vDX) + \
                [f"s_mov_b32 s{sP1}, 256", f"s_mov_b32 s{sP2}, 64", f"s_mov_b32 s{sP3}, {1 << 20}", f"s_mov_b32 s{sP4}, {1 << 18}"] + self.common_srds() + self.xpat(30, 31, vXR, vXR1, CBX) + self.wpat(30, 31, vW0, vW1, CBW) + \
                [f"v_mov_b32 v{vSC}, s{sCS}", f"v_mov_b32 v{vSC+1}, s{sCS}", "v_and_b32 v30, 3, v1", "v_min_u32 v30, 2, v30", "v_and_b32 v31, 12, v1",
                 "v_add_u32 v30, v30, v31", f"v_lshlrev_b32 v{vFA}, 7, v30"]
        self.emit(setup + [self.kv_m0(0), self.kv_so(0), f"s_mov_b32 s{sP5}, 256"] + [f"s_mov_b32 s{sG[i]}, {i*32768}" for i in range(5)])
        self.stamp("iss")
        e("s_waitcnt lgkmcnt(0)\ns_barrier")
        self.stamp("bar")
        done = [0]
        def q0pub(n):
            while done[0] < min(n, 16):
                c = done[0]
                last = max(i for i, t in enumerate(self.q) if t == ("w", c))
                nb = sum(1 for t in self.q[:last] if t[0] == "g") // 16 if c == 15 else 0
                self.emit(self.q_wait(("q0", c), ("w", c)) + self.pub_abs(c + 1 + nb))
                self.stamp(f"c{c}")
                done[0] += 1
        LAG = self.o.get("lag", 3); KN_ = self.o.get("kn", 10)
        q0pub(1)
        for c in range(2, 16):
            if c >= 6:
                assert done[0] >= c - 5
                self.emit([self.rdpr] + self.pcheck(c - 5))
            for t, g in q0w(c): self.emit(self.q_push(g, t))
            for i in range(self.KG if c >= self.KS else 0):
                if self.G < KN_: self.emit(([] if i else [self.kv_m0(self.G & 3), "s_nop 0"]) + self.flat(self.position(("q0p", self.G), check=False, pace=False)))
            q0pub(2 if c == 2 else c - LAG + 1)
        self.stamp("c15i")
        pf = self.o.get("pf", 0); st = 7
        if pf & 1:
            e(f"""s_lshr_b32 s{sT1}, s2, 3
            s_lshl_b32 s{sPO}, s{sT1}, 17
            s_lshl_b32 s{sT0}, s{sKQ}, 11""")
            e(f"""v_lshrrev_b32 v30, 3, v1
            v_lshlrev_b32 v30, 13, v30
            v_bfe_u32 v31, v1, 1, 2
            v_lshl_add_u32 v30, v31, 9, v30
            v_and_b32 v31, 1, v1
            v_lshl_add_u32 v30, v31, 7, v30
            v_add_u32 v30, 256, v30""")
            L = self.srd(sPF, 10, f"s{sT0}", 4194304 - 6144)
            for i in range(4 >> (st - 6)): L += [f"buffer_load_dword v{vHT+1}, v30, {sr(sPF)}, s{sPO} offen", f"s_add_u32 s{sPO}, s{sPO}, {512 << st}"]
            self.emit(self.q_push(L, "pf"))
        if pf & 2:
            half = self.o.get("pfh", 1)
            e(f"""s_lshl_b32 s{sT0}, s{sKQ}, 20
            s_lshr_b32 s{sT1}, s2, 3
            s_lshl_b32 s{sT1}, s{sT1}, 15
            s_add_u32 s{sT0}, s{sT0}, s{sT1}
            s_and_b32 s{sPO}, s2, {half}
            s_lshl_b32 s{sPO}, s{sPO}, 14
            v_lshlrev_b32 v30, 7, v1""")
            L = self.srd(sPF, 12, f"s{sT0}", 32768)
            for i in range(4 >> half): L += [f"buffer_load_dword v{vHT+1}, v30, {sr(sPF)}, s{sPO} offen", f"s_add_u32 s{sPO}, s{sPO}, 8192"]
            self.emit(self.q_push(L, "pf"))
        q0pub(self.o.get("pb", 14))
        self.emit([self.kv_m0(self.G & 3), "s_nop 0"])
        if self.G == 12: self.emit([self.rdpr] + self.pcheck(12))
        while self.G < 20:
            self.emit(self.flat(self.position(("q0p", self.G), check=12 if self.G == 11 else False)))
            q0pub(done[0] + 1)
            if done[0] == 16 and not self.pubok:
                self.pubok = True; self.stamp("q0")
        assert self.pubok
        self.stamp("G20")
        self.emit([self.rdpr] + self.pcheck(16))
        self.engine()
        e(f"s_cmp_lg_u32 s{sIT}, 0\ns_cbranch_scc1 L_wph")
        save = (list(self.q), self.G)
        assert self.G == 128
        F = [f"v_add_u32 v30, {HAND1}, v{vL16}", "s_nop 3"]
        n = 0
        for ks in (1, 2, 3, 0):
            for qt in range(9):
                if ks:
                    b0 = vHACC + 36 * (2 * ks - 2) + 4 * qt; b1 = b0 + 36
                else:
                    b0 = vHACC + 8 * (qt % 2); b1 = b0 + 4
                    for i in range(4): F += [f"v_accvgpr_read_b32 v{b0+i}, a{aHACC+4*qt+i}", f"v_accvgpr_read_b32 v{b1+i}, a{aHACC+36+4*qt+i}"]
                F += [f"v_pk_mul_f32 v[{b}:{b+1}], v[{b}:{b+1}], v[{vSC}:{vSC+1}]" for b in (b0, b0 + 2, b1, b1 + 2)]
                t = vHT + 4 * (n % 2); n += 1
                F += [f"v_cvt_pk_bf16_f32 v{t+i}, v{b}, v{b+1}" for i, b in enumerate((b0, b0 + 2, b1, b1 + 2))]
                F += [f"ds_write_b128 v30, {vr(t)} offset:{(qt*4+ks)*1024}"]
        assert D >= 1
        self.plain("f0", F[:len(F) // 2]); self.plain("f1", F[len(F) // 2:])
        SW = [f"s_lshl_b32 s{sT2}, s{sKQ}, 20", f"s_lshl_b32 s{sT3}, s{sC}, 8", f"s_add_u32 s{sT2}, s{sT2}, s{sT3}"] + self.srd(sEA, 12, f"s{sT2}", 1048576) + \
             [f"s_sub_u32 s{sEA+2}, s{sEA+2}, s{sT3}"] + [f"s_mov_b32 s{sEB+i}, s{sOB+i}" for i in range(3)] + \
             [f"s_mov_b32 s{sP1}, 73728", f"s_mov_b32 s{sP2}, 1024", f"s_mov_b32 s{sP3}, {1 << 18}", f"s_mov_b32 s{sP4}, {1 << 15}",
              f"s_mov_b32 s{sP5}, 0", f"s_mov_b32 s{sP6}, 8192", f"v_add_u32 v{vXR}, {CBX}, v{vL16}", f"v_add_u32 v{vXR1}, {CBX + 1024}, v{vL16}",
              "v_bfe_u32 v30, v1, 2, 2", "v_lshlrev_b32 v30, 10, v30", "v_lshrrev_b32 v31, 4, v1", "v_lshl_add_u32 v30, v31, 6, v30",
              "v_and_b32 v31, 3, v1", f"v_lshl_add_u32 v{vDW}, v31, 4, v30", "v_xor_b32 v31, 2, v31", f"v_lshl_add_u32 v{vDW+1}, v31, 4, v30",
              f"v_add_u32 v{vDW+2}, 2048, v{vDW}", f"v_add_u32 v{vDW+3}, 17408, v{vDW+1}", f"v_add_u32 v{vDW+1}, 15360, v{vDW+1}",
              f"s_lshl_b32 s{sROT}, s{sC}, 2", "v_bfe_u32 v30, v1, 2, 2", f"v_subrev_u32 v30, s{sC}, v30", "v_and_b32 v30, 3, v30", f"v_lshlrev_b32 v{vORD}, 2, v30"]
        SW += [f"v_add_u32 v{vDX+i}, {O_OFF + (i >> 1)*2048}, v{vL16}" for i in range(4)] + [f"s_mov_b32 s{sG[4]}, 32768"]
        for gi in range(4): SW += [f"s_add_u32 s{sT1}, s{sKQ}, {gi+1}", f"s_and_b32 s{sT1}, s{sT1}, 3", f"s_lshl_b32 s{sG[gi]}, s{sT1}, 13"]
        for m in range(34, self.S0): self.plain(("pl", m), SW if m == 34 else [])
        self.stamp("s0")
        e(f"L_s0:\n{self.rdpr}")
        self.emit(self.pcheck(51, redo=True))
        e(f"""v_mov_b32 v30, {MISC+32}
        ds_read_b64 v[30:31], v30
        s_mov_b32 s{sIT}, 1
        s_waitcnt lgkmcnt(0)
        v_readfirstlane_b32 s{sTK}, v30
        v_readfirstlane_b32 s{sTK+1}, v31""")
        self.stamp("it0")
        e("s_branch L_eng")
        if self.dry:
            self.ph = 1
            self.engine()
        else:
            self.G += 108; self.pub = None
        assert self.G == 4 * (self.S0 + 27) and 35 <= self.S0 <= 38
        e("L_wph:")
        for m in range(self.S0 + 27, 65): self.plain(("pz", m))
        G65 = self.G
        self.stamp("G260")
        def wblock(p, slot=None):
            L = []
            for x in range(2):
                n = 2 * p + x
                m0 = (lambda h: f"s_add_u32 m0, s{sSL}, {x*8192 + h*4096}") if slot is None else (lambda h: f"s_mov_b32 m0, {slot*SLOT + x*8192 + h*4096}")
                G = self.agroups(m0, sT3, self.P("wpol"), sT4)
                o = ((n >> 2) << 18) + ((n & 3) << 15) + 131072
                L += [G[0][0], f"s_mov_b32 s{sT3}, {o}"] + G[0][1] + [G[1][0], f"s_mov_b32 s{sT4}, {o + 8192}"] + G[1][1]
            return L
        HW = [f"v_add_u32 v30, {ST}, v{vL16}", "s_nop 4"] + [f"ds_write_b128 v30, {self.hacc(t, i)} offset:{(t*9+i)*1024}" for t in range(4) for i in range(9)]
        for p in range(7):
            L = ([self.rdpr] + self.pcheck(f"s{sB}") if p else []) + self.q_push(wblock(p), ("w", p)) + [f"s_add_u32 s{sB}, s{sB}, 1"] + self.nextslot()
            if p < 2: L += self.q_wait(("wp", p), ("g", G65 - 5 + 4 * p)) + self.pub_abs(16 + 64 + p)
            if p < 4: L += HW[p * 10:(p + 1) * 10]
            if p == 4: L += self.q_wait(("wp", p), ("w", 3)) + self.pub_abs(16 + 69)
            self.emit(L)
            if p == 4: self.stamp("w4")
        self.stamp("it1")
        self.emit(self.tail_wregs() + self.pulls(0))
        if not self.dry: self.b1("L_hredo")
        self.emit(wblock(7, 2) + [f"v_add_u32 v30, 49152, v{vL16}"] + [f"ds_write_b128 v30, {self.hacc(t, i)} offset:{((t-4)*9+i)*1024}" for t in (4, 5) for i in range(9)])
        self.emit(self.tail_regs())
        e("s_waitcnt vmcnt(0) lgkmcnt(0)\ns_barrier")
        self.emit(self.pulls(1))
        e("s_branch L_tail")
        e(f"""L_hredo:
        s_waitcnt vmcnt(0)
        s_barrier
        s_lshl_b32 s{sB}, s{sIT}, 5
        s_add_u32 s{sB}, s{sB}, 10
        s_add_u32 s{sT0}, s{sB}, {6 - (D + 3) // 4}
        v_mov_b32 v{vPB}, s{sT0}
        ds_write_b32 v{vLA}, v{vPB}
        s_mov_b32 s{sCNT}, 0
        s_lshl_b32 s{sOFF}, s{sIT}, 18
        s_mov_b32 s{sSL}, 0
L_hmloop:""")
        for j in range(2): self.emit([self.kv_m0(j), self.kv_so(j)] + self.kv_d(j))
        e(f"""s_add_u32 s{sOFF}, s{sOFF}, 8192
        s_waitcnt vmcnt(0) lgkmcnt(0)
        s_barrier
        s_barrier
        s_add_u32 s{sCNT}, s{sCNT}, 1
        s_cmp_lt_u32 s{sCNT}, 32
        s_cbranch_scc1 L_hmloop
        s_lshl_b32 s{sOFF}, s{sIT}, 18
        s_lshl_b32 s{sSL}, s{sIT}, 16
        s_cmp_eq_u32 s{sIT}, 0
        s_cselect_b32 s{sCNT}, {self.S0 + 10}, {min(65, self.S0 + 27) + 10}
        {self.kv_m0(0)}
        {self.kv_so(0)}
L_hploop:""")
        self.G = 400; self.q = [("g", g) for g in range(380, 400) for _ in range(4)]; self.pub = None
        self.plain("rp")
        e(f"""s_cmp_lt_u32 s{sB}, s{sCNT}
        s_cbranch_scc1 L_hploop
        s_cmp_lg_u32 s{sIT}, 0
        s_cbranch_scc1 L_wph
        s_branch L_s0""")

    def tail_wregs(self):
        return [f"s_lshl_b32 s{sT0}, s{sWAVE}, 8"] + self.wpat(250, 251, 252, 253, f"s{sT0}") + [f"v_add_u32 v254, 65536, v252", f"v_add_u32 v255, 65536, v253"]
    def pulls(self, half):
        L = []
        for n in range(8 * half, 8 * half + 8):
            slot = (2 + (n >> 1)) % 7
            o = (slot & 3) * SLOT + (n & 1) * 8192; r = 252 + 2 * (slot >> 2)
            for u in range(2):
                L += [f"ds_read_b64_tr_b16 {ar(aTW+8*n+4*u,2)}, v{r} offset:{o+8*u}", f"ds_read_b64_tr_b16 {ar(aTW+8*n+4*u+2,2)}, v{r+1} offset:{o+8*u}"]
        return L
    def tail_regs(self):
        L = self.opat()
        L += [f"v_add_u32 v{vTB+s}, {s*36864}, v{vL16}" for s in range(4)]
        L += ["v_bfe_u32 v19, v1, 2, 2", "v_lshrrev_b32 v20, 4, v1", "v_cmp_eq_u32 vcc, v19, v20", "v_and_b32 v19, 1, v1", "v_lshlrev_b32 v19, 4, v19",
              "v_mov_b32 v20, 0x3f80", "v_lshlrev_b32 v19, v19, v20", "v_cndmask_b32 v19, 0, v19, vcc", "v_and_b32 v20, 2, v1", "v_cmp_eq_u32 vcc, 0, v20",
              f"v_mov_b32 v{vSEL+2}, 0", f"v_mov_b32 v{vSEL+3}, 0", f"v_cndmask_b32 v{vSEL}, 0, v19, vcc", f"v_sub_u32 v{vSEL+1}, v19, v{vSEL}",
              f"v_mov_b32 v{vSEL+4}, 0", f"v_mov_b32 v{vSEL+5}, 0", f"v_mov_b32 v{vSEL+6}, v{vSEL}", f"v_mov_b32 v{vSEL+7}, v{vSEL+1}"]
        for j, s in enumerate((sS0, sS1, sS2)):
            L += [f"s_add_u32 s{sT0}, s{sWID}, {4*(j+1)}", f"s_and_b32 s{sT0}, s{sT0}, 15", f"s_and_b32 s{sT1}, s{sWID}, 0xf0", f"s_add_u32 s{sT0}, s{sT0}, s{sT1}",
                  f"s_mul_i32 s{sT0}, s{sT0}, 36864", f"s_add_u32 s{sT1}, s{sWAVE}, {4*j}", f"s_mul_i32 s{sT1}, s{sT1}, 3072", f"s_add_u32 s{s}, s{sT0}, s{sT1}"]
        L += [f"s_sub_u32 s{sT0}, s{sWAVE}, s{sKQ}", f"s_and_b32 s{sT0}, s{sT0}, 3", f"s_cmp_eq_u32 s{sT0}, 1", f"s_cselect_b32 s{sS8}, s{sS0}, s{sS1}",
              f"s_cmp_eq_u32 s{sT0}, 3", f"s_cselect_b32 s{sS8}, s{sS2}, s{sS8}", f"s_add_u32 s{sS8}, s{sS8}, 2048",
              f"s_cmp_eq_u32 s{sT0}, 0", f"s_cselect_b32 s{sS8}, {OOB:#x}, s{sS8}"]
        L += ["v_and_b32 v19, 3, v1", "v_min_u32 v19, 2, v19", "v_lshlrev_b32 v27, 7, v19",
              f"v_add_u32 v20, s{sKQ}, v19", "v_add_u32 v20, 1, v20", "v_and_b32 v20, 3, v20", "v_lshlrev_b32 v20, 15, v20", "v_add_u32 v28, v20, v27",
              "v_and_b32 v19, 15, v1", "v_lshlrev_b32 v19, 10, v19", "v_lshrrev_b32 v20, 4, v1", "v_lshl_add_u32 v19, v20, 4, v19",
              f"s_lshl_b32 s{sT0}, s{sWAVE}, 6", f"v_add_u32 v29, s{sT0}, v19"]
        return L
    def poll(self, name, line0):
        self.a(f"""s_lshl_b32 s{sT2}, s{sWID}, 13
        s_lshl_b32 s{sT1}, s{sWAVE}, 9
        s_add_u32 s{sT2}, s{sT2}, s{sT1}
{name}:""")
        self.emit(self.budget(name + "ok"))
        self.a(f"""buffer_load_dwordx2 v[2:3], v27, {sr(sFL)}, s{sT2} offen offset:{line0*128 & 4095} sc1
        s_waitcnt vmcnt(0)
        v_cmp_ne_u64 vcc, s[{sTK}:{sTK+1}], v[2:3]
        s_cbranch_vccnz {name}
{name}ok:""")
    def tail(self):
        a = self.a
        a("L_tail:\ns_waitcnt lgkmcnt(0)\ns_barrier")
        self.stamp("b3")
        self.poll("L_poll1", 16)
        self.stamp("p1")
        a(f"""s_mul_i32 s{sT2}, s{sWAVE}, 73728
        s_add_u32 s{sT2}, s{sT2}, 36864
        s_mul_i32 s{sT3}, s{sWAVE}, 36864""")
        for k in range(4):
            for gi, n in ((0, 4), (1, 4), (2, 1)):
                a(f"s_add_u32 m0, s{sT3}, {k*9216 + gi*4096}")
                a(f"s_add_u32 s{sT2}, s{sT2}, 1024" if (k and gi == 0) else "s_nop 0")
                for i in range(n): a(self.dma(vDX + 4 * gi + i, sOB, sT2, i * 1024, self.P("olpol")))
        steps = [(k, i) for k in range(3) for i in range(9)] + [(3, i) for i in (8, 0, 1, 2, 3, 4, 5, 6, 7)]
        rd = lambda j: [f"ds_read_b128 {vr(vBF+16*(j&3)+4*s)}, v{vTB+s} offset:{steps[j][0]*9216+steps[j][1]*1024}" for s in range(4)]
        acc = lambda u, i: vTA + 36 * u + 4 * i
        def send(i, n):
            t = vRC + 4 * (n & 1)
            so = sS8 if i == 8 else (sS0, sS1, sS2)[i >> 1]
            return [f"v_cvt_pk_bf16_f32 v{t+2*u+x}, v{acc(u,i)+2*x}, v{acc(u,i)+2*x+1}" for u in range(2) for x in range(2)] + \
                   [f"buffer_store_dwordx4 {vr(t)}, v{vL16}, {sr(sPT)}, s{so} offen offset:{0 if i == 8 else (i&1)*1024} {self.P('psc', 'sc1')}"]
        a("s_waitcnt vmcnt(27)\ns_barrier")
        self.stamp("d0")
        self.emit(rd(0) + rd(1))
        nst = 0
        for j, (k, i) in enumerate(steps):
            nx = j + 2
            if nx < 36 and nx % 9 == 0:
                a(f"s_waitcnt vmcnt({27 - nx})\ns_barrier")
            a(f"s_waitcnt lgkmcnt({4 if j < 35 else 0})")
            mf = [f"{MF} {vr(acc(u,i))}, {ar(aTW+8*(4*s+k)+4*u)}, {vr(vBF+16*(j&3)+4*s)}, {vr(acc(u,i))}" for s in range(4) for u in range(2)]
            f = {}
            if nx < 36:
                for s, x in enumerate(rd(nx)): f[s] = [x]
            if 28 <= j <= 34:
                X = send(steps[j - 1][1], nst); nst += 1
                f[4] = X[:2]; f[5] = X[2:4]; f[6] = X[4:]
            self.weave(mf, f)
        self.stamp("mf")
        a(f"""s_and_b32 s{sT0}, s{sWID}, 0xf3
        s_lshl_b32 s{sT0}, s{sT0}, 13
        s_lshl_b32 s{sT1}, s{sWAVE}, 9
        s_add_u32 s{sT0}, s{sT0}, s{sT1}
        s_add_u32 s{sT0}, s{sT0}, 4096
        v_mov_b32 v2, s{sTK}
        v_mov_b32 v3, s{sTK+1}
        s_mov_b64 exec, 7
        s_waitcnt vmcnt(0)
        buffer_store_dwordx2 v[2:3], v28, {sr(sFL)}, s{sT0} offen sc1
        s_mov_b64 exec, -1
        v_add_u32 v27, 4096, v27""")
        self.poll("L_poll2", 0)
        self.stamp("p2")
        a(f"""s_mul_i32 s{sT0}, s{sWID}, 36864
        s_mul_i32 s{sT1}, s{sWAVE}, 3072
        s_add_u32 s{sT0}, s{sT0}, s{sT1}
        s_lshl_b32 s{sT2}, s{sKQ}, 15
        s_cmp_eq_u32 s{sWAVE}, s{sKQ}
        s_cselect_b32 s{sT3}, 0, {OOB:#x}""")
        for j in range(3):
            if j: a(f"s_add_u32 s{sT0}, s{sT0}, 12288")
            a(f"s_or_b32 s{sT1}, s{sT0}, s{sT3}")
            for u in range(3):
                a(f"buffer_load_dwordx4 {vr(vRC+12*j+4*u)}, v{vL16}, {sr(sPT)}, s{sT1 if u == 2 else sT0} offen offset:{u*1024} {self.P('plpol', 'sc1')}")
        for j in range(3):
            a(f"s_waitcnt vmcnt({6-3*j})")
            for u, i in enumerate((6, 7, 8)):
                for x in range(2):
                    a(f"{MF} {vr(acc(x,i))}, {vr(vSEL+4*x)}, {vr(vRC+12*j+4*u)}, {vr(acc(x,i))}")
        a(f"""s_add_u32 s{sT1}, s{sT2}, 16384
        s_or_b32 s{sT3}, s{sT3}, 131072
        s_nop 1""")
        for n, (i, so) in enumerate(((6, sT2), (7, sT1), (8, sT3))):
            t = vBF + 4 * n
            if n == 2: a("s_nop 1")
            for u in range(2):
                for x in range(2): a(f"v_cvt_pk_bf16_f32 v{t+2*u+x}, v{acc(u,i)+2*x}, v{acc(u,i)+2*x+1}")
            a(f"buffer_store_dwordx4 {vr(t)}, v29, {sr(sOUT)}, s{so} offen {self.P('opol')}")
        if self.o.get("stamps"):
            a("s_waitcnt vmcnt(0)")
            if self.o.get("sm") not in ("s", "r", "c", "p", "o"): self.stamp("end")
            if self.o.get("amp"):
                i = self.o["amp"]
                a(f"""s_waitcnt lgkmcnt(0)
                s_cmp_lg_u32 s{sWAVE}, {self.o.get("ampw", 0)}
                s_cbranch_scc1 L_noamp
                s_and_b32 s{sT0}, s2, {self.o.get("ampm", 0)}
                s_cmp_lg_u32 s{sT0}, {self.o.get("ampv", 0)}
                s_cbranch_scc1 L_noamp
                s_sub_u32 s{sT0}, s{sSTAMP+2*i}, s{sSTAMP+2*self.o.get("amp0", 0)}
                s_min_u32 s{sT0}, s{sT0}, 20000
                s_mul_i32 s{sT0}, s{sT0}, {self.o.get("ampk", 10)}
                s_add_u32 s{sT0}, s{sT0}, 10000
L_amp:
                s_memrealtime s[{sT2}:{sT2+1}]
                s_waitcnt lgkmcnt(0)
                s_sub_u32 s{sT1}, s{sT2}, s{sSTAMP}
                s_cmp_lt_u32 s{sT1}, s{sT0}
                s_cbranch_scc1 L_amp
L_noamp:
                s_endpgm""")
            if self.o.get("dbg"):
                a("s_waitcnt lgkmcnt(0)")
                self.emit(self.srd(sDB, 16, 0, 256))
                a(f"""s_cmp_eq_u32 s{sWAVE}, 3
                s_cselect_b32 s{sT0}, 28, 0
                s_mov_b64 exec, 1
                v_mov_b32 v5, 0
                s_add_u32 s{sT1}, s{sWAVE}, 1
                s_and_b32 s{sT1}, s{sT1}, 2
                s_cbranch_scc1 L_nodbg""")
                for i in range(1, 8):
                    a(f"s_sub_u32 s{sT1}, s{sSTAMP+2*i}, s{sSTAMP}\nv_mov_b32 v6, s{sT1}\nbuffer_atomic_add v6, v5, {sr(sDB)}, s{sT0} offen offset:{4*i} sc1")
                a(f"""s_not_b32 s{sT1}, s{sSTAMP}
                v_mov_b32 v6, s{sT1}
                v_mov_b32 v7, s{sSTAMP+14}
                buffer_atomic_umax v6, v5, {sr(sDB)}, 0 offen offset:60 sc1
                s_waitcnt vmcnt(0)
L_nodbg:
                s_endpgm""")
            a(f"""s_waitcnt lgkmcnt(0)
            s_mov_b32 s{sO}, s18
            s_and_b32 s{sO+1}, s19, 0xffff
            s_mov_b32 s{sO+2}, 536870912
            s_mov_b32 s{sO+3}, 0x00020000
            s_lshl_b32 s{sT0}, s2, 8
            s_lshl_b32 s{sT1}, s{sWAVE}, 6
            s_add_u32 s{sT0}, s{sT0}, s{sT1}
            s_add_u32 s{sT0}, s{sT0}, {256<<20}
            v_mov_b32 v5, 0""")
            for i in range(16): a(f"v_mov_b32 v{16+i}, s{sSTAMP+i}")
            a("s_mov_b64 exec, 1")
            for i in range(4): a(f"buffer_store_dwordx4 {vr(16+4*i)}, v5, {sr(sO)}, s{sT0} offen offset:{16*i}")
        a("s_endpgm")

    def kernel(self):
        self.inh = True
        self.dry = True; self.helper(); self.dry = False
        self.prologue()
        self.helper()
        self.inh = False; self.attention(); self.inh = self.o.get("sm") in ("g", "s", "r", "c", "p", "o") and self.o.get("gh", 1)
        self.tail()
        self.emit(self.ool)
        self.a("L_end:\ns_endpgm")
        return self.a.text()

def build(opt):
    g = Gen(opt)
    t = g.kernel()
    if opt.get("v"): print(g.cnt)
    src = open("standalone__gqa_block_cached__near_ridge.s.ref").read().split("; Override launch")[0]
    return src + header([(KN, 256, 256, LDS)]) + kstart(KN) + t + rodata([kdesc(KN, 256, 256)])

if __name__ == "__main__":
    opt = {}
    out = sys.argv[1]
    for x in sys.argv[2:]:
        k, _, v = x.partition("=")
        opt[k] = int(v) if v.lstrip("-").isdigit() else (v if v else True)
    t = build(opt)
    open(out, "w").write(t)
    print("hazards:", hazard.check(t), "bytes:", len(t))
```

```python
import sys, struct
from asmlib import *
import hazard

SLOT = 16384; NSL = 7; RING = NSL * SLOT
CH = 17408
SYNC = 162560
LAND, PROG, MISC = SYNC, SYNC + 256, SYNC + 1024
PB = 2 * CH
QP = [SYNC - (4 - i) * PB for i in range(4)]
QC = [QP[2], QP[3], QP[1]]
CBX = QP[3]; CBW = CBX + 18432
HAND1 = SYNC - 36864
OWN = 65536
UB = [i * 12288 if i < 5 else 102400 + (i - 5) * 12288 for i in range(9)]
HB = [(32768, 43008), (114688, 124928), (51200, 133120)]
WS = [2*SLOT, 3*SLOT, 4*SLOT, 5*SLOT, 6*SLOT, 0, SLOT, CBW]
LDS = 163840
O_OFF = 4096
PT_OFF = 24 << 20
FL_OFF = 40 << 20
CSC = struct.unpack("<I", struct.pack("<f", 1.4426950408889634 * 128 ** -0.5))[0]
THR = 0x4b800000
OOB = 0x80000000
MF = "v_mfma_f32_16x16x32_bf16"

def vr(b, n=4): return f"v[{b}:{b+n-1}]"
def ar(b, n=4): return f"a[{b}:{b+n-1}]"
def sr(b, n=4): return f"s[{b}:{b+n-1}]"

sWAVE = 3
sEB, sK, sV, sEA, sO, sOB, sPT, sOUT, sFL, sDB = 20, 24, 28, 32, 36, 40, 44, 48, 52, 56
(sT0, sT1, sT2, sT3, sT4, sOFF, sSL, sB, sIT, sCNT, sREDO, sROT, sCS, sKS, sPUB, sBUD, sKQ, sC, sBB, sWID,
 sP1, sP2, sP3, sP4) = range(60, 84)
sSTAMP = 84
sP5, sP6 = 100, 101
sS0, sS1, sS2, sS8 = sP1, sP2, sP3, sP4
sTGT = sPUB
sTK = 4
sAL, sLD, sRT, sPX = 6, 7, 8, 9
sOS = sKS
sH = [sO, sO + 1, sO + 2, sO + 3]
sPF = sO
sXB, sXA = sDB, sDB + 2
sPO = sPUB
sG = [sO, sO + 1, sO + 2, sO + 3, sPUB]
sQD, sXM, sXS, sEX = sKS, sOFF, sB, sP1
vL16, vLA, vPA = 5, 6, 7
vPR, vLD, vRK, vRV0, vRV1, vRKb, vRV0b, vRV1b = 8, 9, 10, 11, 12, 13, 14, 15
vS, vNM, vONE, vMS = 16, 40, 52, 56
vTMP, vQ, vO, vL = 64, 80, 128, 224
vCT = 240
vQB, vDXq = 24, 19
aK, aV, aQF = 0, 64, 128
vKV = 2
vPV, vPB, vDX, vDW, vW0, vW1, vXR, vSC, vFA, vFV = 8, 9, 10, 19, 23, 24, 25, 26, 28, 16
vORD, vXR1 = 4, 14
aB2 = 208
vHACC = 32; aHACC = 0; aHF = 72; vHT = 248
vTB, vOW = 23, 24
vF = (26, 27, 29)
vP2, vS2, vOUT = 10, 11, 12
vBF, vSEL, vRC, vTA = 32, 96, 112, 176
aTW = 128

def S(qt, kt=0): return vS + 8 * qt + 4 * kt
def Kf(p, kt, ks): return aK + 32 * p + 16 * kt + 4 * ks
def Vf(p, dt): return aV + 32 * p + 4 * dt
def Qf(qt, ks): return vQ + 16 * qt + 4 * ks
def Oa(qt, dt): return vO + 32 * qt + 4 * dt
PK = (vTMP, Oa(0, 0), Oa(0, 4))
def isvm(x): return x.startswith("buffer_")

class Gen:
    def __init__(self, opt):
        self.o = opt
        self.a = A()
        self.ool = []
        self.nlab = 0
        self.D = opt.get("d", 5)
        self.S0 = 41
        self.KS = opt.get("ks", 6)
        self.KG = opt.get("kg", 2)
        self.pol = self.P("pol", "nt")
        self.osc = self.P("osc", "sc1")
        self.dry = False
        self.cnt = {}
    def P(self, k, d=""):
        v = self.o.get(k, d)
        return "" if v == "none" else v.replace("+", " ")
    STM = {"m": "start c0 q0 it0 it1 b3 p1 end", "t": "start it1 p1 b3 d0 mf p2 end", "q": "start karg iss bar c0 c8 q0 end", "u": "start it1 b1 b2 ack b3 p1 end",
           "g": "start g00 g03 g06 g10 g13 g16 end", "s": "start c15i G4 G8 G12 G16 G20 g00", "r": "start g06 G128 G136 G144 s0 it0 g10", "e": "start G260 l81 w4 it1 b1 x y", "f": "start fin it1 p1 d0 mf p2 end",
           "c": "start c0 c1 c2 c3 c4 c6 c12", "p": "start G20 p00 p02 p04 p10 p13 g00", "o": "start s0 p00 p02 p04 p10 p13 g10"}
    def stamp(self, name):
        if self.o.get("sm") in ("k", "l"):
            nm = ("start g00 g06 g10" if self.o["sm"] == "k" else "start g10 g16 end").split()
            if name in nm and not self.dry:
                i = nm.index(name)
                self.a(f"s_memrealtime s[{sSTAMP+2*i}:{sSTAMP+2*i+1}]\ns_memtime s[{sSTAMP+8+2*i}:{sSTAMP+9+2*i}]")
            return
        names = self.STM[self.o.get("sm", "m")].split()
        if self.o.get("sm") == "g" and not self.inh: names = "start q0 it0 it1 b3 p1 mf end".split()
        if self.o.get("sm") == "s" and not self.inh: names = "start c0 c8 q0 k0 st0 it0 x".split()
        if self.o.get("sm") == "c" and not self.inh: names = "start c0 c2 c4 c8 c12 c16 q0".split()
        if self.o.get("sm") in ("p", "o") and not self.inh: names = "start q0 k0 st0 st1 it0 x y".split()
        if self.o.get("sm") == "r" and not self.inh: names = "start fin epi it0 st0 ofl st1 x".split()
        if self.o.get("sm") == "e" and not self.inh: names = "start fin it1 b1 ack x p1 end".split()
        if name not in names: return
        i = names.index(name)
        if self.o.get("stamps") == 3 and not self.dry:
            self.a(f"s_sub_u32 s{sSTAMP+2*i}, {1 << 22}, s{sBUD}\ns_mov_b32 s{sSTAMP+2*i+1}, 0" if i else f"s_mov_b64 s[{sSTAMP}:{sSTAMP+1}], 0")
        elif self.o.get("stamps") and not self.dry:
            op = "s_memtime" if self.o.get("stamps") == 2 else "s_memrealtime"
            self.a(f"{op} s[{sSTAMP+2*i}:{sSTAMP+2*i+1}]")
    def stampl(self, name):
        sv = self.a; self.a = A(); self.stamp(name); L = [x.strip() for x in self.a.l]; self.a = sv
        return L
    def emit(self, L):
        if self.dry: return
        for x in L: self.a(x)
    def e(self, s):
        if not self.dry: self.a(s)
    def lab(self, p):
        self.nlab += 1
        return f"L_{p}{self.nlab}"
    def weave(self, mf, fills):
        L = list(fills.get(-1, []))
        for i, m in enumerate(mf):
            L.append(m); L += fills.get(i, [])
        self.emit(L)
    def spread(self, mf, items):
        if not mf:
            self.emit(items); return
        n = len(mf); f = {}
        for k, x in enumerate(items):
            f.setdefault(min(n - 1, k * n // max(1, len(items))), []).append(x)
        self.weave(mf, f)
    def srd(self, d, lo, off, nrec):
        return [f"s_add_u32 s{d}, s{lo}, {off}", f"s_addc_u32 s{d+1}, s{lo+1}, 0", f"s_and_b32 s{d+1}, s{d+1}, 0xffff",
                f"s_mov_b32 s{d+2}, {nrec}", f"s_mov_b32 s{d+3}, 0x00020000"]
    def dma(self, v, srd, soff, imm, pol=""):
        return " ".join(f"buffer_load_dwordx4 v{v}, {sr(srd)}, {'0' if soff is None else f's{soff}'} offen offset:{imm} {pol} lds".split())
    def budget(self, ret):
        return [f"s_sub_i32 s{sBUD}, s{sBUD}, 1", f"s_cmp_lt_i32 s{sBUD}, 0", f"s_cbranch_scc1 {ret}"]

    def prologue(self):
        a = self.a
        a(f"""s_cmp_ge_u32 s2, 256
        s_cbranch_scc1 L_end
        s_load_dwordx16 s[4:19], s[0:1], 0""")
        self.stamp("start")
        if self.o.get("cpf", 1):
            a(f"""s_getpc_b64 s[{sO}:{sO+1}]
            s_lshr_b32 s{sT0}, s2, 3
            s_and_b32 s{sO}, s{sO}, 0xffffff00
            s_and_b32 s{sO+1}, s{sO+1}, 0xffff
            s_mov_b32 s{sO+2}, L_end-{KN}
            s_mov_b32 s{sO+3}, 0x00020000
            s_lshl_b32 s{sT0}, s{sT0}, 11
            v_lshlrev_b32 v1, 7, v0
            v_cmp_gt_u32 vcc, 16, v0
            s_and_saveexec_b64 s[{sT2}:{sT2+1}], vcc
            s_cbranch_execz L_nopf
            buffer_load_dword v255, v1, {sr(sO)}, s{sT0} offen
L_nopf:
            s_mov_b64 exec, -1""")
        a(f"""v_lshrrev_b32 v2, 6, v0
        v_and_b32 v1, 63, v0
        s_bfe_u32 s{sT1}, s2, 0x30003
        v_readfirstlane_b32 s{sWAVE}, v2
        s_and_b32 s{sT0}, s2, 1
        s_lshl_b32 s{sT0}, s{sT0}, 3
        s_add_u32 s{sBB}, s{sT0}, s{sT1}          ; b
        s_lshr_b32 s{sC}, s2, 6                   ; c
        s_bfe_u32 s{sKQ}, s2, 0x20001             ; kq
        s_lshl_b32 s{sT1}, s{sT1}, 1
        s_lshl_b32 s{sT2}, s{sC}, 2
        s_add_u32 s{sROT}, s{sT1}, s{sT2}
        {f"s_mov_b32 s{sROT}, 0" if self.o.get("norot") else ""}
        s_lshl_b32 s{sT2}, s{sKQ}, 2
        s_add_u32 s{sT2}, s{sT2}, s{sC}           ; hp
        s_lshl_b32 s{sWID}, s{sBB}, 4
        s_add_u32 s{sWID}, s{sWID}, s{sT2}        ; b*16 + hp
        v_lshrrev_b32 v2, 4, v1                   ; g
        v_bfe_u32 v3, v1, 2, 2                    ; r
        v_and_b32 v4, 3, v1                       ; c
        s_mov_b32 s{sBUD}, {1 << 22}""")
        a(f"""v_lshrrev_b32 v30, 3, v1
        v_and_b32 v31, 7, v1
        v_xor_b32 v31, v31, v30
        v_lshlrev_b32 v31, 4, v31
        v_lshl_add_u32 v{vDW}, v30, 10, v31
        v_lshlrev_b32 v30, 13, v3
        v_lshl_add_u32 v30, v2, 6, v30
        v_xor_b32 v31, 2, v4
        v_lshl_add_u32 v31, v31, 4, v30
        v_lshl_add_u32 v30, v4, 4, v30
        s_mul_i32 s{sT0}, s{sBB}, 147456
        s_mul_i32 s{sT1}, s{sWAVE}, 49152
        s_add_u32 s{sT0}, s{sT0}, s{sT1}
        s_lshl_b32 s{sT2}, s{sT2}, 9
        s_mul_i32 s{sXM}, s{sWAVE}, 6144
        s_lshr_b32 s{sXS}, s{sROT}, 1
        s_cmp_ge_u32 s{sXS}, 7
        s_cselect_b32 s{sT1}, 6, -1
        s_sub_u32 s{sXS}, s{sXS}, s{sT1}            ; second pair 1 + ((b & 7) + 2c) % 7
        s_add_u32 m0, s{sXM}, {QC[0]}
        s_mov_b32 s{sT4}, 7168
        s_mov_b32 s{sEA+2}, 49152
        s_mov_b32 s{sT1}, 32768
        s_cmp_eq_u32 s{sWAVE}, 3
        s_cselect_b64 vcc, -1, 0
        s_cselect_b32 s{sT0}, s{sT2}, s{sT0}
        s_cselect_b32 s{sT4}, 31744, s{sT4}
        s_cselect_b32 s{sEA+2}, {4194304 - 7680}, s{sEA+2}
        s_cselect_b32 s{sT1}, 131072, s{sT1}
        v_cndmask_b32 v{vDW+1}, v{vDW}, v31, vcc
        v_cndmask_b32 v{vDW}, v{vDW}, v30, vcc
        s_mov_b32 s{sEA+3}, 0x00020000
        v_add_u32 v{vDW+1}, s{sT4}, v{vDW+1}
        s_lshl_b32 s{sT4}, s{sT4}, 1
        v_add_u32 v{vDW+2}, s{sT4}, v{vDW}
        v_add_u32 v{vDW+3}, s{sT4}, v{vDW+1}
        {f"s_mov_b32 s{sEA+2}, 0" if self.o.get("q0oob") else ""}
        s_cmp_eq_u32 s{sWAVE}, 3
        s_waitcnt lgkmcnt(0)
        s_cselect_b32 s{sEA}, s10, s4
        s_cselect_b32 s{sEA+1}, s11, s5
        s_add_u32 s{sEA}, s{sEA}, s{sT0}
        s_addc_u32 s{sEA+1}, s{sEA+1}, 0
        s_and_b32 s{sEA+1}, s{sEA+1}, 0xffff""")
        self.stamp("karg")
        for i in range(4): a(self.dma(vDW + i, sEA, None, i * 1024, self.P("cpol")))
        a(f"s_add_u32 m0, s{sXM}, {QC[0] + 4096}\ns_cmp_lg_u32 s{sWAVE}, 3")
        for i in range(2): a(self.dma(vDW + i, sEA, sT1, i * 1024, self.P("cpol")))
        a("s_cbranch_scc1 L_attn")

    def common_srds(self):
        L = self.srd(sFL, 18, FL_OFF, 256 * 8192) + self.srd(sPT, 18, PT_OFF, 256 * 36864)
        L += [f"s_lshl_b32 s{sT0}, s{sBB}, 2", f"s_add_u32 s{sT0}, s{sT0}, s{sKQ}", f"s_mul_i32 s{sT0}, s{sT0}, {8*36864}"]
        L += self.srd(sOB, 18, f"s{sT0}", 8 * 36864 + O_OFF)
        L += [f"s_mul_i32 s{sT0}, s{sBB}, 147456", f"s_lshl_b32 s{sT1}, s{sC}, 8", f"s_add_u32 s{sT0}, s{sT0}, s{sT1}"]
        L += self.srd(sOUT, 14, f"s{sT0}", 147456) + [f"s_sub_u32 s{sOUT+2}, s{sOUT+2}, s{sT1}"]
        L += [f"s_mov_b32 s{sIT}, 0", f"s_mov_b32 s{sREDO}, 0", f"s_mov_b32 s{sCS}, {CSC:#x}"]
        return L
    def wpat(self, t0, t1, w0, w1, base):
        return [f"v_lshrrev_b32 v{t0}, 4, v1", f"v_lshlrev_b32 v{t0}, 11, v{t0}", f"v_bfe_u32 v{t1}, v1, 2, 2", f"v_lshl_add_u32 v{t0}, v{t1}, 6, v{t0}",
                f"v_add_u32 v{t0}, {base}, v{t0}", f"v_and_b32 v{t1}, 3, v1", f"v_lshl_add_u32 v{w0}, v{t1}, 4, v{t0}",
                f"v_xor_b32 v{t1}, 2, v{t1}", f"v_lshl_add_u32 v{w1}, v{t1}, 4, v{t0}", f"v_add_u32 v{w1}, 1024, v{w1}"]
    def xpat(self, t0, t1, d0, d1, base):
        return [f"v_lshrrev_b32 v{t0}, 4, v1", f"v_and_b32 v{t1}, 7, v1", f"v_xor_b32 v{t0}, v{t0}, v{t1}", f"v_lshlrev_b32 v{t0}, 4, v{t0}",
                f"v_and_b32 v{t1}, 15, v1", f"v_lshl_add_u32 v{t0}, v{t1}, 7, v{t0}", f"v_xor_b32 v{t1}, 64, v{t0}",
                f"v_add_u32 v{d0}, {base}, v{t0}", f"v_add_u32 v{d1}, {base}, v{t1}"]
    def xsrc(self, t0, t1, d):
        return [f"v_lshrrev_b32 v{t0}, 3, v1", f"v_and_b32 v{t1}, 7, v1", f"v_xor_b32 v{t1}, v{t1}, v{t0}", f"v_lshlrev_b32 v{t1}, 4, v{t1}",
                f"v_lshl_add_u32 v{d}, v{t0}, 10, v{t1}"] + [f"v_add_u32 v{d+i}, {i*7168}, v{d}" for i in range(1, 4)]
    def opat(self):
        L = [f"s_lshl_b32 s{sT0}, s{sKQ}, 1"]
        for i in range(8):
            L += [f"s_add_u32 s{sT1}, s{sT0}, {i+2}", f"s_and_b32 s{sT1}, s{sT1}, 7", f"s_lshl_b32 s{sT1}, s{sT1}, 12",
                  f"s_add_u32 s{sT1}, s{sT1}, {O_OFF - (i&3)*1024}", f"v_add_u32 v{vDX+i}, s{sT1}, v{vL16}"]
        return L + [f"v_add_u32 v{vDX+8}, {O_OFF + 32768}, v{vL16}"]

    def await_(self, pre=True, emit=True, above=None):
        l = self.lab("sp")
        if above is not None:
            c = f"v_cmp_lt_u32 vcc, {above}, v{vLD}"
            self.ool += [f"{l}:"] + self.budget(l + "r") + [self.rdla, "s_waitcnt lgkmcnt(0)", c, f"s_cbranch_vccz {l}", f"s_branch {l}r"]
            if pre: self.a(f"{self.rdla}\ns_waitcnt lgkmcnt(0)")
            self.a(f"{c}\ns_cbranch_vccz {l}\n{l}r:")
            return
        self.ool += [f"{l}:"] + self.budget(l + "r") + ([f"s_sleep {self.o['slp']}"] if self.o.get("slp") else []) + [f"ds_read_b32 v{vLD}, v{vLA}", "s_waitcnt lgkmcnt(0)",
                     f"v_cmp_gt_u32 vcc, v{vLD}, v{vPR}", f"s_cbranch_vccz {l}", f"s_branch {l}r"]
        if pre: self.a(f"ds_read_b32 v{vLD}, v{vLA}\ns_waitcnt lgkmcnt(0)\nv_cmp_gt_u32 vcc, v{vLD}, v{vPR}")
        if not emit: return [f"s_cbranch_vccz {l}", f"{l}r:"]
        self.a(f"s_cbranch_vccz {l}\n{l}r:")
    def nextslot(self):
        return [f"s_add_u32 s{sSL}, s{sSL}, {SLOT}", f"s_cmp_eq_u32 s{sSL}, {RING}", f"s_cselect_b32 s{sSL}, 0, s{sSL}"]
    def slotregs(self):
        return [f"v_add_u32 v{vRK}, s{sSL}, v{vRKb}", f"v_add_u32 v{vRV0}, s{sSL}, v{vRV0b}", f"v_add_u32 v{vRV1}, s{sSL}, v{vRV1b}"]
    def kreads(self, p):
        return [f"ds_read_b128 {ar(Kf(p,kt,ks))}, v{vRK} offset:{kt*4096+ks*256}" for kt in range(2) for ks in range(4)]
    def vreads(self, p):
        return [f"ds_read_b64_tr_b16 {ar(Vf(p,dt)+2*h,2)}, v{vRV0 if dt%2==0 else vRV1} offset:{(dt>>1)*256+h*4096}"
                for dt in range(8) for h in range(2)]
    def qk(self, qt, p, raw=False):
        L = []
        for kt in range(2):
            for ks in range(4):
                d = vr(S(qt, kt))
                c = d if ks else ("0" if raw else vr(vNM + 4 * qt))
                L.append(f"{MF} {d}, {ar(Kf(p,kt,ks))}, {vr(Qf(qt,ks))}, {c}")
        return L
    def pv(self, qt, p, first=False):
        L = []
        for dt in range(8):
            d = vr(Oa(qt, dt))
            L.append(f"{MF} {d}, {ar(Vf(p,dt))}, {vr(S(qt))}, {'0' if first else d}")
        d = vr(vL + 4 * qt)
        L.append(f"{MF} {d}, {vr(vONE)}, {vr(S(qt))}, {'0' if first else d}" if not self.o.get("nol") or first else "s_nop 0")
        return L
    def ex(self, qt, i): return f"v_exp_f32 v{S(qt)+i}, v{S(qt)+i}"
    def cv(self, qt, i): return f"v_cvt_pk_bf16_f32 v{S(qt)+i}, v{S(qt)+2*i}, v{S(qt)+2*i+1}"
    incpr = f"v_add_u32 v{vPR}, 1, v{vPR}"
    wrpr = f"ds_write_b32 v{vPA}, v{vPR}"
    rdla = f"ds_read_b32 v{vLD}, v{vLA}"
    cmpla = f"v_cmp_gt_u32 vcc, v{vLD}, v{vPR}"

    def ost(self, qt, ks):
        return [f"buffer_store_dwordx4 {vr(PK[qt] + 4*ks)}, v{vL16}, {sr(sO)}, s{sOS} offen offset:{ks*1024} {self.osc}"] + \
               ([f"s_add_u32 s{sOS}, s{sOS}, {4096 if qt == 1 else -8192}"] if ks == 3 and qt else [])
    def stage(self, p, first=False, tail=[], tail2=[]):
        self.await_(pre=False)
        mf = self.pv(0, p, first) + self.qk(0, p) + self.pv(1, p, first) + self.qk(1, p) + self.pv(2, p, first) + self.qk(2, p)
        f = {i: [] for i in range(51)}
        ki = iter(self.kreads(1 - p)); vi = iter(self.vreads(1 - p))
        for seg, qt in enumerate((2, 0, 1)):
            for i in range(8): f[17 * seg + 2 * i].append(self.ex(qt, i))
        for seg in range(2):
            for g in (3, 7, 11, 15): f[17 * seg + g].append(next(ki))
        for g in (1, 5, 9, 13, 18, 22, 26, 30): f[g] += [next(vi), next(vi)]
        for seg, qt in enumerate((2, 0, 1)):
            for i in range(4): f[17 * seg + 4 * i + 3].append(self.cv(qt, i))
        ns = self.nextslot(); sr_ = self.slotregs()
        f[16] += [self.incpr]
        f[33] += [self.wrpr]
        f[35] += ns[:2]
        f[39] += [ns[2], sr_[0]]
        f[41] += [sr_[1]]
        f[43] += [self.rdla, sr_[2]]
        f[47] += tail
        f[49] += tail2
        if first:
            for ks, g in enumerate((6, 16, 28, 37)): f[g] += self.ost(0, ks)
        if self.o.get("slow"): f[25] += [f"s_sleep {self.o['slow']}"]
        f[50] += ["s_waitcnt lgkmcnt(0)", self.cmpla]
        na = self.o.get("noatt", 0)
        if na & 1: mf = ["s_nop 0"] * 51
        if na & 2: f = {i: [x for x in L if not x.startswith(("v_exp", "v_cvt"))] for i, L in f.items()}
        if na & 4: f = {i: [x for x in L if not x.startswith(("ds_read_b128", "ds_read_b64"))] for i, L in f.items()}
        self.weave(mf, f)

    def xmax(self, v, t):
        self.a(f"""v_mov_b32 v{t}, v{v}
        s_nop 1
        v_permlane16_swap_b32 v{v}, v{t}
        v_max_f32 v{v}, v{v}, v{t}
        v_mov_b32 v{t}, v{v}
        s_nop 1
        v_permlane32_swap_b32 v{v}, v{t}
        v_max_f32 v{v}, v{v}, v{t}""")

    def stage0(self):
        a = self.a
        mf = self.qk(0, 0, True) + self.qk(1, 0, True) + self.qk(2, 0, True)
        self.spread(mf, self.kreads(1) + self.vreads(1))
        self.emit([self.incpr, self.wrpr] + self.nextslot() + self.slotregs())
        ST_ = [self.ost(qt, ks) for qt in (1, 2) for ks in range(4)]
        for qt in range(3):
            s = S(qt); m = 59 + qt
            self.emit(ST_.pop(0))
            a(f"""v_max3_f32 v{m}, v{s}, v{s+1}, v{vMS+qt}
            v_max3_f32 v{m}, v{s+2}, v{s+3}, v{m}
            v_max3_f32 v{m}, v{s+4}, v{s+5}, v{m}
            v_max3_f32 v{m}, v{s+6}, v{s+7}, v{m}""")
            self.xmax(m, 62)
            self.emit(ST_.pop(0))
            for i in range(4): a(f"v_sub_f32 v{vNM+4*qt+i}, 0, v{m}")
            for i in range(8): a(f"v_sub_f32 v{s+i}, v{s+i}, v{m}")
        for qt in range(2):
            self.emit(ST_.pop(0))
            for i in range(8): a(self.ex(qt, i))
            a(self.rdla if qt else "s_nop 0")
            for i in range(4): a(self.cv(qt, i))

    def oflag(self, rnd):
        return [x.strip() for x in f"""s_and_b32 s{sT0}, s{sWID}, 0xfc
        s_lshl_b32 s{sT0}, s{sT0}, 13
        s_lshl_b32 s{sT1}, s{sC}, 2
        s_add_u32 s{sT1}, s{sT1}, s{sWAVE}
        s_lshl_b32 s{sT1}, s{sT1}, 7
        s_add_u32 s{sT0}, s{sT0}, s{sT1}
        s_add_u32 s{sT0}, s{sT0}, {2048*rnd}
        v_lshlrev_b32 v4, 13, v1
        v_mov_b32 v60, s{sTK}
        v_mov_b32 v61, s{sTK+1}
        s_mov_b64 exec, 15
        s_waitcnt vmcnt(0)
        buffer_store_dwordx2 v[60:61], v4, {sr(sFL)}, s{sT0} offen {self.P("fsc", "sc1")}
        s_mov_b64 exec, -1""".split("\n")]

    def final(self, it):
        a = self.a
        mf = self.pv(0, 0) + self.pv(1, 0) + self.pv(2, 0)
        f = {i: [] for i in range(27)}
        for i in range(8): f[i].append(self.ex(2, i))
        for i in range(4): f[9 + i].append(self.cv(2, i))
        X = [f"s_mul_i32 s{sT2}, s{sWAVE}, 12288", f"s_mov_b32 s{sT0}, {THR:#x}"]
        for g, x in zip((19, 21, 23, 25), [f"v_rcp_f32 v60, v{vL}", "v_mov_b32 v61, v60", f"v_rcp_f32 v62, v{vL+4}", "v_mov_b32 v63, v62"]): f[g].append(x)
        if it == 0:
            a(f"v_mov_b32 v3, 0\nbuffer_load_dwordx2 v[{vCT}:{vCT+1}], v3, {sr(sDB)}, 0 offen sc1")
            X += [f"s_lshl_b32 s{sT1}, s{sWAVE}, 2", f"s_add_u32 s{sT1}, s{sT1}, {MISC}", f"v_mov_b32 v4, s{sT1}",
                  "v_and_b32 v3, 3, v1", "v_min_u32 v3, 2, v3", "v_lshlrev_b32 v3, 2, v3", f"v_add_u32 v3, {MISC}, v3"]
        else:
            self.await_(above=82, pre=False)
            X = self.pulls(0, 4) + [self.incpr, self.wrpr] + X + [f"s_add_u32 s{sT2}, s{sT2}, 36864"]
        for g in range(8, 27):
            while X and len(f[g]) + any("v_rcp" in x for x in f[g]) < 2: f[g].append(X.pop(0))
        assert not X
        self.weave(mf, f)
        a(f"""v_add_f32 v59, v{vL}, v{vL+4}
        s_mov_b32 s{sT4}, 1""")
    def lcheck(self, n):
        self.a(f"""v_add_f32 v59, v59, v{vL+8}
        v_cmp_nge_f32 vcc, s{sT0}, v59
        s_cmp_lg_u32 s{sREDO}, 0
        s_cbranch_scc1 L_noflag{n}
        s_cmp_eq_u64 vcc, 0
        s_cselect_b32 s{sT4}, 1, {1 if self.o.get("noatt") else 2}
L_noflag{n}:
        v_mov_b32 v2, s{sT4}""")
    def pack(self, qt, dst, after=lambda ks: []):
        r = (60, 62, 60)[qt]; L = []
        if qt == 2: L += [f"v_rcp_f32 v60, v{vL+8}", "s_nop 0", "v_mov_b32 v61, v60"]
        for ks in range(4):
            b = Oa(qt, 2 * ks)
            L += [f"v_pk_mul_f32 v[{b+2*i}:{b+2*i+1}], v[{b+2*i}:{b+2*i+1}], v[{r}:{r+1}]" for i in range(4)]
            L += [f"v_cvt_pk_bf16_f32 v{dst+4*ks+i}, v{b+2*i}, v{b+2*i+1}" for i in range(4)] + after(ks)
        return L

    def attention(self):
        a = self.a
        a("L_attn:")
        a(f"s_lshl_b32 s{sXS}, s{sXS}, 7")
        xadv = [f"s_add_u32 s{sXS}, s{sXS}, 128", f"s_cmp_eq_u32 s{sXS}, 1024", f"s_cselect_b32 s{sXS}, 128, s{sXS}"]
        xd = [self.dma(vDXq + i, sEA, sXS, i * 1024, self.P("cpol")) for i in range(4)] + [self.dma(vDXq + i, sEA, sT1, i * 1024, self.P("cpol")) for i in range(2)]
        a(f"""v_lshlrev_b32 v{vL16}, 4, v1
        s_add_u32 s{sT0}, s{sXM}, {QP[1]}""")
        self.emit(self.xpat(59, 60, vQB, vQB + 1, f"s{sT0}") + self.wpat(59, 60, vQB + 2, vQB + 3, QP[1] + 18432))
        for i in range(4): a(f"v_add_u32 v{vQB+4+i}, {2*PB}, v{vQB+i}")
        a(f"""s_lshl_b32 s{sT0}, s{sWAVE}, 8
        s_add_u32 s{sT0}, s{sT0}, {PROG}
        v_lshl_add_u32 v{vPA}, v1, 2, s{sT0}
        v_mov_b32 v{vLA}, {LAND}
        v_mov_b32 v{vPR}, 0""")
        X1 = [f"s_add_u32 m0, s{sXM}, {QC[1]}", f"s_add_u32 s{sT1}, s{sXS}, 32768"] + xd[:4] + [f"s_add_u32 m0, s{sXM}, {QC[1] + 4096}", xadv[0]] + xd[4:] + xadv[1:]
        x1at = self.o.get("x1at", 2)
        if x1at == 1: self.emit(X1)
        self.emit(self.common_srds())
        a(f"s_mul_i32 s{sT0}, s{sWID}, 73728\ns_add_u32 s{sT0}, s{sT0}, {O_OFF}")
        self.emit(self.srd(sO, 18, f"s{sT0}", 73728) + self.srd(sDB, 16, 0, 256))
        a(f"""v_and_b32 v59, 1, v3
        v_lshlrev_b32 v59, 1, v59
        v_xor_b32 v59, v59, v2
        v_lshlrev_b32 v59, 4, v59
        v_lshl_add_u32 v{vRKb}, v3, 10, v59
        v_lshl_add_u32 v{vRKb}, v4, 6, v{vRKb}
        v_lshlrev_b32 v59, 10, v2
        v_lshl_add_u32 v59, v3, 6, v59
        v_lshl_add_u32 v59, v4, 3, v59
        v_add_u32 v59, 8192, v59
        v_and_b32 v60, 1, v2
        v_lshl_add_u32 v{vRV0b}, v60, 5, v59
        v_xor_b32 v60, 1, v60
        v_lshl_add_u32 v{vRV1b}, v60, 5, v59
        v_mov_b32 v{vONE}, 0x3f803f80
        v_mov_b32 v{vONE+1}, 0x3f803f80
        v_mov_b32 v{vONE+2}, 0x3f803f80
        v_mov_b32 v{vONE+3}, 0x3f803f80
        v_mov_b32 v{vMS}, 0xff800000
        v_mov_b32 v{vMS+1}, 0xff800000
        v_mov_b32 v{vMS+2}, 0xff800000
        v_mov_b32 v62, s{sCS}
        v_mov_b32 v63, s{sCS}
        s_mov_b32 s{sSL}, 0
        s_or_b32 s{sT0}, s2, s{sWAVE}
        s_cselect_b32 s{sTGT}, 64, 0
        s_mov_b32 s{sOS}, {OOB:#x}""")
        self.emit(self.slotregs())
        self.stamp("iss")
        a("s_barrier")
        self.stamp("bar")
        if x1at == 2: self.emit(X1)
        def qreads(k):
            q = QC[(k >> 1) % 3]; r = 0 if q < QP[3] else 4; ox = q - (QP[3] if r else QP[1])
            o = ox + (k & 1) * 8192; F = aQF + 44 * (k & 1); L = []
            for t in range(8):
                L.append(f"ds_read_b64_tr_b16 {ar(F+4*t,2)}, v{vQB+r+2} offset:{o+(t>>1)*256+8*(t&1)}")
                L.append(f"ds_read_b64_tr_b16 {ar(F+4*t+2,2)}, v{vQB+r+3} offset:{o+(t>>1)*256+8*(t&1)}")
            return L[:2] + [f"ds_read_b128 {ar(F+32+4*qt)}, v{vQB+r+(k&1)} offset:{ox+qt*2048}" for qt in range(3)] + L[2:]
        def qmf(k):
            F = aQF + 44 * (k & 1)
            return [f"{MF} {vr(Oa(qt,t))}, {ar(F+4*t)}, {ar(F+32+4*qt)}, {vr(Oa(qt,t)) if k else 0}" for t in range(8) for qt in range(3)] if k >= 0 else []
        XL = self.o.get("xl", 1); xs = {k: [] for k in range(16)}
        for p in range(2, 8):
            for i in range(6): xs[max(0, 2 * (p - 2) + (i // 3 if XL < 2 else 0) - min(XL, 1))].append((p, i))
        order = [(1, i) for i in range(6)]
        a(f"{self.rdla}\ns_waitcnt vmcnt(6) lgkmcnt(0)\n{self.cmpla}")
        self.await_(pre=False)
        qa = self.o.get("q0a", 0)
        for k in range(16):
            self.stamp(f"c{k}")
            R = qreads(k); f = {i: [] for i in range(24)}
            for g, n in ((0, 2), (1, 2), (2, 2), (3, 1), (4, 1), (5, 1), (6, 1), (7, 1), (8, 1), (10, 2), (11, 1), (12, 1), (14, 2), (15, 1)):
                f[g] += [R.pop(0) for _ in range(n)]
            f[15].append(self.incpr); f[16] += [self.wrpr]; f[12].append(self.rdla)
            if any(p == (k >> 1) + 3 for p, i in xs[k]): f[8].append("s_waitcnt lgkmcnt(7)")
            dg = [9, 13, 17, 18, 19, 21]; sg = [3, 4, 5, 6, 7]
            for n, (p, i) in enumerate(xs[k]):
                g = dg[n]; pre = []
                if i == 0: pre = [f"s_add_u32 m0, s{sXM}, {QC[p % 3]}", f"s_add_u32 s{sT1}, s{sXS}, 32768"]
                if i == 4:
                    pre = [f"s_add_u32 m0, s{sXM}, {QC[p % 3] + 4096}"]
                    if len(xs[k]) > 3: f[23] += xadv
                    else: f[18] += xadv[:1]; f[19] += xadv[1:]
                while pre:
                    if n == 0: f[sg.pop(0)].append(pre.pop(0))
                    else: f[dg[n-1] if dg[n-1] + 1 == g else g - 2 if len(f[g-2]) < 2 else g - 1].append(pre.pop(0))
                f[g].append(xd[i]); order.append((p, i))
            vm = ""
            if k & 1 and k < 15:
                last = max(n for n, (p, i) in enumerate(order) if p == (k >> 1) + 1)
                vm = f"vmcnt({len(order) - 1 - last}) "
            f[20] += [f"s_waitcnt {vm}lgkmcnt(1)", self.cmpla]
            f[22] += self.await_(pre=False, emit=False)
            if qa & 2: f = {i: [x for x in L if "_tr_" not in x] for i, L in f.items()}
            if qa & 4: f = {i: [x for x in L if "ds_read_b128" not in x] for i, L in f.items()}
            if qa & 8: f = {i: [x for x in L if "buffer_" not in x] for i, L in f.items()}
            if k: self.weave(qmf(k - 1) if not qa & 1 else ["s_nop 0"] * 24, f)
            else: self.emit(self.flat([f[i] for i in range(24)]))
        self.stamp("c16")
        C = []
        for ks in range(4):
            for qt in range(3):
                b = Oa(qt, 2 * ks)
                C += [f"v_pk_mul_f32 v[{b+2*i}:{b+2*i+1}], v[{b+2*i}:{b+2*i+1}], v[62:63]" for i in range(4)]
                C += [f"v_cvt_pk_bf16_f32 v{Qf(qt,ks)+i}, v{b+2*i}, v{b+2*i+1}" for i in range(4)]
        K0 = self.kreads(0) + [self.incpr, self.wrpr] + self.nextslot() + self.slotregs() + [self.rdla]
        f = {}
        for g in range(24):
            f[g] = [K0.pop(0) for _ in range(2) if K0]
        self.weave(qmf(15), f)
        self.emit(C)
        self.stamp("q0")
        a(f"s_waitcnt lgkmcnt(0)\n{self.cmpla}")
        self.await_(pre=False)
        self.stamp("k0")
        a("L_item:")
        self.stage0()
        self.cstamp("st0", 0 if self.o.get("sm") in ("s", "c", "p") else 1)
        a(f"s_waitcnt lgkmcnt(0)\n{self.cmpla}")
        self.stage(1, first=True, tail=[f"s_mov_b32 s{sCNT}, 0", f"s_mov_b32 s{sOS}, {OOB:#x}"])
        self.cstamp("st1", 0 if self.o.get("sm") == "p" else 1)
        a(".p2align 3\nL_loop:")
        self.ool += f"""L_init:
        v_mov_b32 v4, 0
        s_cmp_lg_u32 s{sIT}, 0
        s_cbranch_scc1 L_pub0
        s_bitcmp1_b32 s{sTGT}, 5
        s_cbranch_scc1 L_init2
        s_add_u32 s{sTGT}, s{sTGT}, 33
        buffer_load_dwordx2 v[2:3], v4, {sr(sOB)}, 0 offen sc1
        s_branch L_initr
L_init2:
        s_mov_b32 s{sTGT}, 64
        s_waitcnt vmcnt(0)
        v_add_u32 v2, 1, v2
        v_or_b32 v3, 1, v3
        s_mov_b64 exec, 1
        buffer_store_dwordx2 v[2:3], v4, {sr(sOB)}, 0 offen sc1
        buffer_store_dwordx2 v[2:3], v4, {sr(sDB)}, 0 offen sc1
        s_mov_b64 exec, -1
        s_branch L_initr
L_pub0:
        s_mov_b32 s{sTGT}, 64
        s_waitcnt vmcnt(0)
L_cnt:
        v_readfirstlane_b32 s{sTK+1}, v{vCT+1}
        v_readfirstlane_b32 s{sTK}, v{vCT}
        s_cmp_lg_u32 s{sTK+1}, 0
        s_cbranch_scc1 L_cntok""".split("\n") + self.budget("L_cntok") + f"""buffer_load_dwordx2 v[{vCT}:{vCT+1}], v4, {sr(sDB)}, 0 offen sc1
        s_waitcnt vmcnt(0)
        s_branch L_cnt
L_cntok:
        v_mov_b32 v3, {MISC+32}
        ds_write_b64 v3, v[{vCT}:{vCT+1}]""".split("\n") + self.oflag(0) + self.stampl("ofl") + ["s_branch L_initr"]
        self.stage(0, tail=[f"s_xor_b32 s{sT0}, s{sCNT}, s{sTGT}", f"s_and_b32 s{sT0}, s{sT0}, 0x5f"], tail2=["s_cbranch_scc0 L_init", "L_initr:"])
        self.stage(1, tail=[f"s_add_u32 s{sCNT}, s{sCNT}, 1", f"s_cmp_lt_u32 s{sCNT}, 15"])
        a("s_cbranch_scc1 L_loop")
        self.cstamp("fin", 1 if self.o.get("sm") in ("e", "f") else 0)
        a(f"s_cmp_lg_u32 s{sIT}, 0\ns_cbranch_scc1 L_last")
        self.final(0)
        dst = PK
        self.emit(self.pack(0, dst[0]))
        self.lcheck(0)
        self.emit(["ds_write_b32 v4, v2"] + self.pack(1, dst[1]) + [self.rdla, "ds_read_b32 v2, v3"] + self.pack(2, dst[2]))
        self.cstamp("epi", 0)
        a(f"""s_add_u32 s{sT0}, s{sT2}, {HAND1}
        v_add_u32 v4, s{sT0}, v{vL16}
        s_waitcnt lgkmcnt(0)
        {self.cmpla}""")
        self.await_(pre=False)
        a("s_branch L_done1\nL_done:")
        self.emit(self.budget("L_doneok"))
        a(f"""ds_read_b32 v2, v3
        s_waitcnt lgkmcnt(0)
L_done1:
        v_cmp_eq_u32 vcc, 0, v2
        s_cbranch_vccnz L_done
L_doneok:
        v_cmp_eq_u32 vcc, 2, v2
        s_cbranch_vccnz L_redo""")
        self.stamp("it0")
        for qt in range(3):
            for ks in range(4): a(f"ds_read_b128 {vr(Qf(qt,ks))}, v4 offset:{(qt*4+ks)*1024}")
        a(f"""s_mov_b32 s{sIT}, 1
        s_mov_b32 s{sREDO}, 0
        {f"s_add_u32 s{sOS}, s{sT2}, 4096" if not self.o.get("nosh") else ""}
        s_mov_b32 s{sTGT}, 0
        v_mov_b32 v{vMS}, 0xff800000
        v_mov_b32 v{vMS+1}, 0xff800000
        v_mov_b32 v{vMS+2}, 0xff800000""")
        self.emit(self.tail_wregs())
        a(f"""s_waitcnt lgkmcnt(0)
        s_branch L_item
L_last:""")
        self.final(1)
        st = lambda qt: lambda ks: [f"buffer_store_dwordx4 {vr(dst[qt]+4*ks)}, v{vL16}, {sr(sO)}, s{sT2} offen offset:{ks*1024} {self.osc}"]
        self.emit(self.pack(0, dst[0], st(0)) + [f"s_add_u32 s{sT2}, s{sT2}, 4096"])
        self.lcheck(1)
        self.emit(self.pack(1, dst[1], st(1)) + [f"s_add_u32 s{sT2}, s{sT2}, 4096"] + self.pack(2, dst[2], st(2)))
        self.stamp("it1")
        a(f"""s_cmp_eq_u32 s{sT4}, 1
        s_cbranch_scc1 L_ok1
        v_mov_b32 v3, {MISC+16}
        ds_write_b32 v3, v2
L_ok1:""")
        a(self.rdla)
        a(f"s_mul_i32 s{sT0}, s{sWAVE}, 3\ns_lshl_b32 s{sT1}, s{sKQ}, 1\ns_sub_u32 s{sT1}, s{sT0}, s{sT1}")
        for qt in range(3):
            a(f"""s_add_u32 s{sT2}, s{sT1}, {qt+6}
            s_and_b32 s{sT2}, s{sT2}, 7""")
            if qt == 2: a(f"s_cmp_eq_u32 s{sWAVE}, 2\ns_cselect_b32 s{sT2}, 8, s{sT2}")
            a(f"""s_lshl_b32 s{sT2}, s{sT2}, 12
            s_add_u32 s{sT2}, s{sT2}, {OWN}
            v_add_u32 v{30+qt}, s{sT2}, v{vL16}""")
        a("s_waitcnt lgkmcnt(0)")
        self.await_(above=85, pre=False)
        self.emit(self.pulls(4, 16))
        a(f"""s_cmp_eq_u32 s{sWAVE}, 1
        s_cselect_b32 s{sT0}, {HB[1][0] - HB[0][0]}, 0
        s_cmp_eq_u32 s{sWAVE}, 2
        s_cselect_b32 s{sT1}, {HB[2][1] - HB[0][1]}, s{sT0}
        s_cselect_b32 s{sT0}, {HB[2][0] - HB[0][0]}, s{sT0}
        s_add_u32 s{sT0}, s{sT0}, {HB[0][0]}
        s_add_u32 s{sT1}, s{sT1}, {HB[0][1]}
        v_add_u32 v19, s{sT0}, v{vL16}
        v_add_u32 v20, s{sT1}, v{vL16}""")
        self.emit(self.tail_early() + self.tail_src())
        self.b1("L_redo")
        for f in range(18): a(f"ds_read_b128 {vr(vTA+4*f)}, v{19 if f < 10 else 20} offset:{(f % 10)*1024}")
        for qt in range(3):
            for ks in range(4): a(f"ds_write_b128 v{30+qt}, {vr(dst[qt]+4*ks)} offset:{ks*1024}")
        self.emit(self.oflag(1))
        self.stamp("ack")
        a("s_branch L_tail")
        a(f"""L_redo:
        s_waitcnt vmcnt(0)
        s_barrier
        v_mov_b32 v2, 0
        v_lshlrev_b32 v3, 2, v1
        v_add_u32 v3, {MISC}, v3
        ds_write_b32 v3, v2
        s_lshl_b32 s{sT0}, s{sIT}, 5
        s_add_u32 s{sT0}, s{sT0}, 16
        v_mov_b32 v{vPR}, s{sT0}
        v_mov_b32 v{vRK}, v{vRKb}
        {self.wrpr}
        s_mov_b32 s{sCNT}, 0
        s_mov_b32 s{sREDO}, 1
        v_mov_b32 v{vMS}, 0xff800000
        v_mov_b32 v{vMS+1}, 0xff800000
        v_mov_b32 v{vMS+2}, 0xff800000
L_mloop:
        s_barrier""")
        self.emit(self.kreads(0))
        a("s_waitcnt lgkmcnt(0)\ns_barrier")
        self.emit(self.qk(0, 0, True) + self.qk(1, 0, True) + self.qk(2, 0, True))
        a("s_nop 7")
        for qt in range(3):
            s = S(qt); m = vMS + qt
            for i in range(4): a(f"v_max3_f32 v{m}, v{s+2*i}, v{s+2*i+1}, v{m}")
        a(f"""s_add_u32 s{sCNT}, s{sCNT}, 1
        s_cmp_lt_u32 s{sCNT}, 32
        s_cbranch_scc1 L_mloop
        s_lshl_b32 s{sSL}, s{sIT}, 16""")
        self.emit(self.slotregs())
        self.await_()
        self.emit(self.kreads(0) + [self.incpr, self.wrpr] + self.nextslot() + self.slotregs())
        self.await_()
        a("s_branch L_item")
    def cstamp(self, name, it):
        if self.o.get("stamps"):
            l = self.lab("cs")
            self.a(f"s_cmp_lg_u32 s{sIT}, {it}\ns_cbranch_scc1 {l}")
            self.stamp(name)
            self.a(l + ":")
    def stampq(self):
        if self.o.get("stamps"):
            self.a(f"s_cmp_lg_u32 s{sCNT}, 1\ns_cbranch_scc1 L_nost1")
            self.stamp("c2")
            self.a(f"L_nost1:\ns_cmp_lg_u32 s{sCNT}, 4\ns_cbranch_scc1 L_nost2")
            self.stamp("c8")
            self.a(f"L_nost2:\ns_cmp_lg_u32 s{sCNT}, 2\ns_cbranch_scc1 L_nost3")
            self.stamp("c4")
            self.a(f"L_nost3:\ns_cmp_lg_u32 s{sCNT}, 6\ns_cbranch_scc1 L_nost4")
            self.stamp("c12")
            self.a("L_nost4:")
    def b1(self, lab):
        self.a(f"""s_waitcnt lgkmcnt(0)
        s_barrier
        v_mov_b32 v4, {MISC+16}
        ds_read_b32 v4, v4
        s_waitcnt lgkmcnt(0)
        v_cmp_ne_u32 vcc, 0, v4
        s_cbranch_vccnz {lab}""")
        self.stamp("b1")

    def q_push(self, L, tag):
        self.q += [tag] * sum(map(isvm, L))
        return L
    def q_wait(self, loc, tag, part=0):
        if self.dry:
            idx = [i for i, t in enumerate(self.q) if (t in tag if isinstance(tag, list) else t == tag)]
            n = len(self.q) - 1 - idx[-1] if idx else 63
            if part:
                idx = [i for i, t in enumerate(self.q) if t == ("g", tag[1] + 1)]
                n = len(self.q) - 1 - idx[part - 1]
            self.cnt[loc] = min(self.cnt.get(loc, 63), n)
            return []
        return [f"s_waitcnt vmcnt({self.cnt[loc]})"]
    def pub_abs(self, val):
        self.pub = val
        return [f"v_mov_b32 v{vPB}, {val}", f"ds_write_b32 v{vLA}, v{vPB}"]
    def pub_inc(self, val):
        if self.dry: assert self.pub is None or val == self.pub + 1, (val, self.pub)
        self.pub = val
        if not self.o.get("gate", 1): return [f"v_add_u32 v{vPB}, 1, v{vPB}", f"ds_write_b32 v{vLA}, v{vPB}"]
        return [f"v_readfirstlane_b32 s{sPX}, v{vPV}", f"s_add_u32 s{sLD}, s{sLD}, 1", f"s_lshl4_add_u32 s{sPX}, s{sPX}, {self.o.get('clip', 32)}",
                f"s_min_u32 s{sAL}, s{sAL}, s{sPX}", f"s_add_u32 s{sAL}, s{sAL}, s{sRT}", f"s_lshr_b32 s{sPX}, s{sAL}, 4", f"s_min_u32 s{sPX}, s{sPX}, s{sLD}",
                f"v_mov_b32 v{vPB}, s{sPX}", f"ds_write_b32 v{vLA}, v{vPB}"]
    rdpr = f"ds_read_b32 v{vPV}, v{vPA}"
    def pcheck(self, need, redo=False):
        if self.dry: return []
        l = self.lab("pc")
        o = [f"{l}:"] + self.budget(l + "r")
        if redo: o += [f"v_and_b32 v30, 3, v1", f"v_lshlrev_b32 v30, 2, v30", f"v_add_u32 v30, {MISC}, v30", "ds_read_b32 v30, v30"]
        o += [self.rdpr, "s_waitcnt lgkmcnt(0)"]
        if redo: o += ["v_cmp_eq_u32 vcc, 2, v30", "s_cbranch_vccnz L_hredo"]
        o += [f"v_cmp_gt_u32 vcc, {need}, v{vPV}", f"s_cbranch_vccnz {l}", f"s_branch {l}r"]
        self.ool += o
        return ["s_waitcnt lgkmcnt(0)", f"v_cmp_gt_u32 vcc, {need}, v{vPV}", f"s_cbranch_vccnz {l}", f"{l}r:"]
    def kv_m0(self, j): return f"s_add_u32 m0, s{sSL}, {j*4096}"
    def kv_so(self, j): return f"s_add_u32 s{sT0}, s{sOFF}, {j*4096}" if j < 2 else f"s_sub_u32 s{sT0}, s{sOFF}, {16384 - j*4096}"
    def kv_d(self, j): return [self.dma(vKV + (i & 1), sK if j < 2 else sV, sT0, i * 1024, self.pol) for i in range(4)]
    def kv_adv(self): return [f"s_add_u32 s{sOFF}, s{sOFF}, {0 if self.o.get('kvfix') else 8192}", f"s_add_u32 s{sB}, s{sB}, 1"] + self.nextslot()
    def position(self, loc, cg=None, tag=None, pre=[], fill=None, check=True, late=[], fill2=None, pace=True):
        G = self.G; j = G & 3; nj = (G + 1) & 3
        if G in (4, 8, 12, 16, 128, 136, 144) and (G < 20 or loc[0] in ("f0", ("pl", 34), ("pl", 36))): self.stamp(f"G{G}")
        g = [[] for _ in range(12)]
        g[0] += pre
        D = self.q_push(self.kv_d(j), ("g", G))
        for i in range(4): g[i].append(D[i])
        small = self.kv_adv() if j == 3 else []
        if cg:
            if cg[0]: g[3].append(cg[0])
            for i, x in enumerate(self.q_push(cg[1], tag)): g[4 + i].append(x)
        self.G += 1
        at = [0, 1, 2, 5, 5]
        for x in small: g[at.pop(0)].append(x)
        g[6].append(self.kv_so(nj))
        if nj == 0 and check: g[8].append(self.rdpr)
        if nj == 0 and check and self.o.get("tl"): g[8].append(f"s_memrealtime s[{sSTAMP+2}:{sSTAMP+3}]")
        g[8].append(self.kv_m0(nj))
        g[8] += late
        gd = G - self.D; gate = []
        if gd >= 0 and pace:
            g[9] += self.q_wait(loc, ("g", gd), self.o.get("dx", 0) if G >= 128 and G < 164 and "dt" not in self.o or G < 128 or G >= 164 else self.o["dt"])
            v = 17 + (gd >> 2)
            if G < 20 and self.pubok and 16 + ((gd + 1) >> 2) > self.pub:
                P = self.pub_abs(16 + ((gd + 1) >> 2)); g[9].append(P[0]); g[10].append(P[1])
            elif gd & 3 == 3 and self.pubok and G >= 20:
                P = self.pub_inc(v)
                gate = P[:-2]
                g[9].append(P[-2]); g[10].append(P[-1])
        if nj == 0 and check: g[11] += self.pcheck(f"s{sB}" if check in (True, "redo") else check, redo=check == "redo") + ([f"v_cmpx_eq_u32 vcc, s{sB}, v15", f"v_mov_b32 v18, s{sSTAMP+2}", "s_mov_b64 exec, -1"] if self.o.get("tl") else [])
        for fill in (fill, fill2):
            for i in range(11 if nj == 0 and check else 12):
                while fill and len(g[i]) < 2:
                    x = fill.pop(0)
                    if x.startswith("ds_") and g[i] and not g[i][0].startswith(("ds_", "buffer_", "s_waitcnt")): g[i].insert(0, x)
                    else: g[i].append(x)
        for i, x in zip((0, 1, 2, 4, 5, 6, 7), gate): g[i].append(x)
        return g
    def flat(self, G):
        L = []
        for x in (x for g in G for x in g):
            if isvm(x) and L and " m0," in L[-1]: L.append("s_nop 0")
            L.append(x)
        return L + (["s_nop 0"] if L and " m0," in L[-1] else [])
    def plain(self, loc, extra=[], check=True, cg=None):
        n = len(extra)
        for j in range(4):
            self.emit(self.flat(self.position((loc, j), (None, cg) if cg and j == 1 else None, "pf", check=check, late=extra[j * n // 4:(j + 1) * n // 4])))
    def chunk_addr(self, h):
        a_ = sXA + h
        L = [f"s_add_u32 s{sT4}, s{sROT}, s{sKS}", f"s_bfe_u32 s{sT3}, s{sT4}, 0x20002", f"s_and_b32 s{sT4}, s{sT4}, 3"]
        if h == 0: L += [f"s_mul_i32 s{sXB}, s{sT3}, s{sP1}", f"s_mul_i32 s{sT1}, s{sT4}, s{sP2}", f"s_add_u32 s{sXB}, s{sXB}, s{sT1}"]
        L += [f"s_mul_i32 s{a_}, s{sT3}, s{sP3}", f"s_mul_i32 s{sT1}, s{sT4}, s{sP4}", f"s_add_u32 s{a_}, s{a_}, s{sT1}",
              f"s_add_u32 s{a_}, s{a_}, s{sP5}", f"s_add_u32 s{sKS}, s{sKS}, 1"]
        if self.o.get("noeng", 0) & 1 and h == 0: L.append(f"s_mov_b32 s{sXB}, {OOB:#x}")
        if self.o.get("noeng", 0) & 2: L.append(f"s_mov_b32 s{a_}, {OOB:#x}")
        return L
    def bgroups(self, base, so, pol):
        return [(f"s_mov_b32 m0, {base + gi*4096}", [self.dma(vDX + i, sEB, so, i * 1024, pol) for i in range(4 if gi < 4 else 2)]) for gi in range(5)]
    def bgroup(self, gi):
        return self.bgroups(CBX, sXB + 1, self.P("bpol"))[gi], [f"s_add_u32 s{sXB+1}, s{sXB}, s{sG[gi]}"]
    def agroups(self, m0, so, pol, so1=None):
        return [(m0(h), [self.dma(vDW + i, sEA, so1 if h and so1 else so, i * 1024, pol) for i in range(4)]) for h in range(2)]
    poll0 = f"buffer_load_dwordx2 v[{vFV}:{vFV+1}], v{vFA}, {sr(sFL)}, s{sT2} offen sc1"
    def hacc(self, t, qt):
        return ar(aHACC + 36 * t + 4 * qt) if t < 2 else vr(vHACC + 36 * (t - 2) + 4 * qt)
    def areads(self, p):
        F = aHF + 68 * p; L = []
        for t in range(8):
            L.append(f"ds_read_b64_tr_b16 {ar(F+4*t,2)}, v{vW0} offset:{p*8192+(t>>1)*256+8*(t&1)}")
            L.append(f"ds_read_b64_tr_b16 {ar(F+4*t+2,2)}, v{vW1} offset:{p*8192+(t>>1)*256+8*(t&1)}")
        return L
    def breads(self, qts):
        return [f"ds_read_b128 {ar((aB2 if e else aHF+32)+4*qt)}, v{vXR1 if e else vXR} offset:{qt*2048}" for qt in qts for e in range(2)]
    def hmf(self, p):
        F = aHF + 68 * p
        return [f"{MF} {self.hacc(t,qt)}, {ar(F+4*t)}, {ar(F+32+4*qt)}, {self.hacc(t,qt)}" for t in range(8) for qt in range(9)]
    def half(self, loc, k, tail=[]):
        h = k & 1
        self.e("s_waitcnt lgkmcnt(0)")
        if loc == "b0" and self.o.get("sm") in ("g", "s", "r", "e", "p", "o", "k", "l") and not self.dry:
            self.e(f"s_lshl_b32 s{sT4}, s{sIT}, 4\ns_add_u32 s{sT4}, s{sT4}, s{sCNT}")
            for ph in range(2):
                for n in (0, 3, 6):
                    self.e(f"s_cmp_lg_u32 s{sT4}, {16*ph+n}\ns_cbranch_scc1 L_gs{ph}{n}")
                    self.stamp(f"g{ph}{n}")
                    self.e(f"L_gs{ph}{n}:")
        G = [None] * 6; T = [None] * 6; X = [[] for _ in range(6)]
        if k < 16:
            A_ = self.agroups(lambda x: f"s_mov_b32 m0, {CBW + h*8192 + x*4096}", sXA + h, self.P("apol"), sT4)
            for x, p in enumerate((2, 4) if h == 0 else (0, 2)):
                G[p] = A_[x]; T[p] = ("ca", self.ph, k)
                if x: X[p] = [f"s_add_u32 s{sT4}, s{sXA+h}, s{sP6}"]
            for p, gi in ((0, 2), (1, 3), (3, 4)) if h == 0 else ((4, 0), (5, 1)):
                G[p], X[p] = self.bgroup(gi); T[p] = ("xa" if gi < 3 else "xb", self.ph, (k + 1) >> 1)
            if h == 0: G[3] = (G[3][0], G[3][1] + [self.poll0])
        F = self.chunk_addr(1 - h) if k < 16 else []
        F2 = [f"v_accvgpr_mov_b32 a{aHF+68+32+i}, a{aB2+i}" for i in range(36)] if h == 0 and k >= 2 else []
        gaps = []
        for p in range(6):
            pre = X[p]; late = []
            if p == 2: assert not F
            if h and k < 16 and p in (2, 3):
                t = "xa" if p == 2 else "xb"
                pre += self.q_wait((loc, t), (t, self.ph, k >> 1)); F += self.breads(range(6) if p == 2 else range(6, 9))
            if p == 4 and 1 <= k <= 16:
                assert not F
                if h:
                    l = "L_fw" + loc
                    C = [f"v_cmp_ne_u64 vcc, s[{sTK}:{sTK+1}], v[{vFV}:{vFV+1}]", "s_nop 1", f"v_cndmask_b32 v30, 64, v{vORD}, vcc", f"v_cmp_gt_u32 vcc, s{sKS}, v30", f"s_cbranch_vccnz {l}"]
                    if not self.dry: self.ool += [l + ":"] + self.budget(l + "r") + [self.poll0, "s_waitcnt vmcnt(0)"] + C + [f"s_branch {l}r"]
                    gaps[-2] += self.q_wait((loc, "pw"), ("poll", self.ph, k - 1)) + C[:1] + (["s_nop 0"] if k < 2 or self.o.get("nomf") else [])
                    gaps[-1] += ["s_waitcnt lgkmcnt(0)"] + C[2:] + [l + "r:"]
                pre += self.q_wait((loc, "r"), ("ca", self.ph, k - 1)); F += self.areads(1 - h)
            if loc in ("p0", "p1") and self.o.get("sm") in ("p", "o") and self.o.get("stamps") and not self.dry and f"{loc}{p}" in self.STM["p"]:
                i = self.STM["p"].split().index(f"{loc}{p}"); l = self.lab("hs")
                pre = [f"s_cmp_lg_u32 s{sIT}, {int(self.o['sm'] == 'o')}", f"s_cbranch_scc1 {l}", f"{'s_memtime' if self.o['stamps'] == 2 else 's_memrealtime'} s[{sSTAMP+2*i}:{sSTAMP+2*i+1}]", l + ":"] + pre
            gaps += self.position((loc, p), G[p], T[p], pre, F, late=late, fill2=F2)
            if h == 0 and p == 3 and k < 16: self.q[-1] = ("poll", self.ph, k)
        gaps[-2] += F + F2
        gaps[-1] += tail
        if k >= 2 and not self.o.get("nomf"): self.weave(self.hmf(h), dict(enumerate(gaps)))
        else: self.emit(self.flat(gaps))
    def engine(self):
        self.e(f"L_eng:\ns_mov_b32 s{sKS}, 0\ns_lshl_b32 s{sT2}, s{sWID}, 13")
        self.emit(self.chunk_addr(0))
        for gi in range(2):
            (m0, D), X = self.bgroup(gi)
            self.emit([m0] + X + self.q_push(D, ("xa", self.ph, 0)))
        self.e(self.kv_m0(0))
        self.half("p0", 0)
        self.half("p1", 1, tail=[f"s_mov_b32 s{sCNT}, 0"])
        self.e(".p2align 3\nL_eloop:")
        for it in range(7 if self.dry else 1):
            self.half("b0", 2 + 2 * it)
            self.half("b1", 3 + 2 * it, tail=[f"s_add_u32 s{sCNT}, s{sCNT}, 1", f"s_cmp_lt_u32 s{sCNT}, 7"])
        self.e("s_cbranch_scc1 L_eloop")
        if not self.dry: self.G += 72; self.pub = None
        if self.ph == 0:
            self.e(f"s_cmp_lg_u32 s{sIT}, 0\ns_cbranch_scc1 L_wph")
            self.half("e0", 16)
            self.half("e1", 17)

    def helper(self):
        D = self.D
        self.q = []; self.G = 0; self.pubok = False; self.ph = 0; self.pub = 0
        e = self.e
        def q0w(c):
            ad = [f"s_add_u32 s{sT3}, s{sT3}, {1 << 19}", f"s_cmp_eq_u32 s{sT3}, {8 << 19}", f"s_cselect_b32 s{sT3}, {1 << 19}, s{sT3}"] if c > 2 and not c & 1 else []
            G = self.agroups(lambda x: f"s_mov_b32 m0, {QC[(c >> 1) % 3] + 18432 + (c & 1)*8192 + x*4096}", sT4, self.P("cpol"))
            return [(("w", c), (ad if x == 0 else []) + [G[x][0], f"s_add_u32 s{sT4}, s{sT3}, {((c & 1) << 18) + x*131072}"] + G[x][1]) for x in range(2)]
        self.q += [("w", 0)] * 6
        self.emit(self.q_push([self.dma(vDW + i, sEA, sT1, i * 1024, self.P("cpol")) for i in (2, 3)], ("w", 0)) + [f"s_mov_b32 s{sT3}, 0"])
        for t, g in q0w(1): self.emit(self.q_push(g, t))
        e(f"""s_lshl_b32 s{sT3}, s{sXS}, 19
        s_mov_b32 s{sP6}, 131072
        v_lshlrev_b32 v{vL16}, 4, v1
        v_mov_b32 v248, 0
        v_mov_b32 v249, 0
        v_mov_b32 v250, 0
        v_mov_b32 v251, 0
        v_add_u32 v30, {SYNC+256}, v{vL16}
        v_lshlrev_b32 v{vLA}, 2, v1
        v_add_u32 v{vLA}, {LAND}, v{vLA}
        ds_write_b128 v30, v[248:251]
        ds_write_b32 v{vLA}, v248""")
        e(f"s_lshl_b32 s{sT0}, s{sWID}, 19")
        if self.o.get("kvr"):
            e(f"""s_mul_i32 s{sT1}, s2, {self.o["kvr"]}
            s_lshr_b32 s{sT1}, s{sT1}, {self.o.get("kvs", 0)}
            s_and_b32 s{sT1}, s{sT1}, 31
            s_lshl_b32 s{sT1}, s{sT1}, 13
            s_cmp_eq_u32 s{sWID}, 255
            s_cselect_b32 s{sT1}, 0, s{sT1}
            s_add_u32 s{sT0}, s{sT0}, s{sT1}""")
        self.emit(self.srd(sK, 6, f"s{sT0}", 524288) + self.srd(sV, 8, f"s{sT0}", 524288))
        e(f"""v_lshlrev_b32 v30, 8, v3
        v_lshl_add_u32 v30, v2, 6, v30
        v_xor_b32 v31, 2, v4
        v_min_u32 v{vPA}, 2, v4
        v_lshl_add_u32 v{vKV+1}, v31, 4, v30
        v_lshl_add_u32 v{vKV}, v4, 4, v30
        v_lshlrev_b32 v{vPA}, 8, v{vPA}
        v_add_u32 v{vPA}, {PROG}, v{vPA}
        s_mov_b32 s{sOFF}, 0
        s_mov_b32 s{sSL}, 0
        s_mov_b32 s{sB}, 10
        v_mov_b32 v{vORD}, 64
        {"v_cmp_gt_u32 vcc, 12, v1" if self.o.get("tl") else ""}
        {"v_add_u32 v15, 64, v1" if self.o.get("tl") else ""}
        {"s_nop 0" if self.o.get("tl") else ""}
        {"v_cndmask_b32 v15, v1, v15, vcc" if self.o.get("tl") else ""}
        {["s_mov_b32 s%d, 0" % sROT, "", "s_lshl_b32 s%d, s%d, 2" % (sROT, sC), "s_lshl_b32 s%d, s%d, 1" % (sROT, sBB)][self.o.get("er", 0)]}""")
        setup = [f"s_mul_i32 s{sT0}, s{sBB}, 147456"] + self.srd(sEB, 4, f"s{sT0}", 147456) + self.xsrc(30, 31, vDX) + \
                [f"s_mov_b32 s{sP1}, 256", f"s_mov_b32 s{sP2}, 64", f"s_mov_b32 s{sP3}, {1 << 20}", f"s_mov_b32 s{sP4}, {1 << 18}"] + self.common_srds() + self.xpat(30, 31, vXR, vXR1, CBX) + self.wpat(30, 31, vW0, vW1, CBW) + \
                [f"v_mov_b32 v{vSC}, s{sCS}", f"v_mov_b32 v{vSC+1}, s{sCS}", "v_and_b32 v30, 3, v1", "v_min_u32 v30, 2, v30", "v_and_b32 v31, 12, v1",
                 "v_add_u32 v30, v30, v31", f"v_lshlrev_b32 v{vFA}, 7, v30"]
        self.emit(setup + [self.kv_m0(0), self.kv_so(0), f"s_mov_b32 s{sP5}, 256"] + [f"s_mov_b32 s{sG[i]}, {i*32768}" for i in range(5)])
        self.stamp("iss")
        e("s_waitcnt lgkmcnt(0)\ns_barrier")
        self.stamp("bar")
        done = [0]
        def q0pub(n):
            while done[0] < min(n, 16):
                c = done[0]
                last = max(i for i, t in enumerate(self.q) if t == ("w", c))
                nb = sum(1 for t in self.q[:last] if t[0] == "g") // 16 if c == 15 else 0
                self.emit(self.q_wait(("q0", c), ("w", c)) + self.pub_abs(c + 1 + nb))
                self.stamp(f"c{c}")
                done[0] += 1
        Z = [f"v_accvgpr_write_b32 a{aHACC+i}, 0" for i in range(72)] + [f"v_mov_b32 v{vHACC+i}, 0" for i in range(216)]
        LAG = self.o.get("lag", 3); KN_ = self.o.get("kn", 10)
        q0pub(1)
        for c in range(2, 16):
            if c >= 6:
                assert done[0] >= c - 5
                self.emit([self.rdpr] + self.pcheck(c - 5))
            for t, g in q0w(c): self.emit(self.q_push(g, t))
            for i in range(self.KG if c >= self.KS else 0):
                if self.G < KN_: self.emit(([] if i else [self.kv_m0(self.G & 3), "s_nop 0"]) + self.flat(self.position(("q0p", self.G), check=False, pace=False)))
            q0pub(2 if c == 2 else c - LAG + 1)
            if c >= 6 and not self.o.get("zp"): self.emit(Z[(c - 6) * 29:(c - 5) * 29])
        self.stamp("c15i")
        q0pub(self.o.get("pb", 14))
        self.emit([self.kv_m0(self.G & 3), "s_nop 0"])
        if self.G == 12: self.emit([self.rdpr] + self.pcheck(12))
        while self.G < 20:
            n = self.G - 12
            self.emit(self.flat(self.position(("q0p", self.G), check=12 if self.G == 11 else False, late=Z[n * 36:n * 36 + 36] if n >= 0 and self.o.get("zp") else [])))
            q0pub(done[0] + 1)
            if done[0] == 16 and not self.pubok:
                self.pubok = True; self.stamp("q0")
        assert self.pubok
        self.stamp("G20")
        self.emit([self.rdpr, f"s_mov_b32 s{sLD}, {self.pub}", f"s_mov_b32 s{sAL}, 4096", f"s_mov_b32 s{sRT}, {self.o.get('r0', 18)}"] + self.pcheck(16))
        self.engine()
        assert self.G == 128
        F = [f"v_add_u32 v30, {HAND1}, v{vL16}", "s_nop 3"]
        n = 0
        for ks in (1, 2, 3, 0):
            for qt in range(9):
                if ks:
                    b0 = vHACC + 36 * (2 * ks - 2) + 4 * qt; b1 = b0 + 36
                else:
                    b0 = vHACC + 8 * (qt % 2); b1 = b0 + 4
                    for i in range(4): F += [f"v_accvgpr_read_b32 v{b0+i}, a{aHACC+4*qt+i}", f"v_accvgpr_read_b32 v{b1+i}, a{aHACC+36+4*qt+i}"]
                F += [f"v_pk_mul_f32 v[{b}:{b+1}], v[{b}:{b+1}], v[{vSC}:{vSC+1}]" for b in (b0, b0 + 2, b1, b1 + 2)]
                t = vHT + 4 * (n % 2); n += 1
                F += [f"v_cvt_pk_bf16_f32 v{t+i}, v{b}, v{b+1}" for i, b in enumerate((b0, b0 + 2, b1, b1 + 2))]
                F += [f"ds_write_b128 v30, {vr(t)} offset:{(qt*4+ks)*1024}"]
        assert D >= 1
        NF = self.o.get("nf", 3)
        for m in range(NF): self.plain(f"f{m}", F[m * len(F) // NF:(m + 1) * len(F) // NF])
        SW = [f"s_lshl_b32 s{sT2}, s{sKQ}, 20", f"s_lshl_b32 s{sT3}, s{sC}, 8", f"s_add_u32 s{sT2}, s{sT2}, s{sT3}"] + self.srd(sEA, 12, f"s{sT2}", 1048576) + \
             [f"s_sub_u32 s{sEA+2}, s{sEA+2}, s{sT3}"] + [f"s_mov_b32 s{sEB+i}, s{sOB+i}" for i in range(3)] + \
             [f"s_mov_b32 s{sP1}, 73728", f"s_mov_b32 s{sP2}, 1024", f"s_mov_b32 s{sP3}, {1 << 18}", f"s_mov_b32 s{sP4}, {1 << 15}",
              f"s_mov_b32 s{sP5}, 0", f"s_mov_b32 s{sP6}, 8192", f"v_add_u32 v{vXR}, {CBX}, v{vL16}", f"v_add_u32 v{vXR1}, {CBX + 1024}, v{vL16}",
              "v_bfe_u32 v30, v1, 2, 2", "v_lshlrev_b32 v30, 10, v30", "v_lshrrev_b32 v31, 4, v1", "v_lshl_add_u32 v30, v31, 6, v30",
              "v_and_b32 v31, 3, v1", f"v_lshl_add_u32 v{vDW}, v31, 4, v30", "v_xor_b32 v31, 2, v31", f"v_lshl_add_u32 v{vDW+1}, v31, 4, v30",
              f"v_add_u32 v{vDW+2}, 2048, v{vDW}", f"v_add_u32 v{vDW+3}, 17408, v{vDW+1}", f"v_add_u32 v{vDW+1}, 15360, v{vDW+1}",
              f"s_lshl_b32 s{sROT}, s{sC}, 2", "v_bfe_u32 v30, v1, 2, 2", f"v_subrev_u32 v30, s{sC}, v30", "v_add_u32 v30, 31, v30", "v_and_b32 v30, 3, v30" if self.o.get("ownw") else "v_and_b32 v30, 3, v30",
              f"v_lshlrev_b32 v{vORD}, 2, v30", f"v_add_u32 v{vORD}, 4, v{vORD}"] + ([f"v_and_b32 v{vORD}, 15, v{vORD}"] if self.o.get("ownw") else [])
        SW += [f"s_mov_b32 s{sRT}, {self.o.get('r1', 18)}"]
        if self.o.get("nosh"): SW += [f"s_mov_b32 s{sP5}, {OOB:#x}", f"s_mov_b32 s{sEB+2}, 0"]
        SW += [f"v_add_u32 v{vDX+i}, {O_OFF + (i >> 1)*2048}, v{vL16}" for i in range(4)] + [f"s_mov_b32 s{sG[4]}, 32768"]
        for gi in range(4): SW += [f"s_add_u32 s{sT1}, s{sKQ}, {gi+1}", f"s_and_b32 s{sT1}, s{sT1}, 3", f"s_lshl_b32 s{sG[gi]}, s{sT1}, 13"]
        SW += self.tail_wregs(sT1) + self.tail_src() + Z; nb = 40 - 32 - NF
        pf = self.o.get("pf", 2)
        PF = [f"buffer_load_dword v{vHT}, v{vFV}, {sr(sEA)}, s{sG[i]} offen" for i in range(4)] if pf == 1 else None
        SW = [f"s_lshr_b32 s{sT1}, s2, 3", f"s_lshl_b32 s{sG[0]}, s{sT1}, 15"] + [f"s_add_u32 s{sG[i]}, s{sG[0]}, {i*8192}" for i in range(1, 4)] + [f"v_lshlrev_b32 v{vFV}, 7, v1"] + SW
        for m in range(nb): self.plain(("pl", m + 32 + NF), SW[m * len(SW) // nb:(m + 1) * len(SW) // nb], check="redo" if m == nb - 1 else True, cg=PF if m == 0 else None)
        self.plain(("pl", 40), check=False)
        self.stamp("s0")
        e(f"L_s0:\n{self.rdpr}")
        if self.o.get("gate", 1): e(f"s_max_u32 s{sPX}, s{sPX}, 53\nv_mov_b32 v{vPB}, s{sPX}\nds_write_b32 v{vLA}, v{vPB}")
        self.emit(self.pcheck(53, redo=True))
        e(f"""v_mov_b32 v30, {MISC+32}
        ds_read_b64 v[30:31], v30
        s_mov_b32 s{sIT}, 1
        s_waitcnt lgkmcnt(0)
        v_readfirstlane_b32 s{sTK}, v30
        v_readfirstlane_b32 s{sTK+1}, v31""")
        self.stamp("it0")
        e("s_branch L_eng")
        if self.dry:
            self.ph = 1
            self.engine()
        else:
            self.G += 96; self.pub = None
        assert self.G == 260
        e("L_wph:")
        self.stamp("G260")
        def wblock(p):
            L = []
            for x in range(2):
                G = self.agroups(lambda h: f"s_mov_b32 m0, {WS[p] + x*8192 + h*4096}", sT3, self.P("wpol"), sT4)
                o = (((2 * p + x) & 3) << 15) + 131072
                L += [G[0][0], f"s_add_u32 s{sT3}, s{sH[p >> 1]}, {o}"] + G[0][1] + [G[1][0], f"s_add_u32 s{sT4}, s{sH[p >> 1]}, {o + 8192}"] + G[1][1]
            return self.q_push(L, ("w", p))
        HS = []
        for i in range(4): HS += [f"s_add_u32 s{sT1}, s{sC}, {i}", f"s_and_b32 s{sT1}, s{sT1}, 3", f"s_lshl_b32 s{sH[i]}, s{sT1}, 18"]
        def chk(n): return ["|" + x for x in self.pcheck(n)]
        def pour(mf, L):
            gaps = [[]]; room = 2
            for x in L:
                c = 2 if isvm(x) else 1
                if x.startswith("|"):
                    x = x[1:]
                    if x.startswith("s_waitcnt") and room < 2: gaps.append([])
                    gaps[-1].append(x); room = 0; continue
                if c > room: gaps.append([]); room = 2
                gaps[-1].append(x); room -= c
            assert self.dry or len(gaps) <= len(mf) + self.o.get("over", 20), len(gaps)
            f = dict(enumerate(gaps[:len(mf)]))
            f[len(mf) - 1] = f.get(len(mf) - 1, []) + self.flat(gaps[len(mf):])
            if self.o.get("nomf"): self.emit(self.flat(gaps))
            else: self.weave(mf, f)
        e("s_waitcnt lgkmcnt(0)")
        PF = []
        if pf == 2:
            PF = [f"s_bfe_u32 s{sT3}, s2, 0x30003", f"s_lshr_b32 s{sT4}, s{sT3}, 1", f"s_and_b32 s{sT3}, s{sT3}, 1", f"s_lshl_b32 s{sT4}, s{sT4}, 18", f"s_lshl_b32 s{sT3}, s{sT3}, 16",
                  f"s_add_u32 s{sT3}, s{sT3}, s{sT4}", f"s_add_u32 s{sT3}, s{sT3}, 131072", f"v_lshrrev_b32 v30, 1, v1", f"v_and_b32 v31, 1, v1", "v_lshlrev_b32 v30, 10, v30",
                  "v_lshl_add_u32 v30, v31, 7, v30", f"s_add_u32 s{sT4}, s{sT3}, 32768"] + \
                 self.q_push([f"buffer_load_dword v{vHT}, v30, {sr(sEA)}, s{x} offen" for x in (sT3, sT4)], "pf")
        L = HS[:3] + PF + self.q_wait("w80", ("g", 255)) + self.pub_abs(80) + [self.rdpr] + wblock(0) + chk(76) + wblock(1)
        L += self.q_wait("wca", ("ca", 1, 15)) + self.areads(1) + [f"v_accvgpr_mov_b32 a{aHF+68+32+i}, a{aB2+i}" for i in range(36)] + HS[3:] + [self.rdpr]
        pour(self.hmf(0), L)
        self.emit(self.q_wait("w81", ("g", 259)) + self.pub_abs(81) + ["s_waitcnt lgkmcnt(1)"])
        self.stamp("l81")
        L = chk(78) + wblock(2) + self.q_wait("w83", ("w", 1)) + self.pub_abs(83) + wblock(3) + [self.rdpr] + wblock(7) + chk(79) + wblock(4) + [self.rdpr]
        pour(self.hmf(1), L)
        self.emit(self.pcheck(80) + self.flat([wblock(5)]) + [self.rdpr] + self.pulls(0, 4) + self.pcheck(81) + self.flat([wblock(6)]))
        e("L_wdone:")
        self.stamp("w4")
        HW = [[], []]
        for w in range(3):
            for f in range(18):
                ad = HB[w][f // 10] + (f % 10) * 1024; x = int(ad >= HB[1][0])
                HW[x].append(f"ds_write_b128 v{30+x}, {self.hacc(2*w + f // 9, f % 9)} offset:{ad - (HB[0][0], HB[1][0])[x]}")
        self.emit([f"v_add_u32 v{30+x}, {(HB[0][0], HB[1][0])[x]}, v{vL16}" for x in range(2)] + HW[1] + [self.rdpr, "s_waitcnt vmcnt(0)"] + self.pub_abs(86))
        self.emit(self.pcheck(82) + self.pulls(4, 16) + HW[0] + self.tail_early())
        e(f"""v_bfe_u32 v30, v1, 2, 2
        v_min_u32 v30, 2, v30
        v_add_u32 v30, s{sC}, v30
        v_add_u32 v30, 1, v30
        v_and_b32 v30, 3, v30
        v_and_b32 v31, 3, v1
        v_min_u32 v31, 2, v31
        v_lshl_add_u32 v30, v30, 2, v31
        v_lshlrev_b32 v30, 7, v30
        s_lshl_b32 s{sT3}, s{sWID}, 13""")
        self.stamp("it1")
        if not self.dry: self.b1("L_hredo")
        e("L_poll1:")
        self.emit(self.budget("L_tail"))
        e(f"""buffer_load_dwordx2 v[2:3], v30, {sr(sFL)}, s{sT3} offen offset:2048 sc1
        s_waitcnt vmcnt(0)
        v_cmp_ne_u64 vcc, s[{sTK}:{sTK+1}], v[2:3]
        s_cbranch_vccnz L_poll1
        s_branch L_tail""")
        e(f"""L_hredo:
        s_waitcnt vmcnt(0)
        s_barrier
        s_lshl_b32 s{sB}, s{sIT}, 5
        s_add_u32 s{sB}, s{sB}, 10
        s_add_u32 s{sT0}, s{sB}, {6 - (D + 3) // 4}
        v_mov_b32 v{vPB}, s{sT0}
        s_mov_b32 s{sLD}, s{sT0}
        s_add_u32 s{sT0}, s{sB}, 6
        v_mov_b32 v{vPV}, s{sT0}
        s_lshl_b32 s{sAL}, s{sT0}, 4
        ds_write_b32 v{vLA}, v{vPB}
        s_mov_b32 s{sCNT}, 0
        s_lshl_b32 s{sOFF}, s{sIT}, 18
        s_mov_b32 s{sSL}, 0
L_hmloop:""")
        for j in range(2): self.emit([self.kv_m0(j), self.kv_so(j)] + self.kv_d(j))
        e(f"""s_add_u32 s{sOFF}, s{sOFF}, 8192
        s_waitcnt vmcnt(0) lgkmcnt(0)
        s_barrier
        s_barrier
        s_add_u32 s{sCNT}, s{sCNT}, 1
        s_cmp_lt_u32 s{sCNT}, 32
        s_cbranch_scc1 L_hmloop
        s_lshl_b32 s{sOFF}, s{sIT}, 18
        s_lshl_b32 s{sSL}, s{sIT}, 16
        s_cmp_eq_u32 s{sIT}, 0
        s_cselect_b32 s{sCNT}, {self.S0 + 10}, 75
        {self.kv_m0(0)}
        {self.kv_so(0)}
L_hploop:""")
        self.G = 400; self.q = [("g", g) for g in range(380, 400) for _ in range(4)]; self.pub = None
        self.plain("rp")
        e(f"""s_cmp_lt_u32 s{sB}, s{sCNT}
        s_cbranch_scc1 L_hploop
        s_cmp_eq_u32 s{sIT}, 0
        s_cbranch_scc1 L_s0
        s_waitcnt vmcnt(0)""")
        self.emit(self.pub_abs(81) + [self.rdpr] + self.pcheck(81))
        for p in range(8): self.emit(self.flat([wblock(p)]) + ["s_waitcnt vmcnt(16)"])
        self.emit(["s_waitcnt vmcnt(0)"] + self.pub_abs(83) + self.pulls(0, 4) + ["s_branch L_wdone"])

    def tail_wregs(self, sT0=sT0):
        return [f"s_lshl_b32 s{sT0}, s{sWAVE}, 8"] + self.wpat(250, 251, 252, 253, f"s{sT0}") + [f"v_add_u32 v254, 65536, v252", f"v_add_u32 v255, 65536, v253",
                f"v_add_u32 v250, {CBW}, v252", f"v_add_u32 v251, {CBW}, v253"]
    def pulls(self, n0, n1):
        L = []
        for n in range(n0, n1):
            o = WS[n >> 1] + (n & 1) * 8192
            r, o = (250, o - CBW) if o >= CBW else (252 + 2 * (o >> 16), o & 65535)
            for u in range(2):
                L += [f"ds_read_b64_tr_b16 {ar(aTW+8*n+4*u,2)}, v{r} offset:{o+8*u}", f"ds_read_b64_tr_b16 {ar(aTW+8*n+4*u+2,2)}, v{r+1} offset:{o+8*u}"]
        return L
    def tail_early(self):
        return [f"v_add_u32 v{vTB}, {UB[5]}, v{vL16}", f"v_add_u32 v{vOW}, {OWN}, v{vL16}"]
    def tail_src(self):
        L = []
        for x in range(3):
            L += [f"s_mul_i32 s{sT1}, s{sWAVE}, 3", f"s_add_u32 s{sT1}, s{sT1}, {x+4}", f"s_lshr_b32 s{sT2}, s{sT1}, 2", f"s_add_u32 s{sT2}, s{sT2}, s{sC}",
                  f"s_and_b32 s{sT2}, s{sT2}, 3", f"s_mul_i32 s{sT2}, s{sT2}, 73728", f"s_and_b32 s{sT1}, s{sT1}, 3", f"s_lshl_b32 s{sT1}, s{sT1}, 10",
                  f"s_add_u32 s{sT1}, s{sT1}, s{sT2}", f"s_add_u32 s{sT1}, s{sT1}, {36864 + O_OFF - x*1024}", f"v_add_u32 v{vF[x]}, s{sT1}, v{vL16}"]
        return L
    def tail_regs(self):
        L = []
        for j, s in enumerate((sS0, sS1, sS2)):
            L += [f"s_add_u32 s{sT0}, s{sWID}, {4*(j+1)}", f"s_and_b32 s{sT0}, s{sT0}, 15", f"s_and_b32 s{sT1}, s{sWID}, 0xf0", f"s_add_u32 s{sT0}, s{sT0}, s{sT1}",
                  f"s_mul_i32 s{sT0}, s{sT0}, 36864", f"s_add_u32 s{sT1}, s{sWAVE}, {4*j}", f"s_mul_i32 s{sT1}, s{sT1}, 3072", f"s_add_u32 s{s}, s{sT0}, s{sT1}"]
        L += [f"s_sub_u32 s{sT0}, s{sWAVE}, s{sKQ}", f"s_and_b32 s{sT0}, s{sT0}, 3", f"s_cmp_eq_u32 s{sT0}, 1", f"s_cselect_b32 s{sS8}, s{sS0}, s{sS1}",
              f"s_cmp_eq_u32 s{sT0}, 3", f"s_cselect_b32 s{sS8}, s{sS2}, s{sS8}", f"s_add_u32 s{sS8}, s{sS8}, 2048",
              f"s_cmp_eq_u32 s{sT0}, 0", f"s_cselect_b32 s{sS8}, {OOB:#x}, s{sS8}"]
        L += ["v_bfe_u32 v19, v1, 2, 2", "v_lshrrev_b32 v20, 4, v1", "v_cmp_eq_u32 vcc, v19, v20", "v_and_b32 v19, 1, v1", "v_lshlrev_b32 v19, 4, v19",
              "v_mov_b32 v20, 0x3f80", "v_lshlrev_b32 v19, v19, v20", "v_cndmask_b32 v19, 0, v19, vcc", "v_and_b32 v20, 2, v1", "v_cmp_eq_u32 vcc, 0, v20",
              f"v_mov_b32 v{vSEL+2}, 0", f"v_mov_b32 v{vSEL+3}, 0", f"v_cndmask_b32 v{vSEL}, 0, v19, vcc", f"v_sub_u32 v{vSEL+1}, v19, v{vSEL}",
              f"v_mov_b32 v{vSEL+4}, 0", f"v_mov_b32 v{vSEL+5}, 0", f"v_mov_b32 v{vSEL+6}, v{vSEL}", f"v_mov_b32 v{vSEL+7}, v{vSEL+1}"]
        L += ["v_and_b32 v19, 3, v1", "v_min_u32 v19, 2, v19", f"v_lshlrev_b32 v{vP2}, 7, v19",
              f"v_add_u32 v20, s{sKQ}, v19", "v_add_u32 v20, 1, v20", "v_and_b32 v20, 3, v20", "v_lshlrev_b32 v20, 15, v20", f"v_add_u32 v{vS2}, v20, v{vP2}",
              f"v_add_u32 v{vP2}, 4096, v{vP2}",
              "v_and_b32 v19, 15, v1", "v_lshlrev_b32 v19, 10, v19", "v_lshrrev_b32 v20, 4, v1", "v_lshl_add_u32 v19, v20, 4, v19",
              f"s_lshl_b32 s{sT0}, s{sWAVE}, 6", f"v_add_u32 v{vOUT}, s{sT0}, v19"]
        return L
    def poll(self, name, line0, who=sWAVE):
        self.a(f"""s_lshl_b32 s{sT2}, s{sWID}, 13
        s_lshl_b32 s{sT1}, s{who}, 9
        s_add_u32 s{sT2}, s{sT2}, s{sT1}
{name}:""")
        self.emit(self.budget(name + "ok"))
        self.a(f"""buffer_load_dwordx2 v[2:3], v{vP2}, {sr(sFL)}, s{sT2} offen offset:{line0*128 & 4095} sc1
        s_waitcnt vmcnt(0)
        v_cmp_ne_u64 vcc, s[{sTK}:{sTK+1}], v[2:3]
        s_cbranch_vccnz {name}
{name}ok:""")
    def tail(self):
        a = self.a
        order = (8, 0, 1, 2, 3, 4, 5, 6, 7)
        def fetch(i):
            L = [f"s_add_u32 s{sT2}, s{sT2}, 4096", f"s_and_b32 s{sT2}, s{sT2}, 0x7fff"] if i < 8 else []
            return L + [f"s_add_u32 m0, s{sT4}, {UB[i]}"], [self.dma(vF[x], sOB, sT2 if i < 8 else sT3, x * 1024, self.P("olpol")) for x in range(3)]
        a(f"""L_tail:
        s_mul_i32 s{sT4}, s{sWAVE}, 3072
        s_lshl_b32 s{sT2}, s{sKQ}, 13
        s_add_u32 s{sT2}, s{sT2}, 4096
        s_mov_b32 s{sT3}, 32768""")
        self.stamp("p1")
        U0 = self.o.get("u0", 3)
        self.emit(fetch(8)[0] + ["s_waitcnt lgkmcnt(0)", "s_barrier"] + fetch(8)[1])
        for i in order[1:U0]: self.emit(fetch(i)[0] + ["s_nop 0"] + fetch(i)[1])
        self.stamp("b3")
        steps = [(i, 0) for i in range(9)] + [(i, s) for i in order for s in (1, 2, 3)]
        def rd(j):
            i, s = steps[j]
            r, o = (vOW, i * 4096) if s == 0 else (vL16, UB[i] + (s - 1) * 4096) if i < 5 else (vTB, UB[i] - UB[5] + (s - 1) * 4096)
            return [f"ds_read_b128 {vr(vBF+16*(j&3)+4*k)}, v{r} offset:{o+k*1024}" for k in range(4)]
        acc = lambda u, i: vTA + 36 * u + 4 * i
        def send(i, n):
            t = vRC + 4 * (n & 1)
            so = sS8 if i == 8 else (sS0, sS1, sS2)[i >> 1]
            return [f"v_cvt_pk_bf16_f32 v{t+2*u+x}, v{acc(u,i)+2*x}, v{acc(u,i)+2*x+1}" for u in range(2) for x in range(2)] + \
                   [f"buffer_store_dwordx4 {vr(t)}, v{vL16}, {sr(sPT)}, s{so} offen offset:{0 if i == 8 else (i&1)*1024} {self.P('psc', 'sc1')}"]
        self.emit(rd(0) + rd(1))
        nst = 0; R = self.tail_regs()
        land = {n: 24 - 3 * m for n, m in self.o.get("grp", {0: 0, 1: 2, 3: 4, 5: 6, 7: 8}).items()}
        for j, (i, s) in enumerate(steps):
            nx = j + 2
            if 9 <= nx < 36 and (nx - 9) % 3 == 0 and (nx - 9) // 3 in land:
                a(f"s_waitcnt vmcnt({land[(nx - 9) // 3] + nst})\ns_barrier")
                if nx == 9: self.stamp("d0")
            a(f"s_waitcnt lgkmcnt({4 if j < 35 else 0})")
            mf = [f"{MF} {vr(acc(u,i))}, {ar(aTW+8*(4*s+k)+4*u)}, {vr(vBF+16*(j&3)+4*k)}, {vr(acc(u,i))}" for k in range(4) for u in range(2)]
            f = {}
            if nx < 36:
                for k, x in enumerate(rd(nx)): f[k] = [x]
            if j >= 12 and s == 1 and steps[j - 1][0] not in (6, 7):
                X = send(steps[j - 1][0], nst); nst += 1
                f[4] = X[:2]; f[5] = X[2:4]; f[6] = X[4:]
            if j + U0 < 9:
                X, Y = fetch(order[j + U0])
                for g, x in enumerate(X): f[g].append(x)
                for g, y in enumerate(Y): f[4 + g] = [y]
            for g in range(8):
                f.setdefault(g, [])
                while R and len(f[g]) + sum(map(isvm, f[g])) < 2: f[g].append(R.pop(0))
            self.weave(mf, f)
        assert not R and nst == 7
        self.stamp("mf")
        a(f"""s_and_b32 s{sT0}, s{sWID}, 0xf3
        s_lshl_b32 s{sT0}, s{sT0}, 13
        s_lshl_b32 s{sT1}, s{sWAVE}, 9
        s_add_u32 s{sT0}, s{sT0}, s{sT1}
        s_add_u32 s{sT0}, s{sT0}, 4096
        v_mov_b32 v2, s{sTK}
        v_mov_b32 v3, s{sTK+1}
        s_mov_b64 exec, 7
        s_waitcnt vmcnt(0)
        buffer_store_dwordx2 v[2:3], v{vS2}, {sr(sFL)}, s{sT0} offen sc1
        s_mov_b64 exec, -1""")
        self.poll("L_poll2", 0)
        self.stamp("p2")
        a(f"""s_mul_i32 s{sT0}, s{sWID}, 36864
        s_mul_i32 s{sT1}, s{sWAVE}, 3072
        s_add_u32 s{sT0}, s{sT0}, s{sT1}
        s_lshl_b32 s{sT2}, s{sKQ}, 15
        s_cmp_eq_u32 s{sWAVE}, s{sKQ}
        s_cselect_b32 s{sT3}, 0, {OOB:#x}""")
        for j in range(3):
            if j: a(f"s_add_u32 s{sT0}, s{sT0}, 12288")
            a(f"s_or_b32 s{sT1}, s{sT0}, s{sT3}")
            for u in range(3):
                a(f"buffer_load_dwordx4 {vr(vRC+12*j+4*u)}, v{vL16}, {sr(sPT)}, s{sT1 if u == 2 else sT0} offen offset:{u*1024} {self.P('plpol', 'sc1')}")
        for j in range(3):
            a(f"s_waitcnt vmcnt({6-3*j})")
            for u, i in enumerate((6, 7, 8)):
                for x in range(2):
                    a(f"{MF} {vr(acc(x,i))}, {vr(vSEL+4*x)}, {vr(vRC+12*j+4*u)}, {vr(acc(x,i))}")
        a(f"""s_add_u32 s{sT1}, s{sT2}, 16384
        s_or_b32 s{sT3}, s{sT3}, 131072
        s_nop 1""")
        for n, (i, so) in enumerate(((6, sT2), (7, sT1), (8, sT3))):
            t = vBF + 4 * n
            if n == 2: a("s_nop 1")
            for u in range(2):
                for x in range(2): a(f"v_cvt_pk_bf16_f32 v{t+2*u+x}, v{acc(u,i)+2*x}, v{acc(u,i)+2*x+1}")
            a(f"buffer_store_dwordx4 {vr(t)}, v{vOUT}, {sr(sOUT)}, s{so} offen {self.P('opol')}")
        if self.o.get("stamps"):
            a("s_waitcnt vmcnt(0)")
            if self.o.get("sm") not in ("s", "r", "c", "p", "o"): self.stamp("end")
            if self.o.get("amp"):
                i = self.o["amp"]
                a(f"""s_waitcnt lgkmcnt(0)
                s_cmp_lg_u32 s{sWAVE}, {self.o.get("ampw", 0)}
                s_cbranch_scc1 L_noamp
                s_and_b32 s{sT0}, s2, {self.o.get("ampm", 0)}
                s_cmp_lg_u32 s{sT0}, {self.o.get("ampv", 0)}
                s_cbranch_scc1 L_noamp
                s_sub_u32 s{sT0}, s{sSTAMP+2*i}, s{sSTAMP+2*self.o.get("amp0", 0)}
                s_min_u32 s{sT0}, s{sT0}, 20000
                s_mul_i32 s{sT0}, s{sT0}, {self.o.get("ampk", 10)}
                s_add_u32 s{sT0}, s{sT0}, 10000
L_amp:
                s_memrealtime s[{sT2}:{sT2+1}]
                s_waitcnt lgkmcnt(0)
                s_sub_u32 s{sT1}, s{sT2}, s{sSTAMP}
                s_cmp_lt_u32 s{sT1}, s{sT0}
                s_cbranch_scc1 L_amp
L_noamp:
                s_endpgm""")
            if self.o.get("dbg"):
                a("s_waitcnt lgkmcnt(0)")
                self.emit(self.srd(sDB, 16, 0, 256))
                a(f"""s_cmp_eq_u32 s{sWAVE}, 3
                s_cselect_b32 s{sT0}, 28, 0
                s_mov_b64 exec, 1
                v_mov_b32 v5, 0
                s_add_u32 s{sT1}, s{sWAVE}, 1
                s_and_b32 s{sT1}, s{sT1}, 2
                s_cbranch_scc1 L_nodbg""")
                for i in range(1, 8):
                    a(f"s_sub_u32 s{sT1}, s{sSTAMP+2*i}, s{sSTAMP}\nv_mov_b32 v6, s{sT1}\nbuffer_atomic_add v6, v5, {sr(sDB)}, s{sT0} offen offset:{4*i} sc1")
                a(f"""s_not_b32 s{sT1}, s{sSTAMP}
                v_mov_b32 v6, s{sT1}
                v_mov_b32 v7, s{sSTAMP+14}
                buffer_atomic_umax v6, v5, {sr(sDB)}, 0 offen offset:60 sc1
                s_waitcnt vmcnt(0)
L_nodbg:
                s_endpgm""")
            a(f"""s_waitcnt lgkmcnt(0)
            s_mov_b32 s{sO}, s18
            s_and_b32 s{sO+1}, s19, 0xffff
            s_mov_b32 s{sO+2}, 536870912
            s_mov_b32 s{sO+3}, 0x00020000
            s_lshl_b32 s{sT0}, s2, 8
            s_lshl_b32 s{sT1}, s{sWAVE}, 6
            s_add_u32 s{sT0}, s{sT0}, s{sT1}
            s_add_u32 s{sT0}, s{sT0}, {256<<20}
            v_mov_b32 v5, 0""")
            a("v_mov_b32 v15, v18")
            for i in range(16): a(f"v_mov_b32 v{16+i}, s{sSTAMP+i}")
            a("s_mov_b64 exec, 1")
            for i in range(4): a(f"buffer_store_dwordx4 {vr(16+4*i)}, v5, {sr(sO)}, s{sT0} offen offset:{16*i}")
            if self.o.get("tl"):
                a(f"""s_mov_b64 exec, -1
                s_cmp_lg_u32 s{sWAVE}, 3
                s_cbranch_scc1 L_notl
                s_lshl_b32 s{sT0}, s2, 8
                s_add_u32 s{sT0}, s{sT0}, {257<<20}
                v_lshlrev_b32 v5, 2, v1
                buffer_store_dword v15, v5, {sr(sO)}, s{sT0} offen
L_notl:""")
        a("s_endpgm")

    def kernel(self):
        self.inh = True
        self.dry = True; self.helper(); self.dry = False
        self.prologue()
        self.helper()
        self.inh = False; self.attention(); self.inh = self.o.get("sm") in ("g", "s", "r", "c", "p", "o") and self.o.get("gh", 1)
        self.tail()
        self.emit(self.ool)
        self.a("L_end:\ns_endpgm")
        return self.a.text()

def build(opt):
    g = Gen(opt)
    t = g.kernel()
    if opt.get("v"): print(g.cnt)
    src = open("standalone__gqa_block_cached__near_ridge.s.ref").read().split("; Override launch")[0]
    return src + header([(KN, 256, 256, LDS)]) + kstart(KN) + t + rodata([kdesc(KN, 256, 256)])

if __name__ == "__main__":
    opt = {}
    out = sys.argv[1]
    for x in sys.argv[2:]:
        k, _, v = x.partition("=")
        opt[k] = int(v) if v.lstrip("-").isdigit() else (v if v else True)
    t = build(opt)
    open(out, "w").write(t)
    print("hazards:", hazard.check(t), "bytes:", len(t))
```

```python
import sys, struct
from asmlib import *
import hazard

SLOT = 16384; NSL = 7; RING = NSL * SLOT
CH = 17408
SYNC = 162560
LAND, PROG, MISC = SYNC, SYNC + 256, SYNC + 1024
PB = 2 * CH
QP = [SYNC - (4 - i) * PB for i in range(4)]
QC = [QP[2], QP[3], QP[1]]
CBX = QP[3]; CBW = CBX + 18432
HAND1 = 122880
OWN = 49152
PLAN = {12: ((3, 7, 8, 9, 10, 11, 12, 4, 5), (6, 3, 7, 8, 0, 1, 2, 9, 10), (0, 8192, 16384, 24576)),
        8: ((9, 10, 11, 12, 4, 5, 2, 3, 6), (0, 1, 7, 8, 9, 10, 11, 12, 4), (0, 8192, 86016, 94208))}
WA, WB_, WD, WE = [0, 1, 2, 3], [4, 5, 6, 7], [8, 9, 10, 11], [12, 13, 14, 15]
NW = 8
LDS = 163840
O_OFF = 4096
PT_OFF = 24 << 20
FL_OFF = 40 << 20
CSC = struct.unpack("<I", struct.pack("<f", 1.4426950408889634 * 128 ** -0.5))[0]
THR = 0x4b800000
OOB = 0x80000000
MF = "v_mfma_f32_16x16x32_bf16"

def vr(b, n=4): return f"v[{b}:{b+n-1}]"
def ar(b, n=4): return f"a[{b}:{b+n-1}]"
def sr(b, n=4): return f"s[{b}:{b+n-1}]"

sWAVE = 3
sEB, sK, sV, sEA, sO, sOB, sPT, sOUT, sFL, sDB = 20, 24, 28, 32, 36, 40, 44, 48, 52, 56
(sT0, sT1, sT2, sT3, sT4, sOFF, sSL, sB, sIT, sCNT, sREDO, sROT, sCS, sKS, sPUB, sBUD, sKQ, sC, sBB, sWID,
 sP1, sP2, sP3, sP4) = range(60, 84)
sSTAMP = 84
sP5, sP6 = 100, 101
sS0, sS1, sS2, sS8 = sP1, sP2, sP3, sP4
sTGT = sPUB
sTK = 4
sAL, sLD, sRT, sPX = 6, 7, 8, 9
sRG, sR1 = sP5, sP6
sWO, sWM, sWS = sP1, sP2, sP3
sH = [sO, sO + 1, sO + 2, sO + 3]
sPF = sO
sXB, sXA = sDB, sDB + 2
sPO = sPUB
sG = [sO, sO + 1, sO + 2, sO + 3, sPUB]
sQD, sXM, sXS, sEX = sKS, sOFF, sB, sP1
vL16, vLA, vPA = 5, 6, 7
vPR, vLD, vRK, vRV0, vRV1, vRKb, vRV0b, vRV1b = 8, 9, 10, 11, 12, 13, 14, 15
vS, vNM, vONE, vMS = 16, 40, 52, 56
vTMP, vQ, vO, vL = 64, 80, 128, 224
vQB, vDXq = 24, 19
aK, aV, aQF = 0, 64, 128
vKV = 2
vPV, vPB, vDX, vDW, vW0, vW1, vXR, vSC, vFA, vFV = 8, 9, 10, 19, 23, 24, 25, 26, 28, 16
vXR1 = 14
vDW1, vEO = 48, 80
aB2 = 208
vHACC = 32; aHACC = 0; aHF = 72; vHT = 248
vTB, vTC = 236, 237
vE = 238
vF = (242, 243, 244)
vOW = 245
vW2 = 248
vPL = 232
vP2, vS2, vOUT = 10, 11, 12
vBF, vSEL, vRC, vTA = (16, 32, 80), 96, 112, 160
aW = (128, 0)

def S(qt, kt=0): return vS + 8 * qt + 4 * kt
def Kf(p, kt, ks): return aK + 32 * p + 16 * kt + 4 * ks
def Vf(p, dt): return aV + 32 * p + 4 * dt
def Qf(qt, ks): return vQ + 16 * qt + 4 * ks
def Oa(qt, dt): return vO + 32 * qt + 4 * dt
PK = (vTMP, Oa(0, 0), Oa(0, 4))
def isvm(x): return x.startswith("buffer_")

class Gen:
    def __init__(self, opt):
        self.o = opt
        self.a = A()
        self.ool = []
        self.nlab = 0
        self.D = opt.get("d", 5)
        self.S0 = 41
        wp = [int(x) for x in str(opt.get("wp", 2221))]; n = 0; self.ride = {}; self.WB = []
        for G in range(4 * opt.get("wb", 41), 260):
            self.ride[G] = list(range(n, min(16 * NW, n + wp[G % len(wp)]))); n += len(self.ride[G])
            if n >= 16 * (len(self.WB) + 1): self.WB.append(max(G >> 2 | 1, self.WB[-1] + 2 if self.WB else 0))
        assert len(self.WB) == NW and self.WB[-1] <= 63, self.WB
        self.item = [j + sum(b < j for b in self.WB) for j in range(66)]; self.witem = [b + m + 1 for m, b in enumerate(self.WB)]
        self.slot = [i for lap in (7, 7, 7, 7, 7, 9, 9, 9, 7, 4) for i in range(lap)]
        self.need = [17 + max([t for t in range(i) if self.slot[t] == self.slot[i]] + [-17]) for i in range(73)]
        self.KS = opt.get("ks", 6)
        self.KG = opt.get("kg", 2)
        self.pol = self.P("pol", "nt")
        self.osc = self.P("osc", "sc1")
        self.olp = self.P("olpol", "sc1")
        global EU, OU, WC
        self.NP = opt.get("np", 8)
        EU, OU = ([12288 * i for i in x] for x in PLAN[self.NP][:2])
        WC = [(4 + n // 2) % 7 * SLOT + n % 2 * 8192 for n in range(12)] + list(PLAN[self.NP][2])
        self.B3 = opt.get("b3", 31)
        self.dry = False
        self.cnt = {}; self.inc = {}
    def P(self, k, d=""):
        v = self.o.get(k, d)
        return "" if v == "none" else v.replace("+", " ")
    STM = {"m": "start c0 q0 it0 it1 b3 p1 end", "t": "start it1 p1 b3 d0 mf p2 end", "q": "start karg iss bar c0 c8 q0 end", "u": "start it1 b1 b2 ack b3 p1 end",
           "g": "start g00 g03 g06 g10 g13 g16 end", "s": "start c15i G4 G8 G12 G16 G20 g00", "r": "start g06 G128 G136 G144 s0 it0 g10", "e": "start G260 l81 w4 pe it1 b1 y", "f": "start fin it1 p1 d0 mf p2 end", "h": "start l81 wd w3 w4 w6 c15 pe", "j": "start b1 j7 j16 p1 j37 d0 mf", "w": "start b3 d0 d1 d3 d5 d7 mf",
           "c": "start c0 c1 c2 c3 c4 c6 c12", "p": "start G20 p00 p02 p04 p10 p13 g00", "o": "start s0 p00 p02 p04 p10 p13 g10"}
    def stamp(self, name):
        if self.o.get("sm") in ("k", "l"):
            nm = ("start g00 g06 g10" if self.o["sm"] == "k" else "start g10 g16 end").split()
            if name in nm and not self.dry:
                i = nm.index(name)
                self.a(f"s_memrealtime s[{sSTAMP+2*i}:{sSTAMP+2*i+1}]\ns_memtime s[{sSTAMP+8+2*i}:{sSTAMP+9+2*i}]")
            return
        names = self.STM[self.o.get("sm", "m")].split()
        if self.o.get("sm") == "g" and not self.inh: names = "start q0 it0 it1 b3 p1 mf end".split()
        if self.o.get("sm") == "s" and not self.inh: names = "start c0 c8 q0 k0 st0 it0 x".split()
        if self.o.get("sm") == "c" and not self.inh: names = "start c0 c2 c4 c8 c12 c16 q0".split()
        if self.o.get("sm") in ("p", "o") and not self.inh: names = "start q0 k0 st0 st1 it0 x y".split()
        if self.o.get("sm") == "r" and not self.inh: names = "start fin epi it0 st0 ofl st1 x".split()
        if self.o.get("sm") in ("e", "h") and not self.inh: names = "start fin it1 b1 ack x p1 end".split()
        if name not in names: return
        i = names.index(name)
        if self.o.get("stamps") == 3 and not self.dry:
            self.a(f"s_sub_u32 s{sSTAMP+2*i}, {1 << 22}, s{sBUD}\ns_mov_b32 s{sSTAMP+2*i+1}, 0" if i else f"s_mov_b64 s[{sSTAMP}:{sSTAMP+1}], 0")
        elif self.o.get("stamps") and not self.dry:
            op = "s_memtime" if self.o.get("stamps") == 2 else "s_memrealtime"
            self.a(f"{op} s[{sSTAMP+2*i}:{sSTAMP+2*i+1}]")
    def stampl(self, name):
        sv = self.a; self.a = A(); self.stamp(name); L = [x.strip() for x in self.a.l]; self.a = sv
        return L
    def emit(self, L):
        if self.dry: return
        for x in L: self.a(x)
    def e(self, s):
        if not self.dry: self.a(s)
    def lab(self, p):
        self.nlab += 1
        return f"L_{p}{self.nlab}"
    def weave(self, mf, fills):
        L = list(fills.get(-1, []))
        for i, m in enumerate(mf):
            L.append(m); L += fills.get(i, [])
        self.emit(L)
    def spread(self, mf, items):
        if not mf:
            self.emit(items); return
        n = len(mf); f = {}
        for k, x in enumerate(items):
            f.setdefault(min(n - 1, k * n // max(1, len(items))), []).append(x)
        self.weave(mf, f)
    def srd(self, d, lo, off, nrec):
        return [f"s_add_u32 s{d}, s{lo}, {off}", f"s_addc_u32 s{d+1}, s{lo+1}, 0", f"s_and_b32 s{d+1}, s{d+1}, 0xffff",
                f"s_mov_b32 s{d+2}, {nrec}", f"s_mov_b32 s{d+3}, 0x00020000"]
    def dma(self, v, srd, soff, imm, pol=""):
        return " ".join(f"buffer_load_dwordx4 v{v}, {sr(srd)}, {'0' if soff is None else f's{soff}'} offen offset:{imm} {pol} lds".split())
    def budget(self, ret):
        return [f"s_sub_i32 s{sBUD}, s{sBUD}, 1", f"s_cmp_lt_i32 s{sBUD}, 0", f"s_cbranch_scc1 {ret}"]

    def prologue(self):
        a = self.a
        a(f"""s_cmp_ge_u32 s2, 256
        s_cbranch_scc1 L_end
        s_load_dwordx16 s[4:19], s[0:1], 0""")
        self.stamp("start")
        if self.o.get("cpf", 1):
            a(f"""s_getpc_b64 s[{sO}:{sO+1}]
            s_lshr_b32 s{sT0}, s2, 3
            s_and_b32 s{sO}, s{sO}, 0xffffff00
            s_and_b32 s{sO+1}, s{sO+1}, 0xffff
            s_mov_b32 s{sO+2}, L_end-{KN}
            s_mov_b32 s{sO+3}, 0x00020000
            s_mul_i32 s{sT0}, s{sT0}, 2304
            v_lshlrev_b32 v1, 7, v0
            v_cmp_gt_u32 vcc, 18, v0
            s_and_saveexec_b64 s[{sT2}:{sT2+1}], vcc
            s_cbranch_execz L_nopf
            buffer_load_dword v232, v1, {sr(sO)}, s{sT0} offen
L_nopf:
            s_mov_b64 exec, -1""")
        a(f"""v_lshrrev_b32 v2, 6, v0
        v_and_b32 v1, 63, v0
        s_bfe_u32 s{sT1}, s2, 0x30003
        v_readfirstlane_b32 s{sWAVE}, v2
        s_and_b32 s{sT0}, s2, 1
        s_lshl_b32 s{sT0}, s{sT0}, 3
        s_add_u32 s{sBB}, s{sT0}, s{sT1}          ; b
        s_lshr_b32 s{sC}, s2, 6                   ; c
        s_bfe_u32 s{sKQ}, s2, 0x20001             ; kq
        s_lshl_b32 s{sT1}, s{sT1}, 1
        s_lshl_b32 s{sT2}, s{sC}, 2
        s_add_u32 s{sROT}, s{sT1}, s{sT2}
        {f"s_mov_b32 s{sROT}, 0" if self.o.get("norot") else ""}
        s_lshl_b32 s{sT2}, s{sKQ}, 2
        s_add_u32 s{sT2}, s{sT2}, s{sC}           ; hp
        s_lshl_b32 s{sWID}, s{sBB}, 4
        s_add_u32 s{sWID}, s{sWID}, s{sT2}        ; b*16 + hp
        v_lshrrev_b32 v2, 4, v1                   ; g
        v_bfe_u32 v3, v1, 2, 2                    ; r
        v_and_b32 v4, 3, v1                       ; c
        s_mov_b32 s{sBUD}, {1 << 22}""")
        a(f"""v_lshrrev_b32 v30, 3, v1
        v_and_b32 v31, 7, v1
        v_xor_b32 v31, v31, v30
        v_lshlrev_b32 v31, 4, v31
        v_lshl_add_u32 v{vDW}, v30, 10, v31
        v_lshlrev_b32 v30, 13, v3
        v_lshl_add_u32 v30, v2, 6, v30
        v_xor_b32 v31, 2, v4
        v_lshl_add_u32 v31, v31, 4, v30
        v_lshl_add_u32 v30, v4, 4, v30
        s_mul_i32 s{sT0}, s{sBB}, 147456
        s_mul_i32 s{sT1}, s{sWAVE}, 49152
        s_add_u32 s{sT0}, s{sT0}, s{sT1}
        s_lshl_b32 s{sT2}, s{sT2}, 9
        s_mul_i32 s{sXM}, s{sWAVE}, 6144
        s_lshr_b32 s{sXS}, s{sROT}, 1
        s_cmp_ge_u32 s{sXS}, 7
        s_cselect_b32 s{sT1}, 6, -1
        s_sub_u32 s{sXS}, s{sXS}, s{sT1}            ; second pair 1 + ((b & 7) + 2c) % 7
        s_add_u32 m0, s{sXM}, {QC[0]}
        s_mov_b32 s{sT4}, 7168
        s_mov_b32 s{sEA+2}, 49152
        s_mov_b32 s{sT1}, 32768
        s_cmp_eq_u32 s{sWAVE}, 3
        s_cselect_b64 vcc, -1, 0
        s_cselect_b32 s{sT0}, s{sT2}, s{sT0}
        s_cselect_b32 s{sT4}, 31744, s{sT4}
        s_cselect_b32 s{sEA+2}, {4194304 - 7680}, s{sEA+2}
        s_cselect_b32 s{sT1}, 131072, s{sT1}
        v_cndmask_b32 v{vDW+1}, v{vDW}, v31, vcc
        v_cndmask_b32 v{vDW}, v{vDW}, v30, vcc
        s_mov_b32 s{sEA+3}, 0x00020000
        v_add_u32 v{vDW+1}, s{sT4}, v{vDW+1}
        s_lshl_b32 s{sT4}, s{sT4}, 1
        v_add_u32 v{vDW+2}, s{sT4}, v{vDW}
        v_add_u32 v{vDW+3}, s{sT4}, v{vDW+1}
        {f"s_mov_b32 s{sEA+2}, 0" if self.o.get("q0oob") else ""}
        s_cmp_eq_u32 s{sWAVE}, 3
        s_waitcnt lgkmcnt(0)
        s_cselect_b32 s{sEA}, s10, s4
        s_cselect_b32 s{sEA+1}, s11, s5
        s_add_u32 s{sEA}, s{sEA}, s{sT0}
        s_addc_u32 s{sEA+1}, s{sEA+1}, 0
        s_and_b32 s{sEA+1}, s{sEA+1}, 0xffff""")
        self.stamp("karg")
        for i in range(4): a(self.dma(vDW + i, sEA, None, i * 1024, self.P("cpol")))
        a(f"s_add_u32 m0, s{sXM}, {QC[0] + 4096}\ns_cmp_lg_u32 s{sWAVE}, 3")
        for i in range(2): a(self.dma(vDW + i, sEA, sT1, i * 1024, self.P("cpol")))
        a("s_cbranch_scc1 L_attn")

    def common_srds(self):
        L = self.srd(sFL, 18, FL_OFF, 256 * 8192) + self.srd(sPT, 18, PT_OFF, 256 * 36864)
        L += [f"s_lshl_b32 s{sT0}, s{sBB}, 2", f"s_add_u32 s{sT0}, s{sT0}, s{sKQ}", f"s_mul_i32 s{sT0}, s{sT0}, {8*36864}"]
        L += self.srd(sOB, 18, f"s{sT0}", 8 * 36864 + O_OFF)
        L += [f"s_mul_i32 s{sT0}, s{sBB}, 147456", f"s_lshl_b32 s{sT1}, s{sC}, 8", f"s_add_u32 s{sT0}, s{sT0}, s{sT1}"]
        L += self.srd(sOUT, 14, f"s{sT0}", 147456) + [f"s_sub_u32 s{sOUT+2}, s{sOUT+2}, s{sT1}"]
        L += [f"s_mov_b32 s{sIT}, 0", f"s_mov_b32 s{sREDO}, 0", f"s_mov_b32 s{sCS}, {CSC:#x}"]
        return L
    def wpat(self, t0, t1, w0, w1, base):
        return [f"v_lshrrev_b32 v{t0}, 4, v1", f"v_lshlrev_b32 v{t0}, 11, v{t0}", f"v_bfe_u32 v{t1}, v1, 2, 2", f"v_lshl_add_u32 v{t0}, v{t1}, 6, v{t0}",
                f"v_add_u32 v{t0}, {base}, v{t0}", f"v_and_b32 v{t1}, 3, v1", f"v_lshl_add_u32 v{w0}, v{t1}, 4, v{t0}",
                f"v_xor_b32 v{t1}, 2, v{t1}", f"v_lshl_add_u32 v{w1}, v{t1}, 4, v{t0}", f"v_add_u32 v{w1}, 1024, v{w1}"]
    def xpat(self, t0, t1, d0, d1, base):
        return [f"v_lshrrev_b32 v{t0}, 4, v1", f"v_and_b32 v{t1}, 7, v1", f"v_xor_b32 v{t0}, v{t0}, v{t1}", f"v_lshlrev_b32 v{t0}, 4, v{t0}",
                f"v_and_b32 v{t1}, 15, v1", f"v_lshl_add_u32 v{t0}, v{t1}, 7, v{t0}", f"v_xor_b32 v{t1}, 64, v{t0}",
                f"v_add_u32 v{d0}, {base}, v{t0}", f"v_add_u32 v{d1}, {base}, v{t1}"]
    def xsrc(self, t0, t1, d):
        return [f"v_lshrrev_b32 v{t0}, 3, v1", f"v_and_b32 v{t1}, 7, v1", f"v_xor_b32 v{t1}, v{t1}, v{t0}", f"v_lshlrev_b32 v{t1}, 4, v{t1}",
                f"v_lshl_add_u32 v{d}, v{t0}, 10, v{t1}"] + [f"v_add_u32 v{d+i}, {i*7168}, v{d}" for i in range(1, 4)]
    def opat(self):
        L = [f"s_lshl_b32 s{sT0}, s{sKQ}, 1"]
        for i in range(8):
            L += [f"s_add_u32 s{sT1}, s{sT0}, {i+2}", f"s_and_b32 s{sT1}, s{sT1}, 7", f"s_lshl_b32 s{sT1}, s{sT1}, 12",
                  f"s_add_u32 s{sT1}, s{sT1}, {O_OFF - (i&3)*1024}", f"v_add_u32 v{vDX+i}, s{sT1}, v{vL16}"]
        return L + [f"v_add_u32 v{vDX+8}, {O_OFF + 32768}, v{vL16}"]

    def await_(self, pre=True, emit=True, above=None):
        l = self.lab("sp")
        if above is not None:
            c = f"v_cmp_lt_u32 vcc, {above}, v{vLD}"
            self.ool += [f"{l}:"] + self.budget(l + "r") + [self.rdla, "s_waitcnt lgkmcnt(0)", c, f"s_cbranch_vccz {l}", f"s_branch {l}r"]
            if pre: self.a(f"{self.rdla}\ns_waitcnt lgkmcnt(0)")
            self.a(f"{c}\ns_cbranch_vccz {l}\n{l}r:")
            return
        self.ool += [f"{l}:"] + self.budget(l + "r") + ([f"s_sleep {self.o['slp']}"] if self.o.get("slp") else []) + [f"ds_read_b32 v{vLD}, v{vLA}", "s_waitcnt lgkmcnt(0)",
                     f"v_cmp_gt_u32 vcc, v{vLD}, v{vPR}", f"s_cbranch_vccz {l}", f"s_branch {l}r"]
        if pre: self.a(f"ds_read_b32 v{vLD}, v{vLA}\ns_waitcnt lgkmcnt(0)\nv_cmp_gt_u32 vcc, v{vLD}, v{vPR}")
        if not emit: return [f"s_cbranch_vccz {l}", f"{l}r:"]
        self.a(f"s_cbranch_vccz {l}\n{l}r:")
    def nextslot(self):
        return [f"s_add_u32 s{sSL}, s{sSL}, {SLOT}", f"s_cmp_eq_u32 s{sSL}, {RING if self.inh else f's{sRG}'}", f"s_cselect_b32 s{sSL}, 0, s{sSL}"]
    def slotregs(self):
        return [f"v_add_u32 v{vRK}, s{sSL}, v{vRKb}", f"v_add_u32 v{vRV0}, s{sSL}, v{vRV0b}", f"v_add_u32 v{vRV1}, s{sSL}, v{vRV1b}"]
    def kreads(self, p):
        return [f"ds_read_b128 {ar(Kf(p,kt,ks))}, v{vRK} offset:{kt*4096+ks*256}" for kt in range(2) for ks in range(4)]
    def vreads(self, p):
        return [f"ds_read_b64_tr_b16 {ar(Vf(p,dt)+2*h,2)}, v{vRV0 if dt%2==0 else vRV1} offset:{(dt>>1)*256+h*4096}"
                for dt in range(8) for h in range(2)]
    def qk(self, qt, p, raw=False):
        L = []
        for kt in range(2):
            for ks in range(4):
                d = vr(S(qt, kt))
                c = d if ks else ("0" if raw else vr(vNM + 4 * qt))
                L.append(f"{MF} {d}, {ar(Kf(p,kt,ks))}, {vr(Qf(qt,ks))}, {c}")
        return L
    def pv(self, qt, p, first=False):
        L = []
        for dt in range(8):
            d = vr(Oa(qt, dt))
            L.append(f"{MF} {d}, {ar(Vf(p,dt))}, {vr(S(qt))}, {'0' if first else d}")
        d = vr(vL + 4 * qt)
        L.append(f"{MF} {d}, {vr(vONE)}, {vr(S(qt))}, {'0' if first else d}" if not self.o.get("nol") or first else "s_nop 0")
        return L
    def ex(self, qt, i): return f"v_exp_f32 v{S(qt)+i}, v{S(qt)+i}"
    def cv(self, qt, i): return f"v_cvt_pk_bf16_f32 v{S(qt)+i}, v{S(qt)+2*i}, v{S(qt)+2*i+1}"
    incpr = f"v_add_u32 v{vPR}, 1, v{vPR}"
    wrpr = f"ds_write_b32 v{vPA}, v{vPR}"
    rdla = f"ds_read_b32 v{vLD}, v{vLA}"
    cmpla = f"v_cmp_gt_u32 vcc, v{vLD}, v{vPR}"

    def stage(self, p, first=False, tail=[], tail2=[]):
        self.await_(pre=False)
        mf = self.pv(0, p, first) + self.qk(0, p) + self.pv(1, p, first) + self.qk(1, p) + self.pv(2, p, first) + self.qk(2, p)
        f = {i: [] for i in range(51)}
        ki = iter(self.kreads(1 - p)); vi = iter(self.vreads(1 - p))
        for seg, qt in enumerate((2, 0, 1)):
            for i in range(8): f[17 * seg + 2 * i].append(self.ex(qt, i))
        for seg in range(2):
            for g in (3, 7, 11, 15): f[17 * seg + g].append(next(ki))
        for g in (1, 5, 9, 13, 18, 22, 26, 30): f[g] += [next(vi), next(vi)]
        for seg, qt in enumerate((2, 0, 1)):
            for i in range(4): f[17 * seg + 4 * i + 3].append(self.cv(qt, i))
        ns = self.nextslot(); sr_ = self.slotregs()
        f[16] += [self.incpr]
        f[33] += [self.wrpr]
        f[35] += ns[:2]
        f[39] += [ns[2], sr_[0]]
        f[41] += [sr_[1]]
        f[43] += [self.rdla, sr_[2]]
        f[47] += tail
        f[49] += tail2
        if self.o.get("slow"): f[25] += [f"s_sleep {self.o['slow']}"]
        f[50] += ["s_waitcnt lgkmcnt(0)", self.cmpla]
        na = self.o.get("noatt", 0)
        if na & 1: mf = ["s_nop 0"] * 51
        if na & 2: f = {i: [x for x in L if not x.startswith(("v_exp", "v_cvt"))] for i, L in f.items()}
        if na & 4: f = {i: [x for x in L if not x.startswith(("ds_read_b128", "ds_read_b64"))] for i, L in f.items()}
        self.weave(mf, f)

    def xmax(self, v, t):
        self.a(f"""v_mov_b32 v{t}, v{v}
        s_nop 1
        v_permlane16_swap_b32 v{v}, v{t}
        v_max_f32 v{v}, v{v}, v{t}
        v_mov_b32 v{t}, v{v}
        s_nop 1
        v_permlane32_swap_b32 v{v}, v{t}
        v_max_f32 v{v}, v{v}, v{t}""")

    def stage0(self):
        a = self.a
        mf = self.qk(0, 0, True) + self.qk(1, 0, True) + self.qk(2, 0, True)
        self.spread(mf, self.kreads(1) + self.vreads(1))
        self.emit([self.incpr, self.wrpr] + self.nextslot() + self.slotregs())
        for qt in range(3):
            s = S(qt); m = 59 + qt
            a(f"""v_max3_f32 v{m}, v{s}, v{s+1}, v{vMS+qt}
            v_max3_f32 v{m}, v{s+2}, v{s+3}, v{m}
            v_max3_f32 v{m}, v{s+4}, v{s+5}, v{m}
            v_max3_f32 v{m}, v{s+6}, v{s+7}, v{m}""")
            self.xmax(m, 62)
            for i in range(4): a(f"v_sub_f32 v{vNM+4*qt+i}, 0, v{m}")
            for i in range(8): a(f"v_sub_f32 v{s+i}, v{s+i}, v{m}")
        for qt in range(2):
            for i in range(8): a(self.ex(qt, i))
            a(self.rdla if qt else "s_nop 0")
            for i in range(4): a(self.cv(qt, i))

    def oflag(self, rnd, wait="s_waitcnt vmcnt(0)", sT0=sT0, sT1=sT1):
        return [x.strip() for x in f"""s_and_b32 s{sT0}, s{sWID}, 0xfc
        s_lshl_b32 s{sT0}, s{sT0}, 13
        s_lshl_b32 s{sT1}, s{sC}, 2
        s_add_u32 s{sT1}, s{sT1}, s{sWAVE}
        s_lshl_b32 s{sT1}, s{sT1}, 7
        s_add_u32 s{sT0}, s{sT0}, s{sT1}
        s_add_u32 s{sT0}, s{sT0}, {2048*rnd}
        v_lshlrev_b32 v4, 13, v1
        v_mov_b32 v60, s{sTK}
        v_mov_b32 v61, s{sTK+1}
        {wait}
        s_mov_b64 exec, 15
        buffer_store_dwordx2 v[60:61], v4, {sr(sFL)}, s{sT0} offen {self.P("fsc", "sc1")}
        s_mov_b64 exec, -1""".split("\n")]

    def final(self, it):
        a = self.a
        mf = self.pv(0, 0) + self.pv(1, 0) + self.pv(2, 0)
        f = {i: [] for i in range(27)}
        for i in range(8): f[i].append(self.ex(2, i))
        for i in range(4): f[9 + i].append(self.cv(2, i))
        X = [f"s_mul_i32 s{sT2}, s{sWAVE}, 12288", f"s_mov_b32 s{sT0}, {THR:#x}"]
        for g, x in zip((19, 21, 23, 25), [f"v_rcp_f32 v60, v{vL}", "v_mov_b32 v61, v60", f"v_rcp_f32 v62, v{vL+4}", "v_mov_b32 v63, v62"]): f[g].append(x)
        if it == 0:
            X += [f"s_lshl_b32 s{sT1}, s{sWAVE}, 2", f"s_add_u32 s{sT1}, s{sT1}, {MISC}", f"v_mov_b32 v4, s{sT1}",
                  "v_and_b32 v3, 3, v1", "v_min_u32 v3, 2, v3", "v_lshlrev_b32 v3, 2, v3", f"v_add_u32 v3, {MISC}, v3"]
        else:
            g = self.o.get("fa", 8)
            f[0].append(self.rdla); f[g - 1] += ["s_waitcnt lgkmcnt(0)", self.cmpla]; f[g] += self.await_(pre=False, emit=False)
            f[4] += X[:1]; f[5] += X[1:]; f[6] += [f"s_add_u32 s{sT2}, s{sT2}, 36864"]
            X = self.pulls(WA) + [self.incpr, self.wrpr]
        for g in range(8 if it == 0 else g + 1, 27):
            while X and len(f[g]) + any("v_rcp" in x for x in f[g]) < 2: f[g].append(X.pop(0))
        assert it or not X
        self.rest = X
        self.weave(mf, f)
        a(f"""v_add_f32 v59, v{vL}, v{vL+4}
        s_mov_b32 s{sT4}, 1""")
    def lcheck(self, n):
        self.a(f"""v_add_f32 v59, v59, v{vL+8}
        v_cmp_nge_f32 vcc, s{sT0}, v59
        s_cmp_lg_u32 s{sREDO}, 0
        s_cbranch_scc1 L_noflag{n}
        s_cmp_eq_u64 vcc, 0
        s_cselect_b32 s{sT4}, 1, {1 if self.o.get("noatt") else 2}
L_noflag{n}:
        v_mov_b32 v2, s{sT4}""")
    def pack(self, qt, dst, after=lambda ks: []):
        r = (60, 62, 60)[qt]; L = []
        if qt == 2: L += [f"v_rcp_f32 v60, v{vL+8}", "s_nop 0", "v_mov_b32 v61, v60"]
        for ks in range(4):
            b = Oa(qt, 2 * ks)
            L += [f"v_pk_mul_f32 v[{b+2*i}:{b+2*i+1}], v[{b+2*i}:{b+2*i+1}], v[{r}:{r+1}]" for i in range(4)]
            L += [f"v_cvt_pk_bf16_f32 v{dst+4*ks+i}, v{b+2*i}, v{b+2*i+1}" for i in range(4)] + after(ks)
        return L

    def attention(self):
        a = self.a
        a("L_attn:")
        a(f"s_lshl_b32 s{sXS}, s{sXS}, 7")
        xadv = [f"s_add_u32 s{sXS}, s{sXS}, 128", f"s_cmp_eq_u32 s{sXS}, 1024", f"s_cselect_b32 s{sXS}, 128, s{sXS}"]
        xd = [self.dma(vDXq + i, sEA, sXS, i * 1024, self.P("cpol")) for i in range(4)] + [self.dma(vDXq + i, sEA, sT1, i * 1024, self.P("cpol")) for i in range(2)]
        a(f"""v_lshlrev_b32 v{vL16}, 4, v1
        s_add_u32 s{sT0}, s{sXM}, {QP[1]}""")
        self.emit(self.xpat(59, 60, vQB, vQB + 1, f"s{sT0}") + self.wpat(59, 60, vQB + 2, vQB + 3, QP[1] + 18432))
        for i in range(4): a(f"v_add_u32 v{vQB+4+i}, {2*PB}, v{vQB+i}")
        a(f"""s_lshl_b32 s{sT0}, s{sWAVE}, 8
        s_add_u32 s{sT0}, s{sT0}, {PROG}
        v_lshl_add_u32 v{vPA}, v1, 2, s{sT0}
        v_mov_b32 v{vLA}, {LAND}
        v_mov_b32 v{vPR}, 0""")
        X1 = [f"s_add_u32 m0, s{sXM}, {QC[1]}", f"s_add_u32 s{sT1}, s{sXS}, 32768"] + xd[:4] + [f"s_add_u32 m0, s{sXM}, {QC[1] + 4096}", xadv[0]] + xd[4:] + xadv[1:]
        x1at = self.o.get("x1at", 2)
        if x1at == 1: self.emit(X1)
        self.emit(self.common_srds())
        a(f"s_mul_i32 s{sT0}, s{sWID}, 73728\ns_add_u32 s{sT0}, s{sT0}, {O_OFF}")
        self.emit(self.srd(sO, 18, f"s{sT0}", 73728) + self.srd(sDB, 16, 0, 256))
        a(f"""v_and_b32 v59, 1, v3
        v_lshlrev_b32 v59, 1, v59
        v_xor_b32 v59, v59, v2
        v_lshlrev_b32 v59, 4, v59
        v_lshl_add_u32 v{vRKb}, v3, 10, v59
        v_lshl_add_u32 v{vRKb}, v4, 6, v{vRKb}
        v_lshlrev_b32 v59, 10, v2
        v_lshl_add_u32 v59, v3, 6, v59
        v_lshl_add_u32 v59, v4, 3, v59
        v_add_u32 v59, 8192, v59
        v_and_b32 v60, 1, v2
        v_lshl_add_u32 v{vRV0b}, v60, 5, v59
        v_xor_b32 v60, 1, v60
        v_lshl_add_u32 v{vRV1b}, v60, 5, v59
        v_mov_b32 v{vONE}, 0x3f803f80
        v_mov_b32 v{vONE+1}, 0x3f803f80
        v_mov_b32 v{vONE+2}, 0x3f803f80
        v_mov_b32 v{vONE+3}, 0x3f803f80
        v_mov_b32 v{vMS}, 0xff800000
        v_mov_b32 v{vMS+1}, 0xff800000
        v_mov_b32 v{vMS+2}, 0xff800000
        v_mov_b32 v62, s{sCS}
        v_mov_b32 v63, s{sCS}
        s_mov_b32 s{sSL}, 0
        s_or_b32 s{sT0}, s2, s{sWAVE}
        s_cselect_b32 s{sTGT}, 64, 0
        s_mov_b32 s{sRG}, {RING}
        s_mov_b32 s{sR1}, {RING}""")
        self.emit(self.slotregs())
        self.stamp("iss")
        a("s_barrier")
        self.stamp("bar")
        if x1at == 2: self.emit(X1)
        self.emit(self.tail_wregs() + self.tail_src() + self.tail_own())
        def qreads(k):
            q = QC[(k >> 1) % 3]; r = 0 if q < QP[3] else 4; ox = q - (QP[3] if r else QP[1])
            o = ox + (k & 1) * 8192; F = aQF + 44 * (k & 1); L = []
            for t in range(8):
                L.append(f"ds_read_b64_tr_b16 {ar(F+4*t,2)}, v{vQB+r+2} offset:{o+(t>>1)*256+8*(t&1)}")
                L.append(f"ds_read_b64_tr_b16 {ar(F+4*t+2,2)}, v{vQB+r+3} offset:{o+(t>>1)*256+8*(t&1)}")
            return L[:2] + [f"ds_read_b128 {ar(F+32+4*qt)}, v{vQB+r+(k&1)} offset:{ox+qt*2048}" for qt in range(3)] + L[2:]
        def qmf(k):
            F = aQF + 44 * (k & 1)
            return [f"{MF} {vr(Oa(qt,t))}, {ar(F+4*t)}, {ar(F+32+4*qt)}, {vr(Oa(qt,t)) if k else 0}" for t in range(8) for qt in range(3)] if k >= 0 else []
        XL = self.o.get("xl", 1); xs = {k: [] for k in range(16)}
        for p in range(2, 8):
            for i in range(6): xs[max(0, 2 * (p - 2) + (i // 3 if XL < 2 else 0) - min(XL, 1))].append((p, i))
        order = [(1, i) for i in range(6)]
        a(f"{self.rdla}\ns_waitcnt vmcnt(6) lgkmcnt(0)\n{self.cmpla}")
        self.await_(pre=False)
        qa = self.o.get("q0a", 0)
        for k in range(16):
            self.stamp(f"c{k}")
            R = qreads(k); f = {i: [] for i in range(24)}
            for g, n in ((0, 2), (1, 2), (2, 2), (3, 1), (4, 1), (5, 1), (6, 1), (7, 1), (8, 1), (10, 2), (11, 1), (12, 1), (14, 2), (15, 1)):
                f[g] += [R.pop(0) for _ in range(n)]
            f[15].append(self.incpr); f[16] += [self.wrpr]; f[12].append(self.rdla)
            if any(p == (k >> 1) + 3 for p, i in xs[k]): f[8].append("s_waitcnt lgkmcnt(7)")
            dg = [9, 13, 17, 18, 19, 21]; sg = [3, 4, 5, 6, 7]
            for n, (p, i) in enumerate(xs[k]):
                g = dg[n]; pre = []
                if i == 0: pre = [f"s_add_u32 m0, s{sXM}, {QC[p % 3]}", f"s_add_u32 s{sT1}, s{sXS}, 32768"]
                if i == 4:
                    pre = [f"s_add_u32 m0, s{sXM}, {QC[p % 3] + 4096}"]
                    if len(xs[k]) > 3: f[23] += xadv
                    else: f[18] += xadv[:1]; f[19] += xadv[1:]
                while pre:
                    if n == 0: f[sg.pop(0)].append(pre.pop(0))
                    else: f[dg[n-1] if dg[n-1] + 1 == g else g - 2 if len(f[g-2]) < 2 else g - 1].append(pre.pop(0))
                f[g].append(xd[i]); order.append((p, i))
            vm = ""
            if k & 1 and k < 15:
                last = max(n for n, (p, i) in enumerate(order) if p == (k >> 1) + 1)
                vm = f"vmcnt({len(order) - 1 - last}) "
            f[20] += [f"s_waitcnt {vm}lgkmcnt(1)", self.cmpla]
            f[22] += self.await_(pre=False, emit=False)
            if qa & 2: f = {i: [x for x in L if "_tr_" not in x] for i, L in f.items()}
            if qa & 4: f = {i: [x for x in L if "ds_read_b128" not in x] for i, L in f.items()}
            if qa & 8: f = {i: [x for x in L if "buffer_" not in x] for i, L in f.items()}
            if k: self.weave(qmf(k - 1) if not qa & 1 else ["s_nop 0"] * 24, f)
            else: self.emit(self.flat([f[i] for i in range(24)]))
        self.stamp("c16")
        C = []
        for ks in range(4):
            for qt in range(3):
                b = Oa(qt, 2 * ks)
                C += [f"v_pk_mul_f32 v[{b+2*i}:{b+2*i+1}], v[{b+2*i}:{b+2*i+1}], v[62:63]" for i in range(4)]
                C += [f"v_cvt_pk_bf16_f32 v{Qf(qt,ks)+i}, v{b+2*i}, v{b+2*i+1}" for i in range(4)]
        K0 = self.kreads(0) + [self.incpr, self.wrpr] + self.nextslot() + self.slotregs() + [self.rdla]
        f = {}
        for g in range(24):
            f[g] = [K0.pop(0) for _ in range(2) if K0]
        self.weave(qmf(15), f)
        self.emit(C)
        self.stamp("q0")
        a(f"s_waitcnt lgkmcnt(0)\n{self.cmpla}")
        self.await_(pre=False)
        self.stamp("k0")
        a("L_item:")
        self.stage0()
        self.cstamp("st0", 0 if self.o.get("sm") in ("s", "c", "p") else 1)
        a(f"s_waitcnt lgkmcnt(0)\n{self.cmpla}")
        self.stage(1, first=True, tail=[f"s_mov_b32 s{sCNT}, 0", f"s_mov_b32 s{sRG}, s{sR1}"])
        self.cstamp("st1", 0 if self.o.get("sm") == "p" else 1)
        a(".p2align 3\nL_loop:")
        self.ool += f"""L_init:
        v_mov_b32 v4, 0
        s_cmp_lg_u32 s{sIT}, 0
        s_cbranch_scc1 L_pub0
        s_bitcmp1_b32 s{sTGT}, 5
        s_cbranch_scc1 L_init2
        s_add_u32 s{sTGT}, s{sTGT}, 33
        buffer_load_dwordx2 v[2:3], v4, {sr(sOB)}, 0 offen sc1
        s_branch L_initr
L_init2:
        s_mov_b32 s{sTGT}, 64
        s_waitcnt vmcnt(0)
        v_add_u32 v2, 1, v2
        v_or_b32 v3, 1, v3
        s_mov_b64 exec, 1
        buffer_store_dwordx2 v[2:3], v4, {sr(sOB)}, 0 offen sc1
        buffer_store_dwordx2 v[2:3], v4, {sr(sDB)}, 0 offen sc1
        s_mov_b64 exec, -1
        s_branch L_initr
L_pub0:
        v_add_u32 v250, s{sSL}, v252
        v_add_u32 v251, s{sSL}, v253
        s_waitcnt lgkmcnt(0)
L_wsp:
        {self.cmpla}
        s_cbranch_vccnz L_wa""".split("\n") + self.budget("L_wa") + [self.rdla, "s_waitcnt lgkmcnt(0)", "s_branch L_wsp"] + self.wdisp("L_wa") + \
            [self.incpr, self.wrpr] + self.nextslot() + self.slotregs() + [self.rdla, "s_branch L_initr"]
        self.stage(0, tail=[f"s_xor_b32 s{sT0}, s{sCNT}, s{sTGT}", f"s_and_b32 s{sT0}, s{sT0}, 0x5f"], tail2=["s_cbranch_scc0 L_init", "L_initr:"])
        self.stage(1, tail=[f"s_add_u32 s{sCNT}, s{sCNT}, 1", f"s_cmp_lt_u32 s{sCNT}, 15"])
        a("s_cbranch_scc1 L_loop")
        self.cstamp("fin", 1 if self.o.get("sm") in ("e", "f", "h") else 0)
        a(f"s_cmp_lg_u32 s{sIT}, 0\ns_cbranch_scc1 L_last")
        self.final(0)
        dst = PK
        self.emit(self.pack(0, dst[0]))
        self.lcheck(0)
        self.emit(["ds_write_b32 v4, v2"] + self.pack(1, dst[1]) + [self.rdla, "ds_read_b32 v2, v3"] + self.pack(2, dst[2]))
        self.cstamp("epi", 0)
        a(f"""s_add_u32 s{sT0}, s{sT2}, {HAND1}
        v_add_u32 v4, s{sT0}, v{vL16}
        s_waitcnt lgkmcnt(0)
        {self.cmpla}""")
        self.await_(pre=False)
        a("s_branch L_done1\nL_done:")
        self.emit(self.budget("L_doneok"))
        a(f"""ds_read_b32 v2, v3
        s_waitcnt lgkmcnt(0)
L_done1:
        v_cmp_eq_u32 vcc, 0, v2
        s_cbranch_vccnz L_done
L_doneok:
        v_cmp_eq_u32 vcc, 2, v2
        s_cbranch_vccnz L_redo""")
        self.stamp("it0")
        for qt in range(3):
            for ks in range(4): a(f"ds_read_b128 {vr(Qf(qt,ks))}, v4 offset:{(qt*4+ks)*1024}")
        X = [f"s_mov_b32 s{sIT}, 1", f"s_mov_b32 s{sREDO}, 0", f"s_mov_b32 s{sTGT}, {(self.WB[0] - 35) // 2}", f"s_mov_b32 s{sR1}, {9 * SLOT}"] + [f"v_mov_b32 v{vMS+i}, 0xff800000" for i in range(3)] + self.wo_srd()
        self.spread([f"ds_write_b128 v4, {vr(dst[qt]+4*ks)} offset:{(qt*4+ks)*1024}" for qt in range(3) for ks in range(4)], X)
        a(f"""s_waitcnt lgkmcnt(0)
        s_branch L_item
L_last:""")
        self.final(1)
        st = lambda qt: lambda ks: [f"buffer_store_dwordx4 {vr(dst[qt]+4*ks)}, v{vL16}, {sr(sO)}, s{sT2} offen offset:{ks*1024} {self.osc}"]
        assert not self.rest
        self.emit([self.rdla] + self.pack(0, dst[0], st(0)) + [f"s_add_u32 s{sT2}, s{sT2}, 4096"])
        self.lcheck(1)
        wb = self.o.get("pb2", 1); ow = self.o.get("ow", 1)
        OW = [f"ds_write_b128 v{vOW+qt}, {vr(PK[qt]+4*ks)} offset:{OWN + ks*1024}" for qt in range(3) for ks in range(4)]
        for qt in (1, 2):
            n = 0 if qt < wb or not ow else 1 if qt > wb else qt + 1
            P = self.pack(qt, dst[qt], lambda ks: st(qt)(ks) + [OW.pop(0) for _ in range(n)])
            if qt == wb:
                a(f"s_waitcnt lgkmcnt(0)\n{self.cmpla}")
                self.await_(pre=False)
                self.spread(P[:30], self.pulls(WB_) + [self.incpr]); P = P[30:]
            self.emit(P + ([f"s_add_u32 s{sT2}, s{sT2}, 4096"] if qt == 1 else []) + ([self.rdla] if qt == 1 and wb == 2 else []))
        self.stamp("it1")
        a(f"""v_mov_b32 v3, {MISC+16}
        s_cmp_eq_u32 s{sT4}, 1
        s_cbranch_scc1 L_ok1
        ds_write_b32 v3, v2
L_ok1:""")
        self.emit(["ds_read_b64 v[2:3], v3 offset:16", f"v_mov_b32 v{vPL}, {OOB:#x}"] + self.rd(0) + self.rd(1) + OW)
        if self.NP == 12:
            a(f"{self.rdla}\ns_waitcnt lgkmcnt(0)\n{self.cmpla}")
            self.await_(pre=False)
            self.emit(self.pulls(WD))
        self.b1("L_redo")
        a(f"v_readfirstlane_b32 s{sTK}, v2\nv_readfirstlane_b32 s{sTK+1}, v3\ns_branch L_tail")
        a(f"""L_redo:
        s_waitcnt vmcnt(0)
        s_barrier
        v_mov_b32 v2, 0
        v_lshlrev_b32 v3, 2, v1
        v_add_u32 v3, {MISC}, v3
        ds_write_b32 v3, v2
        s_mul_i32 s{sT0}, s{sIT}, {32 + NW}
        s_add_u32 s{sT0}, s{sT0}, 16
        v_mov_b32 v{vPR}, s{sT0}
        v_mov_b32 v{vRK}, v{vRKb}
        {self.wrpr}
        s_mov_b32 s{sCNT}, 0
        s_mov_b32 s{sREDO}, 1
        s_mov_b32 s{sRG}, {RING}
        s_mov_b32 s{sR1}, {RING}
        v_mov_b32 v{vMS}, 0xff800000
        v_mov_b32 v{vMS+1}, 0xff800000
        v_mov_b32 v{vMS+2}, 0xff800000
L_mloop:
        s_barrier""")
        self.emit(self.kreads(0))
        a("s_waitcnt lgkmcnt(0)\ns_barrier")
        self.emit(self.qk(0, 0, True) + self.qk(1, 0, True) + self.qk(2, 0, True))
        a("s_nop 7")
        for qt in range(3):
            s = S(qt); m = vMS + qt
            for i in range(4): a(f"v_max3_f32 v{m}, v{s+2*i}, v{s+2*i+1}, v{m}")
        a(f"""s_add_u32 s{sCNT}, s{sCNT}, 1
        s_cmp_lt_u32 s{sCNT}, 32
        s_cbranch_scc1 L_mloop
        s_mul_i32 s{sSL}, s{sIT}, {6 * SLOT}""")
        self.emit(self.slotregs())
        self.await_()
        self.emit(self.kreads(0) + [self.incpr, self.wrpr] + self.nextslot() + self.slotregs())
        self.await_()
        a("s_branch L_item")
    def cstamp(self, name, it):
        if self.o.get("stamps"):
            l = self.lab("cs")
            self.a(f"s_cmp_lg_u32 s{sIT}, {it}\ns_cbranch_scc1 {l}")
            self.stamp(name)
            self.a(l + ":")
    def stampq(self):
        if self.o.get("stamps"):
            self.a(f"s_cmp_lg_u32 s{sCNT}, 1\ns_cbranch_scc1 L_nost1")
            self.stamp("c2")
            self.a(f"L_nost1:\ns_cmp_lg_u32 s{sCNT}, 4\ns_cbranch_scc1 L_nost2")
            self.stamp("c8")
            self.a(f"L_nost2:\ns_cmp_lg_u32 s{sCNT}, 2\ns_cbranch_scc1 L_nost3")
            self.stamp("c4")
            self.a(f"L_nost3:\ns_cmp_lg_u32 s{sCNT}, 6\ns_cbranch_scc1 L_nost4")
            self.stamp("c12")
            self.a("L_nost4:")
    def b1(self, lab):
        self.a(f"""s_waitcnt lgkmcnt(0)
        s_barrier
        v_mov_b32 v4, {MISC+16}
        ds_read_b32 v4, v4
        s_waitcnt lgkmcnt(0)
        v_cmp_ne_u32 vcc, 0, v4
        s_cbranch_vccnz {lab}""")
        self.stamp("b1")

    def q_push(self, L, tag):
        self.q += [tag] * sum(map(isvm, L))
        return L
    def q_wait(self, loc, tag, part=0):
        if self.dry:
            idx = [i for i, t in enumerate(self.q) if (t in tag if isinstance(tag, list) else t == tag)]
            n = len(self.q) - 1 - idx[-1] if idx else 63
            if part:
                idx = [i for i, t in enumerate(self.q) if t == ("g", tag[1] + 1)]
                n = len(self.q) - 1 - idx[part - 1]
            self.cnt[loc] = min(self.cnt.get(loc, 63), n)
            return []
        return [f"s_waitcnt vmcnt({self.cnt[loc]})"]
    def pub_abs(self, val):
        self.pub = val
        return [f"v_mov_b32 v{vPB}, {val}", f"ds_write_b32 v{vLA}, v{vPB}"]
    def hpull(self, m):
        return [f"v_add_u32 v{250+i}, {self.slot[self.witem[m]] * SLOT}, v{252+i}" for i in range(2)] + self.wpull(m)
    def pub_inc(self, val, n=1):
        if self.dry: assert self.pub is None or val - self.pub == n, (val, self.pub)
        self.pub = val
        if not self.o.get("gate", 1): return [f"s_add_u32 s{sLD}, s{sLD}, {n}", f"v_mov_b32 v{vPB}, s{sLD}", f"ds_write_b32 v{vLA}, v{vPB}"]
        return [f"v_readfirstlane_b32 s{sPX}, v{vPV}", f"s_add_u32 s{sLD}, s{sLD}, {n}", f"s_lshl4_add_u32 s{sPX}, s{sPX}, {self.o.get('clip', 32)}",
                f"s_min_u32 s{sAL}, s{sAL}, s{sPX}", f"s_add_u32 s{sAL}, s{sAL}, s{sRT}"] + ([f"s_add_u32 s{sAL}, s{sAL}, 16"] if n > 1 else []) + \
               [f"s_lshr_b32 s{sPX}, s{sAL}, 4", f"s_min_u32 s{sPX}, s{sPX}, s{sLD}", f"v_mov_b32 v{vPB}, s{sPX}", f"ds_write_b32 v{vLA}, v{vPB}"]
    rdpr = f"ds_read_b32 v{vPV}, v{vPA}"
    def pcheck(self, need, redo=False, rel=False):
        if self.dry:
            assert not rel or need <= self.pub, (need, self.pub)
            return []
        l = self.lab("pc")
        o = [f"{l}:"] + self.budget(l + "r")
        if rel and self.o.get("gate", 1): o += [f"s_max_u32 s{sAL}, s{sAL}, {16*need}", f"v_max_u32 v{vPB}, {need}, v{vPB}", f"ds_write_b32 v{vLA}, v{vPB}"]
        if redo: o += [f"v_and_b32 v30, 3, v1", f"v_lshlrev_b32 v30, 2, v30", f"v_add_u32 v30, {MISC}, v30", "ds_read_b32 v30, v30"]
        o += [self.rdpr, "s_waitcnt lgkmcnt(0)"]
        if redo: o += ["v_cmp_eq_u32 vcc, 2, v30", "s_cbranch_vccnz L_hredo"]
        o += [f"v_cmp_gt_u32 vcc, {need}, v{vPV}", f"s_cbranch_vccnz {l}", f"s_branch {l}r"]
        self.ool += o
        return ["s_waitcnt lgkmcnt(0)", f"v_cmp_gt_u32 vcc, {need}, v{vPV}", f"s_cbranch_vccnz {l}", f"{l}r:"]
    def kv_m0(self, j): return f"s_add_u32 m0, s{sSL}, {j*4096}"
    def kv_so(self, j): return f"s_add_u32 s{sT0}, s{sOFF}, {j*4096}" if j < 2 else f"s_sub_u32 s{sT0}, s{sOFF}, {16384 - j*4096}"
    def kv_d(self, j): return [self.dma(vKV + (i & 1), sK if j < 2 else sV, sT0, i * 1024, self.pol) for i in range(4)]
    def w_cg(self, G):
        L = []
        for n in self.ride.get(G, []):
            m, j, i = n >> 4, n >> 2 & 3, n & 3
            if not n & 15: L += [self.rdpr] + self.pcheck(self.need[self.witem[m]], rel=True)
            if not L or not i: L += [f"s_mov_b32 m0, {self.slot[self.witem[m]] * SLOT + j*4096}"]
            if not i: L += [f"s_add_u32 s{sT1}, s{sH[m >> 1]}, {((m & 1) << 16) + (j >> 1 << 15) + (j & 1)*8192}"]
            L += self.q_push([self.dma(vDW1 + i, sEA, sT1, i * 1024, self.P("wpol"))], ("wg", m))
        return L
    def kv_adv(self): return [f"s_add_u32 s{sOFF}, s{sOFF}, {0 if self.o.get('kvfix') else 8192}", f"s_add_u32 s{sB}, s{sB}, 1"] + self.nextslot()
    def position(self, loc, cg=None, tag=None, pre=[], fill=None, check=True, late=[], fill2=None, pace=True, fix=False):
        G = self.G; j = G & 3; nj = (G + 1) & 3
        if G in (4, 8, 12, 16, 128, 136, 144) and (G < 20 or loc[0] in ("f0", ("pl", 34), ("pl", 36))): self.stamp(f"G{G}")
        g = [[] for _ in range(12)]
        g[0] += pre
        D = self.q_push(self.kv_d(j), ("g", G))
        for i in range(4): g[i].append(D[i])
        if fix: g[3] += self.w_cg(G)
        small = self.kv_adv()[:1 if fix else 5] if j == 3 else []
        if cg:
            if cg[0]: g[3] += cg[0] if isinstance(cg[0], list) else [cg[0]]
            for i, x in enumerate(self.q_push(cg[1], tag)): g[4 + i].append(x)
        self.G += 1
        at = [0, 1, 2, 5, 5, 6, 6, 7, 7]
        for x in small: g[at.pop(0)].append(x)
        g[6].append(self.kv_so(nj))
        if nj == 0 and check: g[8].append(self.rdpr)
        if nj == 0 and check and self.o.get("tl"): g[8].append(f"s_memrealtime s[{sSTAMP+2}:{sSTAMP+3}]")
        g[8].append(self.kv_m0(nj) if not fix else f"s_mov_b32 m0, {self.slot[self.item[min(G + 1 >> 2, 64)]] * SLOT + nj*4096}")
        g[8] += late
        gd = G - self.D; gate = []
        if gd >= 0 and pace:
            isw = gd & 3 == 3 and gd >> 2 in self.WB and G < 400
            g[9] += self.q_wait(loc, [("g", gd), ("wg", self.WB.index(gd >> 2))] if isw else ("g", gd), 0 if isw else self.o.get("dx", 0))
            v = 17 + (self.item[gd >> 2] + isw if G < 400 else gd >> 2)
            if isw: g[10] += self.hpull(self.WB.index(gd >> 2))
            if G < 20 and self.pubok and 16 + ((gd + 1) >> 2) > self.pub:
                P = self.pub_abs(16 + ((gd + 1) >> 2)); g[9].append(P[0]); g[10].append(P[1])
            elif gd & 3 == 3 and self.pubok and G >= 20:
                P = self.pub_inc(v, 1 + isw)
                gate = P[:-2]
                g[9].append(P[-2]); g[10].insert(0, P[-1])
        if fix and check: check = self.need[self.item[G + 1 >> 2]]
        if nj == 0 and check: g[11] += self.pcheck(f"s{sB}" if check in (True, "redo") else check, redo=check == "redo", rel=fix) + ([f"v_cmpx_eq_u32 vcc, s{sB}, v15", f"v_mov_b32 v18, s{sSTAMP+2}", "s_mov_b64 exec, -1"] if self.o.get("tl") else [])
        for fill in (fill, fill2):
            for i in range(11 if nj == 0 and check else 12):
                while fill and len(g[i]) < 2:
                    x = fill.pop(0)
                    if x.startswith("ds_") and g[i] and not g[i][0].startswith(("ds_", "buffer_", "s_waitcnt")): g[i].insert(0, x)
                    else: g[i].append(x)
        for i, x in zip((0, 1, 2, 4, 5, 6, 7, 7, 7), gate): g[i].append(x)
        return g
    def flat(self, G):
        L = []
        for x in (x for g in G for x in g):
            if isvm(x) and L and " m0," in L[-1]: L.append("s_nop 0")
            L.append(x)
        return L + (["s_nop 0"] if L and " m0," in L[-1] else [])
    def plain(self, loc, extra=[], check=True, cg={}, tag="pf", fix=False):
        for j, x in enumerate(self.split(extra, 4)):
            self.emit(self.flat(self.position((loc, j), cg.get(j), tag, check=check, late=x, fix=fix)))
    def split(self, L, n):
        c = [k * len(L) // n for k in range(n + 1)]
        for k in range(1, n):
            while c[k] < len(L) and L[c[k]].startswith(("s_addc", "s_cselect", "v_cndmask")): c[k] += 1
        return [L[c[k]:max(c[k], c[k + 1])] for k in range(n)]
    def chunk_addr(self, h):
        a_ = sXA + h
        L = [f"s_add_u32 s{sT4}, s{sROT}, s{sKS}", f"s_bfe_u32 s{sT3}, s{sT4}, 0x20002", f"s_and_b32 s{sT4}, s{sT4}, 3"]
        if h == 0: L += [f"s_mul_i32 s{sXB}, s{sT3}, s{sP1}", f"s_mul_i32 s{sT1}, s{sT4}, s{sP2}", f"s_add_u32 s{sXB}, s{sXB}, s{sT1}"]
        L += [f"s_mul_i32 s{a_}, s{sT3}, s{sP3}", f"s_mul_i32 s{sT1}, s{sT4}, s{sP4}", f"s_add_u32 s{a_}, s{a_}, s{sT1}",
              f"s_add_u32 s{a_}, s{a_}, s{sP5}", f"s_add_u32 s{sKS}, s{sKS}, 1"]
        if self.o.get("noeng", 0) & 1 and h == 0: L.append(f"s_mov_b32 s{sXB}, {OOB:#x}")
        if self.o.get("noeng", 0) & 2: L.append(f"s_mov_b32 s{a_}, {OOB:#x}")
        return L
    def bgroups(self, base, so, pol):
        return [(f"s_mov_b32 m0, {base + gi*4096}", [self.dma(vDX + i, sEB, so, i * 1024, pol) for i in range(4 if gi < 4 else 2)]) for gi in range(5)]
    def bgroup(self, gi):
        return self.bgroups(CBX, sXB + 1, self.P("bpol"))[gi], [f"s_add_u32 s{sXB+1}, s{sXB}, s{sG[gi]}"]
    def agroups(self, m0, so, pol, so1=None, vDW=vDW):
        return [(m0(h), [self.dma(vDW + i, sEA, so1 if h and so1 else so, i * 1024, pol) for i in range(4)]) for h in range(2)]
    def hacc(self, t, qt):
        return ar(aHACC + 36 * t + 4 * qt) if t < 2 else vr(vHACC + 36 * (t - 2) + 4 * qt)
    def areads(self, p):
        F = aHF + 68 * p; L = []
        for t in range(8):
            L.append(f"ds_read_b64_tr_b16 {ar(F+4*t,2)}, v{vW0} offset:{p*8192+(t>>1)*256+8*(t&1)}")
            L.append(f"ds_read_b64_tr_b16 {ar(F+4*t+2,2)}, v{vW1} offset:{p*8192+(t>>1)*256+8*(t&1)}")
        return L
    def breads(self, qts):
        return [f"ds_read_b128 {ar((aB2 if e else aHF+32)+4*qt)}, v{vXR1 if e else vXR} offset:{qt*2048}" for qt in qts for e in range(2)]
    def hmf(self, p):
        F = aHF + 68 * p
        return [f"{MF} {self.hacc(t,qt)}, {ar(F+4*t)}, {ar(F+32+4*qt)}, {self.hacc(t,qt)}" for t in range(8) for qt in range(9)]
    def half(self, loc, k, tail=[]):
        h = k & 1
        self.e("s_waitcnt lgkmcnt(0)")
        if loc == "b0" and self.o.get("sm") in ("g", "s", "r", "e", "p", "o", "k", "l") and not self.dry:
            self.e(f"s_lshl_b32 s{sT4}, s{sIT}, 4\ns_add_u32 s{sT4}, s{sT4}, s{sCNT}")
            for ph in range(1):
                for n in (0, 3, 6):
                    self.e(f"s_cmp_lg_u32 s{sT4}, {16*ph+n}\ns_cbranch_scc1 L_gs{ph}{n}")
                    self.stamp(f"g{ph}{n}")
                    self.e(f"L_gs{ph}{n}:")
        G = [None] * 6; T = [None] * 6; X = [[] for _ in range(6)]
        if k < 16:
            A_ = self.agroups(lambda x: f"s_mov_b32 m0, {CBW + h*8192 + x*4096}", sXA + h, self.P("apol"), sT4)
            for x, p in enumerate((2, 4) if h == 0 else (0, 2)):
                G[p] = A_[x]; T[p] = ("ca", self.ph, k)
                if x: X[p] = [f"s_add_u32 s{sT4}, s{sXA+h}, s{sP6}"]
            for p, gi in ((0, 2), (1, 3), (3, 4)) if h == 0 else ((4, 0), (5, 1)):
                G[p], X[p] = self.bgroup(gi); T[p] = ("xa" if gi < 3 else "xb", self.ph, (k + 1) >> 1)
        F = self.chunk_addr(1 - h) if k < 16 else []
        F2 = [f"v_accvgpr_mov_b32 a{aHF+68+32+i}, a{aB2+i}" for i in range(36)] if h == 0 and k >= 2 else []
        gaps = []
        for p in range(6):
            pre = X[p]; late = []
            if p == 2: assert not F
            if h and k < 16 and p in (2, 3):
                t = "xa" if p == 2 else "xb"
                pre += self.q_wait((loc, t), (t, self.ph, k >> 1)); F += self.breads(range(6) if p == 2 else range(6, 9))
            if p == 4 and 1 <= k <= 16:
                assert not F
                if h: gaps[-1] += ["s_waitcnt lgkmcnt(0)"]
                pre += self.q_wait((loc, "r"), ("ca", self.ph, k - 1)); F += self.areads(1 - h)
            if loc in ("p0", "p1") and self.o.get("sm") in ("p", "o") and self.o.get("stamps") and not self.dry and f"{loc}{p}" in self.STM["p"]:
                i = self.STM["p"].split().index(f"{loc}{p}"); l = self.lab("hs")
                pre = [f"s_cmp_lg_u32 s{sIT}, {int(self.o['sm'] == 'o')}", f"s_cbranch_scc1 {l}", f"{'s_memtime' if self.o['stamps'] == 2 else 's_memrealtime'} s[{sSTAMP+2*i}:{sSTAMP+2*i+1}]", l + ":"] + pre
            gaps += self.position((loc, p), G[p], T[p], pre, F, late=late, fill2=F2)
        gaps[-2] += F + F2
        gaps[-1] += tail
        if k >= 2 and not self.o.get("nomf"): self.weave(self.hmf(h), dict(enumerate(gaps)))
        else: self.emit(self.flat(gaps))
    def engine(self):
        self.e(f"s_mov_b32 s{sKS}, 0")
        self.emit(self.chunk_addr(0))
        for gi in range(2):
            (m0, D), X = self.bgroup(gi)
            self.emit([m0] + X + self.q_push(D, ("xa", self.ph, 0)))
        self.e(self.kv_m0(0))
        self.half("p0", 0)
        self.half("p1", 1, tail=[f"s_mov_b32 s{sCNT}, 0"])
        self.e(".p2align 3\nL_eloop:")
        for it in range(7 if self.dry else 1):
            self.half("b0", 2 + 2 * it)
            self.half("b1", 3 + 2 * it, tail=[f"s_add_u32 s{sCNT}, s{sCNT}, 1", f"s_cmp_lt_u32 s{sCNT}, 7"])
        self.e("s_cbranch_scc1 L_eloop")
        if not self.dry: self.G += 72; self.pub = None
        self.half("e0", 16)
        self.half("e1", 17)

    def helper(self):
        D = self.D
        self.q = []; self.G = 0; self.pubok = False; self.ph = 0; self.pub = 0
        e = self.e
        def q0w(c):
            ad = [f"s_add_u32 s{sT3}, s{sT3}, {1 << 19}", f"s_cmp_eq_u32 s{sT3}, {8 << 19}", f"s_cselect_b32 s{sT3}, {1 << 19}, s{sT3}"] if c > 2 and not c & 1 else []
            G = self.agroups(lambda x: f"s_mov_b32 m0, {QC[(c >> 1) % 3] + 18432 + (c & 1)*8192 + x*4096}", sT4, self.P("cpol"))
            return [(("w", c), (ad if x == 0 else []) + [G[x][0], f"s_add_u32 s{sT4}, s{sT3}, {((c & 1) << 18) + x*131072}"] + G[x][1]) for x in range(2)]
        self.q += [("w", 0)] * 6
        self.emit(self.q_push([self.dma(vDW + i, sEA, sT1, i * 1024, self.P("cpol")) for i in (2, 3)], ("w", 0)) + [f"s_mov_b32 s{sT3}, 0"])
        for t, g in q0w(1): self.emit(self.q_push(g, t))
        e(f"""s_lshl_b32 s{sT3}, s{sXS}, 19
        s_mov_b32 s{sP6}, 131072
        v_lshlrev_b32 v{vL16}, 4, v1
        v_mov_b32 v248, 0
        v_mov_b32 v249, 0
        v_mov_b32 v250, 0
        v_mov_b32 v251, 0
        v_add_u32 v30, {SYNC+256}, v{vL16}
        v_lshlrev_b32 v{vLA}, 2, v1
        v_add_u32 v{vLA}, {LAND}, v{vLA}
        ds_write_b128 v30, v[248:251]
        ds_write_b32 v{vLA}, v248""")
        e(f"s_lshl_b32 s{sT0}, s{sWID}, 19")
        if self.o.get("kvr"):
            e(f"""s_mul_i32 s{sT1}, s2, {self.o["kvr"]}
            s_lshr_b32 s{sT1}, s{sT1}, {self.o.get("kvs", 0)}
            s_and_b32 s{sT1}, s{sT1}, 31
            s_lshl_b32 s{sT1}, s{sT1}, 13
            s_cmp_eq_u32 s{sWID}, 255
            s_cselect_b32 s{sT1}, 0, s{sT1}
            s_add_u32 s{sT0}, s{sT0}, s{sT1}""")
        self.emit(self.srd(sK, 6, f"s{sT0}", 524288) + self.srd(sV, 8, f"s{sT0}", 524288))
        e(f"""v_lshlrev_b32 v30, 8, v3
        v_lshl_add_u32 v30, v2, 6, v30
        v_xor_b32 v31, 2, v4
        v_min_u32 v{vPA}, 2, v4
        v_lshl_add_u32 v{vKV+1}, v31, 4, v30
        v_lshl_add_u32 v{vKV}, v4, 4, v30
        v_lshlrev_b32 v{vPA}, 8, v{vPA}
        v_add_u32 v{vPA}, {PROG}, v{vPA}
        s_mov_b32 s{sOFF}, 0
        s_mov_b32 s{sSL}, 0
        s_mov_b32 s{sB}, 10
        {"v_cmp_gt_u32 vcc, 12, v1" if self.o.get("tl") else ""}
        {"v_add_u32 v15, 64, v1" if self.o.get("tl") else ""}
        {"s_nop 0" if self.o.get("tl") else ""}
        {"v_cndmask_b32 v15, v1, v15, vcc" if self.o.get("tl") else ""}
        {["s_mov_b32 s%d, 0" % sROT, "", "s_lshl_b32 s%d, s%d, 2" % (sROT, sC), "s_lshl_b32 s%d, s%d, 1" % (sROT, sBB)][self.o.get("er", 0)]}""")
        setup = [f"s_mul_i32 s{sT0}, s{sBB}, 147456"] + self.srd(sEB, 4, f"s{sT0}", 147456) + self.xsrc(30, 31, vDX) + \
                [f"s_mov_b32 s{sP1}, 256", f"s_mov_b32 s{sP2}, 64", f"s_mov_b32 s{sP3}, {1 << 20}", f"s_mov_b32 s{sP4}, {1 << 18}"] + self.common_srds() + self.xpat(30, 31, vXR, vXR1, CBX) + self.wpat(30, 31, vW0, vW1, CBW) + \
                [f"v_mov_b32 v{vSC}, s{sCS}", f"v_mov_b32 v{vSC+1}, s{sCS}"]
        self.emit(setup + [self.kv_m0(0), self.kv_so(0), f"s_mov_b32 s{sP5}, 256"] + [f"s_mov_b32 s{sG[i]}, {i*32768}" for i in range(5)])
        self.stamp("iss")
        e("s_waitcnt lgkmcnt(0)\ns_barrier")
        self.stamp("bar")
        done = [0]
        def q0pub(n):
            while done[0] < min(n, 16):
                c = done[0]
                last = max(i for i, t in enumerate(self.q) if t == ("w", c))
                nb = sum(1 for t in self.q[:last] if t[0] == "g") // 16 if c == 15 else 0
                self.emit(self.q_wait(("q0", c), ("w", c)) + self.pub_abs(c + 1 + nb))
                self.stamp(f"c{c}")
                done[0] += 1
        Z = [f"v_accvgpr_write_b32 a{aHACC+i}, 0" for i in range(72)] + [f"v_mov_b32 v{vHACC+i}, 0" for i in range(216)]
        LAG = self.o.get("lag", 3); KN_ = self.o.get("kn", 10)
        q0pub(1)
        for c in range(2, 16):
            if c >= 6:
                assert done[0] >= c - 5
                self.emit([self.rdpr] + self.pcheck(c - 5))
            for t, g in q0w(c): self.emit(self.q_push(g, t))
            for i in range(self.KG if c >= self.KS else 0):
                if self.G < KN_: self.emit(([] if i else [self.kv_m0(self.G & 3), "s_nop 0"]) + self.flat(self.position(("q0p", self.G), check=False, pace=False)))
            q0pub(2 if c == 2 else c - LAG + 1)
            if c >= 6 and not self.o.get("zp"): self.emit(Z[(c - 6) * 29:(c - 5) * 29])
        self.stamp("c15i")
        q0pub(self.o.get("pb", 14))
        self.emit([self.kv_m0(self.G & 3), "s_nop 0"])
        if self.G == 12: self.emit([self.rdpr] + self.pcheck(12))
        while self.G < 20:
            n = self.G - 12
            self.emit(self.flat(self.position(("q0p", self.G), check=12 if self.G == 11 else False, late=Z[n * 36:n * 36 + 36] if n >= 0 and self.o.get("zp") else [])))
            q0pub(done[0] + 1)
            if done[0] == 16 and not self.pubok:
                self.pubok = True; self.stamp("q0")
        assert self.pubok
        self.stamp("G20")
        self.emit([self.rdpr, f"s_mov_b32 s{sLD}, {self.pub}", f"s_mov_b32 s{sAL}, 4096", f"s_mov_b32 s{sRT}, {self.o.get('r0', 18)}"] + self.pcheck(16))
        self.engine()
        assert self.G == 128
        F = [f"v_add_u32 v30, {HAND1}, v{vL16}", "s_nop 3"]
        n = 0
        for ks in (1, 2, 3, 0):
            for qt in range(9):
                if ks:
                    b0 = vHACC + 36 * (2 * ks - 2) + 4 * qt; b1 = b0 + 36
                else:
                    b0 = vHACC + 8 * (qt % 2); b1 = b0 + 4
                    for i in range(4): F += [f"v_accvgpr_read_b32 v{b0+i}, a{aHACC+4*qt+i}", f"v_accvgpr_read_b32 v{b1+i}, a{aHACC+36+4*qt+i}"]
                F += [f"v_pk_mul_f32 v[{b}:{b+1}], v[{b}:{b+1}], v[{vSC}:{vSC+1}]" for b in (b0, b0 + 2, b1, b1 + 2)]
                t = vHT + 4 * (n % 2); n += 1
                F += [f"v_cvt_pk_bf16_f32 v{t+i}, v{b}, v{b+1}" for i, b in enumerate((b0, b0 + 2, b1, b1 + 2))]
                F += [f"ds_write_b128 v30, {vr(t)} offset:{(qt*4+ks)*1024}"]
        assert D >= 1
        NF = self.o.get("nf", 3)
        for m in range(NF): self.plain(f"f{m}", F[m * len(F) // NF:(m + 1) * len(F) // NF])
        SW = self.wo_srd() + self.srd(sDB, 16, 0, 256) + \
             ["v_bfe_u32 v30, v1, 2, 2", "v_lshlrev_b32 v30, 10, v30", "v_lshrrev_b32 v31, 4, v1", "v_lshl_add_u32 v30, v31, 6, v30",
              "v_and_b32 v31, 3, v1", f"v_lshl_add_u32 v{vDW1}, v31, 4, v30", "v_xor_b32 v31, 2, v31", f"v_lshl_add_u32 v{vDW1+1}, v31, 4, v30",
              f"v_add_u32 v{vDW1+2}, 2048, v{vDW1}", f"v_add_u32 v{vDW1+3}, 17408, v{vDW1+1}", f"v_add_u32 v{vDW1+1}, 15360, v{vDW1+1}",
              f"s_mov_b32 s{sRT}, {self.o.get('r1', 18)}"] + ([f"s_mov_b32 s{sEA+2}, 0"] if self.o.get("now") else [])
        for i in range(4): SW += [f"s_add_u32 s{sT1}, s{sC}, {i}", f"s_and_b32 s{sT1}, s{sT1}, 3", f"s_lshl_b32 s{sH[i]}, s{sT1}, 18"]
        SW += ["v_bfe_u32 v30, v1, 2, 2", "v_min_u32 v30, 2, v30", f"v_add_u32 v30, s{sC}, v30", "v_add_u32 v30, 1, v30", "v_and_b32 v30, 3, v30",
               "v_and_b32 v31, 3, v1", "v_min_u32 v31, 2, v31", f"v_lshl_add_u32 v31, v30, 2, v31", f"v_lshlrev_b32 v{vPL}, 7, v31",
               "v_lshlrev_b32 v53, 9, v30", "v_add_u32 v53, 384, v53", "v_mov_b32 v54, 0"]
        SW += self.tail_wregs(sT1) + self.tail_src() + self.tail_own(False); nb = 40 - 32 - NF
        for m, x in enumerate(self.split(SW, nb)): self.plain(("pl", m + 32 + NF), x, check="redo" if m == nb - 1 else True)
        def share(r):
            return [f"s_bfe_u32 s{sT3}, s2, 0x30003", f"s_lshr_b32 s{sT4}, s{sT3}, 1", f"s_and_b32 s{sT3}, s{sT3}, 1", f"s_lshl_b32 s{sT4}, s{sT4}, 18", f"s_lshl_b32 s{sT3}, s{sT3}, 16",
                    f"s_add_u32 s{sT3}, s{sT3}, s{sT4}", f"s_add_u32 s{sT3}, s{sT3}, {131072*r}", f"v_lshrrev_b32 v30, 1, v1", f"v_and_b32 v31, 1, v1", "v_lshlrev_b32 v30, 10, v30",
                    "v_lshl_add_u32 v30, v31, 7, v30", f"s_add_u32 s{sT4}, s{sT3}, 32768"], [f"buffer_load_dword v52, v30, {sr(sEA)}, s{x} offen" for x in (sT3, sT4)]
        self.plain(("pl", 40), check=False, cg={0: share(0)} if self.o.get("pfe", 1) else {})
        self.stamp("s0")
        e(f"L_s0:\n{self.rdpr}\ns_mov_b32 s{sIT}, 1")
        self.emit(self.pcheck(f"s{sB}"))
        self.stamp("it0")
        tok = f"buffer_load_dwordx2 v[56:57], v54, {sr(sDB)}, 0 offen sc1"
        self.plain(("pl", 41), [f"v_add_u32 v30, {HAND1}, v{vL16}"] + [f"ds_read_b128 {vr(vEO+4*i)}, v30 offset:{i*1024}" for i in range(36)], cg={0: (None, [tok])}, tag="tok", fix=True)
        e("s_waitcnt lgkmcnt(0)")
        self.plain(("pl", 42), fix=True)
        self.emit(self.q_wait("tok", "tok"))
        e(f"""L_tok:
        v_readfirstlane_b32 s{sTK+1}, v57
        v_readfirstlane_b32 s{sTK}, v56
        s_cmp_eq_u32 s{sTK+1}, 0
        s_cbranch_scc1 L_tok2
L_tokok:""")
        if not self.dry: self.ool += ["L_tok2:"] + self.budget("L_tokok") + [tok, "s_waitcnt vmcnt(0)", "s_branch L_tok"]
        ES = []
        for t in range(9):
            ES += [[f"s_add_u32 s{sT2}, s{sT2}, 4096" if t else f"s_mul_i32 s{sT2}, s{sC}, 73728" if not self.o.get("noes") else f"s_mov_b32 s{sT2}, {OOB:#x}"] +
                   [f"buffer_store_dwordx4 {vr(vEO+16*t+4*k)}, v55, {sr(sOB)}, s{sT2} offen offset:{k*1024} {self.P('esc', 'sc1')}" for k in range(4)]]
        es = self.o.get("es", 0); bk = self.o.get("bk", 62)
        back = [f"ds_write_b128 v62, {vr(vEO+4*i)} offset:{i*1024}" for i in range(36)]
        e(f"v_add_u32 v55, {O_OFF}, v{vL16}\nv_add_u32 v62, {HAND1}, v{vL16}")
        for m in range(43, 65):
            cg = {j: (ES[0][0], ES.pop(0)[1:]) for j in range(4) if 4 * (65 - m) - j <= es and ES}
            if m >= self.o.get("et", 99) and ES:
                n = self.o.get("en", 1)
                for j in range(4):
                    if not ES: break
                    pre = ES[0].pop(0) if not isvm(ES[0][0]) else None
                    cg[j] = (pre, [ES[0].pop(0) for _ in range(n)])
                    if not ES[0]: ES.pop(0)
            if m in (44, 50, 58): self.stamp({44: "g10", 50: "g13", 58: "g16"}[m])
            if m == bk: self.emit([self.rdpr] + self.pcheck(78, rel=True))
            self.plain(("pl", m), back[12*(m - bk):12*(m - bk + 1)] if m >= bk else [], cg=cg, tag="e", check=m < 64, fix=True)
        assert self.G == 260
        self.stamp("G260")
        def wchunk(n):
            G = self.agroups(lambda h: f"s_mov_b32 m0, {WC[n] + h*4096}", sT3, self.P("wpol"), sT4, vDW1)
            o = ((n & 3) << 15) + 131072
            return self.q_push([G[0][0], f"s_add_u32 s{sT3}, s{sH[n >> 2]}, {o}"] + G[0][1] + [G[1][0], f"s_add_u32 s{sT4}, s{sH[n >> 2]}, {o + 8192}"] + G[1][1], ("w1", n))
        def wblock(p): return wchunk(2 * p) + wchunk(2 * p + 1)
        def chk(n): return [self.rdpr] + self.pcheck(n)
        def estore():
            L = self.q_push(sum(ES, []), "e"); ES.clear()
            return L
        PB_ = 75 + NW
        if self.o.get("now") == 1: e(f"s_lshl_b32 s{sT3}, s{sC}, 8\ns_sub_u32 s{sEA+2}, 1048576, s{sT3}")
        if self.o.get("ea", 0) == 0: self.emit(estore())
        if self.o.get("pf", 2) == 2:
            self.emit(share(1)[0] + self.q_push(share(1)[1], "pf"))
        GL = 259; N0 = PB_
        late = [m for m in range(NW) if 4 * self.WB[m] + 3 + D > GL]
        ea = self.o.get("ea", 0); w1 = self.o.get("w1", 2)
        self.emit(self.q_wait("w80", [("g", GL - 4), ("wg", NW - 1)]) + self.pub_abs(PB_ + 5) + sum((self.hpull(m) for m in late), []))
        for p in range(w1): self.emit(chk(N0 + p) + wblock(p))
        self.emit(self.q_wait("w81", ("g", GL)) + self.pub_abs(PB_ + 6))
        self.stamp("l81")
        for p in range(w1, self.o.get("w2", 3)): self.emit(chk(N0 + p) + wblock(p))
        poll = f"buffer_load_dwordx2 v[58:59], v53, {sr(sFL)}, s{sP4} offen sc1"
        self.emit(self.q_wait("w83", ("w1", 3)))
        e("L_wdone:")
        self.stamp("wd")
        eflag = lambda: self.q_push(self.oflag(0, (self.q_wait("eack", "e") or ["s_nop 0"])[0]), "ef")
        self.emit(self.pub_abs(PB_ + 7) + (eflag() if not ea else []) + [f"v_mov_b32 v31, {MISC+32}", "ds_write_b64 v31, v[56:57]", f"s_lshl_b32 s{sP4}, s{sWID}, 13"])
        w3 = self.o.get("w3", 5); w6 = 6
        if self.o.get("dl", 1) and self.NP == 8: w3 = w6 = 4
        wb = lambda p: chk(N0 + p) + wblock(p) + (self.q_push([poll], "p0") if p == 3 else [])
        for p in range(self.o.get("w2", 3), w3): self.emit(wb(p))
        self.stamp("w3")
        self.emit(self.pulls(WA) + chk(PB_ + 7) + self.q_wait("w84", ("w1", 7)) + self.pub_abs(PB_ + 8))
        for p in range(w3, w6): self.emit(wb(p))
        self.emit(estore())
        self.stamp("w4")
        self.emit(self.pulls(WB_))
        self.stamp("w6")
        if self.NP == 12: self.emit(self.q_wait("w86", ("w1", 11)) + self.pub_abs(PB_ + 9) + self.pulls(WD))
        self.emit(self.rd(0) + self.rd(1))
        self.stamp("c15")
        self.emit((eflag() if ea else []) + self.q_wait("p0", "p0"))
        e(f"""L_poll0:
        v_cmp_ne_u64 vcc, s[{sTK}:{sTK+1}], v[58:59]
        s_cbranch_vccnz L_poll0b
L_poll0r:""")
        if not self.dry: self.ool += ["L_poll0b:"] + self.budget("L_poll0r") + [poll, "s_waitcnt vmcnt(0)", "s_branch L_poll0"]
        self.stamp("pe")
        self.stamp("it1")
        if not self.dry:
            self.b1("L_hredo")
            e("s_branch L_tail")
        e(f"""L_hredo:
        s_waitcnt vmcnt(0)
        s_barrier
        s_mul_i32 s{sB}, s{sIT}, {32 + NW}
        s_add_u32 s{sB}, s{sB}, 10
        s_add_u32 s{sT0}, s{sB}, {6 - (D + 3) // 4}
        v_mov_b32 v{vPB}, s{sT0}
        s_mov_b32 s{sLD}, s{sT0}
        s_add_u32 s{sT0}, s{sB}, 6
        v_mov_b32 v{vPV}, s{sT0}
        s_lshl_b32 s{sAL}, s{sT0}, 4
        ds_write_b32 v{vLA}, v{vPB}
        s_mov_b32 s{sCNT}, 0
        s_lshl_b32 s{sOFF}, s{sIT}, 18
        s_mov_b32 s{sSL}, 0
L_hmloop:""")
        for j in range(2): self.emit([self.kv_m0(j), self.kv_so(j)] + self.kv_d(j))
        e(f"""s_add_u32 s{sOFF}, s{sOFF}, 8192
        s_waitcnt vmcnt(0) lgkmcnt(0)
        s_barrier
        s_barrier
        s_add_u32 s{sCNT}, s{sCNT}, 1
        s_cmp_lt_u32 s{sCNT}, 32
        s_cbranch_scc1 L_hmloop
        s_lshl_b32 s{sOFF}, s{sIT}, 18
        s_mul_i32 s{sSL}, s{sIT}, {6 * SLOT}
        s_cmp_eq_u32 s{sIT}, 0
        s_cselect_b32 s{sCNT}, {self.S0 + 10}, {75 + NW}
        {self.kv_m0(0)}
        {self.kv_so(0)}
L_hploop:""")
        self.G = 400; self.q = [("g", g) for g in range(380, 400) for _ in range(4)]; self.pub = None
        self.plain("rp")
        e(f"""s_cmp_lt_u32 s{sB}, s{sCNT}
        s_cbranch_scc1 L_hploop
        s_cmp_eq_u32 s{sIT}, 0
        s_cbranch_scc1 L_s0
        s_waitcnt vmcnt(0)""")
        self.emit(self.pub_abs(PB_ + 6) + chk(PB_ + 6))
        for p in range(self.o.get("w2", 3)): self.emit(wblock(p) + ["s_waitcnt vmcnt(16)"])
        self.emit(["s_waitcnt vmcnt(0)", "s_branch L_wdone"])

    def tail_wregs(self, sT0=sT0):
        return [f"s_lshl_b32 s{sT0}, s{sWAVE}, 8"] + self.wpat(250, 251, 252, 253, f"s{sT0}") + [f"v_add_u32 v254, 65536, v252", f"v_add_u32 v255, 65536, v253"]
    def pull(self, b, r, o):
        return [f"ds_read_b64_tr_b16 {ar(b+4*u+2*h,2)}, v{r+h} offset:{o+8*u}" for u in range(2) for h in range(2)]
    def pulls(self, ns):
        return sum((self.pull(aW[1] + 8 * n, 252 + 2 * (WC[n] >> 16), WC[n] & 65535) for n in ns), [])
    def wpull(self, m): return self.pull(aW[0] + 16 * m, 250, 0) + self.pull(aW[0] + 16 * m + 8, 250, 8192)
    def wdisp(self, l):
        L = [l + ":"]; T = [(b - 35) // 2 for b in self.WB] + [64]
        m8 = [m for m in range(NW) if 62 <= self.witem[m] < 69][0]
        for m in range(NW):
            if m < NW - 1: L += [f"s_cmp_lg_u32 s{sTGT}, {T[m]}", f"s_cbranch_scc1 {l}{m+1}"]
            L += self.wpull(m) + [f"s_mov_b32 s{sTGT}, {T[m+1]}"] + ([f"s_mov_b32 s{sRG}, {RING}"] if m == m8 else [])
            if m < NW - 1: L += [f"s_branch {l}x", f"{l}{m+1}:"]
        return L + [l + "x:"]
    def wo_srd(self):
        return [f"s_lshl_b32 s{sT2}, s{sKQ}, 20", f"s_lshl_b32 s{sT3}, s{sC}, 8", f"s_add_u32 s{sT2}, s{sT2}, s{sT3}"] + self.srd(sEA, 12, f"s{sT2}", 1048576) + [f"s_sub_u32 s{sEA+2}, s{sEA+2}, s{sT3}"]
    def tail_w2(self):
        return [f"s_lshl_b32 s{sCNT}, s{sWAVE}, 11", f"s_add_u32 s{sT0}, s{sC}, 2", f"s_and_b32 s{sT0}, s{sT0}, 3", f"s_lshl_b32 s{sSL}, s{sT0}, 18",
                f"s_add_u32 s{sT0}, s{sC}, 3", f"s_and_b32 s{sT0}, s{sT0}, 3", f"s_lshl_b32 s{sB}, s{sT0}, 18"]
    def tail_src(self):
        L = []
        for x in range(3):
            L += [f"s_mul_i32 s{sT1}, s{sWAVE}, 3", f"s_add_u32 s{sT1}, s{sT1}, {x+4}", f"s_lshr_b32 s{sT2}, s{sT1}, 2", f"s_add_u32 s{sT2}, s{sT2}, s{sC}",
                  f"s_and_b32 s{sT2}, s{sT2}, 3", f"s_mul_i32 s{sT2}, s{sT2}, 73728", f"s_and_b32 s{sT1}, s{sT1}, 3", f"s_lshl_b32 s{sT1}, s{sT1}, 10",
                  f"s_add_u32 s{sT1}, s{sT1}, s{sT2}", f"s_add_u32 s{sT1}, s{sT1}, {O_OFF - x*1024}", f"v_add_u32 v{vF[x]}, s{sT1}, v{vL16}"]
        return L
    def tail_own(self, att=True):
        L = [f"s_lshl_b32 s{sT1}, s{sWAVE}, 12", f"s_add_u32 s{sT1}, s{sT1}, 131072", f"v_bfe_u32 v{vTB}, v1, 2, 2", f"v_lshlrev_b32 v{vTB}, 10, v{vTB}", f"v_lshrrev_b32 v{vTC}, 4, v1",
             f"v_lshl_add_u32 v{vTB}, v{vTC}, 6, v{vTB}", f"v_add_u32 v{vTB}, s{sT1}, v{vTB}", f"v_and_b32 v{vTC}, 3, v1", f"v_lshl_add_u32 v{vW2}, v{vTC}, 4, v{vTB}",
             f"v_xor_b32 v{vTC}, 2, v{vTC}", f"v_lshl_add_u32 v{vTB}, v{vTC}, 4, v{vTB}", f"v_add_u32 v{vW2+1}, 15360, v{vTB}",
             f"v_add_u32 v{vTB}, 65536, v{vL16}", f"v_add_u32 v{vTC}, 131072, v{vL16}"]
        for p in range(4):
            L += [f"s_add_u32 s{sT1}, s{sKQ}, {p+1}", f"s_and_b32 s{sT1}, s{sT1}, 3", f"s_lshl_b32 s{sT1}, s{sT1}, 13", f"s_add_u32 s{sT1}, s{sT1}, {HAND1}", f"v_add_u32 v{vE+p}, s{sT1}, v{vL16}"]
        if att:
            L += [f"s_mul_i32 s{sT0}, s{sWAVE}, 3", f"s_lshl_b32 s{sT1}, s{sKQ}, 1", f"s_sub_u32 s{sT1}, s{sT0}, s{sT1}"]
            for qt in range(3):
                L += [f"s_add_u32 s{sT2}, s{sT1}, {qt+6}", f"s_and_b32 s{sT2}, s{sT2}, 7"]
                if qt == 2: L += [f"s_cmp_eq_u32 s{sWAVE}, 2", f"s_cselect_b32 s{sT2}, 8, s{sT2}"]
                L += [f"s_lshl_b32 s{sT2}, s{sT2}, 12", f"v_add_u32 v{vOW+qt}, s{sT2}, v{vL16}"]
        return L
    ORDER = (8, 0, 1, 2, 3, 4, 5, 6, 7)
    STEPS = [(0, i, 0) for i in range(9)] + [(1, i, 0) for i in range(9)] + [(r, i, s) for r in range(2) for i in (8, 0, 1, 2, 3, 4, 5, 6, 7) for s in (1, 2, 3)]
    def rd(self, j):
        r, i, s = self.STEPS[j]
        o = (OU if r else EU)[self.ORDER.index(i)] + (s - 1) * 4096 if s else OWN + i * 4096 if r else HAND1 + 32768
        v, o = (vE + (i >> 1), (i & 1) * 4096) if not r and not s and i < 8 else ((vL16, vTB, vTC)[o >> 16], o & 65535)
        return [f"ds_read_b128 {vr(vBF[j % 3]+4*k)}, v{v} offset:{o+k*1024}" for k in range(4)]
    def acc(self, u, i): return vTA + 36 * u + 4 * i
    def fetch(self, r, n):
        L = [f"s_add_u32 s{sT2}, s{sT2}, 4096", f"s_and_b32 s{sT2}, s{sT2}, 0x7fff"] if n else []
        if r: L += [f"s_add_u32 s{sT3}, s{sT2}, 36864" if n else f"s_mov_b32 s{sT3}, {32768 + 36864}"]
        return L + [f"s_add_u32 m0, s{sT4}, {(OU if r else EU)[n]}"], [self.dma(vF[x], sOB, sT3 if r or not n else sT2, x * 1024, self.olp) for x in range(3)]
    def tstep(self, j, who, at={}, R=[], tags={}):
        r, i, s = self.STEPS[j]
        self.a(f"s_waitcnt lgkmcnt({self.lwait(j)})")
        mf = [f"{MF} {vr(self.acc(u,i))}, {ar(aW[r]+8*(4*s+k)+4*u)}, {vr(vBF[j % 3]+4*k)}, {vr(self.acc(u,i)) if j >= 9 or k else 0}" for k in range(4) for u in range(2)]
        f = {g: [] for g in range(8)}
        if j + 2 < 72:
            for g, x in zip(self.o.get("rg", (0, 1, 3, 4)), self.rd(j + 2)): f[g].append(x)
        busy = any(map(isvm, at.get(6, []) + at.get(7, [])))
        for g in ((2, 5) if busy else (2, 6)) if self.rate(j) == 2 else (2,) if busy else (5,):
            if self.fq:
                X, y, t = self.fq.pop(0)
                for n, x in enumerate(reversed(X)): f[max(0, g - 1 - n // 2)].insert(len(f[max(0, g - 1 - n // 2)]) - n % 2, x)
                f[g].append(y); tags = {**tags, y + str(g): t}
        for g, L in at.items(): f[g] += L
        for g in range(8):
            while R and (len(f[g]) + sum(map(isvm, f[g])) < 2 or R[0].startswith("s_cselect")): f[g].append(R.pop(0))
        for g in range(8):
            for n, x in enumerate(f[g]):
                if x == "@o": f[g][n] = f"s_waitcnt vmcnt({self.vwait(['o'], [True])})"
                if x.startswith("ds_"): self.ql.append(j + 2 if x.startswith("ds_read_b128") else "w")
                if isvm(x):
                    for w in who: self.qt[w].append(tags.get(x, tags.get(x + str(g))))
        self.weave(mf, f)
    def rate(self, j): return 2 if j < self.o.get("r2", 10) or 10 <= j < 10 + self.o.get("r4", 4 if self.NP == 8 else 0) or self.B3 <= j < self.B3 + self.o.get("r3", 3) else 1
    def fpush(self, r, n):
        if r == 2:
            X, Y = [f"s_add_u32 m0, s{sCNT}, {WC[n]}", f"s_add_u32 s{sT3}, s{sB if n >= 12 else sSL}, {(n & 3) << 15}"], [self.dma(vW2 + k, sEA, sT3, k * 1024, self.P("wpol")) for k in range(2)]
        else: X, Y = self.fetch(r, n)
        self.fq += [(X if not k else [], y, ("EOW"[r], n)) for k, y in enumerate(Y)]
    def lwait(self, t):
        return min(15, len(self.ql) - 1 - max(n for n, x in enumerate(self.ql) if x == t))
    def vwait(self, ts, who=(True, False)):
        return min([63] + [len(self.qt[w]) - 1 - n for w in who for n, x in enumerate(self.qt[w]) if x in ts and x not in self.qt[w][n+1:]])
    def tail_regs(self):
        L = []
        for j, s in enumerate((sS0, sS1, sS2)):
            L += [f"s_add_u32 s{sT0}, s{sWID}, {4*(j+1)}", f"s_and_b32 s{sT0}, s{sT0}, 15", f"s_and_b32 s{sT1}, s{sWID}, 0xf0", f"s_add_u32 s{sT0}, s{sT0}, s{sT1}",
                  f"s_mul_i32 s{sT0}, s{sT0}, 36864", f"s_add_u32 s{sT1}, s{sWAVE}, {4*j}", f"s_mul_i32 s{sT1}, s{sT1}, 3072", f"s_add_u32 s{s}, s{sT0}, s{sT1}"]
        L += [f"s_sub_u32 s{sT0}, s{sWAVE}, s{sKQ}", f"s_and_b32 s{sT0}, s{sT0}, 3", f"s_cmp_eq_u32 s{sT0}, 1", f"s_cselect_b32 s{sS8}, s{sS0}, s{sS1}",
              f"s_cmp_eq_u32 s{sT0}, 3", f"s_cselect_b32 s{sS8}, s{sS2}, s{sS8}", f"s_add_u32 s{sS8}, s{sS8}, 2048",
              f"s_cmp_eq_u32 s{sT0}, 0", f"s_cselect_b32 s{sS8}, {OOB:#x}, s{sS8}"]
        L += ["v_bfe_u32 v19, v1, 2, 2", "v_lshrrev_b32 v20, 4, v1", "v_cmp_eq_u32 vcc, v19, v20", "v_and_b32 v19, 1, v1", "v_lshlrev_b32 v19, 4, v19",
              "v_mov_b32 v20, 0x3f80", "v_lshlrev_b32 v19, v19, v20", "v_cndmask_b32 v19, 0, v19, vcc", "v_and_b32 v20, 2, v1", "v_cmp_eq_u32 vcc, 0, v20",
              f"v_mov_b32 v{vSEL+2}, 0", f"v_mov_b32 v{vSEL+3}, 0", f"v_cndmask_b32 v{vSEL}, 0, v19, vcc", f"v_sub_u32 v{vSEL+1}, v19, v{vSEL}",
              f"v_mov_b32 v{vSEL+4}, 0", f"v_mov_b32 v{vSEL+5}, 0", f"v_mov_b32 v{vSEL+6}, v{vSEL}", f"v_mov_b32 v{vSEL+7}, v{vSEL+1}"]
        L += ["v_and_b32 v19, 3, v1", "v_min_u32 v19, 2, v19", f"v_lshlrev_b32 v{vP2}, 7, v19",
              f"v_add_u32 v20, s{sKQ}, v19", "v_add_u32 v20, 1, v20", "v_and_b32 v20, 3, v20", "v_lshlrev_b32 v20, 15, v20", f"v_add_u32 v{vS2}, v20, v{vP2}",
              f"v_add_u32 v{vP2}, 4096, v{vP2}",
              "v_and_b32 v19, 15, v1", "v_lshlrev_b32 v19, 10, v19", "v_lshrrev_b32 v20, 4, v1", "v_lshl_add_u32 v19, v20, 4, v19",
              f"s_lshl_b32 s{sT0}, s{sWAVE}, 6", f"v_add_u32 v{vOUT}, s{sT0}, v19"]
        return [x.replace("v19", "v13").replace("v20", "v14") for x in L]
    def poll(self, name, line0, who=sWAVE):
        self.a(f"""s_lshl_b32 s{sT2}, s{sWID}, 13
        s_lshl_b32 s{sT1}, s{who}, 9
        s_add_u32 s{sT2}, s{sT2}, s{sT1}
{name}:""")
        self.emit(self.budget(name + "ok"))
        self.a(f"""buffer_load_dwordx2 v[2:3], v{vP2}, {sr(sFL)}, s{sT2} offen offset:{line0*128 & 4095} sc1
        s_waitcnt vmcnt(0)
        v_cmp_ne_u64 vcc, s[{sTK}:{sTK+1}], v[2:3]
        s_cbranch_vccnz {name}
{name}ok:""")
    def tail(self):
        a = self.a
        a("L_tail:")
        acc = self.acc
        def send(i, n):
            t = vRC + 4 * (n & 1)
            so = sS8 if i == 8 else (sS0, sS1, sS2)[i >> 1]
            return [f"v_cvt_pk_bf16_f32 v{t+2*u+x}, v{acc(u,i)+2*x}, v{acc(u,i)+2*x+1}" for u in range(2) for x in range(2)] + \
                   [f"buffer_store_dwordx4 {vr(t)}, v{vL16}, {sr(sPT)}, s{so} offen offset:{0 if i == 8 else (i&1)*1024} {self.P('psc', 'sc1')}"]
        B3 = self.B3; PA = self.o.get("pa", 10); FL = self.o.get("fl", 8)
        a(f"""s_mul_i32 s{sT4}, s{sWAVE}, 3072
        s_lshl_b32 s{sT2}, s{sKQ}, 13
        s_add_u32 s{sT2}, s{sT2}, 4096
        s_mov_b32 s{sT3}, 32768""")
        self.ql = [0] * 4 + [1] * 4; self.fq = []
        self.qt = {True: ["o"] * 12, False: [("W", n) for n in WD for _ in range(8)]}
        def groups(x):
            x = [int(c) for c in str(x)[1:]] + [9]
            return {x[k]: list(range(x[k + 1])) for k in range(len(x) - 1)}
        bar = {B3: []}
        for n, L in groups(self.o.get("eg", 1024578 if self.NP == 12 else 10124578)).items(): bar[16 + 3 * n] = [("E", x) for x in L]
        for n, L in groups(self.o.get("og", 101357)).items(): bar[43 + 3 * n] = [("O", x) for x in L]
        late = self.o.get("dl", 1) and self.NP == 8
        if late: bar[10] = []; self.qt[False] = []
        pul = {22: WE} if self.NP == 12 else {16: WD, 22: WE} if late else {self.o.get("pd", 10): WD, self.o.get("pe", 16): WE}
        held = []
        for j, L in pul.items():
            bar[j] = bar.get(j, []) + [("W", n) for n in L]
            held += [(WC[n], 8192, j + 5) for n in L]
        for j, (r, i, s) in enumerate(self.STEPS):
            held.append(((OU if r else EU)[self.ORDER.index(i)], 12288, j) if s else (OWN + i * 4096, 4096, j) if r else (HAND1, 36864, j))
        todo = [(0, n) for n in range(9)] + [(1, n) for n in range(9)]
        n0 = 4 if self.NP == 12 else 1
        todo[n0:n0] = [(2, n) for n in (WD if late else []) + WE]
        poll = f"buffer_load_dwordx2 v[2:3], v{vPL}, {sr(sFL)}, s{sIT} offen offset:2048 sc1"
        nst = 0; R = self.tail_w2(); nw2 = len(R); R += [f"s_lshl_b32 s{sIT}, s{sWID}, 13"] + self.tail_regs(); nw2 = len(R) - nw2; seen = 0; W2 = (True, False); P = []
        def nextf(j):
            if not todo: return None
            r, n = todo[0]
            if r == 2: return todo.pop(0) if len(R) <= nw2 else None
            first = 18 + 27 * r + 3 * n; o = (OU if r else EU)[n]
            if r and seen < B3 or max([-1] + [x for p, l, x in held if x < first and p < o + 12288 and o < p + l]) >= seen: return None
            return todo.pop(0)
        for j in range(72):
            r, i, s = self.STEPS[j]
            if j == B3:
                assert not R and not self.fq
                a(f"""s_cmp_lg_u32 s{sWAVE}, 3
                s_cbranch_scc1 L_p1ok
                s_waitcnt vmcnt({self.vwait(["p"])})
L_p1:
                v_cmp_ne_u64 vcc, s[{sTK}:{sTK+1}], v[2:3]
                s_cbranch_vccnz L_p1b
L_p1ok:
                s_lshl_b32 s{sT2}, s{sKQ}, 13
                s_add_u32 s{sT2}, s{sT2}, 4096""")
                self.ool += ["L_p1b:"] + self.budget("L_p1ok") + [poll, "s_waitcnt vmcnt(0)", "s_branch L_p1"]
            if j in bar:
                assert not any(t in bar[j] for X, y, t in self.fq) and not any(("EOW"[r_], n) in bar[j] for r_, n in todo), j
                if bar[j]: a(f"s_waitcnt vmcnt({self.vwait(bar[j])})")
                a("s_barrier")
                seen = j
            self.stamp("p1" if j == B3 else f"d{(j - 43) // 3}" if j >= 43 and j in bar else f"j{j}")
            while True:
                fe = nextf(j)
                if not fe: break
                self.fpush(*fe)
            if self.o.get("v"): print(j, "B" if j in bar else " ", [t for X, y, t in self.fq[:self.rate(j)]])
            at = {}
            if j == B3 - PA: at[7] = [poll]
            if j == FL:
                F = self.oflag(1, "", sREDO, sROT)
                G = F[:7] + [f"s_cmp_eq_u32 s{sWAVE}, 3", f"s_cselect_b32 s{sREDO}, {OOB:#x}, s{sREDO}"] + F[7:10]
                at = {g: x for g, x in zip((0, 1, 3, 4, 5), self.split(G, 5))}
                at[7] = [f"s_cmp_eq_u32 s{sWAVE}, 3", "s_cbranch_scc1 L_nw", "@o", "L_nw:"] + F[11:]
            if j >= 48 and s == 1 and self.STEPS[j - 1][1] not in (6, 7):
                X = send(self.STEPS[j - 1][1], nst); nst += 1
                at = {4: X[:1], 5: X[1:3], 6: X[3:]}
            if j - 5 in pul: assert not P
            if j in pul: P = self.pulls(pul[j])
            self.tstep(j, W2, at, P if P else R if j != FL else [], {poll: "p"})
            if j == FL: self.stamp("ack")
        assert not R and nst == 7 and not todo
        self.stamp("mf")
        a(f"""s_and_b32 s{sT0}, s{sWID}, 0xf3
        s_lshl_b32 s{sT0}, s{sT0}, 13
        s_lshl_b32 s{sT1}, s{sWAVE}, 9
        s_add_u32 s{sT0}, s{sT0}, s{sT1}
        s_add_u32 s{sT0}, s{sT0}, 4096
        v_mov_b32 v2, s{sTK}
        v_mov_b32 v3, s{sTK+1}
        s_mov_b64 exec, 7
        s_waitcnt vmcnt(0)
        buffer_store_dwordx2 v[2:3], v{vS2}, {sr(sFL)}, s{sT0} offen sc1
        s_mov_b64 exec, -1""")
        self.poll("L_poll2", 0)
        self.stamp("p2")
        a(f"""s_mul_i32 s{sT0}, s{sWID}, 36864
        s_mul_i32 s{sT1}, s{sWAVE}, 3072
        s_add_u32 s{sT0}, s{sT0}, s{sT1}
        s_lshl_b32 s{sT2}, s{sKQ}, 15
        s_cmp_eq_u32 s{sWAVE}, s{sKQ}
        s_cselect_b32 s{sT3}, 0, {OOB:#x}""")
        for j in range(3):
            if j: a(f"s_add_u32 s{sT0}, s{sT0}, 12288")
            a(f"s_or_b32 s{sT1}, s{sT0}, s{sT3}")
            for u in range(3):
                a(f"buffer_load_dwordx4 {vr(vRC+12*j+4*u)}, v{vL16}, {sr(sPT)}, s{sT1 if u == 2 else sT0} offen offset:{u*1024} {self.P('plpol', 'sc1')}")
        for j in range(3):
            a(f"s_waitcnt vmcnt({6-3*j})")
            for u, i in enumerate((6, 7, 8)):
                for x in range(2):
                    a(f"{MF} {vr(acc(x,i))}, {vr(vSEL+4*x)}, {vr(vRC+12*j+4*u)}, {vr(acc(x,i))}")
        a(f"""s_add_u32 s{sT1}, s{sT2}, 16384
        s_or_b32 s{sT3}, s{sT3}, 131072
        s_nop 1""")
        for n, (i, so) in enumerate(((6, sT2), (7, sT1), (8, sT3))):
            t = vBF[0] + 4 * n
            if n == 2: a("s_nop 1")
            for u in range(2):
                for x in range(2): a(f"v_cvt_pk_bf16_f32 v{t+2*u+x}, v{acc(u,i)+2*x}, v{acc(u,i)+2*x+1}")
            a(f"buffer_store_dwordx4 {vr(t)}, v{vOUT}, {sr(sOUT)}, s{so} offen {self.P('opol')}")
        if self.o.get("stamps"):
            a("s_waitcnt vmcnt(0)")
            if self.o.get("sm") not in ("s", "r", "c", "p", "o"): self.inh = self.inh and self.o.get("sm") != "h"; self.stamp("end")
            if self.o.get("amp"):
                i = self.o["amp"]
                a(f"""s_waitcnt lgkmcnt(0)
                s_cmp_lg_u32 s{sWAVE}, {self.o.get("ampw", 0)}
                s_cbranch_scc1 L_noamp
                s_and_b32 s{sT0}, s2, {self.o.get("ampm", 0)}
                s_cmp_lg_u32 s{sT0}, {self.o.get("ampv", 0)}
                s_cbranch_scc1 L_noamp
                s_sub_u32 s{sT0}, s{sSTAMP+2*i}, s{sSTAMP+2*self.o.get("amp0", 0)}
                s_min_u32 s{sT0}, s{sT0}, 20000
                s_mul_i32 s{sT0}, s{sT0}, {self.o.get("ampk", 10)}
                s_add_u32 s{sT0}, s{sT0}, 10000
L_amp:
                s_memrealtime s[{sT2}:{sT2+1}]
                s_waitcnt lgkmcnt(0)
                s_sub_u32 s{sT1}, s{sT2}, s{sSTAMP}
                s_cmp_lt_u32 s{sT1}, s{sT0}
                s_cbranch_scc1 L_amp
L_noamp:
                s_endpgm""")
            if self.o.get("dbg"):
                a("s_waitcnt lgkmcnt(0)")
                self.emit(self.srd(sDB, 16, 0, 256))
                a(f"""s_cmp_eq_u32 s{sWAVE}, 3
                s_cselect_b32 s{sT0}, 28, 0
                s_mov_b64 exec, 1
                v_mov_b32 v5, 0
                s_add_u32 s{sT1}, s{sWAVE}, 1
                s_and_b32 s{sT1}, s{sT1}, 2
                s_cbranch_scc1 L_nodbg""")
                for i in range(1, 8):
                    a(f"s_sub_u32 s{sT1}, s{sSTAMP+2*i}, s{sSTAMP}\nv_mov_b32 v6, s{sT1}\nbuffer_atomic_add v6, v5, {sr(sDB)}, s{sT0} offen offset:{4*i} sc1")
                a(f"""s_not_b32 s{sT1}, s{sSTAMP}
                v_mov_b32 v6, s{sT1}
                v_mov_b32 v7, s{sSTAMP+14}
                buffer_atomic_umax v6, v5, {sr(sDB)}, 0 offen offset:60 sc1
                s_waitcnt vmcnt(0)
L_nodbg:
                s_endpgm""")
            a(f"""s_waitcnt lgkmcnt(0)
            s_mov_b32 s{sO}, s18
            s_and_b32 s{sO+1}, s19, 0xffff
            s_mov_b32 s{sO+2}, 536870912
            s_mov_b32 s{sO+3}, 0x00020000
            s_lshl_b32 s{sT0}, s2, 8
            s_lshl_b32 s{sT1}, s{sWAVE}, 6
            s_add_u32 s{sT0}, s{sT0}, s{sT1}
            s_add_u32 s{sT0}, s{sT0}, {256<<20}
            v_mov_b32 v5, 0""")
            a("v_mov_b32 v15, v18")
            for i in range(16): a(f"v_mov_b32 v{16+i}, s{sSTAMP+i}")
            a("s_mov_b64 exec, 1")
            for i in range(4): a(f"buffer_store_dwordx4 {vr(16+4*i)}, v5, {sr(sO)}, s{sT0} offen offset:{16*i}")
            if self.o.get("tl"):
                a(f"""s_mov_b64 exec, -1
                s_cmp_lg_u32 s{sWAVE}, 3
                s_cbranch_scc1 L_notl
                s_lshl_b32 s{sT0}, s2, 8
                s_add_u32 s{sT0}, s{sT0}, {257<<20}
                v_lshlrev_b32 v5, 2, v1
                buffer_store_dword v15, v5, {sr(sO)}, s{sT0} offen
L_notl:""")
        a("s_endpgm")

    def kernel(self):
        self.inh = True
        self.dry = True; self.helper(); self.dry = False
        self.prologue()
        self.helper()
        self.inh = False; self.attention(); self.inh = self.o.get("sm") in ("g", "s", "r", "c", "p", "o", "h") and self.o.get("gh", 1)
        self.tail()
        self.emit(self.ool)
        self.a("L_end:\ns_endpgm")
        return self.a.text()

def build(opt):
    g = Gen(opt)
    t = g.kernel()
    if opt.get("v"): print(g.cnt)
    src = open("standalone__gqa_block_cached__near_ridge.s.ref").read().split("; Override launch")[0]
    return src + header([(KN, 256, 256, LDS)]) + kstart(KN) + t + rodata([kdesc(KN, 256, 256)])

if __name__ == "__main__":
    opt = {}
    out = sys.argv[1]
    for x in sys.argv[2:]:
        k, _, v = x.partition("=")
        opt[k] = int(v) if v.lstrip("-").isdigit() else (v if v else True)
    t = build(opt)
    open(out, "w").write(t)
    print("hazards:", hazard.check(t), "bytes:", len(t))
```

```python
import sys, struct
from asmlib import *
import hazard

SLOT = 16384; NSL = 7; RING = NSL * SLOT
CH = 17408
SYNC = 162560
LAND, PROG, MISC = SYNC, SYNC + 256, SYNC + 1024
PB = 2 * CH
QP = [SYNC - (4 - i) * PB for i in range(4)]
QC = [QP[2], QP[3], QP[1]]
CBX = QP[3]; CBW = CBX + 18432
HAND1 = 122880
OWN = 49152
EU = [12288 * i for i in (9, 10, 11, 12, 4, 5, 6, 11, 12)]
OU = [12288 * i for i in (2, 3, 9, 10, 0, 1, 7, 8, 4)]
WC = [(4 + n // 2) % 7 * SLOT + n % 2 * 8192 for n in range(12)] + [0, 8192, 86016, 94208]
WA, WB_, WD, WE = [0, 1, 2, 3], [4, 5, 6, 7], [8, 9, 10, 11], [12, 13, 14, 15]
NW = 8
LDS = 163840
O_OFF = 4096
PT_OFF = 24 << 20
FL_OFF = 40 << 20
CSC = struct.unpack("<I", struct.pack("<f", 1.4426950408889634 * 128 ** -0.5))[0]
THR = 0x4b800000
OOB = 0x80000000
MF = "v_mfma_f32_16x16x32_bf16"

def vr(b, n=4): return f"v[{b}:{b+n-1}]"
def ar(b, n=4): return f"a[{b}:{b+n-1}]"
def sr(b, n=4): return f"s[{b}:{b+n-1}]"

sWAVE = 3
sEB, sK, sV, sEA, sO, sOB, sPT, sOUT, sFL, sDB = 20, 24, 28, 32, 36, 40, 44, 48, 52, 56
(sT0, sT1, sT2, sT3, sT4, sOFF, sSL, sB, sIT, sCNT, sREDO, sROT, sCS, sKS, sPUB, sBUD, sKQ, sC, sBB, sWID,
 sP1, sP2, sP3, sP4) = range(60, 84)
sSTAMP = 84
sP5, sP6 = 100, 101
sS0, sS1, sS2, sS8 = sP1, sP2, sP3, sP4
sTGT = sPUB
sTK = 4
sAL, sLD, sRT, sPX = 6, 7, 8, 9
sRG, sR1 = sP5, sP6
sWO, sWM, sWS = sP1, sP2, sP3
sH = [sO, sO + 1, sO + 2, sO + 3]
sPF = sO
sXB, sXA = sDB, sDB + 2
sPO = sPUB
sG = [sO, sO + 1, sO + 2, sO + 3, sPUB]
sQD, sXM, sXS, sEX = sKS, sOFF, sB, sP1
vL16, vLA, vPA = 5, 6, 7
vPR, vLD, vRK, vRV0, vRV1, vRKb, vRV0b, vRV1b = 8, 9, 10, 11, 12, 13, 14, 15
vS, vNM, vONE, vMS = 16, 40, 52, 56
vTMP, vQ, vO, vL = 64, 80, 128, 224
vQB, vDXq = 24, 19
aK, aV, aQF = 0, 64, 128
vKV = 2
vPV, vPB, vDX, vDW, vW0, vW1, vXR, vSC, vFA, vFV = 8, 9, 10, 19, 23, 24, 25, 26, 28, 16
vXR1 = 14
vDW1, vEO = 48, 80
aB2 = 208
vHACC = 32; aHACC = 0; aHF = 72; vHT = 248
vTB, vTC = 236, 237
vE = 238
vF = (242, 243, 244)
vOW = 245
vW2 = 248
vPL = 232
vP2, vOUT = 10, 12
vBF, vSEL, vRC, vTA = (16, 32, 80), 96, 112, 160
aW = (128, 0)

def S(qt, kt=0): return vS + 8 * qt + 4 * kt
def Kf(p, kt, ks): return aK + 32 * p + 16 * kt + 4 * ks
def Vf(p, dt): return aV + 32 * p + 4 * dt
def Qf(qt, ks): return vQ + 16 * qt + 4 * ks
def Oa(qt, dt): return vO + 32 * qt + 4 * dt
PK = (vTMP, Oa(0, 0), Oa(0, 4))
def isvm(x): return x.startswith("buffer_")

class Gen:
    def __init__(self, opt):
        self.o = opt
        self.a = A()
        self.ool = []
        self.nlab = 0
        self.D = opt.get("d", 5)
        self.S0 = 41
        wp = [int(x) for x in str(opt.get("wp", 2221))]; n = 0; self.ride = {}; self.WB = []
        for G in range(4 * opt.get("wb", 41), 260):
            self.ride[G] = list(range(n, min(16 * NW, n + wp[G % len(wp)]))); n += len(self.ride[G])
            if n >= 16 * (len(self.WB) + 1): self.WB.append(max(G >> 2 | 1, self.WB[-1] + 2 if self.WB else 0))
        assert len(self.WB) == NW and self.WB[-1] <= 63, self.WB
        self.item = [j + sum(b < j for b in self.WB) for j in range(66)]; self.witem = [b + m + 1 for m, b in enumerate(self.WB)]
        self.slot = [i for lap in (7, 7, 7, 7, 7, 9, 9, 9, 7, 4) for i in range(lap)]
        self.need = [17 + max([t for t in range(i) if self.slot[t] == self.slot[i]] + [-17]) for i in range(73)]
        self.KS = opt.get("ks", 6)
        self.KG = opt.get("kg", 2)
        self.pol = self.P("pol", "nt")
        self.osc = self.P("osc", "sc1")
        self.olp = self.P("olpol", "sc1")
        self.B3 = opt.get("b3", 28)
        self.dry = False
        self.cnt = {}; self.inc = {}
    def P(self, k, d=""):
        v = self.o.get(k, d)
        return "" if v == "none" else v.replace("+", " ")
    STM = {"m": "start c0 q0 it0 it1 b3 p1 end", "t": "start it1 p1 b3 d0 mf p2 end", "q": "start karg iss bar c0 c8 q0 end", "u": "start it1 b1 b2 ack b3 p1 end",
           "g": "start g00 g03 g06 g10 g13 g16 end", "s": "start c15i G4 G8 G12 G16 G20 g00", "r": "start g06 G128 G136 G144 s0 it0 g10", "e": "start G260 l81 w4 pe it1 b1 y", "f": "start fin it1 p1 fs mf p2 end", "h": "start l81 wd w3 w4 w6 c15 pe", "j": "start b1 j10 j16 p1 d0 j58 mf", "w": "start b3 d0 d1 d3 d5 d7 mf",
           "c": "start c0 c1 c2 c3 c4 c6 c12", "p": "start G20 p00 p02 p04 p10 p13 g00", "o": "start s0 p00 p02 p04 p10 p13 g10"}
    def stamp(self, name):
        if self.o.get("sm") in ("k", "l"):
            nm = ("start g00 g06 g10" if self.o["sm"] == "k" else "start g10 g16 end").split()
            if name in nm and not self.dry:
                i = nm.index(name)
                self.a(f"s_memrealtime s[{sSTAMP+2*i}:{sSTAMP+2*i+1}]\ns_memtime s[{sSTAMP+8+2*i}:{sSTAMP+9+2*i}]")
            return
        names = self.STM[self.o.get("sm", "m")].split()
        if self.o.get("sm") == "g" and not self.inh: names = "start q0 it0 it1 b3 p1 mf end".split()
        if self.o.get("sm") == "s" and not self.inh: names = "start c0 c8 q0 k0 st0 it0 x".split()
        if self.o.get("sm") == "c" and not self.inh: names = "start c0 c2 c4 c8 c12 c16 q0".split()
        if self.o.get("sm") in ("p", "o") and not self.inh: names = "start q0 k0 st0 st1 it0 x y".split()
        if self.o.get("sm") == "r" and not self.inh: names = "start fin epi it0 st0 ofl st1 x".split()
        if self.o.get("sm") in ("e", "h") and not self.inh: names = "start fin it1 b1 ack pq p1 end".split()
        if name not in names: return
        i = names.index(name)
        if self.o.get("stamps") == 3 and not self.dry:
            self.a(f"s_sub_u32 s{sSTAMP+2*i}, {1 << 22}, s{sBUD}\ns_mov_b32 s{sSTAMP+2*i+1}, 0" if i else f"s_mov_b64 s[{sSTAMP}:{sSTAMP+1}], 0")
        elif self.o.get("stamps") and not self.dry:
            op = "s_memtime" if self.o.get("stamps") == 2 else "s_memrealtime"
            self.a(f"{op} s[{sSTAMP+2*i}:{sSTAMP+2*i+1}]")
    def stampl(self, name):
        sv = self.a; self.a = A(); self.stamp(name); L = [x.strip() for x in self.a.l]; self.a = sv
        return L
    def emit(self, L):
        if self.dry: return
        for x in L: self.a(x)
    def e(self, s):
        if not self.dry: self.a(s)
    def lab(self, p):
        self.nlab += 1
        return f"L_{p}{self.nlab}"
    def weave(self, mf, fills):
        L = list(fills.get(-1, []))
        for i, m in enumerate(mf):
            L.append(m); L += fills.get(i, [])
        self.emit(L)
    def spread(self, mf, items):
        if not mf:
            self.emit(items); return
        n = len(mf); f = {}
        for k, x in enumerate(items):
            f.setdefault(min(n - 1, k * n // max(1, len(items))), []).append(x)
        self.weave(mf, f)
    def srd(self, d, lo, off, nrec):
        return [f"s_add_u32 s{d}, s{lo}, {off}", f"s_addc_u32 s{d+1}, s{lo+1}, 0", f"s_and_b32 s{d+1}, s{d+1}, 0xffff",
                f"s_mov_b32 s{d+2}, {nrec}", f"s_mov_b32 s{d+3}, 0x00020000"]
    def dma(self, v, srd, soff, imm, pol=""):
        return " ".join(f"buffer_load_dwordx4 v{v}, {sr(srd)}, {'0' if soff is None else f's{soff}'} offen offset:{imm} {pol} lds".split())
    def budget(self, ret):
        return [f"s_sub_i32 s{sBUD}, s{sBUD}, 1", f"s_cmp_lt_i32 s{sBUD}, 0", f"s_cbranch_scc1 {ret}"]

    def prologue(self):
        a = self.a
        a(f"""s_cmp_ge_u32 s2, 256
        s_cbranch_scc1 L_end
        s_load_dwordx16 s[4:19], s[0:1], 0""")
        self.stamp("start")
        if self.o.get("cpf", 1):
            a(f"""s_getpc_b64 s[{sO}:{sO+1}]
            s_lshr_b32 s{sT0}, s2, 3
            s_and_b32 s{sO}, s{sO}, 0xffffff00
            s_and_b32 s{sO+1}, s{sO+1}, 0xffff
            s_mov_b32 s{sO+2}, L_end-{KN}
            s_mov_b32 s{sO+3}, 0x00020000
            s_mul_i32 s{sT0}, s{sT0}, 2304
            v_lshlrev_b32 v1, 7, v0
            v_cmp_gt_u32 vcc, 18, v0
            s_and_saveexec_b64 s[{sT2}:{sT2+1}], vcc
            s_cbranch_execz L_nopf
            buffer_load_dword v232, v1, {sr(sO)}, s{sT0} offen
L_nopf:
            s_mov_b64 exec, -1""")
        a(f"""v_lshrrev_b32 v2, 6, v0
        v_and_b32 v1, 63, v0
        s_bfe_u32 s{sT1}, s2, 0x30003
        v_readfirstlane_b32 s{sWAVE}, v2
        s_and_b32 s{sT0}, s2, 1
        s_lshl_b32 s{sT0}, s{sT0}, 3
        s_add_u32 s{sBB}, s{sT0}, s{sT1}          ; b
        s_lshr_b32 s{sC}, s2, 6                   ; c
        s_bfe_u32 s{sKQ}, s2, 0x20001             ; kq
        s_lshl_b32 s{sT1}, s{sT1}, 1
        s_lshl_b32 s{sT2}, s{sC}, 2
        s_add_u32 s{sROT}, s{sT1}, s{sT2}
        {f"s_mov_b32 s{sROT}, 0" if self.o.get("norot") else ""}
        s_lshl_b32 s{sT2}, s{sKQ}, 2
        s_add_u32 s{sT2}, s{sT2}, s{sC}           ; hp
        s_lshl_b32 s{sWID}, s{sBB}, 4
        s_add_u32 s{sWID}, s{sWID}, s{sT2}        ; b*16 + hp
        v_lshrrev_b32 v2, 4, v1                   ; g
        v_bfe_u32 v3, v1, 2, 2                    ; r
        v_and_b32 v4, 3, v1                       ; c
        s_mov_b32 s{sBUD}, {1 << 22}""")
        a(f"""v_lshrrev_b32 v30, 3, v1
        v_and_b32 v31, 7, v1
        v_xor_b32 v31, v31, v30
        v_lshlrev_b32 v31, 4, v31
        v_lshl_add_u32 v{vDW}, v30, 10, v31
        v_lshlrev_b32 v30, 13, v3
        v_lshl_add_u32 v30, v2, 6, v30
        v_xor_b32 v31, 2, v4
        v_lshl_add_u32 v31, v31, 4, v30
        v_lshl_add_u32 v30, v4, 4, v30
        s_mul_i32 s{sT0}, s{sBB}, 147456
        s_mul_i32 s{sT1}, s{sWAVE}, 49152
        s_add_u32 s{sT0}, s{sT0}, s{sT1}
        s_lshl_b32 s{sT2}, s{sT2}, 9
        s_mul_i32 s{sXM}, s{sWAVE}, 6144
        s_lshr_b32 s{sXS}, s{sROT}, 1
        s_cmp_ge_u32 s{sXS}, 7
        s_cselect_b32 s{sT1}, 6, -1
        s_sub_u32 s{sXS}, s{sXS}, s{sT1}            ; second pair 1 + ((b & 7) + 2c) % 7
        s_add_u32 m0, s{sXM}, {QC[0]}
        s_mov_b32 s{sT4}, 7168
        s_mov_b32 s{sEA+2}, 49152
        s_mov_b32 s{sT1}, 32768
        s_cmp_eq_u32 s{sWAVE}, 3
        s_cselect_b64 vcc, -1, 0
        s_cselect_b32 s{sT0}, s{sT2}, s{sT0}
        s_cselect_b32 s{sT4}, 31744, s{sT4}
        s_cselect_b32 s{sEA+2}, {4194304 - 7680}, s{sEA+2}
        s_cselect_b32 s{sT1}, 131072, s{sT1}
        v_cndmask_b32 v{vDW+1}, v{vDW}, v31, vcc
        v_cndmask_b32 v{vDW}, v{vDW}, v30, vcc
        s_mov_b32 s{sEA+3}, 0x00020000
        v_add_u32 v{vDW+1}, s{sT4}, v{vDW+1}
        s_lshl_b32 s{sT4}, s{sT4}, 1
        v_add_u32 v{vDW+2}, s{sT4}, v{vDW}
        v_add_u32 v{vDW+3}, s{sT4}, v{vDW+1}
        {f"s_mov_b32 s{sEA+2}, 0" if self.o.get("q0oob") else ""}
        s_cmp_eq_u32 s{sWAVE}, 3
        s_waitcnt lgkmcnt(0)
        s_cselect_b32 s{sEA}, s10, s4
        s_cselect_b32 s{sEA+1}, s11, s5
        s_add_u32 s{sEA}, s{sEA}, s{sT0}
        s_addc_u32 s{sEA+1}, s{sEA+1}, 0
        s_and_b32 s{sEA+1}, s{sEA+1}, 0xffff""")
        self.stamp("karg")
        for i in range(4): a(self.dma(vDW + i, sEA, None, i * 1024, self.P("cpol")))
        a(f"s_add_u32 m0, s{sXM}, {QC[0] + 4096}\ns_cmp_lg_u32 s{sWAVE}, 3")
        for i in range(2): a(self.dma(vDW + i, sEA, sT1, i * 1024, self.P("cpol")))
        a("s_cbranch_scc1 L_attn")

    def common_srds(self):
        L = self.srd(sFL, 18, FL_OFF, 256 * 8192) + self.srd(sPT, 18, PT_OFF, 256 * 49152)
        L += [f"s_lshl_b32 s{sT0}, s{sBB}, 2", f"s_add_u32 s{sT0}, s{sT0}, s{sKQ}", f"s_mul_i32 s{sT0}, s{sT0}, {8*36864}"]
        L += self.srd(sOB, 18, f"s{sT0}", 8 * 36864 + O_OFF)
        L += [f"s_mul_i32 s{sT0}, s{sBB}, 147456", f"s_lshl_b32 s{sT1}, s{sC}, 8", f"s_add_u32 s{sT0}, s{sT0}, s{sT1}"]
        L += self.srd(sOUT, 14, f"s{sT0}", 147456) + [f"s_sub_u32 s{sOUT+2}, s{sOUT+2}, s{sT1}"]
        L += [f"s_mov_b32 s{sIT}, 0", f"s_mov_b32 s{sREDO}, 0", f"s_mov_b32 s{sCS}, {CSC:#x}"]
        return L
    def wpat(self, t0, t1, w0, w1, base):
        return [f"v_lshrrev_b32 v{t0}, 4, v1", f"v_lshlrev_b32 v{t0}, 11, v{t0}", f"v_bfe_u32 v{t1}, v1, 2, 2", f"v_lshl_add_u32 v{t0}, v{t1}, 6, v{t0}",
                f"v_add_u32 v{t0}, {base}, v{t0}", f"v_and_b32 v{t1}, 3, v1", f"v_lshl_add_u32 v{w0}, v{t1}, 4, v{t0}",
                f"v_xor_b32 v{t1}, 2, v{t1}", f"v_lshl_add_u32 v{w1}, v{t1}, 4, v{t0}", f"v_add_u32 v{w1}, 1024, v{w1}"]
    def xpat(self, t0, t1, d0, d1, base):
        return [f"v_lshrrev_b32 v{t0}, 4, v1", f"v_and_b32 v{t1}, 7, v1", f"v_xor_b32 v{t0}, v{t0}, v{t1}", f"v_lshlrev_b32 v{t0}, 4, v{t0}",
                f"v_and_b32 v{t1}, 15, v1", f"v_lshl_add_u32 v{t0}, v{t1}, 7, v{t0}", f"v_xor_b32 v{t1}, 64, v{t0}",
                f"v_add_u32 v{d0}, {base}, v{t0}", f"v_add_u32 v{d1}, {base}, v{t1}"]
    def xsrc(self, t0, t1, d):
        return [f"v_lshrrev_b32 v{t0}, 3, v1", f"v_and_b32 v{t1}, 7, v1", f"v_xor_b32 v{t1}, v{t1}, v{t0}", f"v_lshlrev_b32 v{t1}, 4, v{t1}",
                f"v_lshl_add_u32 v{d}, v{t0}, 10, v{t1}"] + [f"v_add_u32 v{d+i}, {i*7168}, v{d}" for i in range(1, 4)]
    def opat(self):
        L = [f"s_lshl_b32 s{sT0}, s{sKQ}, 1"]
        for i in range(8):
            L += [f"s_add_u32 s{sT1}, s{sT0}, {i+2}", f"s_and_b32 s{sT1}, s{sT1}, 7", f"s_lshl_b32 s{sT1}, s{sT1}, 12",
                  f"s_add_u32 s{sT1}, s{sT1}, {O_OFF - (i&3)*1024}", f"v_add_u32 v{vDX+i}, s{sT1}, v{vL16}"]
        return L + [f"v_add_u32 v{vDX+8}, {O_OFF + 32768}, v{vL16}"]

    def await_(self, pre=True, emit=True, above=None):
        l = self.lab("sp")
        if above is not None:
            c = f"v_cmp_lt_u32 vcc, {above}, v{vLD}"
            self.ool += [f"{l}:"] + self.budget(l + "r") + [self.rdla, "s_waitcnt lgkmcnt(0)", c, f"s_cbranch_vccz {l}", f"s_branch {l}r"]
            if pre: self.a(f"{self.rdla}\ns_waitcnt lgkmcnt(0)")
            self.a(f"{c}\ns_cbranch_vccz {l}\n{l}r:")
            return
        self.ool += [f"{l}:"] + self.budget(l + "r") + ([f"s_sleep {self.o['slp']}"] if self.o.get("slp") else []) + [f"ds_read_b32 v{vLD}, v{vLA}", "s_waitcnt lgkmcnt(0)",
                     f"v_cmp_gt_u32 vcc, v{vLD}, v{vPR}", f"s_cbranch_vccz {l}", f"s_branch {l}r"]
        if pre: self.a(f"ds_read_b32 v{vLD}, v{vLA}\ns_waitcnt lgkmcnt(0)\nv_cmp_gt_u32 vcc, v{vLD}, v{vPR}")
        if not emit: return [f"s_cbranch_vccz {l}", f"{l}r:"]
        self.a(f"s_cbranch_vccz {l}\n{l}r:")
    def nextslot(self):
        return [f"s_add_u32 s{sSL}, s{sSL}, {SLOT}", f"s_cmp_eq_u32 s{sSL}, {RING if self.inh else f's{sRG}'}", f"s_cselect_b32 s{sSL}, 0, s{sSL}"]
    def slotregs(self):
        return [f"v_add_u32 v{vRK}, s{sSL}, v{vRKb}", f"v_add_u32 v{vRV0}, s{sSL}, v{vRV0b}", f"v_add_u32 v{vRV1}, s{sSL}, v{vRV1b}"]
    def kreads(self, p):
        return [f"ds_read_b128 {ar(Kf(p,kt,ks))}, v{vRK} offset:{kt*4096+ks*256}" for kt in range(2) for ks in range(4)]
    def vreads(self, p):
        return [f"ds_read_b64_tr_b16 {ar(Vf(p,dt)+2*h,2)}, v{vRV0 if dt%2==0 else vRV1} offset:{(dt>>1)*256+h*4096}"
                for dt in range(8) for h in range(2)]
    def qk(self, qt, p, raw=False):
        L = []
        for kt in range(2):
            for ks in range(4):
                d = vr(S(qt, kt))
                c = d if ks else ("0" if raw else vr(vNM + 4 * qt))
                L.append(f"{MF} {d}, {ar(Kf(p,kt,ks))}, {vr(Qf(qt,ks))}, {c}")
        return L
    def pv(self, qt, p, first=False):
        L = []
        for dt in range(8):
            d = vr(Oa(qt, dt))
            L.append(f"{MF} {d}, {ar(Vf(p,dt))}, {vr(S(qt))}, {'0' if first else d}")
        d = vr(vL + 4 * qt)
        ls = self.o.get("ls", 0)
        if ls == 1: L.append(f"v_mfma_f32_4x4x4_16b_bf16 {d}, {vr(vONE,2)}, {vr(S(qt),2)}, {'0' if first else d}\nv_mfma_f32_4x4x4_16b_bf16 {d}, {vr(vONE,2)}, {vr(S(qt)+2,2)}, {d}")
        elif ls == 2 and not first: L.append("")
        else: L.append(f"{MF} {d}, {vr(vONE)}, {vr(S(qt))}, {'0' if first else d}" if not self.o.get("nol") or first else "s_nop 0")
        return L
    def ex(self, qt, i): return f"v_exp_f32 v{S(qt)+i}, v{S(qt)+i}"
    def cv(self, qt, i): return f"v_cvt_pk_bf16_f32 v{S(qt)+i}, v{S(qt)+2*i}, v{S(qt)+2*i+1}"
    incpr = f"v_add_u32 v{vPR}, 1, v{vPR}"
    wrpr = f"ds_write_b32 v{vPA}, v{vPR}"
    rdla = f"ds_read_b32 v{vLD}, v{vLA}"
    cmpla = f"v_cmp_gt_u32 vcc, v{vLD}, v{vPR}"

    def stage(self, p, first=False, tail=[], tail2=[]):
        self.await_(pre=False)
        mf = self.pv(0, p, first) + self.qk(0, p) + self.pv(1, p, first) + self.qk(1, p) + self.pv(2, p, first) + self.qk(2, p)
        f = {i: [] for i in range(51)}
        ki = iter(self.kreads(1 - p)); vi = iter(self.vreads(1 - p))
        for seg, qt in enumerate((2, 0, 1)):
            for i in range(8): f[17 * seg + 2 * i].append(self.ex(qt, i))
        for seg in range(2):
            for g in (3, 7, 11, 15): f[17 * seg + g].append(next(ki))
        for g in (1, 5, 9, 13, 18, 22, 26, 30): f[g] += [next(vi), next(vi)]
        for seg, qt in enumerate((2, 0, 1)):
            for i in range(4): f[17 * seg + 4 * i + 3].append(self.cv(qt, i))
        if self.o.get("ls") == 2:
            for seg, qt in enumerate((2, 0, 1)):
                for i, g in enumerate((1, 5, 8, 8, 9, 13, 13, 16)): f[17 * seg + g].append(f"v_add_f32 v{vL+4*qt+(i&1)}, v{S(qt)+i}, v{vL+4*qt+(i&1)}")
        ns = self.nextslot(); sr_ = self.slotregs()
        f[16] += [self.incpr]
        f[33] += [self.wrpr]
        f[35] += ns[:2]
        f[39] += [ns[2], sr_[0]]
        f[41] += [sr_[1]]
        f[43] += [self.rdla, sr_[2]]
        f[47] += tail
        f[49] += tail2
        if self.o.get("slow"): f[25] += [f"s_sleep {self.o['slow']}"]
        f[50] += ["s_waitcnt lgkmcnt(0)", self.cmpla]
        na = self.o.get("noatt", 0)
        if na & 1: mf = ["s_nop 0"] * 51
        if na & 2: f = {i: [x for x in L if not x.startswith(("v_exp", "v_cvt"))] for i, L in f.items()}
        if na & 4: f = {i: [x for x in L if not x.startswith(("ds_read_b128", "ds_read_b64"))] for i, L in f.items()}
        self.weave(mf, f)

    def xmax(self, v, t):
        self.a(f"""v_mov_b32 v{t}, v{v}
        s_nop 1
        v_permlane16_swap_b32 v{v}, v{t}
        v_max_f32 v{v}, v{v}, v{t}
        v_mov_b32 v{t}, v{v}
        s_nop 1
        v_permlane32_swap_b32 v{v}, v{t}
        v_max_f32 v{v}, v{v}, v{t}""")

    def stage0(self):
        a = self.a
        mf = self.qk(0, 0, True) + self.qk(1, 0, True) + self.qk(2, 0, True)
        self.spread(mf, self.kreads(1) + self.vreads(1))
        self.emit([self.incpr, self.wrpr] + self.nextslot() + self.slotregs())
        for qt in range(3):
            s = S(qt); m = 59 + qt
            a(f"""v_max3_f32 v{m}, v{s}, v{s+1}, v{vMS+qt}
            v_max3_f32 v{m}, v{s+2}, v{s+3}, v{m}
            v_max3_f32 v{m}, v{s+4}, v{s+5}, v{m}
            v_max3_f32 v{m}, v{s+6}, v{s+7}, v{m}""")
            self.xmax(m, 62)
            for i in range(4): a(f"v_sub_f32 v{vNM+4*qt+i}, 0, v{m}")
            for i in range(8): a(f"v_sub_f32 v{s+i}, v{s+i}, v{m}")
        for qt in range(2):
            for i in range(8): a(self.ex(qt, i))
            a(self.rdla if qt else "s_nop 0")
            for i in range(4): a(self.cv(qt, i))

    def oflag(self, rnd, wait="s_waitcnt vmcnt(0)", sT0=sT0, sT1=sT1):
        return [x.strip() for x in f"""s_and_b32 s{sT0}, s{sWID}, 0xfc
        s_lshl_b32 s{sT0}, s{sT0}, 13
        s_lshl_b32 s{sT1}, s{sC}, 2
        s_add_u32 s{sT1}, s{sT1}, s{sWAVE}
        s_lshl_b32 s{sT1}, s{sT1}, 7
        s_add_u32 s{sT0}, s{sT0}, s{sT1}
        s_add_u32 s{sT0}, s{sT0}, {2048*rnd}
        v_lshlrev_b32 v4, 13, v1
        v_mov_b32 v60, s{sTK}
        v_mov_b32 v61, s{sTK+1}
        {wait}
        s_mov_b64 exec, 15
        buffer_store_dwordx2 v[60:61], v4, {sr(sFL)}, s{sT0} offen {self.P("fsc", "sc1")}
        s_mov_b64 exec, -1""".split("\n")]

    def final(self, it):
        a = self.a
        mf = self.pv(0, 0) + self.pv(1, 0) + self.pv(2, 0)
        f = {i: [] for i in range(27)}
        for i in range(8): f[i].append(self.ex(2, i))
        for i in range(4): f[9 + i].append(self.cv(2, i))
        X = [f"s_mul_i32 s{sT2}, s{sWAVE}, 12288", f"s_mov_b32 s{sT0}, {THR:#x}"]
        for g, x in zip((19, 21, 23, 25), [f"v_rcp_f32 v60, v{vL}", "v_mov_b32 v61, v60", f"v_rcp_f32 v62, v{vL+4}", "v_mov_b32 v63, v62"]): f[g].append(x)
        if it == 0:
            X += [f"s_lshl_b32 s{sT1}, s{sWAVE}, 2", f"s_add_u32 s{sT1}, s{sT1}, {MISC}", f"v_mov_b32 v4, s{sT1}",
                  "v_and_b32 v3, 3, v1", "v_min_u32 v3, 2, v3", "v_lshlrev_b32 v3, 2, v3", f"v_add_u32 v3, {MISC}, v3"]
        else:
            g = self.o.get("fa", 8)
            f[0].append(self.rdla); f[g - 1] += ["s_waitcnt lgkmcnt(0)", self.cmpla]; f[g] += self.await_(pre=False, emit=False)
            f[4] += X[:1]; f[5] += X[1:]; f[6] += [f"s_add_u32 s{sT2}, s{sT2}, 36864"]
            X = self.pulls(WA) + [self.incpr, self.wrpr]
        for g in range(8 if it == 0 else g + 1, 27):
            while X and len(f[g]) + any("v_rcp" in x for x in f[g]) < 2: f[g].append(X.pop(0))
        assert it or not X
        self.rest = X
        self.weave(mf, f)
        a(f"""v_add_f32 v59, v{vL}, v{vL+4}
        s_mov_b32 s{sT4}, 1""")
    def lcheck(self, n):
        self.a(f"""v_add_f32 v59, v59, v{vL+8}
        v_cmp_nge_f32 vcc, s{sT0}, v59
        s_cmp_lg_u32 s{sREDO}, 0
        s_cbranch_scc1 L_noflag{n}
        s_cmp_eq_u64 vcc, 0
        s_cselect_b32 s{sT4}, 1, {1 if self.o.get("noatt") else 2}
L_noflag{n}:
        v_mov_b32 v2, s{sT4}""")
    def pack(self, qt, dst, after=lambda ks: []):
        r = (60, 62, 60)[qt]; L = []
        if qt == 2: L += [f"v_rcp_f32 v60, v{vL+8}", "s_nop 0", "v_mov_b32 v61, v60"]
        for ks in range(4):
            b = Oa(qt, 2 * ks)
            L += [f"v_pk_mul_f32 v[{b+2*i}:{b+2*i+1}], v[{b+2*i}:{b+2*i+1}], v[{r}:{r+1}]" for i in range(4)]
            L += [f"v_cvt_pk_bf16_f32 v{dst+4*ks+i}, v{b+2*i}, v{b+2*i+1}" for i in range(4)] + after(ks)
        return L

    def attention(self):
        a = self.a
        a("L_attn:")
        a(f"s_lshl_b32 s{sXS}, s{sXS}, 7")
        xadv = [f"s_add_u32 s{sXS}, s{sXS}, 128", f"s_cmp_eq_u32 s{sXS}, 1024", f"s_cselect_b32 s{sXS}, 128, s{sXS}"]
        xd = [self.dma(vDXq + i, sEA, sXS, i * 1024, self.P("cpol")) for i in range(4)] + [self.dma(vDXq + i, sEA, sT1, i * 1024, self.P("cpol")) for i in range(2)]
        a(f"""v_lshlrev_b32 v{vL16}, 4, v1
        s_add_u32 s{sT0}, s{sXM}, {QP[1]}""")
        self.emit(self.xpat(59, 60, vQB, vQB + 1, f"s{sT0}") + self.wpat(59, 60, vQB + 2, vQB + 3, QP[1] + 18432))
        for i in range(4): a(f"v_add_u32 v{vQB+4+i}, {2*PB}, v{vQB+i}")
        a(f"""s_lshl_b32 s{sT0}, s{sWAVE}, 8
        s_add_u32 s{sT0}, s{sT0}, {PROG}
        v_lshl_add_u32 v{vPA}, v1, 2, s{sT0}
        v_mov_b32 v{vLA}, {LAND}
        v_mov_b32 v{vPR}, 0""")
        X1 = [f"s_add_u32 m0, s{sXM}, {QC[1]}", f"s_add_u32 s{sT1}, s{sXS}, 32768"] + xd[:4] + [f"s_add_u32 m0, s{sXM}, {QC[1] + 4096}", xadv[0]] + xd[4:] + xadv[1:]
        x1at = self.o.get("x1at", 2)
        if x1at == 1: self.emit(X1)
        self.emit(self.common_srds())
        a(f"s_mul_i32 s{sT0}, s{sWID}, 73728\ns_add_u32 s{sT0}, s{sT0}, {O_OFF}")
        self.emit(self.srd(sO, 18, f"s{sT0}", 73728) + self.srd(sDB, 16, 0, 256))
        a(f"""v_and_b32 v59, 1, v3
        v_lshlrev_b32 v59, 1, v59
        v_xor_b32 v59, v59, v2
        v_lshlrev_b32 v59, 4, v59
        v_lshl_add_u32 v{vRKb}, v3, 10, v59
        v_lshl_add_u32 v{vRKb}, v4, 6, v{vRKb}
        v_lshlrev_b32 v59, 10, v2
        v_lshl_add_u32 v59, v3, 6, v59
        v_lshl_add_u32 v59, v4, 3, v59
        v_add_u32 v59, 8192, v59
        v_and_b32 v60, 1, v2
        v_lshl_add_u32 v{vRV0b}, v60, 5, v59
        v_xor_b32 v60, 1, v60
        v_lshl_add_u32 v{vRV1b}, v60, 5, v59
        v_mov_b32 v{vONE}, 0x3f803f80
        v_mov_b32 v{vONE+1}, 0x3f803f80
        v_mov_b32 v{vONE+2}, 0x3f803f80
        v_mov_b32 v{vONE+3}, 0x3f803f80
        v_mov_b32 v{vMS}, 0xff800000
        v_mov_b32 v{vMS+1}, 0xff800000
        v_mov_b32 v{vMS+2}, 0xff800000
        v_mov_b32 v62, s{sCS}
        v_mov_b32 v63, s{sCS}
        s_mov_b32 s{sSL}, 0
        s_or_b32 s{sT0}, s2, s{sWAVE}
        s_cselect_b32 s{sTGT}, 64, 0
        s_mov_b32 s{sRG}, {RING}
        s_mov_b32 s{sR1}, {RING}""")
        self.emit(self.slotregs())
        self.stamp("iss")
        a("s_barrier")
        self.stamp("bar")
        if x1at == 2: self.emit(X1)
        self.emit(self.tail_wregs() + self.tail_src() + self.tail_own())
        def qreads(k):
            q = QC[(k >> 1) % 3]; r = 0 if q < QP[3] else 4; ox = q - (QP[3] if r else QP[1])
            o = ox + (k & 1) * 8192; F = aQF + 44 * (k & 1); L = []
            for t in range(8):
                L.append(f"ds_read_b64_tr_b16 {ar(F+4*t,2)}, v{vQB+r+2} offset:{o+(t>>1)*256+8*(t&1)}")
                L.append(f"ds_read_b64_tr_b16 {ar(F+4*t+2,2)}, v{vQB+r+3} offset:{o+(t>>1)*256+8*(t&1)}")
            return L[:2] + [f"ds_read_b128 {ar(F+32+4*qt)}, v{vQB+r+(k&1)} offset:{ox+qt*2048}" for qt in range(3)] + L[2:]
        def qmf(k):
            F = aQF + 44 * (k & 1)
            return [f"{MF} {vr(Oa(qt,t))}, {ar(F+4*t)}, {ar(F+32+4*qt)}, {vr(Oa(qt,t)) if k else 0}" for t in range(8) for qt in range(3)] if k >= 0 else []
        XL = self.o.get("xl", 1); xs = {k: [] for k in range(16)}
        for p in range(2, 8):
            for i in range(6): xs[max(0, 2 * (p - 2) + (i // 3 if XL < 2 else 0) - min(XL, 1))].append((p, i))
        order = [(1, i) for i in range(6)]
        a(f"{self.rdla}\ns_waitcnt vmcnt(6) lgkmcnt(0)\n{self.cmpla}")
        self.await_(pre=False)
        qa = self.o.get("q0a", 0)
        for k in range(16):
            self.stamp(f"c{k}")
            R = qreads(k); f = {i: [] for i in range(24)}
            for g, n in ((0, 2), (1, 2), (2, 2), (3, 1), (4, 1), (5, 1), (6, 1), (7, 1), (8, 1), (10, 2), (11, 1), (12, 1), (14, 2), (15, 1)):
                f[g] += [R.pop(0) for _ in range(n)]
            f[15].append(self.incpr); f[16] += [self.wrpr]; f[12].append(self.rdla)
            if any(p == (k >> 1) + 3 for p, i in xs[k]): f[8].append("s_waitcnt lgkmcnt(7)")
            dg = [9, 13, 17, 18, 19, 21]; sg = [3, 4, 5, 6, 7]
            for n, (p, i) in enumerate(xs[k]):
                g = dg[n]; pre = []
                if i == 0: pre = [f"s_add_u32 m0, s{sXM}, {QC[p % 3]}", f"s_add_u32 s{sT1}, s{sXS}, 32768"]
                if i == 4:
                    pre = [f"s_add_u32 m0, s{sXM}, {QC[p % 3] + 4096}"]
                    if len(xs[k]) > 3: f[23] += xadv
                    else: f[18] += xadv[:1]; f[19] += xadv[1:]
                while pre:
                    if n == 0: f[sg.pop(0)].append(pre.pop(0))
                    else: f[dg[n-1] if dg[n-1] + 1 == g else g - 2 if len(f[g-2]) < 2 else g - 1].append(pre.pop(0))
                f[g].append(xd[i]); order.append((p, i))
            vm = ""
            if k & 1 and k < 15:
                last = max(n for n, (p, i) in enumerate(order) if p == (k >> 1) + 1)
                vm = f"vmcnt({len(order) - 1 - last}) "
            f[20] += [f"s_waitcnt {vm}lgkmcnt(1)", self.cmpla]
            f[22] += self.await_(pre=False, emit=False)
            if qa & 2: f = {i: [x for x in L if "_tr_" not in x] for i, L in f.items()}
            if qa & 4: f = {i: [x for x in L if "ds_read_b128" not in x] for i, L in f.items()}
            if qa & 8: f = {i: [x for x in L if "buffer_" not in x] for i, L in f.items()}
            if k: self.weave(qmf(k - 1) if not qa & 1 else ["s_nop 0"] * 24, f)
            else: self.emit(self.flat([f[i] for i in range(24)]))
        self.stamp("c16")
        C = []
        for ks in range(4):
            for qt in range(3):
                b = Oa(qt, 2 * ks)
                C += [f"v_pk_mul_f32 v[{b+2*i}:{b+2*i+1}], v[{b+2*i}:{b+2*i+1}], v[62:63]" for i in range(4)]
                C += [f"v_cvt_pk_bf16_f32 v{Qf(qt,ks)+i}, v{b+2*i}, v{b+2*i+1}" for i in range(4)]
        K0 = self.kreads(0) + [self.incpr, self.wrpr] + self.nextslot() + self.slotregs() + [self.rdla]
        f = {}
        for g in range(24):
            f[g] = [K0.pop(0) for _ in range(2) if K0]
        self.weave(qmf(15), f)
        self.emit(C)
        self.stamp("q0")
        a(f"s_waitcnt lgkmcnt(0)\n{self.cmpla}")
        self.await_(pre=False)
        self.stamp("k0")
        a("L_item:")
        self.stage0()
        self.cstamp("st0", 0 if self.o.get("sm") in ("s", "c", "p") else 1)
        a(f"s_waitcnt lgkmcnt(0)\n{self.cmpla}")
        self.stage(1, first=True, tail=[f"s_mov_b32 s{sCNT}, 0", f"s_mov_b32 s{sRG}, s{sR1}"])
        self.cstamp("st1", 0 if self.o.get("sm") == "p" else 1)
        a(".p2align 3\nL_loop:")
        self.ool += f"""L_init:
        v_mov_b32 v4, 0
        s_cmp_lg_u32 s{sIT}, 0
        s_cbranch_scc1 L_pub0
        s_bitcmp1_b32 s{sTGT}, 5
        s_cbranch_scc1 L_init2
        s_add_u32 s{sTGT}, s{sTGT}, 33
        buffer_load_dwordx2 v[2:3], v4, {sr(sOB)}, 0 offen sc1
        s_branch L_initr
L_init2:
        s_mov_b32 s{sTGT}, 64
        s_waitcnt vmcnt(0)
        v_add_u32 v2, 1, v2
        v_or_b32 v3, 1, v3
        s_mov_b64 exec, 1
        buffer_store_dwordx2 v[2:3], v4, {sr(sOB)}, 0 offen sc1
        buffer_store_dwordx2 v[2:3], v4, {sr(sDB)}, 0 offen sc1
        s_mov_b64 exec, -1
        s_branch L_initr
L_pub0:
        v_add_u32 v250, s{sSL}, v252
        v_add_u32 v251, s{sSL}, v253
        s_waitcnt lgkmcnt(0)
L_wsp:
        {self.cmpla}
        s_cbranch_vccnz L_wa""".split("\n") + self.budget("L_wa") + [self.rdla, "s_waitcnt lgkmcnt(0)", "s_branch L_wsp"] + self.wdisp("L_wa") + \
            [self.incpr, self.wrpr] + self.nextslot() + self.slotregs() + [self.rdla, "s_branch L_initr"]
        self.stage(0, tail=[f"s_xor_b32 s{sT0}, s{sCNT}, s{sTGT}", f"s_and_b32 s{sT0}, s{sT0}, 0x5f"], tail2=["s_cbranch_scc0 L_init", "L_initr:"])
        self.stage(1, tail=[f"s_add_u32 s{sCNT}, s{sCNT}, 1", f"s_cmp_lt_u32 s{sCNT}, 15"])
        a("s_cbranch_scc1 L_loop")
        self.cstamp("fin", 1 if self.o.get("sm") in ("e", "f", "h") else 0)
        a(f"s_cmp_lg_u32 s{sIT}, 0\ns_cbranch_scc1 L_last")
        self.final(0)
        dst = PK
        self.emit(self.pack(0, dst[0]))
        self.lcheck(0)
        self.emit(["ds_write_b32 v4, v2"] + self.pack(1, dst[1]) + [self.rdla, "ds_read_b32 v2, v3"] + self.pack(2, dst[2]))
        self.cstamp("epi", 0)
        a(f"""s_add_u32 s{sT0}, s{sT2}, {HAND1}
        v_add_u32 v4, s{sT0}, v{vL16}
        s_waitcnt lgkmcnt(0)
        {self.cmpla}""")
        self.await_(pre=False)
        a("s_branch L_done1\nL_done:")
        self.emit(self.budget("L_doneok"))
        a(f"""ds_read_b32 v2, v3
        s_waitcnt lgkmcnt(0)
L_done1:
        v_cmp_eq_u32 vcc, 0, v2
        s_cbranch_vccnz L_done
L_doneok:
        v_cmp_eq_u32 vcc, 2, v2
        s_cbranch_vccnz L_redo""")
        self.stamp("it0")
        for qt in range(3):
            for ks in range(4): a(f"ds_read_b128 {vr(Qf(qt,ks))}, v4 offset:{(qt*4+ks)*1024}")
        X = [f"s_mov_b32 s{sIT}, 1", f"s_mov_b32 s{sREDO}, 0", f"s_mov_b32 s{sTGT}, {(self.WB[0] - 35) // 2}", f"s_mov_b32 s{sR1}, {9 * SLOT}"] + [f"v_mov_b32 v{vMS+i}, 0xff800000" for i in range(3)] + self.wo_srd()
        self.spread([f"ds_write_b128 v4, {vr(dst[qt]+4*ks)} offset:{(qt*4+ks)*1024}" for qt in range(3) for ks in range(4)], X)
        a(f"""s_waitcnt lgkmcnt(0)
        s_branch L_item
L_last:""")
        self.final(1)
        st = lambda qt: lambda ks: [f"buffer_store_dwordx4 {vr(dst[qt]+4*ks)}, v{vL16}, {sr(sO)}, s{sT2} offen offset:{ks*1024} {self.osc}"]
        assert not self.rest
        self.emit([self.rdla] + self.pack(0, dst[0], st(0)) + [f"s_add_u32 s{sT2}, s{sT2}, 4096"])
        self.lcheck(1)
        wb = self.o.get("pb2", 1); ow = self.o.get("ow", 1)
        OW = [f"ds_write_b128 v{vOW+qt}, {vr(PK[qt]+4*ks)} offset:{OWN + ks*1024}" for qt in range(3) for ks in range(4)]
        for qt in (1, 2):
            n = 0 if qt < wb or not ow else 1 if qt > wb else qt + 1
            P = self.pack(qt, dst[qt], lambda ks: st(qt)(ks) + [OW.pop(0) for _ in range(n)])
            if qt == wb:
                a(f"s_waitcnt lgkmcnt(0)\n{self.cmpla}")
                self.await_(pre=False)
                self.spread(P[:30], self.pulls(WB_) + [self.incpr]); P = P[30:]
            self.emit(P + ([f"s_add_u32 s{sT2}, s{sT2}, 4096"] if qt == 1 else []) + ([self.rdla] if qt == 1 and wb == 2 else []))
        self.stamp("it1")
        a(f"""v_mov_b32 v3, {MISC+16}
        s_cmp_eq_u32 s{sT4}, 1
        s_cbranch_scc1 L_ok1
        ds_write_b32 v3, v2
L_ok1:""")
        self.emit(["ds_read_b64 v[2:3], v3 offset:16", f"v_mov_b32 v{vPL}, {OOB:#x}"] + self.rd(0) + self.rd(1) + OW)
        self.b1("L_redo")
        a(f"v_readfirstlane_b32 s{sTK}, v2\nv_readfirstlane_b32 s{sTK+1}, v3\ns_branch L_tail")
        a(f"""L_redo:
        s_waitcnt vmcnt(0)
        s_barrier
        v_mov_b32 v2, 0
        v_lshlrev_b32 v3, 2, v1
        v_add_u32 v3, {MISC}, v3
        ds_write_b32 v3, v2
        s_mul_i32 s{sT0}, s{sIT}, {32 + NW}
        s_add_u32 s{sT0}, s{sT0}, 16
        v_mov_b32 v{vPR}, s{sT0}
        v_mov_b32 v{vRK}, v{vRKb}
        {self.wrpr}
        s_mov_b32 s{sCNT}, 0
        s_mov_b32 s{sREDO}, 1
        s_mov_b32 s{sRG}, {RING}
        s_mov_b32 s{sR1}, {RING}
        v_mov_b32 v{vMS}, 0xff800000
        v_mov_b32 v{vMS+1}, 0xff800000
        v_mov_b32 v{vMS+2}, 0xff800000
L_mloop:
        s_barrier""")
        self.emit(self.kreads(0))
        a("s_waitcnt lgkmcnt(0)\ns_barrier")
        self.emit(self.qk(0, 0, True) + self.qk(1, 0, True) + self.qk(2, 0, True))
        a("s_nop 7")
        for qt in range(3):
            s = S(qt); m = vMS + qt
            for i in range(4): a(f"v_max3_f32 v{m}, v{s+2*i}, v{s+2*i+1}, v{m}")
        a(f"""s_add_u32 s{sCNT}, s{sCNT}, 1
        s_cmp_lt_u32 s{sCNT}, 32
        s_cbranch_scc1 L_mloop
        s_mul_i32 s{sSL}, s{sIT}, {6 * SLOT}""")
        self.emit(self.slotregs())
        self.await_()
        self.emit(self.kreads(0) + [self.incpr, self.wrpr] + self.nextslot() + self.slotregs())
        self.await_()
        a("s_branch L_item")
    def cstamp(self, name, it):
        if self.o.get("stamps"):
            l = self.lab("cs")
            self.a(f"s_cmp_lg_u32 s{sIT}, {it}\ns_cbranch_scc1 {l}")
            self.stamp(name)
            self.a(l + ":")
    def stampq(self):
        if self.o.get("stamps"):
            self.a(f"s_cmp_lg_u32 s{sCNT}, 1\ns_cbranch_scc1 L_nost1")
            self.stamp("c2")
            self.a(f"L_nost1:\ns_cmp_lg_u32 s{sCNT}, 4\ns_cbranch_scc1 L_nost2")
            self.stamp("c8")
            self.a(f"L_nost2:\ns_cmp_lg_u32 s{sCNT}, 2\ns_cbranch_scc1 L_nost3")
            self.stamp("c4")
            self.a(f"L_nost3:\ns_cmp_lg_u32 s{sCNT}, 6\ns_cbranch_scc1 L_nost4")
            self.stamp("c12")
            self.a("L_nost4:")
    def b1(self, lab):
        self.a(f"""s_waitcnt lgkmcnt(0)
        s_barrier
        v_mov_b32 v4, {MISC+16}
        ds_read_b32 v4, v4
        s_waitcnt lgkmcnt(0)
        v_cmp_ne_u32 vcc, 0, v4
        s_cbranch_vccnz {lab}""")
        self.stamp("b1")

    def q_push(self, L, tag):
        self.q += [tag] * sum(map(isvm, L))
        return L
    def q_wait(self, loc, tag, part=0):
        if self.dry:
            idx = [i for i, t in enumerate(self.q) if (t in tag if isinstance(tag, list) else t == tag)]
            n = len(self.q) - 1 - idx[-1] if idx else 63
            if part:
                idx = [i for i, t in enumerate(self.q) if t == ("g", tag[1] + 1)]
                n = len(self.q) - 1 - idx[part - 1]
            self.cnt[loc] = min(self.cnt.get(loc, 63), n)
            return []
        return [f"s_waitcnt vmcnt({self.cnt[loc]})"]
    def pub_abs(self, val):
        self.pub = val
        return [f"v_mov_b32 v{vPB}, {val}", f"ds_write_b32 v{vLA}, v{vPB}"]
    def hpull(self, m):
        return [f"v_add_u32 v{250+i}, {self.slot[self.witem[m]] * SLOT}, v{252+i}" for i in range(2)] + self.wpull(m)
    def pub_inc(self, val, n=1):
        if self.dry: assert self.pub is None or val - self.pub == n, (val, self.pub)
        self.pub = val
        if not self.o.get("gate", 1): return [f"s_add_u32 s{sLD}, s{sLD}, {n}", f"v_mov_b32 v{vPB}, s{sLD}", f"ds_write_b32 v{vLA}, v{vPB}"]
        return [f"v_readfirstlane_b32 s{sPX}, v{vPV}", f"s_add_u32 s{sLD}, s{sLD}, {n}", f"s_lshl4_add_u32 s{sPX}, s{sPX}, {self.o.get('clip', 32)}",
                f"s_min_u32 s{sAL}, s{sAL}, s{sPX}", f"s_add_u32 s{sAL}, s{sAL}, s{sRT}"] + ([f"s_add_u32 s{sAL}, s{sAL}, 16"] if n > 1 else []) + \
               [f"s_lshr_b32 s{sPX}, s{sAL}, 4", f"s_min_u32 s{sPX}, s{sPX}, s{sLD}", f"v_mov_b32 v{vPB}, s{sPX}", f"ds_write_b32 v{vLA}, v{vPB}"]
    rdpr = f"ds_read_b32 v{vPV}, v{vPA}"
    def pcheck(self, need, redo=False, rel=False):
        if self.dry:
            assert not rel or need <= self.pub, (need, self.pub)
            return []
        l = self.lab("pc")
        o = [f"{l}:"] + self.budget(l + "r")
        if rel and self.o.get("gate", 1): o += [f"s_max_u32 s{sAL}, s{sAL}, {16*need}", f"v_max_u32 v{vPB}, {need}, v{vPB}", f"ds_write_b32 v{vLA}, v{vPB}"]
        if redo: o += [f"v_and_b32 v30, 3, v1", f"v_lshlrev_b32 v30, 2, v30", f"v_add_u32 v30, {MISC}, v30", "ds_read_b32 v30, v30"]
        o += [self.rdpr, "s_waitcnt lgkmcnt(0)"]
        if redo: o += ["v_cmp_eq_u32 vcc, 2, v30", "s_cbranch_vccnz L_hredo"]
        o += [f"v_cmp_gt_u32 vcc, {need}, v{vPV}", f"s_cbranch_vccnz {l}", f"s_branch {l}r"]
        self.ool += o
        return ["s_waitcnt lgkmcnt(0)", f"v_cmp_gt_u32 vcc, {need}, v{vPV}", f"s_cbranch_vccnz {l}", f"{l}r:"]
    def kv_m0(self, j): return f"s_add_u32 m0, s{sSL}, {j*4096}"
    def kv_so(self, j): return f"s_add_u32 s{sT0}, s{sOFF}, {j*4096}" if j < 2 else f"s_sub_u32 s{sT0}, s{sOFF}, {16384 - j*4096}"
    def kv_d(self, j): return [self.dma(vKV + (i & 1), sK if j < 2 else sV, sT0, i * 1024, self.pol) for i in range(4)]
    def w_cg(self, G):
        L = []
        for n in self.ride.get(G, []):
            m, j, i = n >> 4, n >> 2 & 3, n & 3
            if not n & 15: L += [self.rdpr] + self.pcheck(self.need[self.witem[m]], rel=True)
            if not L or not i: L += [f"s_mov_b32 m0, {self.slot[self.witem[m]] * SLOT + j*4096}"]
            if not i: L += [f"s_add_u32 s{sT1}, s{sH[m >> 1]}, {((m & 1) << 16) + (j >> 1 << 15) + (j & 1)*8192}"]
            L += self.q_push([self.dma(vDW1 + i, sEA, sT1, i * 1024, self.P("wpol"))], ("wg", m))
        return L
    def kv_adv(self): return [f"s_add_u32 s{sOFF}, s{sOFF}, {0 if self.o.get('kvfix') else 8192}", f"s_add_u32 s{sB}, s{sB}, 1"] + self.nextslot()
    def position(self, loc, cg=None, tag=None, pre=[], fill=None, check=True, late=[], fill2=None, pace=True, fix=False):
        G = self.G; j = G & 3; nj = (G + 1) & 3
        if G in (4, 8, 12, 16, 128, 136, 144) and (G < 20 or loc[0] in ("f0", ("pl", 34), ("pl", 36))): self.stamp(f"G{G}")
        g = [[] for _ in range(12)]
        g[0] += pre
        D = self.q_push(self.kv_d(j), ("g", G))
        for i in range(4): g[i].append(D[i])
        if fix: g[3] += self.w_cg(G)
        small = self.kv_adv()[:1 if fix else 5] if j == 3 else []
        if cg:
            if cg[0]: g[3] += cg[0] if isinstance(cg[0], list) else [cg[0]]
            for i, x in enumerate(self.q_push(cg[1], tag)): g[4 + i].append(x)
        self.G += 1
        at = [0, 1, 2, 5, 5, 6, 6, 7, 7]
        for x in small: g[at.pop(0)].append(x)
        g[6].append(self.kv_so(nj))
        if nj == 0 and check: g[8].append(self.rdpr)
        if nj == 0 and check and self.o.get("tl"): g[8].append(f"s_memrealtime s[{sSTAMP+2}:{sSTAMP+3}]")
        g[8].append(self.kv_m0(nj) if not fix else f"s_mov_b32 m0, {self.slot[self.item[min(G + 1 >> 2, 64)]] * SLOT + nj*4096}")
        g[8] += late
        gd = G - self.D; gate = []
        if gd >= 0 and pace:
            isw = gd & 3 == 3 and gd >> 2 in self.WB and G < 400
            g[9] += self.q_wait(loc, [("g", gd), ("wg", self.WB.index(gd >> 2))] if isw else ("g", gd), 0 if isw else self.o.get("dx", 0) if self.o.get("dxa", 0) <= G < self.o.get("dxb", 999) else 0)
            v = 17 + (self.item[gd >> 2] + isw if G < 400 else gd >> 2)
            if isw: g[10] += self.hpull(self.WB.index(gd >> 2))
            if G < 20 and self.pubok and 16 + ((gd + 1) >> 2) > self.pub:
                P = self.pub_abs(16 + ((gd + 1) >> 2)); g[9].append(P[0]); g[10].append(P[1])
            elif gd & 3 == 3 and self.pubok and G >= 20:
                P = self.pub_inc(v, 1 + isw)
                gate = P[:-2]
                g[9].append(P[-2]); g[10].insert(0, P[-1])
        if fix and check: check = self.need[self.item[G + 1 >> 2]]
        if nj == 0 and check: g[11] += self.pcheck(f"s{sB}" if check in (True, "redo") else check, redo=check == "redo", rel=fix) + ([f"v_cmpx_eq_u32 vcc, s{sB}, v15", f"v_mov_b32 v18, s{sSTAMP+2}", "s_mov_b64 exec, -1"] if self.o.get("tl") else [])
        for fill in (fill, fill2):
            for i in range(11 if nj == 0 and check else 12):
                while fill and len(g[i]) < 2:
                    x = fill.pop(0)
                    if x.startswith("ds_") and g[i] and not g[i][0].startswith(("ds_", "buffer_", "s_waitcnt")): g[i].insert(0, x)
                    else: g[i].append(x)
        for i, x in zip((0, 1, 2, 4, 5, 6, 7, 7, 7), gate): g[i].append(x)
        return g
    def flat(self, G):
        L = []
        for x in (x for g in G for x in g):
            if isvm(x) and L and " m0," in L[-1]: L.append("s_nop 0")
            L.append(x)
        return L + (["s_nop 0"] if L and " m0," in L[-1] else [])
    def plain(self, loc, extra=[], check=True, cg={}, tag="pf", fix=False):
        for j, x in enumerate(self.split(extra, 4)):
            self.emit(self.flat(self.position((loc, j), cg.get(j), tag, check=check, late=x, fix=fix)))
    def split(self, L, n):
        c = [k * len(L) // n for k in range(n + 1)]
        for k in range(1, n):
            while c[k] < len(L) and L[c[k]].startswith(("s_addc", "s_cselect", "v_cndmask")): c[k] += 1
        return [L[c[k]:max(c[k], c[k + 1])] for k in range(n)]
    def chunk_addr(self, h):
        a_ = sXA + h
        L = [f"s_add_u32 s{sT4}, s{sROT}, s{sKS}", f"s_bfe_u32 s{sT3}, s{sT4}, 0x20002", f"s_and_b32 s{sT4}, s{sT4}, 3"]
        if h == 0: L += [f"s_mul_i32 s{sXB}, s{sT3}, s{sP1}", f"s_mul_i32 s{sT1}, s{sT4}, s{sP2}", f"s_add_u32 s{sXB}, s{sXB}, s{sT1}"]
        L += [f"s_mul_i32 s{a_}, s{sT3}, s{sP3}", f"s_mul_i32 s{sT1}, s{sT4}, s{sP4}", f"s_add_u32 s{a_}, s{a_}, s{sT1}",
              f"s_add_u32 s{a_}, s{a_}, s{sP5}", f"s_add_u32 s{sKS}, s{sKS}, 1"]
        if self.o.get("noeng", 0) & 1 and h == 0: L.append(f"s_mov_b32 s{sXB}, {OOB:#x}")
        if self.o.get("noeng", 0) & 2: L.append(f"s_mov_b32 s{a_}, {OOB:#x}")
        return L
    def bgroups(self, base, so, pol):
        return [(f"s_mov_b32 m0, {base + gi*4096}", [self.dma(vDX + i, sEB, so, i * 1024, pol) for i in range(4 if gi < 4 else 2)]) for gi in range(5)]
    def bgroup(self, gi):
        return self.bgroups(CBX, sXB + 1, self.P("bpol"))[gi], [f"s_add_u32 s{sXB+1}, s{sXB}, s{sG[gi]}"]
    def agroups(self, m0, so, pol, so1=None, vDW=vDW):
        return [(m0(h), [self.dma(vDW + i, sEA, so1 if h and so1 else so, i * 1024, pol) for i in range(4)]) for h in range(2)]
    def hacc(self, t, qt):
        return ar(aHACC + 36 * t + 4 * qt) if t < 2 else vr(vHACC + 36 * (t - 2) + 4 * qt)
    def areads(self, p):
        F = aHF + 68 * p; L = []
        for t in range(8):
            L.append(f"ds_read_b64_tr_b16 {ar(F+4*t,2)}, v{vW0} offset:{p*8192+(t>>1)*256+8*(t&1)}")
            L.append(f"ds_read_b64_tr_b16 {ar(F+4*t+2,2)}, v{vW1} offset:{p*8192+(t>>1)*256+8*(t&1)}")
        return L
    def breads(self, qts):
        return [f"ds_read_b128 {ar((aB2 if e else aHF+32)+4*qt)}, v{vXR1 if e else vXR} offset:{qt*2048}" for qt in qts for e in range(2)]
    def hmf(self, p):
        F = aHF + 68 * p
        return [f"{MF} {self.hacc(t,qt)}, {ar(F+4*t)}, {ar(F+32+4*qt)}, {self.hacc(t,qt)}" for t in range(8) for qt in range(9)]
    def half(self, loc, k, tail=[]):
        h = k & 1
        self.e("s_waitcnt lgkmcnt(0)")
        if loc == "b0" and self.o.get("sm") in ("g", "s", "r", "e", "p", "o", "k", "l") and not self.dry:
            self.e(f"s_lshl_b32 s{sT4}, s{sIT}, 4\ns_add_u32 s{sT4}, s{sT4}, s{sCNT}")
            for ph in range(1):
                for n in (0, 3, 6):
                    self.e(f"s_cmp_lg_u32 s{sT4}, {16*ph+n}\ns_cbranch_scc1 L_gs{ph}{n}")
                    self.stamp(f"g{ph}{n}")
                    self.e(f"L_gs{ph}{n}:")
        G = [None] * 6; T = [None] * 6; X = [[] for _ in range(6)]
        if k < 16:
            A_ = self.agroups(lambda x: f"s_mov_b32 m0, {CBW + h*8192 + x*4096}", sXA + h, self.P("apol"), sT4)
            for x, p in enumerate((2, 4) if h == 0 else (0, 2)):
                G[p] = A_[x]; T[p] = ("ca", self.ph, k)
                if x: X[p] = [f"s_add_u32 s{sT4}, s{sXA+h}, s{sP6}"]
            for p, gi in ((0, 2), (1, 3), (3, 4)) if h == 0 else ((4, 0), (5, 1)):
                G[p], X[p] = self.bgroup(gi); T[p] = ("xa" if gi < 3 else "xb", self.ph, (k + 1) >> 1)
        F = self.chunk_addr(1 - h) if k < 16 else []
        F2 = [f"v_accvgpr_mov_b32 a{aHF+68+32+i}, a{aB2+i}" for i in range(36)] if h == 0 and k >= 2 else []
        gaps = []
        for p in range(6):
            pre = X[p]; late = []
            if p == 2: assert not F
            if h and k < 16 and p in (2, 3):
                t = "xa" if p == 2 else "xb"
                pre += self.q_wait((loc, t), (t, self.ph, k >> 1)); F += self.breads(range(6) if p == 2 else range(6, 9))
            if p == 4 and 1 <= k <= 16:
                assert not F
                if h: gaps[-1] += ["s_waitcnt lgkmcnt(0)"]
                pre += self.q_wait((loc, "r"), ("ca", self.ph, k - 1)); F += self.areads(1 - h)
            if loc in ("p0", "p1") and self.o.get("sm") in ("p", "o") and self.o.get("stamps") and not self.dry and f"{loc}{p}" in self.STM["p"]:
                i = self.STM["p"].split().index(f"{loc}{p}"); l = self.lab("hs")
                pre = [f"s_cmp_lg_u32 s{sIT}, {int(self.o['sm'] == 'o')}", f"s_cbranch_scc1 {l}", f"{'s_memtime' if self.o['stamps'] == 2 else 's_memrealtime'} s[{sSTAMP+2*i}:{sSTAMP+2*i+1}]", l + ":"] + pre
            gaps += self.position((loc, p), G[p], T[p], pre, F, late=late, fill2=F2)
        gaps[-2] += F + F2
        gaps[-1] += tail
        if k >= 2 and not self.o.get("nomf"): self.weave(self.hmf(h), dict(enumerate(gaps)))
        else: self.emit(self.flat(gaps))
    def engine(self):
        self.e(f"s_mov_b32 s{sKS}, 0")
        self.emit(self.chunk_addr(0))
        for gi in range(2):
            (m0, D), X = self.bgroup(gi)
            self.emit([m0] + X + self.q_push(D, ("xa", self.ph, 0)))
        self.e(self.kv_m0(0))
        self.half("p0", 0)
        self.half("p1", 1, tail=[f"s_mov_b32 s{sCNT}, 0"])
        self.e(".p2align 3\nL_eloop:")
        for it in range(7 if self.dry else 1):
            self.half("b0", 2 + 2 * it)
            self.half("b1", 3 + 2 * it, tail=[f"s_add_u32 s{sCNT}, s{sCNT}, 1", f"s_cmp_lt_u32 s{sCNT}, 7"])
        self.e("s_cbranch_scc1 L_eloop")
        if not self.dry: self.G += 72; self.pub = None
        self.half("e0", 16)
        self.half("e1", 17)

    def helper(self):
        D = self.D
        self.q = []; self.G = 0; self.pubok = False; self.ph = 0; self.pub = 0
        e = self.e
        def q0w(c):
            ad = [f"s_add_u32 s{sT3}, s{sT3}, {1 << 19}", f"s_cmp_eq_u32 s{sT3}, {8 << 19}", f"s_cselect_b32 s{sT3}, {1 << 19}, s{sT3}"] if c > 2 and not c & 1 else []
            G = self.agroups(lambda x: f"s_mov_b32 m0, {QC[(c >> 1) % 3] + 18432 + (c & 1)*8192 + x*4096}", sT4, self.P("cpol"))
            return [(("w", c), (ad if x == 0 else []) + [G[x][0], f"s_add_u32 s{sT4}, s{sT3}, {((c & 1) << 18) + x*131072}"] + G[x][1]) for x in range(2)]
        self.q += [("w", 0)] * 6
        self.emit(self.q_push([self.dma(vDW + i, sEA, sT1, i * 1024, self.P("cpol")) for i in (2, 3)], ("w", 0)) + [f"s_mov_b32 s{sT3}, 0"])
        for t, g in q0w(1): self.emit(self.q_push(g, t))
        e(f"""s_lshl_b32 s{sT3}, s{sXS}, 19
        s_mov_b32 s{sP6}, 131072
        v_lshlrev_b32 v{vL16}, 4, v1
        v_mov_b32 v248, 0
        v_mov_b32 v249, 0
        v_mov_b32 v250, 0
        v_mov_b32 v251, 0
        v_add_u32 v30, {SYNC+256}, v{vL16}
        v_lshlrev_b32 v{vLA}, 2, v1
        v_add_u32 v{vLA}, {LAND}, v{vLA}
        ds_write_b128 v30, v[248:251]
        ds_write_b32 v{vLA}, v248""")
        e(f"s_lshl_b32 s{sT0}, s{sWID}, 19")
        if self.o.get("kvr"):
            e(f"""s_mul_i32 s{sT1}, s2, {self.o["kvr"]}
            s_lshr_b32 s{sT1}, s{sT1}, {self.o.get("kvs", 0)}
            s_and_b32 s{sT1}, s{sT1}, 31
            s_lshl_b32 s{sT1}, s{sT1}, 13
            s_cmp_eq_u32 s{sWID}, 255
            s_cselect_b32 s{sT1}, 0, s{sT1}
            s_add_u32 s{sT0}, s{sT0}, s{sT1}""")
        self.emit(self.srd(sK, 6, f"s{sT0}", 524288) + self.srd(sV, 8, f"s{sT0}", 524288))
        e(f"""v_lshlrev_b32 v30, 8, v3
        v_lshl_add_u32 v30, v2, 6, v30
        v_xor_b32 v31, 2, v4
        v_min_u32 v{vPA}, 2, v4
        v_lshl_add_u32 v{vKV+1}, v31, 4, v30
        v_lshl_add_u32 v{vKV}, v4, 4, v30
        v_lshlrev_b32 v{vPA}, 8, v{vPA}
        v_add_u32 v{vPA}, {PROG}, v{vPA}
        s_mov_b32 s{sOFF}, 0
        s_mov_b32 s{sSL}, 0
        s_mov_b32 s{sB}, 10
        {"v_cmp_gt_u32 vcc, 12, v1" if self.o.get("tl") else ""}
        {"v_add_u32 v15, 64, v1" if self.o.get("tl") else ""}
        {"s_nop 0" if self.o.get("tl") else ""}
        {"v_cndmask_b32 v15, v1, v15, vcc" if self.o.get("tl") else ""}
        {["s_mov_b32 s%d, 0" % sROT, "", "s_lshl_b32 s%d, s%d, 2" % (sROT, sC), "s_lshl_b32 s%d, s%d, 1" % (sROT, sBB)][self.o.get("er", 0)]}""")
        setup = [f"s_mul_i32 s{sT0}, s{sBB}, 147456"] + self.srd(sEB, 4, f"s{sT0}", 147456) + self.xsrc(30, 31, vDX) + \
                [f"s_mov_b32 s{sP1}, 256", f"s_mov_b32 s{sP2}, 64", f"s_mov_b32 s{sP3}, {1 << 20}", f"s_mov_b32 s{sP4}, {1 << 18}"] + self.common_srds() + self.xpat(30, 31, vXR, vXR1, CBX) + self.wpat(30, 31, vW0, vW1, CBW) + \
                [f"v_mov_b32 v{vSC}, s{sCS}", f"v_mov_b32 v{vSC+1}, s{sCS}"]
        self.emit(setup + [self.kv_m0(0), self.kv_so(0), f"s_mov_b32 s{sP5}, 256"] + [f"s_mov_b32 s{sG[i]}, {i*32768}" for i in range(5)])
        self.stamp("iss")
        e("s_waitcnt lgkmcnt(0)\ns_barrier")
        self.stamp("bar")
        done = [0]
        def q0pub(n):
            while done[0] < min(n, 16):
                c = done[0]
                last = max(i for i, t in enumerate(self.q) if t == ("w", c))
                nb = sum(1 for t in self.q[:last] if t[0] == "g") // 16 if c == 15 else 0
                self.emit(self.q_wait(("q0", c), ("w", c)) + self.pub_abs(c + 1 + nb))
                self.stamp(f"c{c}")
                done[0] += 1
        Z = [f"v_accvgpr_write_b32 a{aHACC+i}, 0" for i in range(72)] + [f"v_mov_b32 v{vHACC+i}, 0" for i in range(216)]
        LAG = self.o.get("lag", 3); KN_ = self.o.get("kn", 10)
        q0pub(1)
        for c in range(2, 16):
            if c >= 6:
                assert done[0] >= c - 5
                self.emit([self.rdpr] + self.pcheck(c - 5))
            for t, g in q0w(c): self.emit(self.q_push(g, t))
            for i in range(self.KG if c >= self.KS else 0):
                if self.G < KN_: self.emit(([] if i else [self.kv_m0(self.G & 3), "s_nop 0"]) + self.flat(self.position(("q0p", self.G), check=False, pace=False)))
            q0pub(2 if c == 2 else c - LAG + 1)
            if c >= 6 and not self.o.get("zp"): self.emit(Z[(c - 6) * 29:(c - 5) * 29])
        self.stamp("c15i")
        q0pub(self.o.get("pb", 14))
        self.emit([self.kv_m0(self.G & 3), "s_nop 0"])
        if self.G == 12: self.emit([self.rdpr] + self.pcheck(12))
        while self.G < 20:
            n = self.G - 12
            self.emit(self.flat(self.position(("q0p", self.G), check=12 if self.G == 11 else False, late=Z[n * 36:n * 36 + 36] if n >= 0 and self.o.get("zp") else [])))
            q0pub(done[0] + 1)
            if done[0] == 16 and not self.pubok:
                self.pubok = True; self.stamp("q0")
        assert self.pubok
        self.stamp("G20")
        self.emit([self.rdpr, f"s_mov_b32 s{sLD}, {self.pub}", f"s_mov_b32 s{sAL}, 4096", f"s_mov_b32 s{sRT}, {self.o.get('r0', 18)}"] + self.pcheck(16))
        self.engine()
        assert self.G == 128
        F = [f"v_add_u32 v30, {HAND1}, v{vL16}", "s_nop 3"]
        n = 0
        for ks in (1, 2, 3, 0):
            for qt in range(9):
                if ks:
                    b0 = vHACC + 36 * (2 * ks - 2) + 4 * qt; b1 = b0 + 36
                else:
                    b0 = vHACC + 8 * (qt % 2); b1 = b0 + 4
                    for i in range(4): F += [f"v_accvgpr_read_b32 v{b0+i}, a{aHACC+4*qt+i}", f"v_accvgpr_read_b32 v{b1+i}, a{aHACC+36+4*qt+i}"]
                F += [f"v_pk_mul_f32 v[{b}:{b+1}], v[{b}:{b+1}], v[{vSC}:{vSC+1}]" for b in (b0, b0 + 2, b1, b1 + 2)]
                t = vHT + 4 * (n % 2); n += 1
                F += [f"v_cvt_pk_bf16_f32 v{t+i}, v{b}, v{b+1}" for i, b in enumerate((b0, b0 + 2, b1, b1 + 2))]
                F += [f"ds_write_b128 v30, {vr(t)} offset:{(qt*4+ks)*1024}"]
        assert D >= 1
        NF = self.o.get("nf", 3)
        for m in range(NF): self.plain(f"f{m}", F[m * len(F) // NF:(m + 1) * len(F) // NF])
        SW = self.wo_srd() + self.srd(sDB, 16, 0, 256) + \
             ["v_bfe_u32 v30, v1, 2, 2", "v_lshlrev_b32 v30, 10, v30", "v_lshrrev_b32 v31, 4, v1", "v_lshl_add_u32 v30, v31, 6, v30",
              "v_and_b32 v31, 3, v1", f"v_lshl_add_u32 v{vDW1}, v31, 4, v30", "v_xor_b32 v31, 2, v31", f"v_lshl_add_u32 v{vDW1+1}, v31, 4, v30",
              f"v_add_u32 v{vDW1+2}, 2048, v{vDW1}", f"v_add_u32 v{vDW1+3}, 17408, v{vDW1+1}", f"v_add_u32 v{vDW1+1}, 15360, v{vDW1+1}",
              f"s_mov_b32 s{sRT}, {self.o.get('r1', 18)}"] + ([f"s_mov_b32 s{sEA+2}, 0"] if self.o.get("now") else [])
        for i in range(4): SW += [f"s_add_u32 s{sT1}, s{sC}, {i}", f"s_and_b32 s{sT1}, s{sT1}, 3", f"s_lshl_b32 s{sH[i]}, s{sT1}, 18"]
        SW += ["v_bfe_u32 v30, v1, 2, 2", "v_min_u32 v30, 2, v30", f"v_add_u32 v30, s{sC}, v30", "v_add_u32 v30, 1, v30", "v_and_b32 v30, 3, v30",
               "v_and_b32 v31, 3, v1", "v_min_u32 v31, 2, v31", f"v_lshl_add_u32 v31, v30, 2, v31", f"v_lshlrev_b32 v{vPL}, 7, v31",
               "v_lshlrev_b32 v53, 9, v30", "v_add_u32 v53, 384, v53", "v_mov_b32 v54, 0"]
        SW += self.tail_wregs(sT1) + self.tail_src() + self.tail_own(False); nb = 40 - 32 - NF
        for m, x in enumerate(self.split(SW, nb)): self.plain(("pl", m + 32 + NF), x, check="redo" if m == nb - 1 else True)
        def share(r):
            return [f"s_bfe_u32 s{sT3}, s2, 0x30003", f"s_lshr_b32 s{sT4}, s{sT3}, 1", f"s_and_b32 s{sT3}, s{sT3}, 1", f"s_lshl_b32 s{sT4}, s{sT4}, 18", f"s_lshl_b32 s{sT3}, s{sT3}, 16",
                    f"s_add_u32 s{sT3}, s{sT3}, s{sT4}", f"s_add_u32 s{sT3}, s{sT3}, {131072*r}", f"v_lshrrev_b32 v30, 1, v1", f"v_and_b32 v31, 1, v1", "v_lshlrev_b32 v30, 10, v30",
                    "v_lshl_add_u32 v30, v31, 7, v30", f"s_add_u32 s{sT4}, s{sT3}, 32768"], [f"buffer_load_dword v52, v30, {sr(sEA)}, s{x} offen" for x in (sT3, sT4)]
        self.plain(("pl", 40), check=False, cg={0: share(0)} if self.o.get("pfe", 1) else {})
        self.stamp("s0")
        e(f"L_s0:\n{self.rdpr}\ns_mov_b32 s{sIT}, 1")
        self.emit(self.pcheck(f"s{sB}"))
        self.stamp("it0")
        tok = f"buffer_load_dwordx2 v[56:57], v54, {sr(sDB)}, 0 offen sc1"
        self.plain(("pl", 41), [f"v_add_u32 v30, {HAND1}, v{vL16}"] + [f"ds_read_b128 {vr(vEO+4*i)}, v30 offset:{i*1024}" for i in range(36)], cg={0: (None, [tok])}, tag="tok", fix=True)
        e("s_waitcnt lgkmcnt(0)")
        self.plain(("pl", 42), fix=True)
        self.emit(self.q_wait("tok", "tok"))
        e(f"""L_tok:
        v_readfirstlane_b32 s{sTK+1}, v57
        v_readfirstlane_b32 s{sTK}, v56
        s_cmp_eq_u32 s{sTK+1}, 0
        s_cbranch_scc1 L_tok2
L_tokok:""")
        if not self.dry: self.ool += ["L_tok2:"] + self.budget("L_tokok") + [tok, "s_waitcnt vmcnt(0)", "s_branch L_tok"]
        ES = []
        for t in range(9):
            ES += [[f"s_add_u32 s{sT2}, s{sT2}, 4096" if t else f"s_mul_i32 s{sT2}, s{sC}, 73728" if not self.o.get("noes") else f"s_mov_b32 s{sT2}, {OOB:#x}"] +
                   [f"buffer_store_dwordx4 {vr(vEO+16*t+4*k)}, v55, {sr(sOB)}, s{sT2} offen offset:{k*1024} {self.P('esc', 'sc1')}" for k in range(4)]]
        es = self.o.get("es", 9); bk = self.o.get("bk", 62)
        back = [f"ds_write_b128 v62, {vr(vEO+4*i)} offset:{i*1024}" for i in range(36)]
        e(f"v_add_u32 v55, {O_OFF}, v{vL16}\nv_add_u32 v62, {HAND1}, v{vL16}")
        for m in range(43, 65):
            cg = {j: (ES[0][0], ES.pop(0)[1:]) for j in range(4) if 4 * (65 - m) - j <= es and ES}
            if m >= self.o.get("et", 99) and ES:
                n = self.o.get("en", 1)
                for j in range(4):
                    if not ES: break
                    pre = ES[0].pop(0) if not isvm(ES[0][0]) else None
                    cg[j] = (pre, [ES[0].pop(0) for _ in range(n)])
                    if not ES[0]: ES.pop(0)
            if m in (44, 50, 58): self.stamp({44: "g10", 50: "g13", 58: "g16"}[m])
            if m == bk: self.emit([self.rdpr] + self.pcheck(78, rel=True))
            self.plain(("pl", m), back[12*(m - bk):12*(m - bk + 1)] if m >= bk else [], cg=cg, tag="e", check=m < 64, fix=True)
        assert self.G == 260
        self.stamp("G260")
        def wchunk(n):
            G = self.agroups(lambda h: f"s_mov_b32 m0, {WC[n] + h*4096}", sT3, self.P("wpol"), sT4, vDW1)
            o = ((n & 3) << 15) + 131072
            return self.q_push([G[0][0], f"s_add_u32 s{sT3}, s{sH[n >> 2]}, {o}"] + G[0][1] + [G[1][0], f"s_add_u32 s{sT4}, s{sH[n >> 2]}, {o + 8192}"] + G[1][1], ("w1", n))
        def wblock(p): return wchunk(2 * p) + wchunk(2 * p + 1)
        def chk(n): return [self.rdpr] + self.pcheck(n)
        def estore():
            L = self.q_push(sum(ES, []), "e"); ES.clear()
            return L
        PB_ = 75 + NW
        if self.o.get("now") == 1: e(f"s_lshl_b32 s{sT3}, s{sC}, 8\ns_sub_u32 s{sEA+2}, 1048576, s{sT3}")
        if self.o.get("ea", 0) == 0: self.emit(estore())
        if self.o.get("pf", 2) == 2:
            self.emit(share(1)[0] + self.q_push(share(1)[1], "pf"))
        GL = 259; N0 = PB_
        late = [m for m in range(NW) if 4 * self.WB[m] + 3 + D > GL]
        ea = self.o.get("ea", 0); w1 = self.o.get("w1", 2)
        self.emit(self.q_wait("w80", [("g", GL - 4), ("wg", NW - 1)]) + self.pub_abs(PB_ + 5) + sum((self.hpull(m) for m in late), []))
        for p in range(w1): self.emit(chk(N0 + p) + wblock(p))
        self.emit(self.q_wait("w81", ("g", GL)) + self.pub_abs(PB_ + 6))
        self.stamp("l81")
        for p in range(w1, self.o.get("w2", 3)): self.emit(chk(N0 + p) + wblock(p))
        poll = f"buffer_load_dwordx2 v[58:59], v53, {sr(sFL)}, s{sP4} offen sc1"
        self.emit(self.q_wait("w83", ("w1", 3)))
        e("L_wdone:")
        self.stamp("wd")
        eflag = lambda: self.q_push(self.oflag(0, (self.q_wait("eack", "e") or ["s_nop 0"])[0]), "ef")
        self.emit(self.pub_abs(PB_ + 7) + (eflag() if not ea else []) + [f"v_mov_b32 v31, {MISC+32}", "ds_write_b64 v31, v[56:57]", f"s_lshl_b32 s{sP4}, s{sWID}, 13"])
        for p in range(self.o.get("w2", 3), 4): self.emit(chk(N0 + p) + wblock(p))
        self.emit(self.q_push([poll], "p0"))
        self.stamp("w3")
        self.emit(self.pulls(WA) + chk(PB_ + 7) + self.q_wait("w84", ("w1", 7)) + self.pub_abs(PB_ + 8))
        self.emit(estore())
        self.stamp("w4")
        self.emit(self.pulls(WB_))
        self.stamp("w6")
        self.emit(self.rd(0) + self.rd(1))
        self.stamp("c15")
        self.emit((eflag() if ea else []) + self.q_wait("p0", "p0"))
        e(f"""L_poll0:
        v_cmp_ne_u64 vcc, s[{sTK}:{sTK+1}], v[58:59]
        s_cbranch_vccnz L_poll0b
L_poll0r:""")
        if not self.dry: self.ool += ["L_poll0b:"] + self.budget("L_poll0r") + [poll, "s_waitcnt vmcnt(0)", "s_branch L_poll0"]
        self.stamp("pe")
        self.stamp("it1")
        if not self.dry:
            self.b1("L_hredo")
            e("s_branch L_tail")
        e(f"""L_hredo:
        s_waitcnt vmcnt(0)
        s_barrier
        s_mul_i32 s{sB}, s{sIT}, {32 + NW}
        s_add_u32 s{sB}, s{sB}, 10
        s_add_u32 s{sT0}, s{sB}, {6 - (D + 3) // 4}
        v_mov_b32 v{vPB}, s{sT0}
        s_mov_b32 s{sLD}, s{sT0}
        s_add_u32 s{sT0}, s{sB}, 6
        v_mov_b32 v{vPV}, s{sT0}
        s_lshl_b32 s{sAL}, s{sT0}, 4
        ds_write_b32 v{vLA}, v{vPB}
        s_mov_b32 s{sCNT}, 0
        s_lshl_b32 s{sOFF}, s{sIT}, 18
        s_mov_b32 s{sSL}, 0
L_hmloop:""")
        for j in range(2): self.emit([self.kv_m0(j), self.kv_so(j)] + self.kv_d(j))
        e(f"""s_add_u32 s{sOFF}, s{sOFF}, 8192
        s_waitcnt vmcnt(0) lgkmcnt(0)
        s_barrier
        s_barrier
        s_add_u32 s{sCNT}, s{sCNT}, 1
        s_cmp_lt_u32 s{sCNT}, 32
        s_cbranch_scc1 L_hmloop
        s_lshl_b32 s{sOFF}, s{sIT}, 18
        s_mul_i32 s{sSL}, s{sIT}, {6 * SLOT}
        s_cmp_eq_u32 s{sIT}, 0
        s_cselect_b32 s{sCNT}, {self.S0 + 10}, {75 + NW}
        {self.kv_m0(0)}
        {self.kv_so(0)}
L_hploop:""")
        self.G = 400; self.q = [("g", g) for g in range(380, 400) for _ in range(4)]; self.pub = None
        self.plain("rp")
        e(f"""s_cmp_lt_u32 s{sB}, s{sCNT}
        s_cbranch_scc1 L_hploop
        s_cmp_eq_u32 s{sIT}, 0
        s_cbranch_scc1 L_s0
        s_waitcnt vmcnt(0)""")
        self.emit(self.pub_abs(PB_ + 6) + chk(PB_ + 6))
        for p in range(self.o.get("w2", 3)): self.emit(wblock(p) + ["s_waitcnt vmcnt(16)"])
        self.emit(["s_waitcnt vmcnt(0)", "s_branch L_wdone"])

    def tail_wregs(self, sT0=sT0):
        return [f"s_lshl_b32 s{sT0}, s{sWAVE}, 8"] + self.wpat(250, 251, 252, 253, f"s{sT0}") + [f"v_add_u32 v254, 65536, v252", f"v_add_u32 v255, 65536, v253"]
    def pull(self, b, r, o):
        return [f"ds_read_b64_tr_b16 {ar(b+4*u+2*h,2)}, v{r+h} offset:{o+8*u}" for u in range(2) for h in range(2)]
    def pulls(self, ns):
        return sum((self.pull(aW[1] + 8 * n, 252 + 2 * (WC[n] >> 16), WC[n] & 65535) for n in ns), [])
    def wpull(self, m): return self.pull(aW[0] + 16 * m, 250, 0) + self.pull(aW[0] + 16 * m + 8, 250, 8192)
    def wdisp(self, l):
        L = [l + ":"]; T = [(b - 35) // 2 for b in self.WB] + [64]
        m8 = [m for m in range(NW) if 62 <= self.witem[m] < 69][0]
        for m in range(NW):
            if m < NW - 1: L += [f"s_cmp_lg_u32 s{sTGT}, {T[m]}", f"s_cbranch_scc1 {l}{m+1}"]
            L += self.wpull(m) + [f"s_mov_b32 s{sTGT}, {T[m+1]}"] + ([f"s_mov_b32 s{sRG}, {RING}"] if m == m8 else [])
            if m < NW - 1: L += [f"s_branch {l}x", f"{l}{m+1}:"]
        return L + [l + "x:"]
    def wo_srd(self):
        return [f"s_lshl_b32 s{sT2}, s{sKQ}, 20", f"s_lshl_b32 s{sT3}, s{sC}, 8", f"s_add_u32 s{sT2}, s{sT2}, s{sT3}"] + self.srd(sEA, 12, f"s{sT2}", 1048576) + [f"s_sub_u32 s{sEA+2}, s{sEA+2}, s{sT3}"]
    def tail_w2(self):
        return [f"s_lshl_b32 s{sCNT}, s{sWAVE}, 11", f"s_add_u32 s{sT0}, s{sC}, 2", f"s_and_b32 s{sT0}, s{sT0}, 3", f"s_lshl_b32 s{sSL}, s{sT0}, 18",
                f"s_add_u32 s{sT0}, s{sC}, 3", f"s_and_b32 s{sT0}, s{sT0}, 3", f"s_lshl_b32 s{sB}, s{sT0}, 18"]
    def tail_src(self):
        L = []
        for x in range(3):
            L += [f"s_mul_i32 s{sT1}, s{sWAVE}, 3", f"s_add_u32 s{sT1}, s{sT1}, {x+4}", f"s_lshr_b32 s{sT2}, s{sT1}, 2", f"s_add_u32 s{sT2}, s{sT2}, s{sC}",
                  f"s_and_b32 s{sT2}, s{sT2}, 3", f"s_mul_i32 s{sT2}, s{sT2}, 73728", f"s_and_b32 s{sT1}, s{sT1}, 3", f"s_lshl_b32 s{sT1}, s{sT1}, 10",
                  f"s_add_u32 s{sT1}, s{sT1}, s{sT2}", f"s_add_u32 s{sT1}, s{sT1}, {O_OFF - x*1024}", f"v_add_u32 v{vF[x]}, s{sT1}, v{vL16}"]
        return L
    def tail_own(self, att=True):
        L = [f"s_lshl_b32 s{sT1}, s{sWAVE}, 12", f"s_add_u32 s{sT1}, s{sT1}, 131072", f"v_bfe_u32 v{vTB}, v1, 2, 2", f"v_lshlrev_b32 v{vTB}, 10, v{vTB}", f"v_lshrrev_b32 v{vTC}, 4, v1",
             f"v_lshl_add_u32 v{vTB}, v{vTC}, 6, v{vTB}", f"v_add_u32 v{vTB}, s{sT1}, v{vTB}", f"v_and_b32 v{vTC}, 3, v1", f"v_lshl_add_u32 v{vW2}, v{vTC}, 4, v{vTB}",
             f"v_xor_b32 v{vTC}, 2, v{vTC}", f"v_lshl_add_u32 v{vTB}, v{vTC}, 4, v{vTB}", f"v_add_u32 v{vW2+1}, 15360, v{vTB}",
             f"v_add_u32 v{vTB}, 65536, v{vL16}", f"v_add_u32 v{vTC}, 131072, v{vL16}"]
        for p in range(4):
            L += [f"s_add_u32 s{sT1}, s{sKQ}, {p+1}", f"s_and_b32 s{sT1}, s{sT1}, 3", f"s_lshl_b32 s{sT1}, s{sT1}, 13", f"s_add_u32 s{sT1}, s{sT1}, {HAND1}", f"v_add_u32 v{vE+p}, s{sT1}, v{vL16}"]
        if att:
            L += [f"s_mul_i32 s{sT0}, s{sWAVE}, 3", f"s_lshl_b32 s{sT1}, s{sKQ}, 1", f"s_sub_u32 s{sT1}, s{sT0}, s{sT1}"]
            for qt in range(3):
                L += [f"s_add_u32 s{sT2}, s{sT1}, {qt+6}", f"s_and_b32 s{sT2}, s{sT2}, 7"]
                if qt == 2: L += [f"s_cmp_eq_u32 s{sWAVE}, 2", f"s_cselect_b32 s{sT2}, 8, s{sT2}"]
                L += [f"s_lshl_b32 s{sT2}, s{sT2}, 12", f"v_add_u32 v{vOW+qt}, s{sT2}, v{vL16}"]
        return L
    ORDER = (8, 0, 1, 2, 3, 4, 5, 6, 7)
    STEPS = [(0, i, 0) for i in range(9)] + [(1, i, 0) for i in range(9)] + \
            [(r, i, s) for U in ((8, 0, 1, 2, 3, 4, 5), (6, 7)) for r in range(2) for i in U for s in (1, 2, 3)]
    def rd(self, j):
        r, i, s = self.STEPS[j]
        o = (OU if r else EU)[self.ORDER.index(i)] + (s - 1) * 4096 if s else OWN + i * 4096 if r else HAND1 + 32768
        v, o = (vE + (i >> 1), (i & 1) * 4096) if not r and not s and i < 8 else ((vL16, vTB, vTC)[o >> 16], o & 65535)
        return [f"ds_read_b128 {vr(vBF[j % 3]+4*k)}, v{v} offset:{o+k*1024}" for k in range(4)]
    def acc(self, u, i): return vTA + 36 * u + 4 * i
    def fetch(self, r, n):
        L = [f"s_add_u32 s{sT2}, s{sOFF}, {n*4096}", f"s_and_b32 s{sT2}, s{sT2}, 0x7fff"] if n else []
        if r: L += [f"s_add_u32 s{sT3}, s{sT2}, 36864" if n else f"s_mov_b32 s{sT3}, {32768 + 36864}"]
        return L + [f"s_add_u32 m0, s{sT4}, {(OU if r else EU)[n]}"], [self.dma(vF[x], sOB, sT3 if r or not n else sT2, x * 1024, self.olp) for x in range(3)]
    def tstep(self, j, who, at={}, R=[], tags={}):
        r, i, s = self.STEPS[j]
        if not self.o.get("nord"): self.a(f"s_waitcnt lgkmcnt({self.lwait(j)})")
        mf = [f"{MF} {vr(self.acc(u,i))}, {ar(aW[r]+8*(4*s+k)+4*u)}, {vr(vBF[j % 3]+4*k)}, {vr(self.acc(u,i)) if j >= 9 or k else 0}" for k in range(4) for u in range(2)]
        f = {g: [] for g in range(8)}
        if j + 2 < 72:
            for g, x in zip([int(c) for c in str(self.o.get("rg", 10134))[1:]], self.rd(j + 2)): f[g].append(x if not self.o.get("nord") else "s_nop 0")
        busy = any(map(isvm, at.get(6, []) + at.get(7, [])))
        for g in ((2, 5) if busy else (2, 6)) if self.rate(j) == 2 else (2,) if busy else (5,):
            if self.fq:
                X, y, t = self.fq.pop(0)
                for n, x in enumerate(reversed(X)): f[max(0, g - 1 - n // 2)].insert(len(f[max(0, g - 1 - n // 2)]) - n % 2, x)
                f[g].append(y); tags = {**tags, y + str(g): t}
        for g, L in at.items(): f[g] += L
        for g in range(8):
            while R and (len(f[g]) + sum(map(isvm, f[g])) < 2 or R[0].startswith("s_cselect")): f[g].append(R.pop(0))
        for g in range(8):
            for n, x in enumerate(f[g]):
                if x == "@o": f[g][n] = f"s_waitcnt vmcnt({self.vwait(['o'], [True])})"
                if x.startswith("ds_"): self.ql.append(j + 2 if x.startswith("ds_read_b128") else "w")
                if isvm(x):
                    for w in who: self.qt[w].append(tags.get(x, tags.get(x + str(g))))
        self.weave(mf, f)
    def rate(self, j): return 2 if j < self.o.get("r2", 10) or 10 <= j < 10 + self.o.get("r4", 4) or self.B3 <= j < self.B3 + self.o.get("r3", 6) else 1
    def fpush(self, r, n):
        if r == 2:
            X, Y = [f"s_add_u32 m0, s{sCNT}, {WC[n]}", f"s_add_u32 s{sT3}, s{sB if n >= 12 else sSL}, {(n & 3) << 15}"], [self.dma(vW2 + k, sEA, sT3, k * 1024, self.P("wpol")) for k in range(2)]
        else: X, Y = self.fetch(r, n)
        self.fq += [(X if not k else [], y, ("EOW"[r], n)) for k, y in enumerate(Y)]
    def lwait(self, t):
        return min(15, len(self.ql) - 1 - max(n for n, x in enumerate(self.ql) if x == t))
    def vwait(self, ts, who=(True, False)):
        return min([63] + [len(self.qt[w]) - 1 - n for w in who for n, x in enumerate(self.qt[w]) if x in ts and x not in self.qt[w][n+1:]])
    def tail_regs(self):
        L = []
        for j, s in enumerate((sS0, sS1, sS2)):
            L += [f"s_add_u32 s{sT0}, s{sWID}, {4*(j+1)}", f"s_and_b32 s{sT0}, s{sT0}, 15", f"s_and_b32 s{sT1}, s{sWID}, 0xf0", f"s_add_u32 s{sT0}, s{sT0}, s{sT1}",
                  f"s_mul_i32 s{sT0}, s{sT0}, 49152", f"s_add_u32 s{sT1}, s{sWAVE}, {4*j}", f"s_lshl_b32 s{sT1}, s{sT1}, 12", f"s_add_u32 s{s}, s{sT0}, s{sT1}"]
        L += [f"s_sub_u32 s{sT0}, s{sWAVE}, s{sKQ}", f"s_and_b32 s{sT0}, s{sT0}, 3", f"s_cmp_eq_u32 s{sT0}, 1", f"s_cselect_b32 s{sS8}, s{sS0}, s{sS1}",
              f"s_cmp_eq_u32 s{sT0}, 3", f"s_cselect_b32 s{sS8}, s{sS2}, s{sS8}", f"s_add_u32 s{sS8}, s{sS8}, 3072",
              f"s_cmp_eq_u32 s{sT0}, 0", f"s_cselect_b32 s{sS8}, {OOB:#x}, s{sS8}"]
        L += ["v_bfe_u32 v19, v1, 2, 2", "v_lshrrev_b32 v20, 4, v1", "v_cmp_eq_u32 vcc, v19, v20", "v_and_b32 v19, 1, v1", "v_lshlrev_b32 v19, 4, v19",
              "v_mov_b32 v20, 0x3f80", "v_lshlrev_b32 v19, v19, v20", "v_cndmask_b32 v19, 0, v19, vcc", "v_and_b32 v20, 2, v1", "v_cmp_eq_u32 vcc, 0, v20",
              f"v_mov_b32 v{vSEL+2}, 0", f"v_mov_b32 v{vSEL+3}, 0", f"v_cndmask_b32 v{vSEL}, 0, v19, vcc", f"v_sub_u32 v{vSEL+1}, v19, v{vSEL}",
              f"v_mov_b32 v{vSEL+4}, 0", f"v_mov_b32 v{vSEL+5}, 0", f"v_mov_b32 v{vSEL+6}, v{vSEL}", f"v_mov_b32 v{vSEL+7}, v{vSEL+1}"]
        L += [f"v_mov_b32 v{vRC+4*k+3}, s{sTK}" for k in range(3)]
        L += ["v_and_b32 v19, 3, v1", "v_min_u32 v19, 2, v19", f"v_lshlrev_b32 v19, 14, v19", f"v_add_u32 v{vP2}, 3068, v19",
              "v_and_b32 v19, 15, v1", "v_lshlrev_b32 v19, 10, v19", "v_lshrrev_b32 v20, 4, v1", "v_lshl_add_u32 v19, v20, 4, v19",
              f"s_lshl_b32 s{sT0}, s{sWAVE}, 6", f"v_add_u32 v{vOUT}, s{sT0}, v19"]
        return [x.replace("v19", "v13").replace("v20", "v14") for x in L]
    def tail(self):
        a = self.a
        a("L_tail:")
        acc = self.acc
        def send(i, n):
            t = vRC + 4 * (n & 1); c = vRC + 8
            so = sS8 if i == 8 else (sS0, sS1, sS2)[i >> 1]
            st = lambda t, o: f"buffer_store_dwordx4 {vr(t)}, v{vL16}, {sr(sPT)}, s{so} offen offset:{o} {self.P('psc', 'sc1')}"
            return [f"v_cvt_pk_bf16_f32 v{t+2*u+x if u + x < 2 else c + (2 if i == 8 else i & 1)}, v{acc(u,i)+2*x}, v{acc(u,i)+2*x+1}" for u in range(2) for x in range(2)] + \
                   [st(t, 0 if i == 8 else (i & 1) * 1024)] + ([st(c, 2048)] if i & 1 else [])
        B3 = self.B3; PA = self.o.get("pa", 7); FL = self.o.get("fl", 5); FS = self.o.get("fs", 66); PB2 = self.o.get("p2", 56)
        a(f"""s_mul_i32 s{sT4}, s{sWAVE}, 3072
        s_lshl_b32 s{sOFF}, s{sKQ}, 13
        s_add_u32 s{sOFF}, s{sOFF}, 4096
        s_mov_b32 s{sT3}, 32768""")
        if self.o.get("hit") == 1: a(f"s_mov_b32 s{sOB}, s{sEA}\ns_mov_b32 s{sOB+1}, s{sEA+1}")
        if self.o.get("hit") == 2: a(f"s_mov_b32 s{sOB+2}, 0")
        if self.o.get("hit") == 3: a(f"s_mov_b32 s{sOB+2}, 0\ns_mov_b32 s{sEA+2}, 0")
        self.ql = [0] * 4 + [1] * 4; self.fq = []
        self.qt = {True: ["o"] * 12, False: []}
        first = lambda r, n: self.STEPS.index((r, self.ORDER[n], 1))
        todo = [(0, n) for n in range(7)] + [(1, n) for n in range(7)] + [(0, 7), (0, 8), (1, 7), (1, 8)]
        bar = {B3: [], 10: []}
        cutsE = [int(c) for c in str(self.o.get("eg", 101245))[1:]]; cutsO = [int(c) for c in str(self.o.get("og", 10135))[1:]]
        cuts = [(0, n) for n in cutsE] + [(1, n) for n in cutsO] + [(0, 7)] + ([(1, 7)] if self.o.get("lg", 1) else [])
        for k, x in enumerate(cuts): bar[first(*x) - 2] = [("EO"[r], n) for r, n in todo[:todo.index(cuts[k + 1]) if k + 1 < len(cuts) else 18]]
        pul = {16: WD, 22: WE}
        held = []
        for j, L in pul.items():
            bar[j] = bar.get(j, []) + [("W", n) for n in L]
            held += [(WC[n], 8192, j + 5) for n in L]
        for j, (r, i, s) in enumerate(self.STEPS):
            held.append(((OU if r else EU)[self.ORDER.index(i)], 12288, j) if s else (OWN + i * 4096, 4096, j) if r else (HAND1, 36864, j))
        todo[1:1] = [(2, n) for n in WD + WE]
        poll = f"buffer_load_dwordx2 v[2:3], v{vPL}, {sr(sFL)}, s{sIT} offen offset:2048 sc1"
        nst = 0; R = self.tail_w2(); nw2 = len(R); R += [f"s_lshl_b32 s{sIT}, s{sWID}, 13"] + self.tail_regs(); nw2 = len(R) - nw2; seen = 0; W2 = (True, False); P = []
        def nextf(j):
            if not todo: return None
            r, n = todo[0]
            if r == 2: return todo.pop(0) if len(R) <= nw2 else None
            o = (OU if r else EU)[n]
            if r and seen < B3 or max([-1] + [x for p, l, x in held if x < first(r, n) and p < o + 12288 and o < p + l]) >= seen: return None
            return todo.pop(0)
        pre2 = [f"s_mul_i32 s{sROT}, s{sWID}, 49152", f"s_lshl_b32 s{sT1}, s{sWAVE}, 12", f"s_add_u32 s{sROT}, s{sROT}, s{sT1}", f"s_lshl_b32 s{sT2}, s{sKQ}, 15",
                f"s_cmp_eq_u32 s{sWAVE}, s{sKQ}", f"s_cselect_b32 s{sT3}, 0, {OOB:#x}", f"s_cselect_b32 s{sREDO}, s{sTK}, 0"]
        pol2 = f"buffer_load_dword v2, v{vP2}, {sr(sPT)}, s{sROT} offen sc1"
        get = [[f"s_add_u32 s{sT0}, s{sROT}, {16384*k}", f"s_or_b32 s{sT1}, s{sT0}, s{sT3}"] +
               [f"buffer_load_dwordx4 {vr(vRC+16*k+4*u)}, v{vL16}, {sr(sPT)}, s{sT1 if u == 3 else sT0} offen offset:{u*1024} {self.P('plpol', 'sc1')}" for u in range(4)] for k in range(3)]
        for j in range(72):
            r, i, s = self.STEPS[j]
            if j == B3:
                assert not R
                self.stamp("pq")
                a(f"""s_cmp_lg_u32 s{sWAVE}, 3
                s_cbranch_scc1 L_p1ok
                s_waitcnt vmcnt({self.vwait(["p"])})
L_p1:
                v_cmp_ne_u64 vcc, s[{sTK}:{sTK+1}], v[2:3]
                s_cbranch_vccnz L_p1b
L_p1ok:""")
                self.ool += ["L_p1b:"] + self.budget("L_p1ok") + [poll, "s_waitcnt vmcnt(0)", "s_branch L_p1"]
            if j in bar:
                assert not any(t in bar[j] for X, y, t in self.fq) and not any(("EOW"[r_], n) in bar[j] for r_, n in todo), j
                if bar[j]: a(f"s_waitcnt vmcnt({self.vwait(bar[j])})")
                if not self.o.get("nobar"): a("s_barrier")
                seen = j
            self.stamp("p1" if j == B3 else "d0" if j == 37 else f"j{j}")
            while True:
                fe = nextf(j)
                if not fe: break
                self.fpush(*fe)
            if self.o.get("v"): print(j, "B" if j in bar else " ", [t for X, y, t in self.fq[:self.rate(j)]])
            at = {}
            if j == B3 - PA: at[7] = [poll]
            if j == FL:
                F = self.oflag(1, "", sREDO, sROT)
                G = F[:7] + [f"s_cmp_eq_u32 s{sWAVE}, 3", f"s_cselect_b32 s{sREDO}, {OOB:#x}, s{sREDO}"] + F[7:10]
                at = {g: x for g, x in zip((0, 1, 3, 4, 5), self.split(G, 5))}
                at[7] = [f"s_cmp_eq_u32 s{sWAVE}, 3", "s_cbranch_scc1 L_nw", "@o", "L_nw:"] + F[11:]
            assert PB2 % 3 and PB2 > 54
            if j == PB2: at = {**{g: x for g, x in zip((0, 1, 2, 3, 4, 5), self.split(pre2, 6))}, 7: [pol2]}
            if j == FS:
                self.emit([f"s_waitcnt vmcnt({self.vwait(['p2'])})", f"v_cmp_ne_u32 vcc, s{sTK}, v2", "s_cbranch_vccz L_get", pol2, "L_got:"])
                self.ool += ["L_get:"] + sum(get, []) + ["s_branch L_got"]
                self.stamp("fs")
            if 42 <= j <= 60 and s == 1:
                X = send(self.STEPS[j - 1][1], nst); nst += 1
                at = {4: X[:1], 5: X[1:3], 6: X[3:5], 7: X[5:]}
            if j - 5 in pul: assert not P
            if j in pul: P = self.pulls(pul[j])
            self.tstep(j, W2, at, P if P else R if j != FL else [], {poll: "p", pol2: "p2"})
            if j == FL: self.stamp("ack")
        assert not R and nst == 7 and not todo
        self.stamp("mf")
        a("s_cbranch_vccz L_have\nL_poll2:\ns_waitcnt vmcnt(0)")
        a(f"v_cmp_ne_u32 vcc, s{sTK}, v2\ns_cbranch_vccnz L_poll2b\nL_poll2r:")
        self.ool += ["L_poll2b:"] + self.budget("L_poll2r") + [pol2, "s_branch L_poll2"]
        self.emit(sum(get, []))
        a("L_have:")
        self.stamp("p2")
        for k in range(3):
            b = vRC + 16 * k
            a(f"""s_waitcnt vmcnt({8-4*k})
L_ck{k}:
            v_xor_b32 v2, s{sTK}, v{b+3}
            v_xor_b32 v3, s{sTK}, v{b+7}
            v_xor_b32 v4, s{sTK}, v{b+11}
            v_xor_b32 v13, s{sREDO}, v{b+15}
            v_or3_b32 v2, v2, v3, v4
            v_or_b32 v2, v2, v13
            v_cmp_ne_u32 vcc, 0, v2
            s_cbranch_vccnz L_re{k}
L_ok{k}r:
            v_mov_b32 v{b+3}, v{b+8}
            v_mov_b32 v{b+7}, v{b+9}
            v_mov_b32 v{b+15}, v{b+10}
            s_nop 0""")
            self.ool += [f"L_re{k}:"] + self.budget(f"L_ok{k}r") + get[k] + ["s_waitcnt vmcnt(0)", f"s_branch L_ck{k}"]
            for u, i in ((0, 6), (1, 7), (3, 8)):
                for x in range(2):
                    a(f"{MF} {vr(acc(x,i))}, {vr(vSEL+4*x)}, {vr(b+4*u)}, {vr(acc(x,i))}")
        a(f"""s_add_u32 s{sT1}, s{sT2}, 16384
        s_or_b32 s{sT3}, s{sT3}, 131072
        s_nop 1""")
        for n, (i, so) in enumerate(((6, sT2), (7, sT1), (8, sT3))):
            t = vBF[0] + 4 * n
            if n == 2: a("s_nop 1")
            for u in range(2):
                for x in range(2): a(f"v_cvt_pk_bf16_f32 v{t+2*u+x}, v{acc(u,i)+2*x}, v{acc(u,i)+2*x+1}")
            a(f"buffer_store_dwordx4 {vr(t)}, v{vOUT}, {sr(sOUT)}, s{so} offen {self.P('opol')}")
        if self.o.get("stamps"):
            a("s_waitcnt vmcnt(0)")
            if self.o.get("sm") not in ("s", "r", "c", "p", "o"): self.inh = self.inh and self.o.get("sm") != "h"; self.stamp("end")
            if self.o.get("amp"):
                i = self.o["amp"]
                a(f"""s_waitcnt lgkmcnt(0)
                s_cmp_lg_u32 s{sWAVE}, {self.o.get("ampw", 0)}
                s_cbranch_scc1 L_noamp
                s_and_b32 s{sT0}, s2, {self.o.get("ampm", 0)}
                s_cmp_lg_u32 s{sT0}, {self.o.get("ampv", 0)}
                s_cbranch_scc1 L_noamp
                s_sub_u32 s{sT0}, s{sSTAMP+2*i}, s{sSTAMP+2*self.o.get("amp0", 0)}
                s_min_u32 s{sT0}, s{sT0}, 20000
                s_mul_i32 s{sT0}, s{sT0}, {self.o.get("ampk", 10)}
                s_add_u32 s{sT0}, s{sT0}, 10000
L_amp:
                s_memrealtime s[{sT2}:{sT2+1}]
                s_waitcnt lgkmcnt(0)
                s_sub_u32 s{sT1}, s{sT2}, s{sSTAMP}
                s_cmp_lt_u32 s{sT1}, s{sT0}
                s_cbranch_scc1 L_amp
L_noamp:
                s_endpgm""")
            if self.o.get("dbg"):
                a("s_waitcnt lgkmcnt(0)")
                self.emit(self.srd(sDB, 16, 0, 256))
                a(f"""s_cmp_eq_u32 s{sWAVE}, 3
                s_cselect_b32 s{sT0}, 28, 0
                s_mov_b64 exec, 1
                v_mov_b32 v5, 0
                s_add_u32 s{sT1}, s{sWAVE}, 1
                s_and_b32 s{sT1}, s{sT1}, 2
                s_cbranch_scc1 L_nodbg""")
                for i in range(1, 8):
                    a(f"s_sub_u32 s{sT1}, s{sSTAMP+2*i}, s{sSTAMP}\nv_mov_b32 v6, s{sT1}\nbuffer_atomic_add v6, v5, {sr(sDB)}, s{sT0} offen offset:{4*i} sc1")
                a(f"""s_not_b32 s{sT1}, s{sSTAMP}
                v_mov_b32 v6, s{sT1}
                v_mov_b32 v7, s{sSTAMP+14}
                buffer_atomic_umax v6, v5, {sr(sDB)}, 0 offen offset:60 sc1
                s_waitcnt vmcnt(0)
L_nodbg:
                s_endpgm""")
            a(f"""s_waitcnt lgkmcnt(0)
            s_mov_b32 s{sO}, s18
            s_and_b32 s{sO+1}, s19, 0xffff
            s_mov_b32 s{sO+2}, 536870912
            s_mov_b32 s{sO+3}, 0x00020000
            s_lshl_b32 s{sT0}, s2, 8
            s_lshl_b32 s{sT1}, s{sWAVE}, 6
            s_add_u32 s{sT0}, s{sT0}, s{sT1}
            s_add_u32 s{sT0}, s{sT0}, {256<<20}
            v_mov_b32 v5, 0""")
            a("v_mov_b32 v15, v18")
            for i in range(16): a(f"v_mov_b32 v{16+i}, s{sSTAMP+i}")
            a("s_mov_b64 exec, 1")
            for i in range(4): a(f"buffer_store_dwordx4 {vr(16+4*i)}, v5, {sr(sO)}, s{sT0} offen offset:{16*i}")
            if self.o.get("tl"):
                a(f"""s_mov_b64 exec, -1
                s_cmp_lg_u32 s{sWAVE}, 3
                s_cbranch_scc1 L_notl
                s_lshl_b32 s{sT0}, s2, 8
                s_add_u32 s{sT0}, s{sT0}, {257<<20}
                v_lshlrev_b32 v5, 2, v1
                buffer_store_dword v15, v5, {sr(sO)}, s{sT0} offen
L_notl:""")
        a("s_endpgm")

    def kernel(self):
        self.inh = True
        self.dry = True; self.helper(); self.dry = False
        self.prologue()
        self.helper()
        self.inh = False; self.attention(); self.inh = self.o.get("sm") in ("g", "s", "r", "c", "p", "o", "h") and self.o.get("gh", 1)
        self.tail()
        self.emit(self.ool)
        self.a("L_end:\ns_endpgm")
        return self.a.text()

def build(opt):
    g = Gen(opt)
    t = g.kernel()
    if opt.get("v"): print(g.cnt)
    src = open("standalone__gqa_block_cached__near_ridge.s.ref").read().split("; Override launch")[0]
    return src + header([(KN, 256, 256, LDS)]) + kstart(KN) + t + rodata([kdesc(KN, 256, 256)])

if __name__ == "__main__":
    opt = {}
    out = sys.argv[1]
    for x in sys.argv[2:]:
        k, _, v = x.partition("=")
        opt[k] = int(v) if v.lstrip("-").isdigit() else (v if v else True)
    t = build(opt)
    open(out, "w").write(t)
    print("hazards:", hazard.check(t), "bytes:", len(t))
```

```python
import sys, struct
from asmlib import *
import hazard

SLOT = 16384; NSL = 7; RING = NSL * SLOT
CH = 17408
SYNC = 162560
LAND, PROG, MISC = SYNC, SYNC + 256, SYNC + 1024
PB = 2 * CH
QP = [SYNC - (4 - i) * PB for i in range(4)]
QC = [QP[2], QP[3], QP[1]]
CBX = QP[3]; CBW = CBX + 18432
HAND1 = 122880
OWN = 49152
EU = [12288 * i for i in (9, 10, 11, 12, 4, 5, 6, 11, 12)]
OU = [12288 * i for i in (2, 3, 9, 10, 0, 1, 7, 8, 4)]
WC = [(4 + n // 2) % 7 * SLOT + n % 2 * 8192 for n in range(12)] + [0, 8192, 86016, 94208]
WA, WB_, WD, WE = [0, 1, 2, 3], [4, 5, 6, 7], [8, 9, 10, 11], [12, 13, 14, 15]
NW = 8
LDS = 163840
O_OFF = 4096
PT_OFF = 24 << 20
FL_OFF = 40 << 20
CSC = struct.unpack("<I", struct.pack("<f", 1.4426950408889634 * 128 ** -0.5))[0]
THR = 0x4b800000
OOB = 0x80000000
MF = "v_mfma_f32_16x16x32_bf16"

def vr(b, n=4): return f"v[{b}:{b+n-1}]"
def ar(b, n=4): return f"a[{b}:{b+n-1}]"
def sr(b, n=4): return f"s[{b}:{b+n-1}]"

sWAVE = 3
sEB, sK, sV, sEA, sO, sOB, sPT, sOUT, sFL, sDB = 20, 24, 28, 32, 36, 40, 44, 48, 52, 56
(sT0, sT1, sT2, sT3, sT4, sOFF, sSL, sB, sIT, sCNT, sREDO, sROT, sCS, sKS, sPUB, sBUD, sKQ, sC, sBB, sWID,
 sP1, sP2, sP3, sP4) = range(60, 84)
sSTAMP = 84
sP5, sP6 = 100, 101
sS0, sS1, sS2, sS8 = sP1, sP2, sP3, sP4
sTGT = sPUB
sTK = 4
sAL, sLD, sRT, sPX = 6, 7, 8, 9
sRG, sR1 = sP5, sP6
sWO, sWM, sWS = sP1, sP2, sP3
sH = [sO, sO + 1, sO + 2, sO + 3]
sPF = sO
sXB, sXA = sDB, sDB + 2
sPO = sPUB
sG = [sO, sO + 1, sO + 2, sO + 3, sPUB]
sQD, sXM, sXS, sEX = sKS, sOFF, sB, sP1
vL16, vLA, vPA = 5, 6, 7
vPR, vLD, vRK, vRV0, vRV1, vRKb, vRV0b, vRV1b = 8, 9, 10, 11, 12, 13, 14, 15
vS, vNM, vONE, vMS = 16, 40, 52, 56
vTMP, vQ, vO, vL = 64, 80, 128, 224
vQB, vDXq = 24, 19
aK, aV, aQF = 0, 64, 128
vKV = 2
vPV, vPB, vDX, vDW, vW0, vW1, vXR, vSC, vFA, vFV = 8, 9, 10, 19, 23, 24, 25, 26, 28, 16
vXR1 = 14
vDW1, vEO = 48, 80
aB2 = 208
vHACC = 32; aHACC = 0; aHF = 72; vHT = 248
vTB, vTC = 236, 237
vE = 238
vF = (242, 243, 244)
vOW = 245
vW2 = 248
vPL = 232
vP2, vOUT = 10, 12
vBF, vSEL, vRC, vTA = (16, 32, 80), 96, 112, 160
aW = (128, 0)

def S(qt, kt=0): return vS + 8 * qt + 4 * kt
def Kf(p, kt, ks): return aK + 32 * p + 16 * kt + 4 * ks
def Vf(p, dt): return aV + 32 * p + 4 * dt
def Qf(qt, ks): return vQ + 16 * qt + 4 * ks
def Oa(qt, dt): return vO + 32 * qt + 4 * dt
PK = (vTMP, Oa(0, 0), Oa(0, 4))
def isvm(x): return x.startswith("buffer_")

class Gen:
    def __init__(self, opt):
        self.o = opt
        self.a = A()
        self.ool = []
        self.nlab = 0
        self.D = opt.get("d", 5)
        self.S0 = 41
        wp = [int(x) for x in str(opt.get("wp", 2221))]; n = 0; self.ride = {}; self.WB = []
        for G in range(4 * opt.get("wb", 41), 260):
            self.ride[G] = list(range(n, min(16 * NW, n + wp[G % len(wp)]))); n += len(self.ride[G])
            if n >= 16 * (len(self.WB) + 1): self.WB.append(max(G >> 2 | 1, self.WB[-1] + 2 if self.WB else 0))
        assert len(self.WB) == NW and self.WB[-1] <= 63, self.WB
        self.item = [j + sum(b < j for b in self.WB) for j in range(66)]; self.witem = [b + m + 1 for m, b in enumerate(self.WB)]
        self.slot = [i for lap in (7, 7, 7, 7, 7, 9, 9, 9, 7, 4) for i in range(lap)]
        self.need = [17 + max([t for t in range(i) if self.slot[t] == self.slot[i]] + [-17]) for i in range(73)]
        self.KS = opt.get("ks", 6)
        self.KG = opt.get("kg", 2)
        self.pol = self.P("pol", "nt")
        self.osc = self.P("osc", "sc1")
        self.olp = self.P("olpol", "sc1")
        self.B3 = opt.get("b3", 28)
        self.dry = False
        self.cnt = {}; self.inc = {}
    def P(self, k, d=""):
        v = self.o.get(k, d)
        return "" if v == "none" else v.replace("+", " ")
    STM = {"m": "start c0 q0 it0 it1 b3 p1 end", "t": "start it1 p1 b3 d0 mf p2 end", "q": "start karg iss bar c0 c8 q0 end", "u": "start it1 b1 b2 ack b3 p1 end",
           "g": "start g00 g03 g06 g10 g13 g16 end", "s": "start c15i G4 G8 G12 G16 G20 g00", "r": "start g06 G128 G136 G144 s0 it0 g10", "e": "start G260 l81 w4 pe it1 b1 y", "f": "start fin it1 p1 fs mf p2 end", "h": "start l81 wd w3 w4 w6 c15 pe", "j": "start b1 j10 j16 p1 d0 j58 mf", "i": "start b1 j22 pq pk pv p1 end", "w": "start b3 d0 d1 d3 d5 d7 mf",
           "c": "start c0 c1 c2 c3 c4 c6 c12", "p": "start G20 p00 p02 p04 p10 p13 g00", "o": "start s0 p00 p02 p04 p10 p13 g10"}
    def stamp(self, name):
        if self.o.get("sm") in ("k", "l"):
            nm = ("start g00 g06 g10" if self.o["sm"] == "k" else "start g10 g16 end").split()
            if name in nm and not self.dry:
                i = nm.index(name)
                self.a(f"s_memrealtime s[{sSTAMP+2*i}:{sSTAMP+2*i+1}]\ns_memtime s[{sSTAMP+8+2*i}:{sSTAMP+9+2*i}]")
            return
        names = self.STM[self.o.get("sm", "m")].split()
        if self.o.get("sm") == "g" and not self.inh: names = "start q0 it0 it1 b3 p1 mf end".split()
        if self.o.get("sm") == "s" and not self.inh: names = "start c0 c8 q0 k0 st0 it0 x".split()
        if self.o.get("sm") == "c" and not self.inh: names = "start c0 c2 c4 c8 c12 c16 q0".split()
        if self.o.get("sm") in ("p", "o") and not self.inh: names = "start q0 k0 st0 st1 it0 x y".split()
        if self.o.get("sm") == "r" and not self.inh: names = "start fin epi it0 st0 ofl st1 x".split()
        if self.o.get("sm") in ("e", "h") and not self.inh: names = "start fin it1 b1 ack pq p1 end".split()
        if name not in names: return
        i = names.index(name)
        if self.o.get("stamps") == 3 and not self.dry:
            self.a(f"s_sub_u32 s{sSTAMP+2*i}, {1 << 22}, s{sBUD}\ns_mov_b32 s{sSTAMP+2*i+1}, 0" if i else f"s_mov_b64 s[{sSTAMP}:{sSTAMP+1}], 0")
        elif self.o.get("stamps") and not self.dry:
            op = "s_memtime" if self.o.get("stamps") == 2 else "s_memrealtime"
            self.a(f"{op} s[{sSTAMP+2*i}:{sSTAMP+2*i+1}]")
    def stampl(self, name):
        sv = self.a; self.a = A(); self.stamp(name); L = [x.strip() for x in self.a.l]; self.a = sv
        return L
    def emit(self, L):
        if self.dry: return
        for x in L: self.a(x)
    def e(self, s):
        if not self.dry: self.a(s)
    def lab(self, p):
        self.nlab += 1
        return f"L_{p}{self.nlab}"
    def weave(self, mf, fills):
        L = list(fills.get(-1, []))
        for i, m in enumerate(mf):
            L.append(m); L += fills.get(i, [])
        self.emit(L)
    def spread(self, mf, items):
        if not mf:
            self.emit(items); return
        n = len(mf); f = {}
        for k, x in enumerate(items):
            f.setdefault(min(n - 1, k * n // max(1, len(items))), []).append(x)
        self.weave(mf, f)
    def srd(self, d, lo, off, nrec):
        return [f"s_add_u32 s{d}, s{lo}, {off}", f"s_addc_u32 s{d+1}, s{lo+1}, 0", f"s_and_b32 s{d+1}, s{d+1}, 0xffff",
                f"s_mov_b32 s{d+2}, {nrec}", f"s_mov_b32 s{d+3}, 0x00020000"]
    def dma(self, v, srd, soff, imm, pol=""):
        return " ".join(f"buffer_load_dwordx4 v{v}, {sr(srd)}, {'0' if soff is None else f's{soff}'} offen offset:{imm} {pol} lds".split())
    def budget(self, ret):
        return [f"s_sub_i32 s{sBUD}, s{sBUD}, 1", f"s_cmp_lt_i32 s{sBUD}, 0", f"s_cbranch_scc1 {ret}"]

    def prologue(self):
        a = self.a
        a(f"""s_cmp_ge_u32 s2, 256
        s_cbranch_scc1 L_end
        s_load_dwordx16 s[4:19], s[0:1], 0""")
        self.stamp("start")
        if self.o.get("cpf", 1):
            a(f"""s_getpc_b64 s[{sO}:{sO+1}]
            s_lshr_b32 s{sT0}, s2, 3
            s_and_b32 s{sO}, s{sO}, 0xffffff00
            s_and_b32 s{sO+1}, s{sO+1}, 0xffff
            s_mov_b32 s{sO+2}, L_end-{KN}
            s_mov_b32 s{sO+3}, 0x00020000
            s_mul_i32 s{sT0}, s{sT0}, {128 * self.o.get("cl", 18)}
            v_lshlrev_b32 v1, 7, v0
            v_cmp_gt_u32 vcc, {self.o.get("cl", 18)}, v0
            s_and_saveexec_b64 s[{sT2}:{sT2+1}], vcc
            s_cbranch_execz L_nopf
            buffer_load_dword v232, v1, {sr(sO)}, s{sT0} offen
L_nopf:
            s_mov_b64 exec, -1""")
        a(f"""v_lshrrev_b32 v2, 6, v0
        v_and_b32 v1, 63, v0
        s_bfe_u32 s{sT1}, s2, 0x30003
        v_readfirstlane_b32 s{sWAVE}, v2
        s_and_b32 s{sT0}, s2, 1
        s_lshl_b32 s{sT0}, s{sT0}, 3
        s_add_u32 s{sBB}, s{sT0}, s{sT1}          ; b
        s_lshr_b32 s{sC}, s2, 6                   ; c
        s_bfe_u32 s{sKQ}, s2, 0x20001             ; kq
        s_lshl_b32 s{sT1}, s{sT1}, 1
        s_lshl_b32 s{sT2}, s{sC}, 2
        s_add_u32 s{sROT}, s{sT1}, s{sT2}
        {f"s_mov_b32 s{sROT}, 0" if self.o.get("norot") else ""}
        s_lshl_b32 s{sT2}, s{sKQ}, 2
        s_add_u32 s{sT2}, s{sT2}, s{sC}           ; hp
        s_lshl_b32 s{sWID}, s{sBB}, 4
        s_add_u32 s{sWID}, s{sWID}, s{sT2}        ; b*16 + hp
        v_lshrrev_b32 v2, 4, v1                   ; g
        v_bfe_u32 v3, v1, 2, 2                    ; r
        v_and_b32 v4, 3, v1                       ; c
        s_mov_b32 s{sBUD}, {1 << 22}""")
        a(f"""v_lshrrev_b32 v30, 3, v1
        v_and_b32 v31, 7, v1
        v_xor_b32 v31, v31, v30
        v_lshlrev_b32 v31, 4, v31
        v_lshl_add_u32 v{vDW}, v30, 10, v31
        v_lshlrev_b32 v30, 13, v3
        v_lshl_add_u32 v30, v2, 6, v30
        v_xor_b32 v31, 2, v4
        v_lshl_add_u32 v31, v31, 4, v30
        v_lshl_add_u32 v30, v4, 4, v30
        s_mul_i32 s{sT0}, s{sBB}, 147456
        s_mul_i32 s{sT1}, s{sWAVE}, 49152
        s_add_u32 s{sT0}, s{sT0}, s{sT1}
        s_lshl_b32 s{sT2}, s{sT2}, 9
        s_mul_i32 s{sXM}, s{sWAVE}, 6144
        s_lshr_b32 s{sXS}, s{sROT}, 1
        s_cmp_ge_u32 s{sXS}, 7
        s_cselect_b32 s{sT1}, 6, -1
        s_sub_u32 s{sXS}, s{sXS}, s{sT1}            ; second pair 1 + ((b & 7) + 2c) % 7
        s_add_u32 m0, s{sXM}, {QC[0]}
        s_mov_b32 s{sT4}, 7168
        s_mov_b32 s{sEA+2}, 49152
        s_mov_b32 s{sT1}, 32768
        s_cmp_eq_u32 s{sWAVE}, 3
        s_cselect_b64 vcc, -1, 0
        s_cselect_b32 s{sT0}, s{sT2}, s{sT0}
        s_cselect_b32 s{sT4}, 31744, s{sT4}
        s_cselect_b32 s{sEA+2}, {4194304 - 7680}, s{sEA+2}
        s_cselect_b32 s{sT1}, 131072, s{sT1}
        v_cndmask_b32 v{vDW+1}, v{vDW}, v31, vcc
        v_cndmask_b32 v{vDW}, v{vDW}, v30, vcc
        s_mov_b32 s{sEA+3}, 0x00020000
        v_add_u32 v{vDW+1}, s{sT4}, v{vDW+1}
        s_lshl_b32 s{sT4}, s{sT4}, 1
        v_add_u32 v{vDW+2}, s{sT4}, v{vDW}
        v_add_u32 v{vDW+3}, s{sT4}, v{vDW+1}
        {f"s_mov_b32 s{sEA+2}, 0" if self.o.get("q0oob") else ""}
        s_cmp_eq_u32 s{sWAVE}, 3
        s_waitcnt lgkmcnt(0)
        s_cselect_b32 s{sEA}, s10, s4
        s_cselect_b32 s{sEA+1}, s11, s5
        s_add_u32 s{sEA}, s{sEA}, s{sT0}
        s_addc_u32 s{sEA+1}, s{sEA+1}, 0
        s_and_b32 s{sEA+1}, s{sEA+1}, 0xffff""")
        self.stamp("karg")
        for i in range(4): a(self.dma(vDW + i, sEA, None, i * 1024, self.P("cpol")))
        a(f"s_add_u32 m0, s{sXM}, {QC[0] + 4096}\ns_cmp_lg_u32 s{sWAVE}, 3")
        for i in range(2): a(self.dma(vDW + i, sEA, sT1, i * 1024, self.P("cpol")))
        a("s_cbranch_scc1 L_attn")

    def common_srds(self):
        L = self.srd(sFL, 18, FL_OFF, (257 if self.o.get("fb") else 256) * 8192) + self.srd(sPT, 18, PT_OFF, 256 * 49152)
        L += [f"s_lshl_b32 s{sT0}, s{sBB}, 2", f"s_add_u32 s{sT0}, s{sT0}, s{sKQ}", f"s_mul_i32 s{sT0}, s{sT0}, {8*36864}"]
        L += self.srd(sOB, 18, f"s{sT0}", 8 * 36864 + O_OFF)
        L += [f"s_mul_i32 s{sT0}, s{sBB}, 147456", f"s_lshl_b32 s{sT1}, s{sC}, 8", f"s_add_u32 s{sT0}, s{sT0}, s{sT1}"]
        L += self.srd(sOUT, 14, f"s{sT0}", 147456) + [f"s_sub_u32 s{sOUT+2}, s{sOUT+2}, s{sT1}"]
        L += [f"s_mov_b32 s{sIT}, 0", f"s_mov_b32 s{sREDO}, 0", f"s_mov_b32 s{sCS}, {CSC:#x}"]
        return L
    def wpat(self, t0, t1, w0, w1, base):
        return [f"v_lshrrev_b32 v{t0}, 4, v1", f"v_lshlrev_b32 v{t0}, 11, v{t0}", f"v_bfe_u32 v{t1}, v1, 2, 2", f"v_lshl_add_u32 v{t0}, v{t1}, 6, v{t0}",
                f"v_add_u32 v{t0}, {base}, v{t0}", f"v_and_b32 v{t1}, 3, v1", f"v_lshl_add_u32 v{w0}, v{t1}, 4, v{t0}",
                f"v_xor_b32 v{t1}, 2, v{t1}", f"v_lshl_add_u32 v{w1}, v{t1}, 4, v{t0}", f"v_add_u32 v{w1}, 1024, v{w1}"]
    def xpat(self, t0, t1, d0, d1, base):
        return [f"v_lshrrev_b32 v{t0}, 4, v1", f"v_and_b32 v{t1}, 7, v1", f"v_xor_b32 v{t0}, v{t0}, v{t1}", f"v_lshlrev_b32 v{t0}, 4, v{t0}",
                f"v_and_b32 v{t1}, 15, v1", f"v_lshl_add_u32 v{t0}, v{t1}, 7, v{t0}", f"v_xor_b32 v{t1}, 64, v{t0}",
                f"v_add_u32 v{d0}, {base}, v{t0}", f"v_add_u32 v{d1}, {base}, v{t1}"]
    def xsrc(self, t0, t1, d):
        return [f"v_lshrrev_b32 v{t0}, 3, v1", f"v_and_b32 v{t1}, 7, v1", f"v_xor_b32 v{t1}, v{t1}, v{t0}", f"v_lshlrev_b32 v{t1}, 4, v{t1}",
                f"v_lshl_add_u32 v{d}, v{t0}, 10, v{t1}"] + [f"v_add_u32 v{d+i}, {i*7168}, v{d}" for i in range(1, 4)]
    def opat(self):
        L = [f"s_lshl_b32 s{sT0}, s{sKQ}, 1"]
        for i in range(8):
            L += [f"s_add_u32 s{sT1}, s{sT0}, {i+2}", f"s_and_b32 s{sT1}, s{sT1}, 7", f"s_lshl_b32 s{sT1}, s{sT1}, 12",
                  f"s_add_u32 s{sT1}, s{sT1}, {O_OFF - (i&3)*1024}", f"v_add_u32 v{vDX+i}, s{sT1}, v{vL16}"]
        return L + [f"v_add_u32 v{vDX+8}, {O_OFF + 32768}, v{vL16}"]

    def await_(self, pre=True, emit=True, above=None):
        l = self.lab("sp")
        if above is not None:
            c = f"v_cmp_lt_u32 vcc, {above}, v{vLD}"
            self.ool += [f"{l}:"] + self.budget(l + "r") + [self.rdla, "s_waitcnt lgkmcnt(0)", c, f"s_cbranch_vccz {l}", f"s_branch {l}r"]
            if pre: self.a(f"{self.rdla}\ns_waitcnt lgkmcnt(0)")
            self.a(f"{c}\ns_cbranch_vccz {l}\n{l}r:")
            return
        self.ool += [f"{l}:"] + self.budget(l + "r") + ([f"s_sleep {self.o['slp']}"] if self.o.get("slp") else []) + [f"ds_read_b32 v{vLD}, v{vLA}", "s_waitcnt lgkmcnt(0)",
                     f"v_cmp_gt_u32 vcc, v{vLD}, v{vPR}", f"s_cbranch_vccz {l}", f"s_branch {l}r"]
        if pre: self.a(f"ds_read_b32 v{vLD}, v{vLA}\ns_waitcnt lgkmcnt(0)\nv_cmp_gt_u32 vcc, v{vLD}, v{vPR}")
        if not emit: return [f"s_cbranch_vccz {l}", f"{l}r:"]
        self.a(f"s_cbranch_vccz {l}\n{l}r:")
    def nextslot(self):
        return [f"s_add_u32 s{sSL}, s{sSL}, {SLOT}", f"s_cmp_eq_u32 s{sSL}, {RING if self.inh else f's{sRG}'}", f"s_cselect_b32 s{sSL}, 0, s{sSL}"]
    def slotregs(self):
        return [f"v_add_u32 v{vRK}, s{sSL}, v{vRKb}", f"v_add_u32 v{vRV0}, s{sSL}, v{vRV0b}", f"v_add_u32 v{vRV1}, s{sSL}, v{vRV1b}"]
    def kreads(self, p):
        return [f"ds_read_b128 {ar(Kf(p,kt,ks))}, v{vRK} offset:{kt*4096+ks*256}" for kt in range(2) for ks in range(4)]
    def vreads(self, p):
        return [f"ds_read_b64_tr_b16 {ar(Vf(p,dt)+2*h,2)}, v{vRV0 if dt%2==0 else vRV1} offset:{(dt>>1)*256+h*4096}"
                for dt in range(8) for h in range(2)]
    def qk(self, qt, p, raw=False):
        L = []
        for kt in range(2):
            for ks in range(4):
                d = vr(S(qt, kt))
                c = d if ks else ("0" if raw else vr(vNM + 4 * qt))
                L.append(f"{MF} {d}, {ar(Kf(p,kt,ks))}, {vr(Qf(qt,ks))}, {c}")
        return L
    def pv(self, qt, p, first=False):
        L = []
        for dt in range(8):
            d = vr(Oa(qt, dt))
            L.append(f"{MF} {d}, {ar(Vf(p,dt))}, {vr(S(qt))}, {'0' if first else d}")
        d = vr(vL + 4 * qt)
        ls = self.o.get("ls", 0)
        if ls == 1: L.append(f"v_mfma_f32_4x4x4_16b_bf16 {d}, {vr(vONE,2)}, {vr(S(qt),2)}, {'0' if first else d}\nv_mfma_f32_4x4x4_16b_bf16 {d}, {vr(vONE,2)}, {vr(S(qt)+2,2)}, {d}")
        elif ls == 2 and not first: L.append("")
        else: L.append(f"{MF} {d}, {vr(vONE)}, {vr(S(qt))}, {'0' if first else d}" if not self.o.get("nol") or first else "s_nop 0")
        return L
    def ex(self, qt, i): return f"v_exp_f32 v{S(qt)+i}, v{S(qt)+i}"
    def cv(self, qt, i): return f"v_cvt_pk_bf16_f32 v{S(qt)+i}, v{S(qt)+2*i}, v{S(qt)+2*i+1}"
    incpr = f"v_add_u32 v{vPR}, 1, v{vPR}"
    wrpr = f"ds_write_b32 v{vPA}, v{vPR}"
    rdla = f"ds_read_b32 v{vLD}, v{vLA}"
    cmpla = f"v_cmp_gt_u32 vcc, v{vLD}, v{vPR}"

    def stage(self, p, first=False, tail=[], tail2=[]):
        self.await_(pre=False)
        mf = self.pv(0, p, first) + self.qk(0, p) + self.pv(1, p, first) + self.qk(1, p) + self.pv(2, p, first) + self.qk(2, p)
        f = {i: [] for i in range(51)}
        ki = iter(self.kreads(1 - p)); vi = iter(self.vreads(1 - p))
        for seg, qt in enumerate((2, 0, 1)):
            for i in range(8): f[17 * seg + 2 * i].append(self.ex(qt, i))
        for seg in range(2):
            for g in (3, 7, 11, 15): f[17 * seg + g].append(next(ki))
        for g in (1, 5, 9, 13, 18, 22, 26, 30): f[g] += [next(vi), next(vi)]
        for seg, qt in enumerate((2, 0, 1)):
            for i in range(4): f[17 * seg + 4 * i + 3].append(self.cv(qt, i))
        if self.o.get("ls") == 2:
            for seg, qt in enumerate((2, 0, 1)):
                for i, g in enumerate((1, 5, 8, 8, 9, 13, 13, 16)): f[17 * seg + g].append(f"v_add_f32 v{vL+4*qt+(i&1)}, v{S(qt)+i}, v{vL+4*qt+(i&1)}")
        ns = self.nextslot(); sr_ = self.slotregs()
        f[16] += [self.incpr]
        f[33] += [self.wrpr]
        f[35] += ns[:2]
        f[39] += [ns[2], sr_[0]]
        f[41] += [sr_[1]]
        f[43] += [self.rdla, sr_[2]]
        f[47] += tail
        f[49] += tail2
        if self.o.get("slow"): f[25] += [f"s_sleep {self.o['slow']}"]
        f[50] += ["s_waitcnt lgkmcnt(0)", self.cmpla]
        na = self.o.get("noatt", 0)
        if na & 1: mf = ["s_nop 0"] * 51
        if na & 2: f = {i: [x for x in L if not x.startswith(("v_exp", "v_cvt"))] for i, L in f.items()}
        if na & 4: f = {i: [x for x in L if not x.startswith(("ds_read_b128", "ds_read_b64"))] for i, L in f.items()}
        self.weave(mf, f)

    def xmax(self, v, t):
        self.a(f"""v_mov_b32 v{t}, v{v}
        s_nop 1
        v_permlane16_swap_b32 v{v}, v{t}
        v_max_f32 v{v}, v{v}, v{t}
        v_mov_b32 v{t}, v{v}
        s_nop 1
        v_permlane32_swap_b32 v{v}, v{t}
        v_max_f32 v{v}, v{v}, v{t}""")

    def stage0(self):
        a = self.a
        mf = self.qk(0, 0, True) + self.qk(1, 0, True) + self.qk(2, 0, True)
        self.spread(mf, self.kreads(1) + self.vreads(1))
        self.emit([self.incpr, self.wrpr] + self.nextslot() + self.slotregs())
        for qt in range(3):
            s = S(qt); m = 59 + qt
            a(f"""v_max3_f32 v{m}, v{s}, v{s+1}, v{vMS+qt}
            v_max3_f32 v{m}, v{s+2}, v{s+3}, v{m}
            v_max3_f32 v{m}, v{s+4}, v{s+5}, v{m}
            v_max3_f32 v{m}, v{s+6}, v{s+7}, v{m}""")
            self.xmax(m, 62)
            for i in range(4): a(f"v_sub_f32 v{vNM+4*qt+i}, 0, v{m}")
            for i in range(8): a(f"v_sub_f32 v{s+i}, v{s+i}, v{m}")
        for qt in range(2):
            for i in range(8): a(self.ex(qt, i))
            a(self.rdla if qt else "s_nop 0")
            for i in range(4): a(self.cv(qt, i))

    def oflag(self, rnd, wait="s_waitcnt vmcnt(0)", sT0=sT0, sT1=sT1):
        return [x.strip() for x in f"""s_and_b32 s{sT0}, s{sWID}, 0xfc
        s_lshl_b32 s{sT0}, s{sT0}, 13
        s_lshl_b32 s{sT1}, s{sC}, 2
        s_add_u32 s{sT1}, s{sT1}, s{sWAVE}
        s_lshl_b32 s{sT1}, s{sT1}, 7
        s_add_u32 s{sT0}, s{sT0}, s{sT1}
        s_add_u32 s{sT0}, s{sT0}, {2048*rnd}
        v_lshlrev_b32 v4, 13, v1
        v_mov_b32 v60, s{sTK}
        v_mov_b32 v61, s{sTK+1}
        {wait}
        s_mov_b64 exec, 15
        buffer_store_dwordx2 v[60:61], v4, {sr(sFL)}, s{sT0} offen {self.P("fsc", "sc1")}
        s_mov_b64 exec, -1""".split("\n")]

    def final(self, it):
        a = self.a
        mf = self.pv(0, 0) + self.pv(1, 0) + self.pv(2, 0)
        f = {i: [] for i in range(27)}
        for i in range(8): f[i].append(self.ex(2, i))
        for i in range(4): f[9 + i].append(self.cv(2, i))
        X = [f"s_mul_i32 s{sT2}, s{sWAVE}, 12288", f"s_mov_b32 s{sT0}, {THR:#x}"]
        for g, x in zip((19, 21, 23, 25), [f"v_rcp_f32 v60, v{vL}", "v_mov_b32 v61, v60", f"v_rcp_f32 v62, v{vL+4}", "v_mov_b32 v63, v62"]): f[g].append(x)
        if it == 0:
            X += [f"s_lshl_b32 s{sT1}, s{sWAVE}, 2", f"s_add_u32 s{sT1}, s{sT1}, {MISC}", f"v_mov_b32 v4, s{sT1}",
                  "v_and_b32 v3, 3, v1", "v_min_u32 v3, 2, v3", "v_lshlrev_b32 v3, 2, v3", f"v_add_u32 v3, {MISC}, v3"]
        else:
            g = self.o.get("fa", 8)
            f[0].append(self.rdla); f[g - 1] += ["s_waitcnt lgkmcnt(0)", self.cmpla]; f[g] += self.await_(pre=False, emit=False)
            f[4] += X[:1]; f[5] += X[1:]; f[6] += [f"s_add_u32 s{sT2}, s{sT2}, 36864"]
            X = self.pulls(WA) + [self.incpr, self.wrpr]
        for g in range(8 if it == 0 else g + 1, 27):
            while X and len(f[g]) + any("v_rcp" in x for x in f[g]) < 2: f[g].append(X.pop(0))
        assert it or not X
        self.rest = X
        self.weave(mf, f)
        a(f"""v_add_f32 v59, v{vL}, v{vL+4}
        s_mov_b32 s{sT4}, 1""")
    def lcheck(self, n):
        self.a(f"""v_add_f32 v59, v59, v{vL+8}
        v_cmp_nge_f32 vcc, s{sT0}, v59
        s_cmp_lg_u32 s{sREDO}, 0
        s_cbranch_scc1 L_noflag{n}
        s_cmp_eq_u64 vcc, 0
        s_cselect_b32 s{sT4}, 1, {1 if self.o.get("noatt") else 2}
L_noflag{n}:
        v_mov_b32 v2, s{sT4}""")
    def pack(self, qt, dst, after=lambda ks: []):
        r = (60, 62, 60)[qt]; L = []
        if qt == 2: L += [f"v_rcp_f32 v60, v{vL+8}", "s_nop 0", "v_mov_b32 v61, v60"]
        for ks in range(4):
            b = Oa(qt, 2 * ks)
            L += [f"v_pk_mul_f32 v[{b+2*i}:{b+2*i+1}], v[{b+2*i}:{b+2*i+1}], v[{r}:{r+1}]" for i in range(4)]
            L += [f"v_cvt_pk_bf16_f32 v{dst+4*ks+i}, v{b+2*i}, v{b+2*i+1}" for i in range(4)] + after(ks)
        return L

    def attention(self):
        a = self.a
        a("L_attn:")
        a(f"s_lshl_b32 s{sXS}, s{sXS}, 7")
        xadv = [f"s_add_u32 s{sXS}, s{sXS}, 128", f"s_cmp_eq_u32 s{sXS}, 1024", f"s_cselect_b32 s{sXS}, 128, s{sXS}"]
        xd = [self.dma(vDXq + i, sEA, sXS, i * 1024, self.P("cpol")) for i in range(4)] + [self.dma(vDXq + i, sEA, sT1, i * 1024, self.P("cpol")) for i in range(2)]
        a(f"""v_lshlrev_b32 v{vL16}, 4, v1
        s_add_u32 s{sT0}, s{sXM}, {QP[1]}""")
        self.emit(self.xpat(59, 60, vQB, vQB + 1, f"s{sT0}") + self.wpat(59, 60, vQB + 2, vQB + 3, QP[1] + 18432))
        for i in range(4): a(f"v_add_u32 v{vQB+4+i}, {2*PB}, v{vQB+i}")
        a(f"""s_lshl_b32 s{sT0}, s{sWAVE}, 8
        s_add_u32 s{sT0}, s{sT0}, {PROG}
        v_lshl_add_u32 v{vPA}, v1, 2, s{sT0}
        v_mov_b32 v{vLA}, {LAND}
        v_mov_b32 v{vPR}, 0""")
        X1 = [f"s_add_u32 m0, s{sXM}, {QC[1]}", f"s_add_u32 s{sT1}, s{sXS}, 32768"] + xd[:4] + [f"s_add_u32 m0, s{sXM}, {QC[1] + 4096}", xadv[0]] + xd[4:] + xadv[1:]
        x1at = self.o.get("x1at", 2)
        if x1at == 1: self.emit(X1)
        self.emit(self.common_srds())
        a(f"s_mul_i32 s{sT0}, s{sWID}, 73728\ns_add_u32 s{sT0}, s{sT0}, {O_OFF}")
        self.emit(self.srd(sO, 18, f"s{sT0}", 73728) + self.srd(sDB, 16, 0, 256))
        a(f"""v_and_b32 v59, 1, v3
        v_lshlrev_b32 v59, 1, v59
        v_xor_b32 v59, v59, v2
        v_lshlrev_b32 v59, 4, v59
        v_lshl_add_u32 v{vRKb}, v3, 10, v59
        v_lshl_add_u32 v{vRKb}, v4, 6, v{vRKb}
        v_lshlrev_b32 v59, 10, v2
        v_lshl_add_u32 v59, v3, 6, v59
        v_lshl_add_u32 v59, v4, 3, v59
        v_add_u32 v59, 8192, v59
        v_and_b32 v60, 1, v2
        v_lshl_add_u32 v{vRV0b}, v60, 5, v59
        v_xor_b32 v60, 1, v60
        v_lshl_add_u32 v{vRV1b}, v60, 5, v59
        v_mov_b32 v{vONE}, 0x3f803f80
        v_mov_b32 v{vONE+1}, 0x3f803f80
        v_mov_b32 v{vONE+2}, 0x3f803f80
        v_mov_b32 v{vONE+3}, 0x3f803f80
        v_mov_b32 v{vMS}, 0xff800000
        v_mov_b32 v{vMS+1}, 0xff800000
        v_mov_b32 v{vMS+2}, 0xff800000
        v_mov_b32 v62, s{sCS}
        v_mov_b32 v63, s{sCS}
        s_mov_b32 s{sSL}, 0
        s_or_b32 s{sT0}, s2, s{sWAVE}
        s_cselect_b32 s{sTGT}, 64, 0
        s_mov_b32 s{sRG}, {RING}
        s_mov_b32 s{sR1}, {RING}""")
        self.emit(self.slotregs())
        self.stamp("iss")
        a("s_barrier")
        self.stamp("bar")
        if x1at == 2: self.emit(X1)
        self.emit(self.tail_wregs() + self.tail_src() + self.tail_own())
        def qreads(k):
            q = QC[(k >> 1) % 3]; r = 0 if q < QP[3] else 4; ox = q - (QP[3] if r else QP[1])
            o = ox + (k & 1) * 8192; F = aQF + 44 * (k & 1); L = []
            for t in range(8):
                L.append(f"ds_read_b64_tr_b16 {ar(F+4*t,2)}, v{vQB+r+2} offset:{o+(t>>1)*256+8*(t&1)}")
                L.append(f"ds_read_b64_tr_b16 {ar(F+4*t+2,2)}, v{vQB+r+3} offset:{o+(t>>1)*256+8*(t&1)}")
            return L[:2] + [f"ds_read_b128 {ar(F+32+4*qt)}, v{vQB+r+(k&1)} offset:{ox+qt*2048}" for qt in range(3)] + L[2:]
        def qmf(k):
            F = aQF + 44 * (k & 1)
            return [f"{MF} {vr(Oa(qt,t))}, {ar(F+4*t)}, {ar(F+32+4*qt)}, {vr(Oa(qt,t)) if k else 0}" for t in range(8) for qt in range(3)] if k >= 0 else []
        XL = self.o.get("xl", 1); xs = {k: [] for k in range(16)}
        for p in range(2, 8):
            for i in range(6): xs[max(0, 2 * (p - 2) + (i // 3 if XL < 2 else 0) - min(XL, 1))].append((p, i))
        order = [(1, i) for i in range(6)]
        a(f"{self.rdla}\ns_waitcnt vmcnt(6) lgkmcnt(0)\n{self.cmpla}")
        self.await_(pre=False)
        qa = self.o.get("q0a", 0)
        for k in range(16):
            self.stamp(f"c{k}")
            R = qreads(k); f = {i: [] for i in range(24)}
            for g, n in ((0, 2), (1, 2), (2, 2), (3, 1), (4, 1), (5, 1), (6, 1), (7, 1), (8, 1), (10, 2), (11, 1), (12, 1), (14, 2), (15, 1)):
                f[g] += [R.pop(0) for _ in range(n)]
            f[15].append(self.incpr); f[16] += [self.wrpr]; f[12].append(self.rdla)
            if any(p == (k >> 1) + 3 for p, i in xs[k]): f[8].append("s_waitcnt lgkmcnt(7)")
            dg = [9, 13, 17, 18, 19, 21]; sg = [3, 4, 5, 6, 7]
            for n, (p, i) in enumerate(xs[k]):
                g = dg[n]; pre = []
                if i == 0: pre = [f"s_add_u32 m0, s{sXM}, {QC[p % 3]}", f"s_add_u32 s{sT1}, s{sXS}, 32768"]
                if i == 4:
                    pre = [f"s_add_u32 m0, s{sXM}, {QC[p % 3] + 4096}"]
                    if len(xs[k]) > 3: f[23] += xadv
                    else: f[18] += xadv[:1]; f[19] += xadv[1:]
                while pre:
                    if n == 0: f[sg.pop(0)].append(pre.pop(0))
                    else: f[dg[n-1] if dg[n-1] + 1 == g else g - 2 if len(f[g-2]) < 2 else g - 1].append(pre.pop(0))
                f[g].append(xd[i]); order.append((p, i))
            vm = ""
            if k & 1 and k < 15:
                last = max(n for n, (p, i) in enumerate(order) if p == (k >> 1) + 1)
                vm = f"vmcnt({len(order) - 1 - last}) "
            f[20] += [f"s_waitcnt {vm}lgkmcnt(1)", self.cmpla]
            f[22] += self.await_(pre=False, emit=False)
            if qa & 2: f = {i: [x for x in L if "_tr_" not in x] for i, L in f.items()}
            if qa & 4: f = {i: [x for x in L if "ds_read_b128" not in x] for i, L in f.items()}
            if qa & 8: f = {i: [x for x in L if "buffer_" not in x] for i, L in f.items()}
            if k: self.weave(qmf(k - 1) if not qa & 1 else ["s_nop 0"] * 24, f)
            else: self.emit(self.flat([f[i] for i in range(24)]))
        self.stamp("c16")
        C = []
        for ks in range(4):
            for qt in range(3):
                b = Oa(qt, 2 * ks)
                C += [f"v_pk_mul_f32 v[{b+2*i}:{b+2*i+1}], v[{b+2*i}:{b+2*i+1}], v[62:63]" for i in range(4)]
                C += [f"v_cvt_pk_bf16_f32 v{Qf(qt,ks)+i}, v{b+2*i}, v{b+2*i+1}" for i in range(4)]
        K0 = self.kreads(0) + [self.incpr, self.wrpr] + self.nextslot() + self.slotregs() + [self.rdla]
        f = {}
        for g in range(24):
            f[g] = [K0.pop(0) for _ in range(2) if K0]
        self.weave(qmf(15), f)
        self.emit(C)
        self.stamp("q0")
        a(f"s_waitcnt lgkmcnt(0)\n{self.cmpla}")
        self.await_(pre=False)
        self.stamp("k0")
        a("L_item:")
        self.stage0()
        self.cstamp("st0", 0 if self.o.get("sm") in ("s", "c", "p") else 1)
        a(f"s_waitcnt lgkmcnt(0)\n{self.cmpla}")
        self.stage(1, first=True, tail=[f"s_mov_b32 s{sCNT}, 0", f"s_mov_b32 s{sRG}, s{sR1}"])
        self.cstamp("st1", 0 if self.o.get("sm") == "p" else 1)
        a(".p2align 3\nL_loop:")
        self.ool += f"""L_init:
        v_mov_b32 v4, 0
        s_cmp_lg_u32 s{sIT}, 0
        s_cbranch_scc1 L_pub0
        s_bitcmp1_b32 s{sTGT}, 5
        s_cbranch_scc1 L_init2
        s_add_u32 s{sTGT}, s{sTGT}, 33
        buffer_load_dwordx2 v[2:3], v4, {sr(sOB)}, 0 offen sc1
        s_branch L_initr
L_init2:
        s_mov_b32 s{sTGT}, 64
        {f"v_lshlrev_b32 v59, 7, v1" if self.o.get("fb") else ""}
        {f"s_mov_b32 s{sT0}, {2 << 20}" if self.o.get("fb") else ""}
        {f"buffer_store_dword v4, v59, {sr(sFL)}, s{sT0} offen sc1" if self.o.get("fb") else ""}
        s_waitcnt vmcnt(0)
        v_add_u32 v2, 1, v2
        v_or_b32 v3, 1, v3
        s_mov_b64 exec, 1
        buffer_store_dwordx2 v[2:3], v4, {sr(sOB)}, 0 offen sc1
        buffer_store_dwordx2 v[2:3], v4, {sr(sDB)}, 0 offen sc1
        s_mov_b64 exec, -1
        s_branch L_initr
L_pub0:
        v_add_u32 v250, s{sSL}, v252
        v_add_u32 v251, s{sSL}, v253
        s_waitcnt lgkmcnt(0)
L_wsp:
        {self.cmpla}
        s_cbranch_vccnz L_wa""".split("\n") + self.budget("L_wa") + [self.rdla, "s_waitcnt lgkmcnt(0)", "s_branch L_wsp"] + self.wdisp("L_wa") + \
            [self.incpr, self.wrpr] + self.nextslot() + self.slotregs() + [self.rdla, "s_branch L_initr"]
        self.stage(0, tail=[f"s_xor_b32 s{sT0}, s{sCNT}, s{sTGT}", f"s_and_b32 s{sT0}, s{sT0}, 0x5f"], tail2=["s_cbranch_scc0 L_init", "L_initr:"])
        self.stage(1, tail=[f"s_add_u32 s{sCNT}, s{sCNT}, 1", f"s_cmp_lt_u32 s{sCNT}, 15"])
        a("s_cbranch_scc1 L_loop")
        self.cstamp("fin", 1 if self.o.get("sm") in ("e", "f", "h") else 0)
        a(f"s_cmp_lg_u32 s{sIT}, 0\ns_cbranch_scc1 L_last")
        self.final(0)
        dst = PK
        self.emit(self.pack(0, dst[0]))
        self.lcheck(0)
        self.emit(["ds_write_b32 v4, v2"] + self.pack(1, dst[1]) + [self.rdla, "ds_read_b32 v2, v3"] + self.pack(2, dst[2]))
        self.cstamp("epi", 0)
        a(f"""s_add_u32 s{sT0}, s{sT2}, {HAND1}
        v_add_u32 v4, s{sT0}, v{vL16}
        s_waitcnt lgkmcnt(0)
        {self.cmpla}""")
        self.await_(pre=False)
        a("s_branch L_done1\nL_done:")
        self.emit(self.budget("L_doneok"))
        a(f"""ds_read_b32 v2, v3
        s_waitcnt lgkmcnt(0)
L_done1:
        v_cmp_eq_u32 vcc, 0, v2
        s_cbranch_vccnz L_done
L_doneok:
        v_cmp_eq_u32 vcc, 2, v2
        s_cbranch_vccnz L_redo""")
        self.stamp("it0")
        for qt in range(3):
            for ks in range(4): a(f"ds_read_b128 {vr(Qf(qt,ks))}, v4 offset:{(qt*4+ks)*1024}")
        X = [f"s_mov_b32 s{sIT}, 1", f"s_mov_b32 s{sREDO}, 0", f"s_mov_b32 s{sTGT}, {(self.WB[0] - 35) // 2}", f"s_mov_b32 s{sR1}, {9 * SLOT}"] + [f"v_mov_b32 v{vMS+i}, 0xff800000" for i in range(3)] + self.wo_srd()
        HW = [f"ds_write_b128 v4, {vr(dst[qt]+4*ks)} offset:{(qt*4+ks)*1024}" for qt in range(3) for ks in range(4)]
        if self.o.get("ae"):
            a(f"s_mov_b32 s{sT4}, s{sT2}")
            for n in range(12): HW[n] += f"\nbuffer_store_dwordx4 {vr(dst[n >> 2]+4*(n & 3))}, v{vL16}, {sr(sO)}, s{sT4} offen offset:{(n & 3)*1024} {self.P('esc', 'sc1')}" + (f"\ns_add_u32 s{sT4}, s{sT4}, 4096" if n in (3, 7) else "")
            W = self.wo_srd(); X = X[:-len(W)]
        self.spread(HW, X)
        if self.o.get("ae"): self.emit(W)
        a(f"""s_waitcnt lgkmcnt(0)
        s_branch L_item
L_last:""")
        self.final(1)
        st = lambda qt: lambda ks: [f"buffer_store_dwordx4 {vr(dst[qt]+4*ks)}, v{vL16}, {sr(sO)}, s{sT2} offen offset:{ks*1024} {self.osc}"]
        assert not self.rest
        self.emit([self.rdla] + self.pack(0, dst[0], st(0)) + [f"s_add_u32 s{sT2}, s{sT2}, 4096"])
        self.lcheck(1)
        wb = self.o.get("pb2", 1); ow = self.o.get("ow", 1)
        OW = [f"ds_write_b128 v{vOW+qt}, {vr(PK[qt]+4*ks)} offset:{OWN + ks*1024}" for qt in range(3) for ks in range(4)]
        for qt in (1, 2):
            n = 0 if qt < wb or not ow else 1 if qt > wb else qt + 1
            P = self.pack(qt, dst[qt], lambda ks: st(qt)(ks) + [OW.pop(0) for _ in range(n)])
            if qt == wb:
                a(f"s_waitcnt lgkmcnt(0)\n{self.cmpla}")
                self.await_(pre=False)
                self.spread(P[:30], self.pulls(WB_) + [self.incpr]); P = P[30:]
            self.emit(P + ([f"s_add_u32 s{sT2}, s{sT2}, 4096"] if qt == 1 else []) + ([self.rdla] if qt == 1 and wb == 2 else []))
        self.stamp("it1")
        a(f"""v_mov_b32 v3, {MISC+16}
        s_cmp_eq_u32 s{sT4}, 1
        s_cbranch_scc1 L_ok1
        ds_write_b32 v3, v2
L_ok1:""")
        self.emit(["ds_read_b64 v[2:3], v3 offset:16", f"v_mov_b32 v{vPL}, {OOB:#x}"] + self.rd(0) + self.rd(1) + OW)
        self.b1("L_redo")
        a(f"v_readfirstlane_b32 s{sTK}, v2\nv_readfirstlane_b32 s{sTK+1}, v3\ns_branch L_tail")
        a(f"""L_redo:
        s_waitcnt vmcnt(0)
        s_barrier
        v_mov_b32 v2, 0
        v_lshlrev_b32 v3, 2, v1
        v_add_u32 v3, {MISC}, v3
        ds_write_b32 v3, v2
        s_mul_i32 s{sT0}, s{sIT}, {32 + NW}
        s_add_u32 s{sT0}, s{sT0}, 16
        v_mov_b32 v{vPR}, s{sT0}
        v_mov_b32 v{vRK}, v{vRKb}
        {self.wrpr}
        s_mov_b32 s{sCNT}, 0
        s_mov_b32 s{sREDO}, 1
        s_mov_b32 s{sRG}, {RING}
        s_mov_b32 s{sR1}, {RING}
        v_mov_b32 v{vMS}, 0xff800000
        v_mov_b32 v{vMS+1}, 0xff800000
        v_mov_b32 v{vMS+2}, 0xff800000
L_mloop:
        s_barrier""")
        self.emit(self.kreads(0))
        a("s_waitcnt lgkmcnt(0)\ns_barrier")
        self.emit(self.qk(0, 0, True) + self.qk(1, 0, True) + self.qk(2, 0, True))
        a("s_nop 7")
        for qt in range(3):
            s = S(qt); m = vMS + qt
            for i in range(4): a(f"v_max3_f32 v{m}, v{s+2*i}, v{s+2*i+1}, v{m}")
        a(f"""s_add_u32 s{sCNT}, s{sCNT}, 1
        s_cmp_lt_u32 s{sCNT}, 32
        s_cbranch_scc1 L_mloop
        s_mul_i32 s{sSL}, s{sIT}, {6 * SLOT}""")
        self.emit(self.slotregs())
        self.await_()
        self.emit(self.kreads(0) + [self.incpr, self.wrpr] + self.nextslot() + self.slotregs())
        self.await_()
        a("s_branch L_item")
    def cstamp(self, name, it):
        if self.o.get("stamps"):
            l = self.lab("cs")
            self.a(f"s_cmp_lg_u32 s{sIT}, {it}\ns_cbranch_scc1 {l}")
            self.stamp(name)
            self.a(l + ":")
    def stampq(self):
        if self.o.get("stamps"):
            self.a(f"s_cmp_lg_u32 s{sCNT}, 1\ns_cbranch_scc1 L_nost1")
            self.stamp("c2")
            self.a(f"L_nost1:\ns_cmp_lg_u32 s{sCNT}, 4\ns_cbranch_scc1 L_nost2")
            self.stamp("c8")
            self.a(f"L_nost2:\ns_cmp_lg_u32 s{sCNT}, 2\ns_cbranch_scc1 L_nost3")
            self.stamp("c4")
            self.a(f"L_nost3:\ns_cmp_lg_u32 s{sCNT}, 6\ns_cbranch_scc1 L_nost4")
            self.stamp("c12")
            self.a("L_nost4:")
    def b1(self, lab):
        self.a(f"""s_waitcnt lgkmcnt(0)
        s_barrier
        v_mov_b32 v4, {MISC+16}
        ds_read_b32 v4, v4
        s_waitcnt lgkmcnt(0)
        v_cmp_ne_u32 vcc, 0, v4
        s_cbranch_vccnz {lab}""")
        self.stamp("b1")

    def q_push(self, L, tag):
        self.q += [tag] * sum(map(isvm, L))
        return L
    def q_wait(self, loc, tag, part=0):
        if self.dry:
            idx = [i for i, t in enumerate(self.q) if (t in tag if isinstance(tag, list) else t == tag)]
            n = len(self.q) - 1 - idx[-1] if idx else 63
            if part:
                idx = [i for i, t in enumerate(self.q) if t == ("g", tag[1] + 1)]
                n = len(self.q) - 1 - idx[part - 1]
            self.cnt[loc] = min(self.cnt.get(loc, 63), n)
            return []
        return [f"s_waitcnt vmcnt({self.cnt[loc]})"]
    def pub_abs(self, val):
        self.pub = val
        return [f"v_mov_b32 v{vPB}, {val}", f"ds_write_b32 v{vLA}, v{vPB}"]
    def hpull(self, m):
        return [f"v_add_u32 v{250+i}, {self.slot[self.witem[m]] * SLOT}, v{252+i}" for i in range(2)] + self.wpull(m)
    def pub_inc(self, val, n=1):
        if self.dry: assert self.pub is None or val - self.pub == n, (val, self.pub)
        self.pub = val
        if not self.o.get("gate", 1): return [f"s_add_u32 s{sLD}, s{sLD}, {n}", f"v_mov_b32 v{vPB}, s{sLD}", f"ds_write_b32 v{vLA}, v{vPB}"]
        return [f"v_readfirstlane_b32 s{sPX}, v{vPV}", f"s_add_u32 s{sLD}, s{sLD}, {n}", f"s_lshl4_add_u32 s{sPX}, s{sPX}, {self.o.get('clip', 32)}",
                f"s_min_u32 s{sAL}, s{sAL}, s{sPX}", f"s_add_u32 s{sAL}, s{sAL}, s{sRT}"] + ([f"s_add_u32 s{sAL}, s{sAL}, 16"] if n > 1 else []) + \
               [f"s_lshr_b32 s{sPX}, s{sAL}, 4", f"s_min_u32 s{sPX}, s{sPX}, s{sLD}", f"v_mov_b32 v{vPB}, s{sPX}", f"ds_write_b32 v{vLA}, v{vPB}"]
    rdpr = f"ds_read_b32 v{vPV}, v{vPA}"
    def pcheck(self, need, redo=False, rel=False):
        if self.dry:
            assert not rel or need <= self.pub, (need, self.pub)
            return []
        l = self.lab("pc")
        o = [f"{l}:"] + self.budget(l + "r")
        if rel and self.o.get("gate", 1): o += [f"s_max_u32 s{sAL}, s{sAL}, {16*need}", f"v_max_u32 v{vPB}, {need}, v{vPB}", f"ds_write_b32 v{vLA}, v{vPB}"]
        if redo: o += [f"v_and_b32 v30, 3, v1", f"v_lshlrev_b32 v30, 2, v30", f"v_add_u32 v30, {MISC}, v30", "ds_read_b32 v30, v30"]
        o += [self.rdpr, "s_waitcnt lgkmcnt(0)"]
        if redo: o += ["v_cmp_eq_u32 vcc, 2, v30", "s_cbranch_vccnz L_hredo"]
        o += [f"v_cmp_gt_u32 vcc, {need}, v{vPV}", f"s_cbranch_vccnz {l}", f"s_branch {l}r"]
        self.ool += o
        return ["s_waitcnt lgkmcnt(0)", f"v_cmp_gt_u32 vcc, {need}, v{vPV}", f"s_cbranch_vccnz {l}", f"{l}r:"]
    def kv_m0(self, j): return f"s_add_u32 m0, s{sSL}, {j*4096}"
    def kv_so(self, j): return f"s_add_u32 s{sT0}, s{sOFF}, {j*4096}" if j < 2 else f"s_sub_u32 s{sT0}, s{sOFF}, {16384 - j*4096}"
    def kv_d(self, j): return [self.dma(vKV + (i & 1), sK if j < 2 else sV, sT0, i * 1024, self.pol) for i in range(4)]
    def w_cg(self, G):
        L = []
        for n in self.ride.get(G, []):
            m, j, i = n >> 4, n >> 2 & 3, n & 3
            if not n & 15: L += [self.rdpr] + self.pcheck(self.need[self.witem[m]], rel=True)
            if not L or not i: L += [f"s_mov_b32 m0, {self.slot[self.witem[m]] * SLOT + j*4096}"]
            if not i: L += [f"s_add_u32 s{sT1}, s{sH[m >> 1]}, {((m & 1) << 16) + (j >> 1 << 15) + (j & 1)*8192}"]
            L += self.q_push([self.dma(vDW1 + i, sEA, sT1, i * 1024, self.P("wpol"))], ("wg", m))
        return L
    def kv_adv(self): return [f"s_add_u32 s{sOFF}, s{sOFF}, {0 if self.o.get('kvfix') else 8192}", f"s_add_u32 s{sB}, s{sB}, 1"] + self.nextslot()
    def position(self, loc, cg=None, tag=None, pre=[], fill=None, check=True, late=[], fill2=None, pace=True, fix=False):
        G = self.G; j = G & 3; nj = (G + 1) & 3
        if G in (4, 8, 12, 16, 128, 136, 144) and (G < 20 or loc[0] in ("f0", ("pl", 34), ("pl", 36))): self.stamp(f"G{G}")
        g = [[] for _ in range(12)]
        g[0] += pre
        D = self.q_push(self.kv_d(j), ("g", G))
        for i in range(4): g[i].append(D[i])
        if fix: g[3] += self.w_cg(G)
        small = self.kv_adv()[:1 if fix else 5] if j == 3 else []
        if cg:
            if cg[0]: g[3] += cg[0] if isinstance(cg[0], list) else [cg[0]]
            for i, x in enumerate(self.q_push(cg[1], tag)): g[4 + i].append(x)
        self.G += 1
        at = [0, 1, 2, 5, 5, 6, 6, 7, 7]
        for x in small: g[at.pop(0)].append(x)
        g[6].append(self.kv_so(nj))
        if nj == 0 and check: g[8].append(self.rdpr)
        if nj == 0 and check and self.o.get("tl"): g[8].append(f"s_memrealtime s[{sSTAMP+2}:{sSTAMP+3}]")
        g[8].append(self.kv_m0(nj) if not fix else f"s_mov_b32 m0, {self.slot[self.item[min(G + 1 >> 2, 64)]] * SLOT + nj*4096}")
        g[8] += late
        fb = self.o.get("fb") and self.o.get("fa2", 177) <= G < 400
        gd = G - self.D - (min(self.o.get("fbd", 1), 1 + (G - self.o.get("fa2", 177)) // 4) if fb else 0); gate = []
        if fb and G - self.o.get("fa2", 177) in range(0, 4 * self.o.get("fbd", 1), 4): assert gd & 3 != 3
        if fb and nj == 0 and check: g[8].append("ds_read_b32 v65, v64")
        if fb and j == 0 and G > self.o.get("fa2", 177) + 3: g[0].insert(0, f"v_readfirstlane_b32 s{sP5}, v65")
        if gd >= 0 and pace:
            isw = gd & 3 == 3 and gd >> 2 in self.WB and G < 400
            g[9] += self.q_wait(loc, [("g", gd), ("wg", self.WB.index(gd >> 2))] if isw else ("g", gd), 0 if isw else self.o.get("dx", 0) if self.o.get("dxa", 0) <= G < self.o.get("dxb", 999) else 0)
            v = 17 + (self.item[gd >> 2] + isw if G < 400 else gd >> 2)
            if isw: g[10] += self.hpull(self.WB.index(gd >> 2))
            if G < 20 and self.pubok and 16 + ((gd + 1) >> 2) > self.pub:
                P = self.pub_abs(16 + ((gd + 1) >> 2)); g[9].append(P[0]); g[10].append(P[1])
            elif gd & 3 == 3 and self.pubok and G >= 20:
                P = self.pub_inc(v, 1 + isw)
                gate = P[:-2]
                g[9].append(P[-2]); g[10].insert(0, P[-1])
        if fb:
            l = self.lab("fb")
            for t, n in ((0, self.o.get("q0", 0)), (self.o.get("t2", 192), self.o.get("q1", 4)), (self.o.get("t1", 64), self.o.get("q2", 8)), (self.o.get("t3", 32), self.o.get("q3", 0))):
                if not n: continue
                idx = [i for i, x in enumerate(self.q) if x[0] == "g" and x[1] > gd] if self.dry else None
                if self.dry: self.cnt[(loc, n)] = len(self.q) - 1 - idx[n - 1]
                g[10] += ([f"s_cmp_ge_u32 s{sP5}, {t}", f"s_cbranch_scc1 {l}"] if t else []) + [f"s_waitcnt vmcnt({self.cnt[(loc, n)]})"]
            g[10].append(l + ":")
        if fix and check: check = self.need[self.item[G + 1 >> 2]]
        if nj == 0 and check: g[11] += self.pcheck(f"s{sB}" if check in (True, "redo") else check, redo=check == "redo", rel=fix) + ([f"v_cmpx_eq_u32 vcc, s{sB}, v15", f"v_mov_b32 v18, s{sSTAMP+2}", "s_mov_b64 exec, -1"] if self.o.get("tl") else [])
        for fill in (fill, fill2):
            for i in range(11 if nj == 0 and check else 12):
                while fill and len(g[i]) < 2:
                    x = fill.pop(0)
                    if x.startswith("ds_") and g[i] and not g[i][0].startswith(("ds_", "buffer_", "s_waitcnt")): g[i].insert(0, x)
                    else: g[i].append(x)
        for i, x in zip((0, 1, 2, 4, 5, 6, 7, 7, 7), gate): g[i].append(x)
        return g
    def flat(self, G):
        L = []
        for x in (x for g in G for x in g):
            if isvm(x) and L and " m0," in L[-1]: L.append("s_nop 0")
            L.append(x)
        return L + (["s_nop 0"] if L and " m0," in L[-1] else [])
    def plain(self, loc, extra=[], check=True, cg={}, tag="pf", fix=False):
        for j, x in enumerate(self.split(extra, 4)):
            self.emit(self.flat(self.position((loc, j), cg.get(j), tag, check=check, late=x, fix=fix)))
    def split(self, L, n):
        c = [k * len(L) // n for k in range(n + 1)]
        for k in range(1, n):
            while c[k] < len(L) and L[c[k]].startswith(("s_addc", "s_cselect", "v_cndmask")): c[k] += 1
        return [L[c[k]:max(c[k], c[k + 1])] for k in range(n)]
    def chunk_addr(self, h):
        a_ = sXA + h
        L = [f"s_add_u32 s{sT4}, s{sROT}, s{sKS}", f"s_bfe_u32 s{sT3}, s{sT4}, 0x20002", f"s_and_b32 s{sT4}, s{sT4}, 3"]
        if h == 0: L += [f"s_mul_i32 s{sXB}, s{sT3}, s{sP1}", f"s_mul_i32 s{sT1}, s{sT4}, s{sP2}", f"s_add_u32 s{sXB}, s{sXB}, s{sT1}"]
        L += [f"s_mul_i32 s{a_}, s{sT3}, s{sP3}", f"s_mul_i32 s{sT1}, s{sT4}, s{sP4}", f"s_add_u32 s{a_}, s{a_}, s{sT1}",
              f"s_add_u32 s{a_}, s{a_}, s{sP5}", f"s_add_u32 s{sKS}, s{sKS}, 1"]
        if self.o.get("noeng", 0) & 1 and h == 0: L.append(f"s_mov_b32 s{sXB}, {OOB:#x}")
        if self.o.get("noeng", 0) & 2: L.append(f"s_mov_b32 s{a_}, {OOB:#x}")
        return L
    def bgroups(self, base, so, pol):
        return [(f"s_mov_b32 m0, {base + gi*4096}", [self.dma(vDX + i, sEB, so, i * 1024, pol) for i in range(4 if gi < 4 else 2)]) for gi in range(5)]
    def bgroup(self, gi):
        return self.bgroups(CBX, sXB + 1, self.P("bpol"))[gi], [f"s_add_u32 s{sXB+1}, s{sXB}, s{sG[gi]}"]
    def agroups(self, m0, so, pol, so1=None, vDW=vDW):
        return [(m0(h), [self.dma(vDW + i, sEA, so1 if h and so1 else so, i * 1024, pol) for i in range(4)]) for h in range(2)]
    def hacc(self, t, qt):
        return ar(aHACC + 36 * t + 4 * qt) if t < 2 else vr(vHACC + 36 * (t - 2) + 4 * qt)
    def areads(self, p):
        F = aHF + 68 * p; L = []
        for t in range(8):
            L.append(f"ds_read_b64_tr_b16 {ar(F+4*t,2)}, v{vW0} offset:{p*8192+(t>>1)*256+8*(t&1)}")
            L.append(f"ds_read_b64_tr_b16 {ar(F+4*t+2,2)}, v{vW1} offset:{p*8192+(t>>1)*256+8*(t&1)}")
        return L
    def breads(self, qts):
        return [f"ds_read_b128 {ar((aB2 if e else aHF+32)+4*qt)}, v{vXR1 if e else vXR} offset:{qt*2048}" for qt in qts for e in range(2)]
    def hmf(self, p):
        F = aHF + 68 * p
        return [f"{MF} {self.hacc(t,qt)}, {ar(F+4*t)}, {ar(F+32+4*qt)}, {self.hacc(t,qt)}" for t in range(8) for qt in range(9)]
    def half(self, loc, k, tail=[]):
        h = k & 1
        self.e("s_waitcnt lgkmcnt(0)")
        if loc == "b0" and self.o.get("sm") in ("g", "s", "r", "e", "p", "o", "k", "l") and not self.dry:
            self.e(f"s_lshl_b32 s{sT4}, s{sIT}, 4\ns_add_u32 s{sT4}, s{sT4}, s{sCNT}")
            for ph in range(1):
                for n in (0, 3, 6):
                    self.e(f"s_cmp_lg_u32 s{sT4}, {16*ph+n}\ns_cbranch_scc1 L_gs{ph}{n}")
                    self.stamp(f"g{ph}{n}")
                    self.e(f"L_gs{ph}{n}:")
        G = [None] * 6; T = [None] * 6; X = [[] for _ in range(6)]
        if k < 16:
            A_ = self.agroups(lambda x: f"s_mov_b32 m0, {CBW + h*8192 + x*4096}", sXA + h, self.P("apol"), sT4)
            for x, p in enumerate((2, 4) if h == 0 else (0, 2)):
                G[p] = A_[x]; T[p] = ("ca", self.ph, k)
                if x: X[p] = [f"s_add_u32 s{sT4}, s{sXA+h}, s{sP6}"]
            for p, gi in ((0, 2), (1, 3), (3, 4)) if h == 0 else ((4, 0), (5, 1)):
                G[p], X[p] = self.bgroup(gi); T[p] = ("xa" if gi < 3 else "xb", self.ph, (k + 1) >> 1)
        F = self.chunk_addr(1 - h) if k < 16 else []
        F2 = [f"v_accvgpr_mov_b32 a{aHF+68+32+i}, a{aB2+i}" for i in range(36)] if h == 0 and k >= 2 else []
        gaps = []
        for p in range(6):
            pre = X[p]; late = []
            if p == 2: assert not F
            if h and k < 16 and p in (2, 3):
                t = "xa" if p == 2 else "xb"
                pre += self.q_wait((loc, t), (t, self.ph, k >> 1)); F += self.breads(range(6) if p == 2 else range(6, 9))
            if p == 4 and 1 <= k <= 16:
                assert not F
                if h: gaps[-1] += ["s_waitcnt lgkmcnt(0)"]
                pre += self.q_wait((loc, "r"), ("ca", self.ph, k - 1)); F += self.areads(1 - h)
            if loc in ("p0", "p1") and self.o.get("sm") in ("p", "o") and self.o.get("stamps") and not self.dry and f"{loc}{p}" in self.STM["p"]:
                i = self.STM["p"].split().index(f"{loc}{p}"); l = self.lab("hs")
                pre = [f"s_cmp_lg_u32 s{sIT}, {int(self.o['sm'] == 'o')}", f"s_cbranch_scc1 {l}", f"{'s_memtime' if self.o['stamps'] == 2 else 's_memrealtime'} s[{sSTAMP+2*i}:{sSTAMP+2*i+1}]", l + ":"] + pre
            gaps += self.position((loc, p), G[p], T[p], pre, F, late=late, fill2=F2)
        gaps[-2] += F + F2
        gaps[-1] += tail
        if k >= 2 and not self.o.get("nomf"): self.weave(self.hmf(h), dict(enumerate(gaps)))
        else: self.emit(self.flat(gaps))
    def engine(self):
        self.e(f"s_mov_b32 s{sKS}, 0")
        self.emit(self.chunk_addr(0))
        for gi in range(2):
            (m0, D), X = self.bgroup(gi)
            self.emit([m0] + X + self.q_push(D, ("xa", self.ph, 0)))
        self.e(self.kv_m0(0))
        self.half("p0", 0)
        self.half("p1", 1, tail=[f"s_mov_b32 s{sCNT}, 0"])
        self.e(".p2align 3\nL_eloop:")
        for it in range(7 if self.dry else 1):
            self.half("b0", 2 + 2 * it)
            self.half("b1", 3 + 2 * it, tail=[f"s_add_u32 s{sCNT}, s{sCNT}, 1", f"s_cmp_lt_u32 s{sCNT}, 7"])
        self.e("s_cbranch_scc1 L_eloop")
        if not self.dry: self.G += 72; self.pub = None
        self.half("e0", 16)
        self.half("e1", 17)

    def helper(self):
        D = self.D
        self.q = []; self.G = 0; self.pubok = False; self.ph = 0; self.pub = 0
        e = self.e
        def q0w(c):
            ad = [f"s_add_u32 s{sT3}, s{sT3}, {1 << 19}", f"s_cmp_eq_u32 s{sT3}, {8 << 19}", f"s_cselect_b32 s{sT3}, {1 << 19}, s{sT3}"] if c > 2 and not c & 1 else []
            G = self.agroups(lambda x: f"s_mov_b32 m0, {QC[(c >> 1) % 3] + 18432 + (c & 1)*8192 + x*4096}", sT4, self.P("cpol"))
            return [(("w", c), (ad if x == 0 else []) + [G[x][0], f"s_add_u32 s{sT4}, s{sT3}, {((c & 1) << 18) + x*131072}"] + G[x][1]) for x in range(2)]
        self.q += [("w", 0)] * 6
        self.emit(self.q_push([self.dma(vDW + i, sEA, sT1, i * 1024, self.P("cpol")) for i in (2, 3)], ("w", 0)) + [f"s_mov_b32 s{sT3}, 0"])
        for t, g in q0w(1): self.emit(self.q_push(g, t))
        e(f"""s_lshl_b32 s{sT3}, s{sXS}, 19
        s_mov_b32 s{sP6}, 131072
        v_lshlrev_b32 v{vL16}, 4, v1
        v_mov_b32 v248, 0
        v_mov_b32 v249, 0
        v_mov_b32 v250, 0
        v_mov_b32 v251, 0
        v_add_u32 v30, {SYNC+256}, v{vL16}
        v_lshlrev_b32 v{vLA}, 2, v1
        v_add_u32 v{vLA}, {LAND}, v{vLA}
        ds_write_b128 v30, v[248:251]
        ds_write_b32 v{vLA}, v248""")
        e(f"s_lshl_b32 s{sT0}, s{sWID}, 19")
        if self.o.get("kvr"):
            e(f"""s_mul_i32 s{sT1}, s2, {self.o["kvr"]}
            s_lshr_b32 s{sT1}, s{sT1}, {self.o.get("kvs", 0)}
            s_and_b32 s{sT1}, s{sT1}, 31
            s_lshl_b32 s{sT1}, s{sT1}, 13
            s_cmp_eq_u32 s{sWID}, 255
            s_cselect_b32 s{sT1}, 0, s{sT1}
            s_add_u32 s{sT0}, s{sT0}, s{sT1}""")
        self.emit(self.srd(sK, 6, f"s{sT0}", 524288) + self.srd(sV, 8, f"s{sT0}", 524288))
        e(f"""v_lshlrev_b32 v30, 8, v3
        v_lshl_add_u32 v30, v2, 6, v30
        v_xor_b32 v31, 2, v4
        v_min_u32 v{vPA}, 2, v4
        v_lshl_add_u32 v{vKV+1}, v31, 4, v30
        v_lshl_add_u32 v{vKV}, v4, 4, v30
        v_lshlrev_b32 v{vPA}, 8, v{vPA}
        v_add_u32 v{vPA}, {PROG}, v{vPA}
        s_mov_b32 s{sOFF}, 0
        s_mov_b32 s{sSL}, 0
        s_mov_b32 s{sB}, 10
        {"v_cmp_gt_u32 vcc, 12, v1" if self.o.get("tl") else ""}
        {"v_add_u32 v15, 64, v1" if self.o.get("tl") else ""}
        {"s_nop 0" if self.o.get("tl") else ""}
        {"v_cndmask_b32 v15, v1, v15, vcc" if self.o.get("tl") else ""}
        {["s_mov_b32 s%d, 0" % sROT, "", "s_lshl_b32 s%d, s%d, 2" % (sROT, sC), "s_lshl_b32 s%d, s%d, 1" % (sROT, sBB)][self.o.get("er", 0)]}""")
        setup = [f"s_mul_i32 s{sT0}, s{sBB}, 147456"] + self.srd(sEB, 4, f"s{sT0}", 147456) + self.xsrc(30, 31, vDX) + \
                [f"s_mov_b32 s{sP1}, 256", f"s_mov_b32 s{sP2}, 64", f"s_mov_b32 s{sP3}, {1 << 20}", f"s_mov_b32 s{sP4}, {1 << 18}"] + self.common_srds() + self.xpat(30, 31, vXR, vXR1, CBX) + self.wpat(30, 31, vW0, vW1, CBW) + \
                [f"v_mov_b32 v{vSC}, s{sCS}", f"v_mov_b32 v{vSC+1}, s{sCS}"]
        self.emit(setup + [self.kv_m0(0), self.kv_so(0), f"s_mov_b32 s{sP5}, 256"] + [f"s_mov_b32 s{sG[i]}, {i*32768}" for i in range(5)])
        self.stamp("iss")
        e("s_waitcnt lgkmcnt(0)\ns_barrier")
        self.stamp("bar")
        done = [0]
        def q0pub(n):
            while done[0] < min(n, 16):
                c = done[0]
                last = max(i for i, t in enumerate(self.q) if t == ("w", c))
                nb = sum(1 for t in self.q[:last] if t[0] == "g") // 16 if c == 15 else 0
                self.emit(self.q_wait(("q0", c), ("w", c)) + self.pub_abs(c + 1 + nb))
                self.stamp(f"c{c}")
                done[0] += 1
        Z = [f"v_accvgpr_write_b32 a{aHACC+i}, 0" for i in range(72)] + [f"v_mov_b32 v{vHACC+i}, 0" for i in range(216)]
        LAG = self.o.get("lag", 3); KN_ = self.o.get("kn", 10)
        q0pub(1)
        for c in range(2, 16):
            if c >= 6:
                assert done[0] >= c - 5
                self.emit([self.rdpr] + self.pcheck(c - 5))
            for t, g in q0w(c): self.emit(self.q_push(g, t))
            for i in range(self.KG if c >= self.KS else 0):
                if self.G < KN_: self.emit(([] if i else [self.kv_m0(self.G & 3), "s_nop 0"]) + self.flat(self.position(("q0p", self.G), check=False, pace=False)))
            q0pub(2 if c == 2 else c - LAG + 1)
            if c >= 6 and not self.o.get("zp"): self.emit(Z[(c - 6) * 29:(c - 5) * 29])
        self.stamp("c15i")
        q0pub(self.o.get("pb", 14))
        self.emit([self.kv_m0(self.G & 3), "s_nop 0"])
        if self.G == 12: self.emit([self.rdpr] + self.pcheck(12))
        while self.G < 20:
            n = self.G - 12
            self.emit(self.flat(self.position(("q0p", self.G), check=12 if self.G == 11 else False, late=Z[n * 36:n * 36 + 36] if n >= 0 and self.o.get("zp") else [])))
            q0pub(done[0] + 1)
            if done[0] == 16 and not self.pubok:
                self.pubok = True; self.stamp("q0")
        assert self.pubok
        self.stamp("G20")
        self.emit([self.rdpr, f"s_mov_b32 s{sLD}, {self.pub}", f"s_mov_b32 s{sAL}, 4096", f"s_mov_b32 s{sRT}, {self.o.get('r0', 18)}"] + self.pcheck(16))
        self.engine()
        assert self.G == 128
        F = [f"v_add_u32 v30, {HAND1}, v{vL16}", "s_nop 3"]
        n = 0
        for ks in (1, 2, 3, 0):
            for qt in range(9):
                if ks:
                    b0 = vHACC + 36 * (2 * ks - 2) + 4 * qt; b1 = b0 + 36
                else:
                    b0 = vHACC + 8 * (qt % 2); b1 = b0 + 4
                    for i in range(4): F += [f"v_accvgpr_read_b32 v{b0+i}, a{aHACC+4*qt+i}", f"v_accvgpr_read_b32 v{b1+i}, a{aHACC+36+4*qt+i}"]
                F += [f"v_pk_mul_f32 v[{b}:{b+1}], v[{b}:{b+1}], v[{vSC}:{vSC+1}]" for b in (b0, b0 + 2, b1, b1 + 2)]
                t = vHT + 4 * (n % 2); n += 1
                F += [f"v_cvt_pk_bf16_f32 v{t+i}, v{b}, v{b+1}" for i, b in enumerate((b0, b0 + 2, b1, b1 + 2))]
                F += [f"ds_write_b128 v30, {vr(t)} offset:{(qt*4+ks)*1024}"]
        assert D >= 1
        NF = self.o.get("nf", 3)
        for m in range(NF): self.plain(f"f{m}", F[m * len(F) // NF:(m + 1) * len(F) // NF])
        SW = self.wo_srd() + self.srd(sDB, 16, 0, 256) + \
             ["v_bfe_u32 v30, v1, 2, 2", "v_lshlrev_b32 v30, 10, v30", "v_lshrrev_b32 v31, 4, v1", "v_lshl_add_u32 v30, v31, 6, v30",
              "v_and_b32 v31, 3, v1", f"v_lshl_add_u32 v{vDW1}, v31, 4, v30", "v_xor_b32 v31, 2, v31", f"v_lshl_add_u32 v{vDW1+1}, v31, 4, v30",
              f"v_add_u32 v{vDW1+2}, 2048, v{vDW1}", f"v_add_u32 v{vDW1+3}, 17408, v{vDW1+1}", f"v_add_u32 v{vDW1+1}, 15360, v{vDW1+1}",
              f"s_mov_b32 s{sRT}, {self.o.get('r1', 18)}"] + ([f"s_mov_b32 s{sEA+2}, 0"] if self.o.get("now") else [])
        for i in range(4): SW += [f"s_add_u32 s{sT1}, s{sC}, {i}", f"s_and_b32 s{sT1}, s{sT1}, 3", f"s_lshl_b32 s{sH[i]}, s{sT1}, 18"]
        SW += ["v_bfe_u32 v30, v1, 2, 2", "v_min_u32 v30, 2, v30", f"v_add_u32 v30, s{sC}, v30", "v_add_u32 v30, 1, v30", "v_and_b32 v30, 3, v30",
               "v_and_b32 v31, 3, v1", "v_min_u32 v31, 2, v31", f"v_lshl_add_u32 v31, v30, 2, v31", f"v_lshlrev_b32 v{vPL}, 7, v31",
               "v_lshlrev_b32 v53, 9, v30", "v_add_u32 v53, 384, v53", "v_mov_b32 v54, 0"]
        if self.o.get("fb"): SW += [f"v_mov_b32 v64, {MISC+64}", f"s_mov_b32 s{sP5}, {self.o.get('t0', 128)}", f"v_mov_b32 v65, s{sP5}", "ds_write_b32 v64, v65"]
        SW += self.tail_wregs(sT1) + self.tail_src() + self.tail_own(False); nb = 40 - 32 - NF
        for m, x in enumerate(self.split(SW, nb)): self.plain(("pl", m + 32 + NF), x, check="redo" if m == nb - 1 else True)
        def share(r):
            return [f"s_bfe_u32 s{sT3}, s2, 0x30003", f"s_lshr_b32 s{sT4}, s{sT3}, 1", f"s_and_b32 s{sT3}, s{sT3}, 1", f"s_lshl_b32 s{sT4}, s{sT4}, 18", f"s_lshl_b32 s{sT3}, s{sT3}, 16",
                    f"s_add_u32 s{sT3}, s{sT3}, s{sT4}", f"s_add_u32 s{sT3}, s{sT3}, {131072*r}", f"v_lshrrev_b32 v30, 1, v1", f"v_and_b32 v31, 1, v1", "v_lshlrev_b32 v30, 10, v30",
                    "v_lshl_add_u32 v30, v31, 7, v30", f"s_add_u32 s{sT4}, s{sT3}, 32768"], [f"buffer_load_dword v52, v30, {sr(sEA)}, s{x} offen" for x in (sT3, sT4)]
        self.plain(("pl", 40), check=False, cg={0: share(0)} if self.o.get("pfe", 1) else {})
        self.stamp("s0")
        e(f"L_s0:\n{self.rdpr}\ns_mov_b32 s{sIT}, 1")
        self.emit(self.pcheck(f"s{sB}"))
        self.stamp("it0")
        tok = f"buffer_load_dwordx2 v[56:57], v54, {sr(sDB)}, 0 offen sc1"
        self.plain(("pl", 41), [f"v_add_u32 v30, {HAND1}, v{vL16}"] + [f"ds_read_b128 {vr(vEO+4*i)}, v30 offset:{i*1024}" for i in range(36)], cg={0: (None, [tok])}, tag="tok", fix=True)
        e("s_waitcnt lgkmcnt(0)")
        self.plain(("pl", 42), fix=True)
        self.emit(self.q_wait("tok", "tok"))
        e(f"""L_tok:
        v_readfirstlane_b32 s{sTK+1}, v57
        v_readfirstlane_b32 s{sTK}, v56
        s_cmp_eq_u32 s{sTK+1}, 0
        s_cbranch_scc1 L_tok2
L_tokok:""")
        if not self.dry: self.ool += ["L_tok2:"] + self.budget("L_tokok") + [tok, "s_waitcnt vmcnt(0)", "s_branch L_tok"]
        ES = []
        if self.o.get("ae"): e(f"v_mov_b32 v31, {MISC+32}\nds_write_b64 v31, v[56:57]")
        for t in range(0 if self.o.get("ae") else 9):
            ES += [[f"s_add_u32 s{sT2}, s{sT2}, 4096" if t else f"s_mul_i32 s{sT2}, s{sC}, 73728" if not self.o.get("noes") else f"s_mov_b32 s{sT2}, {OOB:#x}"] +
                   [f"buffer_store_dwordx4 {vr(vEO+16*t+4*k)}, v55, {sr(sOB)}, s{sT2} offen offset:{k*1024} {self.P('esc', 'sc1')}" for k in range(4)]]
        es = self.o.get("es", 9); bk = self.o.get("bk", 62)
        back = [f"ds_write_b128 v62, {vr(vEO+4*i)} offset:{i*1024}" for i in range(36)]
        e(f"v_add_u32 v55, {O_OFF}, v{vL16}\nv_add_u32 v62, {HAND1}, v{vL16}")
        for m in range(43, 65):
            cg = {j: (ES[0][0], ES.pop(0)[1:]) for j in range(4) if 4 * (65 - m) - j <= es and ES}
            if m >= self.o.get("et", 99) and ES:
                n = self.o.get("en", 1)
                for j in range(4):
                    if not ES: break
                    pre = ES[0].pop(0) if not isvm(ES[0][0]) else None
                    cg[j] = (pre, [ES[0].pop(0) for _ in range(n)])
                    if not ES[0]: ES.pop(0)
            if m in (44, 50, 58): self.stamp({44: "g10", 50: "g13", 58: "g16"}[m])
            if m == bk: self.emit([self.rdpr] + self.pcheck(78, rel=True))
            self.plain(("pl", m), back[12*(m - bk):12*(m - bk + 1)] if m >= bk else [], cg=cg, tag="e", check=m < 64, fix=True)
        assert self.G == 260
        self.stamp("G260")
        def wchunk(n):
            G = self.agroups(lambda h: f"s_mov_b32 m0, {WC[n] + h*4096}", sT3, self.P("wpol"), sT4, vDW1)
            o = ((n & 3) << 15) + 131072
            return self.q_push([G[0][0], f"s_add_u32 s{sT3}, s{sH[n >> 2]}, {o}"] + G[0][1] + [G[1][0], f"s_add_u32 s{sT4}, s{sH[n >> 2]}, {o + 8192}"] + G[1][1], ("w1", n))
        def wblock(p): return wchunk(2 * p) + wchunk(2 * p + 1)
        def chk(n): return [self.rdpr] + self.pcheck(n)
        def estore():
            L = self.q_push(sum(ES, []), "e"); ES.clear()
            return L
        PB_ = 75 + NW
        if self.o.get("now") == 1: e(f"s_lshl_b32 s{sT3}, s{sC}, 8\ns_sub_u32 s{sEA+2}, 1048576, s{sT3}")
        if self.o.get("ea", 0) == 0: self.emit(estore())
        if self.o.get("pf", 2) == 2:
            self.emit(share(1)[0] + self.q_push(share(1)[1], "pf"))
        GL = 259; N0 = PB_
        late = [m for m in range(NW) if 4 * self.WB[m] + 3 + D + (self.o.get("fbd", 1) if self.o.get("fb") else 0) > GL]
        ea = self.o.get("ea", 0); w1 = self.o.get("w1", 2)
        self.emit(self.q_wait("w80", [("g", GL - 4), ("wg", NW - 1)]) + self.pub_abs(PB_ + 5) + sum((self.hpull(m) for m in late), []))
        for p in range(w1): self.emit(chk(N0 + p) + wblock(p))
        self.emit(self.q_wait("w81", ("g", GL)) + self.pub_abs(PB_ + 6))
        self.stamp("l81")
        for p in range(w1, self.o.get("w2", 3)): self.emit(chk(N0 + p) + wblock(p))
        poll = f"buffer_load_dwordx2 v[58:59], v{vPL if self.o.get('ae') else 53}, {sr(sFL)}, s{sP4} offen sc1"
        self.emit(self.q_wait("w83", ("w1", 3)))
        e("L_wdone:")
        self.stamp("wd")
        eflag = lambda: [] if self.o.get("ae") else self.q_push(self.oflag(0, (self.q_wait("eack", "e") or ["s_nop 0"])[0]), "ef")
        self.emit(self.pub_abs(PB_ + 7) + (eflag() if not ea and not self.o.get("efl") else []) + [f"v_mov_b32 v31, {MISC+32}", "ds_write_b64 v31, v[56:57]", f"s_lshl_b32 s{sP4}, s{sWID}, 13"])
        spe = ["v_lshlrev_b32 v62, 7, v1", f"s_mul_i32 s{sP5}, s{sC}, 73728", f"s_add_u32 s{sP5}, s{sP5}, {O_OFF}"]
        for i in range(5): spe += (["s_mov_b32 exec_hi, 0"] if i == 4 else []) + [f"buffer_load_dword v63, v62, {sr(sOB)}, s{sP5} offen sc1", f"s_add_u32 s{sP5}, s{sP5}, 8192"]
        spe[-1] = "s_mov_b32 exec_hi, -1"
        if self.o.get("spe") == 2: self.emit(self.q_push(spe, "spe"))
        for p in range(self.o.get("w2", 3), 4): self.emit(chk(N0 + p) + wblock(p))
        if self.o.get("efl"): self.emit(eflag())
        self.emit(self.q_push([poll], "p0"))
        if self.o.get("spe") == 4: self.emit(self.q_push(spe, "spe"))
        self.stamp("w3")
        self.emit(self.pulls(WA) + chk(PB_ + 7) + self.q_wait("w84", ("w1", 7)) + self.pub_abs(PB_ + 8))
        self.emit(estore())
        self.stamp("w4")
        self.emit(self.pulls(WB_))
        self.stamp("w6")
        self.emit(self.rd(0) + self.rd(1))
        self.stamp("c15")
        self.emit((eflag() if ea else []) + self.q_wait("p0", "p0"))
        e(f"""L_poll0:
        v_cmp_ne_u64 vcc, s[{sTK}:{sTK+1}], v[58:59]
        s_cbranch_vccnz L_poll0b
L_poll0r:""")
        if not self.dry and self.o.get("spe") in (1, 5):
            self.ool += ["L_poll0b:"] + ([poll, "s_waitcnt vmcnt(0)", f"v_cmp_ne_u64 vcc, s[{sTK}:{sTK+1}], v[58:59]", "s_cbranch_vccz L_poll0r"] if self.o["spe"] == 5 else []) + spe + ["L_poll0c:"] + self.budget("L_poll0r") + [poll, "s_waitcnt vmcnt(0)", f"v_cmp_ne_u64 vcc, s[{sTK}:{sTK+1}], v[58:59]", "s_cbranch_vccnz L_poll0c", "s_branch L_poll0r"]
        elif not self.dry: self.ool += ["L_poll0b:"] + self.budget("L_poll0r") + [poll, "s_waitcnt vmcnt(0)", "s_branch L_poll0"]
        self.stamp("pe")
        self.stamp("it1")
        if not self.dry:
            self.b1("L_hredo")
            e("s_branch L_tail")
        e(f"""L_hredo:
        s_waitcnt vmcnt(0)
        s_barrier
        s_mul_i32 s{sB}, s{sIT}, {32 + NW}
        s_add_u32 s{sB}, s{sB}, 10
        s_add_u32 s{sT0}, s{sB}, {6 - (D + 3) // 4}
        v_mov_b32 v{vPB}, s{sT0}
        s_mov_b32 s{sLD}, s{sT0}
        s_add_u32 s{sT0}, s{sB}, 6
        v_mov_b32 v{vPV}, s{sT0}
        s_lshl_b32 s{sAL}, s{sT0}, 4
        ds_write_b32 v{vLA}, v{vPB}
        s_mov_b32 s{sCNT}, 0
        s_lshl_b32 s{sOFF}, s{sIT}, 18
        s_mov_b32 s{sSL}, 0
L_hmloop:""")
        for j in range(2): self.emit([self.kv_m0(j), self.kv_so(j)] + self.kv_d(j))
        e(f"""s_add_u32 s{sOFF}, s{sOFF}, 8192
        s_waitcnt vmcnt(0) lgkmcnt(0)
        s_barrier
        s_barrier
        s_add_u32 s{sCNT}, s{sCNT}, 1
        s_cmp_lt_u32 s{sCNT}, 32
        s_cbranch_scc1 L_hmloop
        s_lshl_b32 s{sOFF}, s{sIT}, 18
        s_mul_i32 s{sSL}, s{sIT}, {6 * SLOT}
        s_cmp_eq_u32 s{sIT}, 0
        s_cselect_b32 s{sCNT}, {self.S0 + 10}, {75 + NW}
        {self.kv_m0(0)}
        {self.kv_so(0)}
L_hploop:""")
        self.G = 400; self.q = [("g", g) for g in range(380, 400) for _ in range(4)]; self.pub = None
        self.plain("rp")
        e(f"""s_cmp_lt_u32 s{sB}, s{sCNT}
        s_cbranch_scc1 L_hploop
        s_cmp_eq_u32 s{sIT}, 0
        s_cbranch_scc1 L_s0
        s_waitcnt vmcnt(0)""")
        self.emit(self.pub_abs(PB_ + 6) + chk(PB_ + 6))
        for p in range(self.o.get("w2", 3)): self.emit(wblock(p) + ["s_waitcnt vmcnt(16)"])
        self.emit(["s_waitcnt vmcnt(0)", "s_branch L_wdone"])

    def tail_wregs(self, sT0=sT0):
        return [f"s_lshl_b32 s{sT0}, s{sWAVE}, 8"] + self.wpat(250, 251, 252, 253, f"s{sT0}") + [f"v_add_u32 v254, 65536, v252", f"v_add_u32 v255, 65536, v253"]
    def pull(self, b, r, o):
        return [f"ds_read_b64_tr_b16 {ar(b+4*u+2*h,2)}, v{r+h} offset:{o+8*u}" for u in range(2) for h in range(2)]
    def pulls(self, ns):
        return sum((self.pull(aW[1] + 8 * n, 252 + 2 * (WC[n] >> 16), WC[n] & 65535) for n in ns), [])
    def wpull(self, m): return self.pull(aW[0] + 16 * m, 250, 0) + self.pull(aW[0] + 16 * m + 8, 250, 8192)
    def wdisp(self, l):
        L = [l + ":"]; T = [(b - 35) // 2 for b in self.WB] + [64]
        m8 = [m for m in range(NW) if 62 <= self.witem[m] < 69][0]
        for m in range(NW):
            if m < NW - 1: L += [f"s_cmp_lg_u32 s{sTGT}, {T[m]}", f"s_cbranch_scc1 {l}{m+1}"]
            if self.o.get("ae") and m == self.o.get("hk", 1):
                F = [x.replace("v4,", "v59,") for x in self.oflag(0, "s_waitcnt vmcnt(0) lgkmcnt(0)")]
                L += [f"v_mov_b32 v3, {MISC+32}", "ds_read_b64 v[60:61], v3"] + F[:8] + F[10:]
            L += self.rank(m, l) + self.wpull(m) + [f"s_mov_b32 s{sTGT}, {T[m+1]}"] + ([f"s_mov_b32 s{sRG}, {RING}"] if m == m8 else [])
            if m < NW - 1: L += [f"s_branch {l}x", f"{l}{m+1}:"]
        return L + [l + "x:"]
    def rank(self, m, l):
        if not self.o.get("fb"): return []
        lag = self.o.get("fl2", 1); L = [f"s_cmp_lg_u32 s{sWAVE}, {m % lag}", f"s_cbranch_scc1 {l}k{m}", "s_mov_b64 exec, 1"]
        if m >= lag: L += [f"v_mov_b32 v3, {MISC+64}", f"s_waitcnt vmcnt({1 if self.o.get('ae') and m == self.o.get('hk', 1) else 0})", "ds_write_b32 v3, v2"]
        ng = self.o.get("ng", 8)
        if m + lag < NW: L += [f"s_and_b32 s{sT0}, s{sBB}, {ng - 1}", f"s_lshl_b32 s{sT0}, s{sT0}, 10", f"s_add_u32 s{sT0}, s{sT0}, {2 << 20}", f"v_mov_b32 v2, {ng}",
                               f"buffer_atomic_add v2, v4, {sr(sFL)}, s{sT0} offen offset:{128*m} sc0 sc1"]
        return L + ["s_mov_b64 exec, -1", f"{l}k{m}:"]
    def wo_srd(self):
        return [f"s_lshl_b32 s{sT2}, s{sKQ}, 20", f"s_lshl_b32 s{sT3}, s{sC}, 8", f"s_add_u32 s{sT2}, s{sT2}, s{sT3}"] + self.srd(sEA, 12, f"s{sT2}", 1048576) + [f"s_sub_u32 s{sEA+2}, s{sEA+2}, s{sT3}"]
    def tail_w2(self):
        return [f"s_lshl_b32 s{sCNT}, s{sWAVE}, 11", f"s_add_u32 s{sT0}, s{sC}, 2", f"s_and_b32 s{sT0}, s{sT0}, 3", f"s_lshl_b32 s{sSL}, s{sT0}, 18",
                f"s_add_u32 s{sT0}, s{sC}, 3", f"s_and_b32 s{sT0}, s{sT0}, 3", f"s_lshl_b32 s{sB}, s{sT0}, 18"]
    def tail_src(self):
        L = []
        for x in range(3):
            L += [f"s_mul_i32 s{sT1}, s{sWAVE}, 3", f"s_add_u32 s{sT1}, s{sT1}, {x+4}", f"s_lshr_b32 s{sT2}, s{sT1}, 2", f"s_add_u32 s{sT2}, s{sT2}, s{sC}",
                  f"s_and_b32 s{sT2}, s{sT2}, 3", f"s_mul_i32 s{sT2}, s{sT2}, 73728", f"s_and_b32 s{sT1}, s{sT1}, 3", f"s_lshl_b32 s{sT1}, s{sT1}, 10",
                  f"s_add_u32 s{sT1}, s{sT1}, s{sT2}", f"s_add_u32 s{sT1}, s{sT1}, {O_OFF - x*1024}", f"v_add_u32 v{vF[x]}, s{sT1}, v{vL16}"]
        return L
    def tail_own(self, att=True):
        L = [f"s_lshl_b32 s{sT1}, s{sWAVE}, 12", f"s_add_u32 s{sT1}, s{sT1}, 131072", f"v_bfe_u32 v{vTB}, v1, 2, 2", f"v_lshlrev_b32 v{vTB}, 10, v{vTB}", f"v_lshrrev_b32 v{vTC}, 4, v1",
             f"v_lshl_add_u32 v{vTB}, v{vTC}, 6, v{vTB}", f"v_add_u32 v{vTB}, s{sT1}, v{vTB}", f"v_and_b32 v{vTC}, 3, v1", f"v_lshl_add_u32 v{vW2}, v{vTC}, 4, v{vTB}",
             f"v_xor_b32 v{vTC}, 2, v{vTC}", f"v_lshl_add_u32 v{vTB}, v{vTC}, 4, v{vTB}", f"v_add_u32 v{vW2+1}, 15360, v{vTB}",
             f"v_add_u32 v{vTB}, 65536, v{vL16}", f"v_add_u32 v{vTC}, 131072, v{vL16}"]
        for p in range(4):
            L += [f"s_add_u32 s{sT1}, s{sKQ}, {p+1}", f"s_and_b32 s{sT1}, s{sT1}, 3", f"s_lshl_b32 s{sT1}, s{sT1}, 13", f"s_add_u32 s{sT1}, s{sT1}, {HAND1}", f"v_add_u32 v{vE+p}, s{sT1}, v{vL16}"]
        if att:
            L += [f"s_mul_i32 s{sT0}, s{sWAVE}, 3", f"s_lshl_b32 s{sT1}, s{sKQ}, 1", f"s_sub_u32 s{sT1}, s{sT0}, s{sT1}"]
            for qt in range(3):
                L += [f"s_add_u32 s{sT2}, s{sT1}, {qt+6}", f"s_and_b32 s{sT2}, s{sT2}, 7"]
                if qt == 2: L += [f"s_cmp_eq_u32 s{sWAVE}, 2", f"s_cselect_b32 s{sT2}, 8, s{sT2}"]
                L += [f"s_lshl_b32 s{sT2}, s{sT2}, 12", f"v_add_u32 v{vOW+qt}, s{sT2}, v{vL16}"]
        return L
    ORDER = (8, 0, 1, 2, 3, 4, 5, 6, 7)
    STEPS = [(0, i, 0) for i in range(9)] + [(1, i, 0) for i in range(9)] + \
            [(r, i, s) for U in ((8, 0, 1, 2, 3, 4, 5), (6, 7)) for r in range(2) for i in U for s in (1, 2, 3)]
    def rd(self, j):
        r, i, s = self.STEPS[j]
        o = (OU if r else EU)[self.ORDER.index(i)] + (s - 1) * 4096 if s else OWN + i * 4096 if r else HAND1 + 32768
        v, o = (vE + (i >> 1), (i & 1) * 4096) if not r and not s and i < 8 else ((vL16, vTB, vTC)[o >> 16], o & 65535)
        return [f"ds_read_b128 {vr(vBF[j % 3]+4*k)}, v{v} offset:{o+k*1024}" for k in range(4)]
    def acc(self, u, i): return vTA + 36 * u + 4 * i
    def fetch(self, r, n):
        L = [f"s_add_u32 s{sT2}, s{sOFF}, {n*4096}", f"s_and_b32 s{sT2}, s{sT2}, 0x7fff"] if n else []
        if r: L += [f"s_add_u32 s{sT3}, s{sT2}, 36864" if n else f"s_mov_b32 s{sT3}, {32768 + 36864}"]
        return L + [f"s_add_u32 m0, s{sT4}, {(OU if r else EU)[n]}"], [self.dma(vF[x], sOB, sT3 if r or not n else sT2, x * 1024, self.olp) for x in range(3)]
    def tstep(self, j, who, at={}, R=[], tags={}):
        r, i, s = self.STEPS[j]
        if not self.o.get("nord"): self.a(f"s_waitcnt lgkmcnt({self.lwait(j)})")
        mf = [f"{MF} {vr(self.acc(u,i))}, {ar(aW[r]+8*(4*s+k)+4*u)}, {vr(vBF[j % 3]+4*k)}, {vr(self.acc(u,i)) if j >= 9 or k else 0}" for k in range(4) for u in range(2)]
        f = {g: [] for g in range(8)}
        if j + 2 < 72:
            for g, x in zip([int(c) for c in str(self.o.get("rg", 10134))[1:]], self.rd(j + 2)): f[g].append(x if not self.o.get("nord") else "s_nop 0")
        busy = any(map(isvm, at.get(6, []) + at.get(7, [])))
        for g in ((2, 5) if busy else (2, 6)) if self.rate(j) == 2 else (2,) if busy else (5,):
            if self.fq:
                X, y, t = self.fq.pop(0)
                for n, x in enumerate(reversed(X)): f[max(0, g - 1 - n // 2)].insert(len(f[max(0, g - 1 - n // 2)]) - n % 2, x)
                f[g].append(y); tags = {**tags, y + str(g): t}
        for g, L in at.items(): f[g] += L
        for g in range(8):
            while R and (len(f[g]) + sum(map(isvm, f[g])) < 2 or R[0].startswith("s_cselect")): f[g].append(R.pop(0))
        for g in range(8):
            for n, x in enumerate(f[g]):
                if x == "@o": f[g][n] = f"s_waitcnt vmcnt({self.vwait(['o'], [True])})"
                if x.startswith("ds_"): self.ql.append(j + 2 if x.startswith("ds_read_b128") else "w")
                if isvm(x):
                    for w in who: self.qt[w].append(tags.get(x, tags.get(x + str(g))))
        self.weave(mf, f)
    def rate(self, j): return 2 if j < self.o.get("r2", 10) or 10 <= j < 10 + self.o.get("r4", 4) or self.B3 <= j < self.B3 + self.o.get("r3", 6) else 1
    def fpush(self, r, n):
        if r == 2:
            X, Y = [f"s_add_u32 m0, s{sCNT}, {WC[n]}", f"s_add_u32 s{sT3}, s{sB if n >= 12 else sSL}, {(n & 3) << 15}"], [self.dma(vW2 + k, sEA, sT3, k * 1024, self.P("wpol")) for k in range(2)]
        else: X, Y = self.fetch(r, n)
        self.fq += [(X if not k else [], y, ("EOW"[r], n)) for k, y in enumerate(Y)]
    def lwait(self, t):
        return min(15, len(self.ql) - 1 - max(n for n, x in enumerate(self.ql) if x == t))
    def vwait(self, ts, who=(True, False)):
        return min([63] + [len(self.qt[w]) - 1 - n for w in who for n, x in enumerate(self.qt[w]) if x in ts and x not in self.qt[w][n+1:]])
    def tail_regs(self):
        L = []
        for j, s in enumerate((sS0, sS1, sS2)):
            L += [f"s_add_u32 s{sT0}, s{sWID}, {4*(j+1)}", f"s_and_b32 s{sT0}, s{sT0}, 15", f"s_and_b32 s{sT1}, s{sWID}, 0xf0", f"s_add_u32 s{sT0}, s{sT0}, s{sT1}",
                  f"s_mul_i32 s{sT0}, s{sT0}, 49152", f"s_add_u32 s{sT1}, s{sWAVE}, {4*j}", f"s_lshl_b32 s{sT1}, s{sT1}, 12", f"s_add_u32 s{s}, s{sT0}, s{sT1}"]
        L += [f"s_sub_u32 s{sT0}, s{sWAVE}, s{sKQ}", f"s_and_b32 s{sT0}, s{sT0}, 3", f"s_cmp_eq_u32 s{sT0}, 1", f"s_cselect_b32 s{sS8}, s{sS0}, s{sS1}",
              f"s_cmp_eq_u32 s{sT0}, 3", f"s_cselect_b32 s{sS8}, s{sS2}, s{sS8}", f"s_add_u32 s{sS8}, s{sS8}, 3072",
              f"s_cmp_eq_u32 s{sT0}, 0", f"s_cselect_b32 s{sS8}, {OOB:#x}, s{sS8}"]
        L += ["v_bfe_u32 v19, v1, 2, 2", "v_lshrrev_b32 v20, 4, v1", "v_cmp_eq_u32 vcc, v19, v20", "v_and_b32 v19, 1, v1", "v_lshlrev_b32 v19, 4, v19",
              "v_mov_b32 v20, 0x3f80", "v_lshlrev_b32 v19, v19, v20", "v_cndmask_b32 v19, 0, v19, vcc", "v_and_b32 v20, 2, v1", "v_cmp_eq_u32 vcc, 0, v20",
              f"v_mov_b32 v{vSEL+2}, 0", f"v_mov_b32 v{vSEL+3}, 0", f"v_cndmask_b32 v{vSEL}, 0, v19, vcc", f"v_sub_u32 v{vSEL+1}, v19, v{vSEL}",
              f"v_mov_b32 v{vSEL+4}, 0", f"v_mov_b32 v{vSEL+5}, 0", f"v_mov_b32 v{vSEL+6}, v{vSEL}", f"v_mov_b32 v{vSEL+7}, v{vSEL+1}"]
        L += [f"v_mov_b32 v{vRC+4*k+3}, s{sTK}" for k in range(3)]
        L += ["v_and_b32 v19, 3, v1", "v_min_u32 v19, 2, v19", f"v_lshlrev_b32 v19, 14, v19", f"v_add_u32 v{vP2}, 3068, v19",
              "v_and_b32 v19, 15, v1", "v_lshlrev_b32 v19, 10, v19", "v_lshrrev_b32 v20, 4, v1", "v_lshl_add_u32 v19, v20, 4, v19",
              f"s_lshl_b32 s{sT0}, s{sWAVE}, 6", f"v_add_u32 v{vOUT}, s{sT0}, v19"]
        return [x.replace("v19", "v13").replace("v20", "v14") for x in L]
    def tail(self):
        a = self.a
        a("L_tail:")
        acc = self.acc
        def send(i, n):
            t = vRC + 4 * (n & 1); c = vRC + 8
            so = sS8 if i == 8 else (sS0, sS1, sS2)[i >> 1]
            st = lambda t, o: f"buffer_store_dwordx4 {vr(t)}, v{vL16}, {sr(sPT)}, s{so} offen offset:{o} {self.P('psc', 'sc1')}"
            return [f"v_cvt_pk_bf16_f32 v{t+2*u+x if u + x < 2 else c + (2 if i == 8 else i & 1)}, v{acc(u,i)+2*x}, v{acc(u,i)+2*x+1}" for u in range(2) for x in range(2)] + \
                   [st(t, 0 if i == 8 else (i & 1) * 1024)] + ([st(c, 2048)] if i & 1 else [])
        B3 = self.B3; PA = self.o.get("pa", 7); FL = self.o.get("fl", 5); FS = self.o.get("fs", 66); PB2 = self.o.get("p2", 56)
        a(f"""s_mul_i32 s{sT4}, s{sWAVE}, 3072
        s_lshl_b32 s{sOFF}, s{sKQ}, 13
        s_add_u32 s{sOFF}, s{sOFF}, 4096
        s_mov_b32 s{sT3}, 32768""")
        if self.o.get("hit") == 1: a(f"s_mov_b32 s{sOB}, s{sEA}\ns_mov_b32 s{sOB+1}, s{sEA+1}")
        if self.o.get("hit") == 2: a(f"s_mov_b32 s{sOB+2}, 0")
        if self.o.get("hit") == 3: a(f"s_mov_b32 s{sOB+2}, 0\ns_mov_b32 s{sEA+2}, 0")
        self.ql = [0] * 4 + [1] * 4; self.fq = []
        self.qt = {True: ["o"] * 12, False: []}
        first = lambda r, n: self.STEPS.index((r, self.ORDER[n], 1))
        todo = [(0, n) for n in range(7)] + [(1, n) for n in range(7)] + [(0, 7), (0, 8), (1, 7), (1, 8)]
        bar = {B3: [], 10: []}
        cutsE = [int(c) for c in str(self.o.get("eg", 101245))[1:]]; cutsO = [int(c) for c in str(self.o.get("og", 10135))[1:]]
        cuts = [(0, n) for n in cutsE] + [(1, n) for n in cutsO] + [(0, 7)] + ([(1, 7)] if self.o.get("lg", 1) else [])
        for k, x in enumerate(cuts): bar[first(*x) - 2] = [("EO"[r], n) for r, n in todo[:todo.index(cuts[k + 1]) if k + 1 < len(cuts) else 18]]
        pul = {16: WD, 22: WE}
        held = []
        for j, L in pul.items():
            bar[j] = bar.get(j, []) + [("W", n) for n in L]
            held += [(WC[n], 8192, j + 5) for n in L]
        for j, (r, i, s) in enumerate(self.STEPS):
            held.append(((OU if r else EU)[self.ORDER.index(i)], 12288, j) if s else (OWN + i * 4096, 4096, j) if r else (HAND1, 36864, j))
        todo[1:1] = [(2, n) for n in WD + WE]
        poll = f"buffer_load_dwordx2 v[2:3], v{vPL}, {sr(sFL)}, s{sIT} offen offset:2048 sc1"
        nst = 0; R = self.tail_w2(); nw2 = len(R); R += [f"s_lshl_b32 s{sIT}, s{sWID}, 13"] + self.tail_regs(); nw2 = len(R) - nw2; seen = 0; W2 = (True, False); P = []
        def nextf(j):
            if not todo: return None
            r, n = todo[0]
            if r == 2: return todo.pop(0) if len(R) <= nw2 else None
            o = (OU if r else EU)[n]
            if r and seen < B3 or max([-1] + [x for p, l, x in held if x < first(r, n) and p < o + 12288 and o < p + l]) >= seen: return None
            return todo.pop(0)
        pre2 = [f"s_mul_i32 s{sROT}, s{sWID}, 49152", f"s_lshl_b32 s{sT1}, s{sWAVE}, 12", f"s_add_u32 s{sROT}, s{sROT}, s{sT1}", f"s_lshl_b32 s{sT2}, s{sKQ}, 15",
                f"s_cmp_eq_u32 s{sWAVE}, s{sKQ}", f"s_cselect_b32 s{sT3}, 0, {OOB:#x}", f"s_cselect_b32 s{sREDO}, s{sTK}, 0"]
        pol2 = f"buffer_load_dword v2, v{vP2}, {sr(sPT)}, s{sROT} offen sc1"
        get = [[f"s_add_u32 s{sT0}, s{sROT}, {16384*k}", f"s_or_b32 s{sT1}, s{sT0}, s{sT3}"] +
               [f"buffer_load_dwordx4 {vr(vRC+16*k+4*u)}, v{vL16}, {sr(sPT)}, s{sT1 if u == 3 else sT0} offen offset:{u*1024} {self.P('plpol', 'sc1')}" for u in range(4)] for k in range(3)]
        for j in range(72):
            r, i, s = self.STEPS[j]
            if j == B3:
                assert not R
                self.stamp("pq")
                a(f"""s_cmp_lg_u32 s{sWAVE}, 3
                s_cbranch_scc1 L_p1ok
                s_waitcnt vmcnt({self.vwait(["p"])})
L_p1:
                v_cmp_ne_u64 vcc, s[{sTK}:{sTK+1}], v[2:3]
                s_cbranch_vccnz L_p1b
L_p1ok:""")
                self.ool += ["L_p1b:"] + self.budget("L_p1ok") + [poll, "s_waitcnt vmcnt(0)", "s_branch L_p1"]
                self.stamp("pk")
            if j in bar:
                assert not any(t in bar[j] for X, y, t in self.fq) and not any(("EOW"[r_], n) in bar[j] for r_, n in todo), j
                if bar[j]: a(f"s_waitcnt vmcnt({self.vwait(bar[j])})")
                if j == B3: self.stamp("pv")
                if not self.o.get("nobar"): a("s_barrier")
                seen = j
            self.stamp("p1" if j == B3 else "d0" if j == 37 else f"j{j}")
            while True:
                fe = nextf(j)
                if not fe: break
                self.fpush(*fe)
            if self.o.get("v"): print(j, "B" if j in bar else " ", [t for X, y, t in self.fq[:self.rate(j)]])
            at = {}
            if j == B3 - PA: at[7] = [poll]
            if j == FL:
                F = self.oflag(1, "", sREDO, sROT)
                G = F[:7] + [f"s_cmp_eq_u32 s{sWAVE}, 3", f"s_cselect_b32 s{sREDO}, {OOB:#x}, s{sREDO}"] + F[7:10]
                at = {g: x for g, x in zip((0, 1, 3, 4, 5), self.split(G, 5))}
                at[7] = [f"s_cmp_eq_u32 s{sWAVE}, 3", "s_cbranch_scc1 L_nw", "@o", "L_nw:"] + F[11:]
            if j == FL + self.o.get("spo", -99):
                ld = lambda s_: f"buffer_load_dword v63, v62, {sr(sOB)}, s{s_} offen sc1"
                for g, x in zip((0, 0, 1, 1, 3, 4, 4, 5) if j > FL else (2, 2, 2, 6, 6, 6, 6, 6), ["v_lshlrev_b32 v62, 7, v1", f"s_mul_i32 s{sP5}, s{sC}, 73728", f"s_mul_i32 s{sP6}, s{sWAVE}, 12288", f"s_add_u32 s{sP5}, s{sP5}, s{sP6}",
                                f"s_add_u32 s{sP5}, s{sP5}, {O_OFF + 36864}", f"s_cmp_eq_u32 s{sWAVE}, 3", f"s_cselect_b32 s{sP5}, {OOB:#x}, s{sP5}", f"s_add_u32 s{sP6}, s{sP5}, 6144"]):
                    at[g] = at.get(g, []) + [x]
                at[7] = at.get(7, []) + ["s_mov_b32 exec_hi, 0xffff", ld(sP5), ld(sP6), "s_mov_b32 exec_hi, -1"]
            assert PB2 % 3 and PB2 > 54
            if j == PB2: at = {**{g: x for g, x in zip((0, 1, 2, 3, 4, 5), self.split(pre2, 6))}, 7: [pol2]}
            if j == FS:
                self.emit([f"s_waitcnt vmcnt({self.vwait(['p2'])})", f"v_cmp_ne_u32 vcc, s{sTK}, v2", "s_cbranch_vccz L_get", pol2, "L_got:"])
                self.ool += ["L_get:"] + sum(get, []) + ["s_branch L_got"]
                self.stamp("fs")
            if 42 <= j <= 60 and s == 1:
                X = send(self.STEPS[j - 1][1], nst); nst += 1
                at = {4: X[:1], 5: X[1:3], 6: X[3:5], 7: X[5:]}
            if j - 5 in pul: assert not P
            if j in pul: P = self.pulls(pul[j])
            self.tstep(j, W2, at, P if P else R if j not in (FL, FL + self.o.get("spo", 0)) else [], {poll: "p", pol2: "p2"})
            if j == FL: self.stamp("ack")
        assert not R and nst == 7 and not todo
        self.stamp("mf")
        a("s_cbranch_vccz L_have\nL_poll2:\ns_waitcnt vmcnt(0)")
        a(f"v_cmp_ne_u32 vcc, s{sTK}, v2\ns_cbranch_vccnz L_poll2b\nL_poll2r:")
        self.ool += ["L_poll2b:"] + self.budget("L_poll2r") + [pol2, "s_branch L_poll2"]
        self.emit(sum(get, []))
        a("L_have:")
        self.stamp("p2")
        for k in range(3):
            b = vRC + 16 * k
            a(f"""s_waitcnt vmcnt({8-4*k})
L_ck{k}:
            v_xor_b32 v2, s{sTK}, v{b+3}
            v_xor_b32 v3, s{sTK}, v{b+7}
            v_xor_b32 v4, s{sTK}, v{b+11}
            v_xor_b32 v13, s{sREDO}, v{b+15}
            v_or3_b32 v2, v2, v3, v4
            v_or_b32 v2, v2, v13
            v_cmp_ne_u32 vcc, 0, v2
            s_cbranch_vccnz L_re{k}
L_ok{k}r:
            v_mov_b32 v{b+3}, v{b+8}
            v_mov_b32 v{b+7}, v{b+9}
            v_mov_b32 v{b+15}, v{b+10}
            s_nop 0""")
            self.ool += [f"L_re{k}:"] + self.budget(f"L_ok{k}r") + get[k] + ["s_waitcnt vmcnt(0)", f"s_branch L_ck{k}"]
            for u, i in ((0, 6), (1, 7), (3, 8)):
                for x in range(2):
                    a(f"{MF} {vr(acc(x,i))}, {vr(vSEL+4*x)}, {vr(b+4*u)}, {vr(acc(x,i))}")
        a(f"""s_add_u32 s{sT1}, s{sT2}, 16384
        s_or_b32 s{sT3}, s{sT3}, 131072
        s_nop 1""")
        for n, (i, so) in enumerate(((6, sT2), (7, sT1), (8, sT3))):
            t = vBF[0] + 4 * n
            if n == 2: a("s_nop 1")
            for u in range(2):
                for x in range(2): a(f"v_cvt_pk_bf16_f32 v{t+2*u+x}, v{acc(u,i)+2*x}, v{acc(u,i)+2*x+1}")
            a(f"buffer_store_dwordx4 {vr(t)}, v{vOUT}, {sr(sOUT)}, s{so} offen {self.P('opol')}")
        if self.o.get("stamps"):
            a("s_waitcnt vmcnt(0)")
            if self.o.get("sm") not in ("s", "r", "c", "p", "o"): self.inh = self.inh and self.o.get("sm") != "h"; self.stamp("end")
            if self.o.get("amp"):
                i = self.o["amp"]
                a(f"""s_waitcnt lgkmcnt(0)
                s_cmp_lg_u32 s{sWAVE}, {self.o.get("ampw", 0)}
                s_cbranch_scc1 L_noamp
                s_and_b32 s{sT0}, s2, {self.o.get("ampm", 0)}
                s_cmp_lg_u32 s{sT0}, {self.o.get("ampv", 0)}
                s_cbranch_scc1 L_noamp
                s_sub_u32 s{sT0}, s{sSTAMP+2*i}, s{sSTAMP+2*self.o.get("amp0", 0)}
                s_min_u32 s{sT0}, s{sT0}, 20000
                s_mul_i32 s{sT0}, s{sT0}, {self.o.get("ampk", 10)}
                s_add_u32 s{sT0}, s{sT0}, 10000
L_amp:
                s_memrealtime s[{sT2}:{sT2+1}]
                s_waitcnt lgkmcnt(0)
                s_sub_u32 s{sT1}, s{sT2}, s{sSTAMP}
                s_cmp_lt_u32 s{sT1}, s{sT0}
                s_cbranch_scc1 L_amp
L_noamp:
                s_endpgm""")
            if self.o.get("dbg"):
                a("s_waitcnt lgkmcnt(0)")
                self.emit(self.srd(sDB, 16, 0, 256))
                a(f"""s_cmp_eq_u32 s{sWAVE}, 3
                s_cselect_b32 s{sT0}, 28, 0
                s_mov_b64 exec, 1
                v_mov_b32 v5, 0
                s_add_u32 s{sT1}, s{sWAVE}, 1
                s_and_b32 s{sT1}, s{sT1}, 2
                s_cbranch_scc1 L_nodbg""")
                for i in range(1, 8):
                    a(f"s_sub_u32 s{sT1}, s{sSTAMP+2*i}, s{sSTAMP}\nv_mov_b32 v6, s{sT1}\nbuffer_atomic_add v6, v5, {sr(sDB)}, s{sT0} offen offset:{4*i} sc1")
                a(f"""s_not_b32 s{sT1}, s{sSTAMP}
                v_mov_b32 v6, s{sT1}
                v_mov_b32 v7, s{sSTAMP+14}
                buffer_atomic_umax v6, v5, {sr(sDB)}, 0 offen offset:60 sc1
                s_waitcnt vmcnt(0)
L_nodbg:
                s_endpgm""")
            a(f"""s_waitcnt lgkmcnt(0)
            s_mov_b32 s{sO}, s18
            s_and_b32 s{sO+1}, s19, 0xffff
            s_mov_b32 s{sO+2}, 536870912
            s_mov_b32 s{sO+3}, 0x00020000
            s_lshl_b32 s{sT0}, s2, 8
            s_lshl_b32 s{sT1}, s{sWAVE}, 6
            s_add_u32 s{sT0}, s{sT0}, s{sT1}
            s_add_u32 s{sT0}, s{sT0}, {256<<20}
            v_mov_b32 v5, 0""")
            a("v_mov_b32 v15, v18")
            for i in range(16): a(f"v_mov_b32 v{16+i}, s{sSTAMP+i}")
            a("s_mov_b64 exec, 1")
            for i in range(4): a(f"buffer_store_dwordx4 {vr(16+4*i)}, v5, {sr(sO)}, s{sT0} offen offset:{16*i}")
            if self.o.get("tl"):
                a(f"""s_mov_b64 exec, -1
                s_cmp_lg_u32 s{sWAVE}, 3
                s_cbranch_scc1 L_notl
                s_lshl_b32 s{sT0}, s2, 8
                s_add_u32 s{sT0}, s{sT0}, {257<<20}
                v_lshlrev_b32 v5, 2, v1
                buffer_store_dword v15, v5, {sr(sO)}, s{sT0} offen
L_notl:""")
        a("s_endpgm")

    def kernel(self):
        self.inh = True
        self.dry = True; self.helper(); self.dry = False
        self.prologue()
        self.helper()
        self.inh = False; self.attention(); self.inh = self.o.get("sm") in ("g", "s", "r", "c", "p", "o", "h") and self.o.get("gh", 1)
        self.tail()
        self.emit(self.ool)
        self.a("L_end:\ns_endpgm")
        return self.a.text()

def build(opt):
    g = Gen(opt)
    t = g.kernel()
    if opt.get("v"): print(g.cnt)
    src = open("standalone__gqa_block_cached__near_ridge.s.ref").read().split("; Override launch")[0]
    return src + header([(KN, 256, 256, LDS)]) + kstart(KN) + t + rodata([kdesc(KN, 256, 256)])

if __name__ == "__main__":
    opt = {}
    out = sys.argv[1]
    for x in sys.argv[2:]:
        k, _, v = x.partition("=")
        opt[k] = int(v) if v.lstrip("-").isdigit() else (v if v else True)
    t = build(opt)
    open(out, "w").write(t)
    print("hazards:", hazard.check(t), "bytes:", len(t))
```

```python
import sys, struct
from asmlib import *
import hazard

SLOT = 16384; NSL = 7; RING = NSL * SLOT
CH = 17408
SYNC = 162560
LAND, PROG, MISC = SYNC, SYNC + 256, SYNC + 1024
PB = 2 * CH
QP = [SYNC - (4 - i) * PB for i in range(4)]
QC = [QP[2], QP[3], QP[1]]
CBX = QP[3]; CBW = CBX + 18432
HAND1 = 122880
OWN = 49152
EU = [12288 * i for i in (9, 10, 11, 12, 4, 5, 6, 11, 12)]
OU = [12288 * i for i in (2, 3, 9, 10, 0, 1, 7, 8, 4)]
WC = [(4 + n // 2) % 7 * SLOT + n % 2 * 8192 for n in range(12)] + [0, 8192, 86016, 94208]
WA, WB_, WD, WE = [0, 1, 2, 3], [4, 5, 6, 7], [8, 9, 10, 11], [12, 13, 14, 15]
NW = 8
LDS = 163840
O_OFF = 4096
PT_OFF = 24 << 20
FL_OFF = 40 << 20
CSC = struct.unpack("<I", struct.pack("<f", 1.4426950408889634 * 128 ** -0.5))[0]
THR = 0x4b800000
OOB = 0x80000000
MF = "v_mfma_f32_16x16x32_bf16"

def vr(b, n=4): return f"v[{b}:{b+n-1}]"
def ar(b, n=4): return f"a[{b}:{b+n-1}]"
def sr(b, n=4): return f"s[{b}:{b+n-1}]"

sWAVE = 3
sEB, sK, sV, sEA, sO, sOB, sPT, sOUT, sFL, sDB = 20, 24, 28, 32, 36, 40, 44, 48, 52, 56
(sT0, sT1, sT2, sT3, sT4, sOFF, sSL, sB, sIT, sCNT, sREDO, sROT, sCS, sKS, sPUB, sBUD, sKQ, sC, sBB, sWID,
 sP1, sP2, sP3, sP4) = range(60, 84)
sSTAMP = 84
sP5, sP6 = 100, 101
sS0, sS1, sS2, sS8 = sP1, sP2, sP3, sP4
sTGT = sPUB
sTK = 4
sAL, sLD, sRT, sPX = 6, 7, 8, 9
sRG, sR1 = sP5, sP6
sWO, sWM, sWS = sP1, sP2, sP3
sH = [sO, sO + 1, sO + 2, sO + 3]
sPF = sO
sXB, sXA = sDB, sDB + 2
sPO = sPUB
sG = [sO, sO + 1, sO + 2, sO + 3, sPUB]
sQD, sXM, sXS, sEX = sKS, sOFF, sB, sP1
vL16, vLA, vPA = 5, 6, 7
vPR, vLD, vRK, vRV0, vRV1, vRKb, vRV0b, vRV1b = 8, 9, 10, 11, 12, 13, 14, 15
vS, vNM, vONE, vMS = 16, 40, 52, 56
vTMP, vQ, vO, vL = 64, 80, 128, 224
vQB, vDXq = 24, 19
aK, aV, aQF = 0, 64, 128
vKV = 2
vPV, vPB, vDX, vDW, vW0, vW1, vXR, vSC, vFA, vFV = 8, 9, 10, 19, 23, 24, 25, 26, 28, 16
vXR1 = 14
vDW1, vEO = 48, 80
aB2 = 208
vHACC = 32; aHACC = 0; aHF = 72; vHT = 248
vTB, vTC = 236, 237
vE = 238
vF = (242, 243, 244)
vOW = 245
vW2 = 248
vPL = 232
vP2, vOUT = 10, 12
vBF, vSEL, vRC, vTA = (16, 32, 80), 96, 112, 160
aW = (128, 0)

def S(qt, kt=0): return vS + 8 * qt + 4 * kt
def Kf(p, kt, ks): return aK + 32 * p + 16 * kt + 4 * ks
def Vf(p, dt): return aV + 32 * p + 4 * dt
def Qf(qt, ks): return vQ + 16 * qt + 4 * ks
def Oa(qt, dt): return vO + 32 * qt + 4 * dt
PK = (vTMP, Oa(0, 0), Oa(0, 4))
def isvm(x): return x.startswith("buffer_")

class Gen:
    def __init__(self, opt):
        self.o = opt
        self.a = A()
        self.ool = []
        self.nlab = 0
        self.D = opt.get("d", 5)
        self.S0 = 41
        wp = [int(x) for x in str(opt.get("wp", 2221))]; n = 0; self.ride = {}; self.WB = []
        for G in range(4 * opt.get("wb", 41), 260):
            self.ride[G] = list(range(n, min(16 * NW, n + wp[G % len(wp)]))); n += len(self.ride[G])
            if n >= 16 * (len(self.WB) + 1): self.WB.append(max(G >> 2 | 1, self.WB[-1] + 2 if self.WB else 0))
        assert len(self.WB) == NW and self.WB[-1] <= 63, self.WB
        self.item = [j + sum(b < j for b in self.WB) for j in range(66)]; self.witem = [b + m + 1 for m, b in enumerate(self.WB)]
        self.slot = [i for lap in (7, 7, 7, 7, 7, 9, 9, 9, 7, 4) for i in range(lap)]
        self.need = [17 + max([t for t in range(i) if self.slot[t] == self.slot[i]] + [-17]) for i in range(73)]
        self.KS = opt.get("ks", 6)
        self.KG = opt.get("kg", 2)
        self.pol = self.P("pol", "nt")
        self.osc = self.P("osc", "sc1")
        self.olp = self.P("olpol", "sc1")
        self.B3 = opt.get("b3", 28)
        self.dry = False
        self.cnt = {}; self.inc = {}
    def P(self, k, d=""):
        v = self.o.get(k, d)
        return "" if v == "none" else v.replace("+", " ")
    STM = {"m": "start c0 q0 it0 it1 b3 p1 end", "t": "start it1 p1 b3 d0 mf p2 end", "q": "start karg iss bar c0 c8 q0 end", "u": "start it1 b1 b2 ack b3 p1 end",
           "g": "start g00 g03 g06 g10 g13 g16 end", "s": "start c15i G4 G8 G12 G16 G20 g00", "r": "start g06 G128 G136 G144 s0 it0 g10", "e": "start G260 l81 w4 pe it1 b1 y", "f": "start fin it1 p1 fs mf p2 end", "h": "start l81 wd w3 w4 w6 c15 pe", "j": "start b1 j10 j16 p1 d0 j58 mf", "i": "start b1 j22 pq pk pv p1 end", "w": "start b3 d0 d1 d3 d5 d7 mf",
           "c": "start c0 c1 c2 c3 c4 c6 c12", "p": "start G20 p00 p02 p04 p10 p13 g00", "o": "start s0 p00 p02 p04 p10 p13 g10"}
    def stamp(self, name):
        if self.o.get("sm") in ("k", "l"):
            nm = ("start g00 g06 g10" if self.o["sm"] == "k" else "start g10 g16 end").split()
            if name in nm and not self.dry:
                i = nm.index(name)
                self.a(f"s_memrealtime s[{sSTAMP+2*i}:{sSTAMP+2*i+1}]\ns_memtime s[{sSTAMP+8+2*i}:{sSTAMP+9+2*i}]")
            return
        names = self.STM[self.o.get("sm", "m")].split()
        if self.o.get("sm") == "g" and not self.inh: names = "start q0 it0 it1 b3 p1 mf end".split()
        if self.o.get("sm") == "s" and not self.inh: names = "start c0 c8 q0 k0 st0 it0 x".split()
        if self.o.get("sm") == "c" and not self.inh: names = "start c0 c2 c4 c8 c12 c16 q0".split()
        if self.o.get("sm") in ("p", "o") and not self.inh: names = "start q0 k0 st0 st1 it0 x y".split()
        if self.o.get("sm") == "r" and not self.inh: names = "start fin epi it0 st0 ofl st1 x".split()
        if self.o.get("sm") in ("e", "h") and not self.inh: names = "start fin it1 b1 ack pq p1 end".split()
        if name not in names: return
        i = names.index(name)
        if self.o.get("stamps") == 3 and not self.dry:
            self.a(f"s_sub_u32 s{sSTAMP+2*i}, {1 << 22}, s{sBUD}\ns_mov_b32 s{sSTAMP+2*i+1}, 0" if i else f"s_mov_b64 s[{sSTAMP}:{sSTAMP+1}], 0")
        elif self.o.get("stamps") and not self.dry:
            op = "s_memtime" if self.o.get("stamps") == 2 else "s_memrealtime"
            self.a(f"{op} s[{sSTAMP+2*i}:{sSTAMP+2*i+1}]")
    def stampl(self, name):
        sv = self.a; self.a = A(); self.stamp(name); L = [x.strip() for x in self.a.l]; self.a = sv
        return L
    def emit(self, L):
        if self.dry: return
        for x in L: self.a(x)
    def e(self, s):
        if not self.dry: self.a(s)
    def lab(self, p):
        self.nlab += 1
        return f"L_{p}{self.nlab}"
    def weave(self, mf, fills):
        L = list(fills.get(-1, []))
        for i, m in enumerate(mf):
            L.append(m); L += fills.get(i, [])
        self.emit(L)
    def spread(self, mf, items):
        if not mf:
            self.emit(items); return
        n = len(mf); f = {}
        for k, x in enumerate(items):
            f.setdefault(min(n - 1, k * n // max(1, len(items))), []).append(x)
        self.weave(mf, f)
    def srd(self, d, lo, off, nrec):
        return [f"s_add_u32 s{d}, s{lo}, {off}", f"s_addc_u32 s{d+1}, s{lo+1}, 0", f"s_and_b32 s{d+1}, s{d+1}, 0xffff",
                f"s_mov_b32 s{d+2}, {nrec}", f"s_mov_b32 s{d+3}, 0x00020000"]
    def dma(self, v, srd, soff, imm, pol=""):
        return " ".join(f"buffer_load_dwordx4 v{v}, {sr(srd)}, {'0' if soff is None else f's{soff}'} offen offset:{imm} {pol} lds".split())
    def budget(self, ret):
        return [f"s_sub_i32 s{sBUD}, s{sBUD}, 1", f"s_cmp_lt_i32 s{sBUD}, 0", f"s_cbranch_scc1 {ret}"]

    def prologue(self):
        a = self.a
        a(f"""s_cmp_ge_u32 s2, 256
        s_cbranch_scc1 L_end
        s_load_dwordx16 s[4:19], s[0:1], 0""")
        self.stamp("start")
        if self.o.get("cpf", 1):
            a(f"""s_getpc_b64 s[{sO}:{sO+1}]
            s_lshr_b32 s{sT0}, s2, 3
            s_and_b32 s{sO}, s{sO}, 0xffffff00
            s_and_b32 s{sO+1}, s{sO+1}, 0xffff
            s_mov_b32 s{sO+2}, L_end-{KN}
            s_mov_b32 s{sO+3}, 0x00020000
            s_mul_i32 s{sT0}, s{sT0}, {128 * self.o.get("cl", 18)}
            v_lshlrev_b32 v1, 7, v0
            v_cmp_gt_u32 vcc, {self.o.get("cl", 18)}, v0
            s_and_saveexec_b64 s[{sT2}:{sT2+1}], vcc
            s_cbranch_execz L_nopf
            buffer_load_dword v232, v1, {sr(sO)}, s{sT0} offen
L_nopf:
            s_mov_b64 exec, -1""")
        a(f"""v_lshrrev_b32 v2, 6, v0
        v_and_b32 v1, 63, v0
        s_bfe_u32 s{sT1}, s2, 0x30003
        v_readfirstlane_b32 s{sWAVE}, v2
        s_and_b32 s{sT0}, s2, 1
        s_lshl_b32 s{sT0}, s{sT0}, 3
        s_add_u32 s{sBB}, s{sT0}, s{sT1}          ; b
        s_lshr_b32 s{sC}, s2, 6                   ; c
        s_bfe_u32 s{sKQ}, s2, 0x20001             ; kq
        s_lshl_b32 s{sT1}, s{sT1}, 1
        s_lshl_b32 s{sT2}, s{sC}, 2
        s_add_u32 s{sROT}, s{sT1}, s{sT2}
        {f"s_mov_b32 s{sROT}, 0" if self.o.get("norot") else ""}
        s_lshl_b32 s{sT2}, s{sKQ}, 2
        s_add_u32 s{sT2}, s{sT2}, s{sC}           ; hp
        s_lshl_b32 s{sWID}, s{sBB}, 4
        s_add_u32 s{sWID}, s{sWID}, s{sT2}        ; b*16 + hp
        v_lshrrev_b32 v2, 4, v1                   ; g
        v_bfe_u32 v3, v1, 2, 2                    ; r
        v_and_b32 v4, 3, v1                       ; c
        s_mov_b32 s{sBUD}, {1 << 22}""")
        a(f"""v_lshrrev_b32 v30, 3, v1
        v_and_b32 v31, 7, v1
        v_xor_b32 v31, v31, v30
        v_lshlrev_b32 v31, 4, v31
        v_lshl_add_u32 v{vDW}, v30, 10, v31
        v_lshlrev_b32 v30, 13, v3
        v_lshl_add_u32 v30, v2, 6, v30
        v_xor_b32 v31, 2, v4
        v_lshl_add_u32 v31, v31, 4, v30
        v_lshl_add_u32 v30, v4, 4, v30
        s_mul_i32 s{sT0}, s{sBB}, 147456
        s_mul_i32 s{sT1}, s{sWAVE}, 49152
        s_add_u32 s{sT0}, s{sT0}, s{sT1}
        s_lshl_b32 s{sT2}, s{sT2}, 9
        s_mul_i32 s{sXM}, s{sWAVE}, 6144
        s_lshr_b32 s{sXS}, s{sROT}, 1
        s_cmp_ge_u32 s{sXS}, 7
        s_cselect_b32 s{sT1}, 6, -1
        s_sub_u32 s{sXS}, s{sXS}, s{sT1}            ; second pair 1 + ((b & 7) + 2c) % 7
        s_add_u32 m0, s{sXM}, {QC[0]}
        s_mov_b32 s{sT4}, 7168
        s_mov_b32 s{sEA+2}, 49152
        s_mov_b32 s{sT1}, 32768
        s_cmp_eq_u32 s{sWAVE}, 3
        s_cselect_b64 vcc, -1, 0
        s_cselect_b32 s{sT0}, s{sT2}, s{sT0}
        s_cselect_b32 s{sT4}, 31744, s{sT4}
        s_cselect_b32 s{sEA+2}, {4194304 - 7680}, s{sEA+2}
        s_cselect_b32 s{sT1}, 131072, s{sT1}
        v_cndmask_b32 v{vDW+1}, v{vDW}, v31, vcc
        v_cndmask_b32 v{vDW}, v{vDW}, v30, vcc
        s_mov_b32 s{sEA+3}, 0x00020000
        v_add_u32 v{vDW+1}, s{sT4}, v{vDW+1}
        s_lshl_b32 s{sT4}, s{sT4}, 1
        v_add_u32 v{vDW+2}, s{sT4}, v{vDW}
        v_add_u32 v{vDW+3}, s{sT4}, v{vDW+1}
        {f"s_mov_b32 s{sEA+2}, 0" if self.o.get("q0oob") else ""}
        s_cmp_eq_u32 s{sWAVE}, 3
        s_waitcnt lgkmcnt(0)
        s_cselect_b32 s{sEA}, s10, s4
        s_cselect_b32 s{sEA+1}, s11, s5
        s_add_u32 s{sEA}, s{sEA}, s{sT0}
        s_addc_u32 s{sEA+1}, s{sEA+1}, 0
        s_and_b32 s{sEA+1}, s{sEA+1}, 0xffff""")
        self.stamp("karg")
        for i in range(4): a(self.dma(vDW + i, sEA, None, i * 1024, self.P("cpol")))
        a(f"s_add_u32 m0, s{sXM}, {QC[0] + 4096}\ns_cmp_lg_u32 s{sWAVE}, 3")
        for i in range(2): a(self.dma(vDW + i, sEA, sT1, i * 1024, self.P("cpol")))
        a("s_cbranch_scc1 L_attn")

    def common_srds(self):
        L = self.srd(sFL, 18, FL_OFF, (257 if self.o.get("fb") else 256) * 8192) + self.srd(sPT, 18, PT_OFF, 256 * 49152)
        L += [f"s_lshl_b32 s{sT0}, s{sBB}, 2", f"s_add_u32 s{sT0}, s{sT0}, s{sKQ}", f"s_mul_i32 s{sT0}, s{sT0}, {8*36864}"]
        L += self.srd(sOB, 18, f"s{sT0}", 8 * 36864 + O_OFF)
        L += [f"s_mul_i32 s{sT0}, s{sBB}, 147456", f"s_lshl_b32 s{sT1}, s{sC}, 8", f"s_add_u32 s{sT0}, s{sT0}, s{sT1}"]
        L += self.srd(sOUT, 14, f"s{sT0}", 147456) + [f"s_sub_u32 s{sOUT+2}, s{sOUT+2}, s{sT1}"]
        L += [f"s_mov_b32 s{sIT}, 0", f"s_mov_b32 s{sREDO}, 0", f"s_mov_b32 s{sCS}, {CSC:#x}"]
        return L
    def wpat(self, t0, t1, w0, w1, base):
        return [f"v_lshrrev_b32 v{t0}, 4, v1", f"v_lshlrev_b32 v{t0}, 11, v{t0}", f"v_bfe_u32 v{t1}, v1, 2, 2", f"v_lshl_add_u32 v{t0}, v{t1}, 6, v{t0}",
                f"v_add_u32 v{t0}, {base}, v{t0}", f"v_and_b32 v{t1}, 3, v1", f"v_lshl_add_u32 v{w0}, v{t1}, 4, v{t0}",
                f"v_xor_b32 v{t1}, 2, v{t1}", f"v_lshl_add_u32 v{w1}, v{t1}, 4, v{t0}", f"v_add_u32 v{w1}, 1024, v{w1}"]
    def xpat(self, t0, t1, d0, d1, base):
        return [f"v_lshrrev_b32 v{t0}, 4, v1", f"v_and_b32 v{t1}, 7, v1", f"v_xor_b32 v{t0}, v{t0}, v{t1}", f"v_lshlrev_b32 v{t0}, 4, v{t0}",
                f"v_and_b32 v{t1}, 15, v1", f"v_lshl_add_u32 v{t0}, v{t1}, 7, v{t0}", f"v_xor_b32 v{t1}, 64, v{t0}",
                f"v_add_u32 v{d0}, {base}, v{t0}", f"v_add_u32 v{d1}, {base}, v{t1}"]
    def xsrc(self, t0, t1, d):
        return [f"v_lshrrev_b32 v{t0}, 3, v1", f"v_and_b32 v{t1}, 7, v1", f"v_xor_b32 v{t1}, v{t1}, v{t0}", f"v_lshlrev_b32 v{t1}, 4, v{t1}",
                f"v_lshl_add_u32 v{d}, v{t0}, 10, v{t1}"] + [f"v_add_u32 v{d+i}, {i*7168}, v{d}" for i in range(1, 4)]
    def opat(self):
        L = [f"s_lshl_b32 s{sT0}, s{sKQ}, 1"]
        for i in range(8):
            L += [f"s_add_u32 s{sT1}, s{sT0}, {i+2}", f"s_and_b32 s{sT1}, s{sT1}, 7", f"s_lshl_b32 s{sT1}, s{sT1}, 12",
                  f"s_add_u32 s{sT1}, s{sT1}, {O_OFF - (i&3)*1024}", f"v_add_u32 v{vDX+i}, s{sT1}, v{vL16}"]
        return L + [f"v_add_u32 v{vDX+8}, {O_OFF + 32768}, v{vL16}"]

    def await_(self, pre=True, emit=True, above=None):
        l = self.lab("sp")
        if above is not None:
            c = f"v_cmp_lt_u32 vcc, {above}, v{vLD}"
            self.ool += [f"{l}:"] + self.budget(l + "r") + [self.rdla, "s_waitcnt lgkmcnt(0)", c, f"s_cbranch_vccz {l}", f"s_branch {l}r"]
            if pre: self.a(f"{self.rdla}\ns_waitcnt lgkmcnt(0)")
            self.a(f"{c}\ns_cbranch_vccz {l}\n{l}r:")
            return
        self.ool += [f"{l}:"] + self.budget(l + "r") + ([f"s_sleep {self.o['slp']}"] if self.o.get("slp") else []) + [f"ds_read_b32 v{vLD}, v{vLA}", "s_waitcnt lgkmcnt(0)",
                     f"v_cmp_gt_u32 vcc, v{vLD}, v{vPR}", f"s_cbranch_vccz {l}", f"s_branch {l}r"]
        if pre: self.a(f"ds_read_b32 v{vLD}, v{vLA}\ns_waitcnt lgkmcnt(0)\nv_cmp_gt_u32 vcc, v{vLD}, v{vPR}")
        if not emit: return [f"s_cbranch_vccz {l}", f"{l}r:"]
        self.a(f"s_cbranch_vccz {l}\n{l}r:")
    def nextslot(self):
        return [f"s_add_u32 s{sSL}, s{sSL}, {SLOT}", f"s_cmp_eq_u32 s{sSL}, {RING if self.inh else f's{sRG}'}", f"s_cselect_b32 s{sSL}, 0, s{sSL}"]
    def slotregs(self):
        return [f"v_add_u32 v{vRK}, s{sSL}, v{vRKb}", f"v_add_u32 v{vRV0}, s{sSL}, v{vRV0b}", f"v_add_u32 v{vRV1}, s{sSL}, v{vRV1b}"]
    def kreads(self, p):
        return [f"ds_read_b128 {ar(Kf(p,kt,ks))}, v{vRK} offset:{kt*4096+ks*256}" for kt in range(2) for ks in range(4)]
    def vreads(self, p):
        return [f"ds_read_b64_tr_b16 {ar(Vf(p,dt)+2*h,2)}, v{vRV0 if dt%2==0 else vRV1} offset:{(dt>>1)*256+h*4096}"
                for dt in range(8) for h in range(2)]
    def qk(self, qt, p, raw=False):
        L = []
        for kt in range(2):
            for ks in range(4):
                d = vr(S(qt, kt))
                c = d if ks else ("0" if raw else vr(vNM + 4 * qt))
                L.append(f"{MF} {d}, {ar(Kf(p,kt,ks))}, {vr(Qf(qt,ks))}, {c}")
        return L
    def pv(self, qt, p, first=False):
        L = []
        for dt in range(8):
            d = vr(Oa(qt, dt))
            L.append(f"{MF} {d}, {ar(Vf(p,dt))}, {vr(S(qt))}, {'0' if first else d}")
        d = vr(vL + 4 * qt)
        ls = self.o.get("ls", 0)
        if ls == 1: L.append(f"v_mfma_f32_4x4x4_16b_bf16 {d}, {vr(vONE,2)}, {vr(S(qt),2)}, {'0' if first else d}\nv_mfma_f32_4x4x4_16b_bf16 {d}, {vr(vONE,2)}, {vr(S(qt)+2,2)}, {d}")
        elif ls == 2 and not first: L.append("")
        else: L.append(f"{MF} {d}, {vr(vONE)}, {vr(S(qt))}, {'0' if first else d}" if not self.o.get("nol") or first else "s_nop 0")
        return L
    def ex(self, qt, i): return f"v_exp_f32 v{S(qt)+i}, v{S(qt)+i}"
    def cv(self, qt, i): return f"v_cvt_pk_bf16_f32 v{S(qt)+i}, v{S(qt)+2*i}, v{S(qt)+2*i+1}"
    incpr = f"v_add_u32 v{vPR}, 1, v{vPR}"
    wrpr = f"ds_write_b32 v{vPA}, v{vPR}"
    rdla = f"ds_read_b32 v{vLD}, v{vLA}"
    cmpla = f"v_cmp_gt_u32 vcc, v{vLD}, v{vPR}"

    def stage(self, p, first=False, tail=[], tail2=[]):
        self.await_(pre=False)
        mf = self.pv(0, p, first) + self.qk(0, p) + self.pv(1, p, first) + self.qk(1, p) + self.pv(2, p, first) + self.qk(2, p)
        f = {i: [] for i in range(51)}
        ki = iter(self.kreads(1 - p)); vi = iter(self.vreads(1 - p))
        for seg, qt in enumerate((2, 0, 1)):
            for i in range(8): f[17 * seg + 2 * i].append(self.ex(qt, i))
        for seg in range(2):
            for g in (3, 7, 11, 15): f[17 * seg + g].append(next(ki))
        for g in (1, 5, 9, 13, 18, 22, 26, 30): f[g] += [next(vi), next(vi)]
        for seg, qt in enumerate((2, 0, 1)):
            for i in range(4): f[17 * seg + 4 * i + 3].append(self.cv(qt, i))
        if self.o.get("ls") == 2:
            for seg, qt in enumerate((2, 0, 1)):
                for i, g in enumerate((1, 5, 8, 8, 9, 13, 13, 16)): f[17 * seg + g].append(f"v_add_f32 v{vL+4*qt+(i&1)}, v{S(qt)+i}, v{vL+4*qt+(i&1)}")
        ns = self.nextslot(); sr_ = self.slotregs()
        f[16] += [self.incpr]
        f[33] += [self.wrpr]
        f[35] += ns[:2]
        f[39] += [ns[2], sr_[0]]
        f[41] += [sr_[1]]
        f[43] += [self.rdla, sr_[2]]
        f[47] += tail
        f[49] += tail2
        if self.o.get("slow"): f[25] += [f"s_sleep {self.o['slow']}"]
        f[50] += ["s_waitcnt lgkmcnt(0)", self.cmpla]
        na = self.o.get("noatt", 0)
        if na & 1: mf = ["s_nop 0"] * 51
        if na & 2: f = {i: [x for x in L if not x.startswith(("v_exp", "v_cvt"))] for i, L in f.items()}
        if na & 4: f = {i: [x for x in L if not x.startswith(("ds_read_b128", "ds_read_b64"))] for i, L in f.items()}
        self.weave(mf, f)

    def xmax(self, v, t):
        self.a(f"""v_mov_b32 v{t}, v{v}
        s_nop 1
        v_permlane16_swap_b32 v{v}, v{t}
        v_max_f32 v{v}, v{v}, v{t}
        v_mov_b32 v{t}, v{v}
        s_nop 1
        v_permlane32_swap_b32 v{v}, v{t}
        v_max_f32 v{v}, v{v}, v{t}""")

    def stage0(self):
        a = self.a
        mf = self.qk(0, 0, True) + self.qk(1, 0, True) + self.qk(2, 0, True)
        self.spread(mf, self.kreads(1) + self.vreads(1))
        self.emit([self.incpr, self.wrpr] + self.nextslot() + self.slotregs())
        for qt in range(3):
            s = S(qt); m = 59 + qt
            a(f"""v_max3_f32 v{m}, v{s}, v{s+1}, v{vMS+qt}
            v_max3_f32 v{m}, v{s+2}, v{s+3}, v{m}
            v_max3_f32 v{m}, v{s+4}, v{s+5}, v{m}
            v_max3_f32 v{m}, v{s+6}, v{s+7}, v{m}""")
            self.xmax(m, 62)
            for i in range(4): a(f"v_sub_f32 v{vNM+4*qt+i}, 0, v{m}")
            for i in range(8): a(f"v_sub_f32 v{s+i}, v{s+i}, v{m}")
        for qt in range(2):
            for i in range(8): a(self.ex(qt, i))
            a(self.rdla if qt else "s_nop 0")
            for i in range(4): a(self.cv(qt, i))

    def oflag(self, rnd, wait="s_waitcnt vmcnt(0)", sT0=sT0, sT1=sT1):
        return [x.strip() for x in f"""s_and_b32 s{sT0}, s{sWID}, 0xfc
        s_lshl_b32 s{sT0}, s{sT0}, 13
        s_lshl_b32 s{sT1}, s{sC}, 2
        s_add_u32 s{sT1}, s{sT1}, s{sWAVE}
        s_lshl_b32 s{sT1}, s{sT1}, 7
        s_add_u32 s{sT0}, s{sT0}, s{sT1}
        s_add_u32 s{sT0}, s{sT0}, {2048*rnd}
        v_lshlrev_b32 v4, 13, v1
        v_mov_b32 v60, s{sTK}
        v_mov_b32 v61, s{sTK+1}
        {wait}
        s_mov_b64 exec, 15
        buffer_store_dwordx2 v[60:61], v4, {sr(sFL)}, s{sT0} offen {self.P("fsc", "sc1")}
        s_mov_b64 exec, -1""".split("\n")]

    def final(self, it):
        a = self.a
        mf = self.pv(0, 0) + self.pv(1, 0) + self.pv(2, 0)
        f = {i: [] for i in range(27)}
        for i in range(8): f[i].append(self.ex(2, i))
        for i in range(4): f[9 + i].append(self.cv(2, i))
        X = [f"s_mul_i32 s{sT2}, s{sWAVE}, 12288", f"s_mov_b32 s{sT0}, {THR:#x}"]
        for g, x in zip((19, 21, 23, 25), [f"v_rcp_f32 v60, v{vL}", "v_mov_b32 v61, v60", f"v_rcp_f32 v62, v{vL+4}", "v_mov_b32 v63, v62"]): f[g].append(x)
        if it == 0:
            X += [f"s_lshl_b32 s{sT1}, s{sWAVE}, 2", f"s_add_u32 s{sT1}, s{sT1}, {MISC}", f"v_mov_b32 v4, s{sT1}",
                  "v_and_b32 v3, 3, v1", "v_min_u32 v3, 2, v3", "v_lshlrev_b32 v3, 2, v3", f"v_add_u32 v3, {MISC}, v3"]
        else:
            g = self.o.get("fa", 8)
            f[0].append(self.rdla); f[g - 1] += ["s_waitcnt lgkmcnt(0)", self.cmpla]; f[g] += self.await_(pre=False, emit=False)
            f[4] += X[:1]; f[5] += X[1:]; f[6] += [f"s_add_u32 s{sT2}, s{sT2}, 36864"]
            X = self.pulls(WA) + [self.incpr, self.wrpr]
        for g in range(8 if it == 0 else g + 1, 27):
            while X and len(f[g]) + any("v_rcp" in x for x in f[g]) < 2: f[g].append(X.pop(0))
        assert it or not X
        self.rest = X
        self.weave(mf, f)
        a(f"""v_add_f32 v59, v{vL}, v{vL+4}
        s_mov_b32 s{sT4}, 1""")
    def lcheck(self, n):
        self.a(f"""v_add_f32 v59, v59, v{vL+8}
        v_cmp_nge_f32 vcc, s{sT0}, v59
        s_cmp_lg_u32 s{sREDO}, 0
        s_cbranch_scc1 L_noflag{n}
        s_cmp_eq_u64 vcc, 0
        s_cselect_b32 s{sT4}, 1, {1 if self.o.get("noatt") else 2}
L_noflag{n}:
        v_mov_b32 v2, s{sT4}""")
    def pack(self, qt, dst, after=lambda ks: []):
        r = (60, 62, 60)[qt]; L = []
        if qt == 2: L += [f"v_rcp_f32 v60, v{vL+8}", "s_nop 0", "v_mov_b32 v61, v60"]
        for ks in range(4):
            b = Oa(qt, 2 * ks)
            L += [f"v_pk_mul_f32 v[{b+2*i}:{b+2*i+1}], v[{b+2*i}:{b+2*i+1}], v[{r}:{r+1}]" for i in range(4)]
            L += [f"v_cvt_pk_bf16_f32 v{dst+4*ks+i}, v{b+2*i}, v{b+2*i+1}" for i in range(4)] + after(ks)
        return L

    def attention(self):
        a = self.a
        a("L_attn:")
        a(f"s_lshl_b32 s{sXS}, s{sXS}, 7")
        xadv = [f"s_add_u32 s{sXS}, s{sXS}, 128", f"s_cmp_eq_u32 s{sXS}, 1024", f"s_cselect_b32 s{sXS}, 128, s{sXS}"]
        xd = [self.dma(vDXq + i, sEA, sXS, i * 1024, self.P("cpol")) for i in range(4)] + [self.dma(vDXq + i, sEA, sT1, i * 1024, self.P("cpol")) for i in range(2)]
        a(f"""v_lshlrev_b32 v{vL16}, 4, v1
        s_add_u32 s{sT0}, s{sXM}, {QP[1]}""")
        self.emit(self.xpat(59, 60, vQB, vQB + 1, f"s{sT0}") + self.wpat(59, 60, vQB + 2, vQB + 3, QP[1] + 18432))
        for i in range(4): a(f"v_add_u32 v{vQB+4+i}, {2*PB}, v{vQB+i}")
        a(f"""s_lshl_b32 s{sT0}, s{sWAVE}, 8
        s_add_u32 s{sT0}, s{sT0}, {PROG}
        v_lshl_add_u32 v{vPA}, v1, 2, s{sT0}
        v_mov_b32 v{vLA}, {LAND}
        v_mov_b32 v{vPR}, 0""")
        X1 = [f"s_add_u32 m0, s{sXM}, {QC[1]}", f"s_add_u32 s{sT1}, s{sXS}, 32768"] + xd[:4] + [f"s_add_u32 m0, s{sXM}, {QC[1] + 4096}", xadv[0]] + xd[4:] + xadv[1:]
        x1at = self.o.get("x1at", 2)
        if x1at == 1: self.emit(X1)
        self.emit(self.common_srds())
        a(f"s_mul_i32 s{sT0}, s{sWID}, 73728\ns_add_u32 s{sT0}, s{sT0}, {O_OFF}")
        self.emit(self.srd(sO, 18, f"s{sT0}", 73728) + self.srd(sDB, 16, 0, 256))
        a(f"""v_and_b32 v59, 1, v3
        v_lshlrev_b32 v59, 1, v59
        v_xor_b32 v59, v59, v2
        v_lshlrev_b32 v59, 4, v59
        v_lshl_add_u32 v{vRKb}, v3, 10, v59
        v_lshl_add_u32 v{vRKb}, v4, 6, v{vRKb}
        v_lshlrev_b32 v59, 10, v2
        v_lshl_add_u32 v59, v3, 6, v59
        v_lshl_add_u32 v59, v4, 3, v59
        v_add_u32 v59, 8192, v59
        v_and_b32 v60, 1, v2
        v_lshl_add_u32 v{vRV0b}, v60, 5, v59
        v_xor_b32 v60, 1, v60
        v_lshl_add_u32 v{vRV1b}, v60, 5, v59
        v_mov_b32 v{vONE}, 0x3f803f80
        v_mov_b32 v{vONE+1}, 0x3f803f80
        v_mov_b32 v{vONE+2}, 0x3f803f80
        v_mov_b32 v{vONE+3}, 0x3f803f80
        v_mov_b32 v{vMS}, 0xff800000
        v_mov_b32 v{vMS+1}, 0xff800000
        v_mov_b32 v{vMS+2}, 0xff800000
        v_mov_b32 v62, s{sCS}
        v_mov_b32 v63, s{sCS}
        s_mov_b32 s{sSL}, 0
        s_or_b32 s{sT0}, s2, s{sWAVE}
        s_cselect_b32 s{sTGT}, 64, 0
        s_mov_b32 s{sRG}, {RING}
        s_mov_b32 s{sR1}, {RING}""")
        self.emit(self.slotregs())
        self.stamp("iss")
        a("s_barrier")
        self.stamp("bar")
        if x1at == 2: self.emit(X1)
        self.emit(self.tail_wregs() + self.tail_src() + self.tail_own())
        def qreads(k):
            q = QC[(k >> 1) % 3]; r = 0 if q < QP[3] else 4; ox = q - (QP[3] if r else QP[1])
            o = ox + (k & 1) * 8192; F = aQF + 44 * (k & 1); L = []
            for t in range(8):
                L.append(f"ds_read_b64_tr_b16 {ar(F+4*t,2)}, v{vQB+r+2} offset:{o+(t>>1)*256+8*(t&1)}")
                L.append(f"ds_read_b64_tr_b16 {ar(F+4*t+2,2)}, v{vQB+r+3} offset:{o+(t>>1)*256+8*(t&1)}")
            return L[:2] + [f"ds_read_b128 {ar(F+32+4*qt)}, v{vQB+r+(k&1)} offset:{ox+qt*2048}" for qt in range(3)] + L[2:]
        def qmf(k):
            F = aQF + 44 * (k & 1)
            return [f"{MF} {vr(Oa(qt,t))}, {ar(F+4*t)}, {ar(F+32+4*qt)}, {vr(Oa(qt,t)) if k else 0}" for t in range(8) for qt in range(3)] if k >= 0 else []
        XL = self.o.get("xl", 1); xs = {k: [] for k in range(16)}
        for p in range(2, 8):
            for i in range(6): xs[max(0, 2 * (p - 2) + (i // 3 if XL < 2 else 0) - min(XL, 1))].append((p, i))
        order = [(1, i) for i in range(6)]
        a(f"{self.rdla}\ns_waitcnt vmcnt(6) lgkmcnt(0)\n{self.cmpla}")
        self.await_(pre=False)
        qa = self.o.get("q0a", 0)
        for k in range(16):
            self.stamp(f"c{k}")
            R = qreads(k); f = {i: [] for i in range(24)}
            for g, n in ((0, 2), (1, 2), (2, 2), (3, 1), (4, 1), (5, 1), (6, 1), (7, 1), (8, 1), (10, 2), (11, 1), (12, 1), (14, 2), (15, 1)):
                f[g] += [R.pop(0) for _ in range(n)]
            f[15].append(self.incpr); f[16] += [self.wrpr]; f[12].append(self.rdla)
            if any(p == (k >> 1) + 3 for p, i in xs[k]): f[8].append("s_waitcnt lgkmcnt(7)")
            dg = [9, 13, 17, 18, 19, 21]; sg = [3, 4, 5, 6, 7]
            for n, (p, i) in enumerate(xs[k]):
                g = dg[n]; pre = []
                if i == 0: pre = [f"s_add_u32 m0, s{sXM}, {QC[p % 3]}", f"s_add_u32 s{sT1}, s{sXS}, 32768"]
                if i == 4:
                    pre = [f"s_add_u32 m0, s{sXM}, {QC[p % 3] + 4096}"]
                    if len(xs[k]) > 3: f[23] += xadv
                    else: f[18] += xadv[:1]; f[19] += xadv[1:]
                while pre:
                    if n == 0: f[sg.pop(0)].append(pre.pop(0))
                    else: f[dg[n-1] if dg[n-1] + 1 == g else g - 2 if len(f[g-2]) < 2 else g - 1].append(pre.pop(0))
                f[g].append(xd[i]); order.append((p, i))
            vm = ""
            if k & 1 and k < 15:
                last = max(n for n, (p, i) in enumerate(order) if p == (k >> 1) + 1)
                vm = f"vmcnt({len(order) - 1 - last}) "
            f[20] += [f"s_waitcnt {vm}lgkmcnt(1)", self.cmpla]
            f[22] += self.await_(pre=False, emit=False)
            if qa & 2: f = {i: [x for x in L if "_tr_" not in x] for i, L in f.items()}
            if qa & 4: f = {i: [x for x in L if "ds_read_b128" not in x] for i, L in f.items()}
            if qa & 8: f = {i: [x for x in L if "buffer_" not in x] for i, L in f.items()}
            if k: self.weave(qmf(k - 1) if not qa & 1 else ["s_nop 0"] * 24, f)
            else: self.emit(self.flat([f[i] for i in range(24)]))
        self.stamp("c16")
        C = []
        for ks in range(4):
            for qt in range(3):
                b = Oa(qt, 2 * ks)
                C += [f"v_pk_mul_f32 v[{b+2*i}:{b+2*i+1}], v[{b+2*i}:{b+2*i+1}], v[62:63]" for i in range(4)]
                C += [f"v_cvt_pk_bf16_f32 v{Qf(qt,ks)+i}, v{b+2*i}, v{b+2*i+1}" for i in range(4)]
        K0 = self.kreads(0) + [self.incpr, self.wrpr] + self.nextslot() + self.slotregs() + [self.rdla]
        f = {}
        for g in range(24):
            f[g] = [K0.pop(0) for _ in range(2) if K0]
        self.weave(qmf(15), f)
        self.emit(C)
        self.stamp("q0")
        a(f"s_waitcnt lgkmcnt(0)\n{self.cmpla}")
        self.await_(pre=False)
        self.stamp("k0")
        a("L_item:")
        self.stage0()
        self.cstamp("st0", 0 if self.o.get("sm") in ("s", "c", "p") else 1)
        a(f"s_waitcnt lgkmcnt(0)\n{self.cmpla}")
        self.stage(1, first=True, tail=[f"s_mov_b32 s{sCNT}, 0", f"s_mov_b32 s{sRG}, s{sR1}"])
        self.cstamp("st1", 0 if self.o.get("sm") == "p" else 1)
        a(".p2align 3\nL_loop:")
        self.ool += f"""L_init:
        v_mov_b32 v4, 0
        s_cmp_lg_u32 s{sIT}, 0
        s_cbranch_scc1 L_pub0
        s_bitcmp1_b32 s{sTGT}, 5
        s_cbranch_scc1 L_init2
        s_add_u32 s{sTGT}, s{sTGT}, 33
        buffer_load_dwordx2 v[2:3], v4, {sr(sOB)}, 0 offen sc1
        s_branch L_initr
L_init2:
        s_mov_b32 s{sTGT}, 64
        {f"v_lshlrev_b32 v59, 7, v1" if self.o.get("fb") else ""}
        {f"s_mov_b32 s{sT0}, {2 << 20}" if self.o.get("fb") else ""}
        {f"buffer_store_dword v4, v59, {sr(sFL)}, s{sT0} offen sc1" if self.o.get("fb") else ""}
        s_waitcnt vmcnt(0)
        v_add_u32 v2, 1, v2
        v_or_b32 v3, 1, v3
        s_mov_b64 exec, 1
        buffer_store_dwordx2 v[2:3], v4, {sr(sOB)}, 0 offen sc1
        buffer_store_dwordx2 v[2:3], v4, {sr(sDB)}, 0 offen sc1
        s_mov_b64 exec, -1
        s_branch L_initr
L_pub0:
        v_add_u32 v250, s{sSL}, v252
        v_add_u32 v251, s{sSL}, v253
        s_waitcnt lgkmcnt(0)
L_wsp:
        {self.cmpla}
        s_cbranch_vccnz L_wa""".split("\n") + self.budget("L_wa") + [self.rdla, "s_waitcnt lgkmcnt(0)", "s_branch L_wsp"] + self.wdisp("L_wa") + \
            [self.incpr, self.wrpr] + self.nextslot() + self.slotregs() + [self.rdla, "s_branch L_initr"]
        self.stage(0, tail=[f"s_xor_b32 s{sT0}, s{sCNT}, s{sTGT}", f"s_and_b32 s{sT0}, s{sT0}, 0x5f"], tail2=["s_cbranch_scc0 L_init", "L_initr:"])
        self.stage(1, tail=[f"s_add_u32 s{sCNT}, s{sCNT}, 1", f"s_cmp_lt_u32 s{sCNT}, 15"])
        a("s_cbranch_scc1 L_loop")
        self.cstamp("fin", 1 if self.o.get("sm") in ("e", "f", "h") else 0)
        a(f"s_cmp_lg_u32 s{sIT}, 0\ns_cbranch_scc1 L_last")
        self.final(0)
        dst = PK
        self.emit(self.pack(0, dst[0]))
        self.lcheck(0)
        self.emit(["ds_write_b32 v4, v2"] + self.pack(1, dst[1]) + [self.rdla, "ds_read_b32 v2, v3"] + self.pack(2, dst[2]))
        self.cstamp("epi", 0)
        a(f"""s_add_u32 s{sT0}, s{sT2}, {HAND1}
        v_add_u32 v4, s{sT0}, v{vL16}
        s_waitcnt lgkmcnt(0)
        {self.cmpla}""")
        self.await_(pre=False)
        a("s_branch L_done1\nL_done:")
        self.emit(self.budget("L_doneok"))
        a(f"""ds_read_b32 v2, v3
        s_waitcnt lgkmcnt(0)
L_done1:
        v_cmp_eq_u32 vcc, 0, v2
        s_cbranch_vccnz L_done
L_doneok:
        v_cmp_eq_u32 vcc, 2, v2
        s_cbranch_vccnz L_redo""")
        self.stamp("it0")
        for qt in range(3):
            for ks in range(4): a(f"ds_read_b128 {vr(Qf(qt,ks))}, v4 offset:{(qt*4+ks)*1024}")
        X = [f"s_mov_b32 s{sIT}, 1", f"s_mov_b32 s{sREDO}, 0", f"s_mov_b32 s{sTGT}, {(self.WB[0] - 35) // 2}", f"s_mov_b32 s{sR1}, {9 * SLOT}"] + [f"v_mov_b32 v{vMS+i}, 0xff800000" for i in range(3)] + self.wo_srd()
        HW = [f"ds_write_b128 v4, {vr(dst[qt]+4*ks)} offset:{(qt*4+ks)*1024}" for qt in range(3) for ks in range(4)]
        if self.o.get("ae"):
            a(f"s_mov_b32 s{sT4}, s{sT2}")
            for n in range(12): HW[n] += f"\nbuffer_store_dwordx4 {vr(dst[n >> 2]+4*(n & 3))}, v{vL16}, {sr(sO)}, s{sT4} offen offset:{(n & 3)*1024} {self.P('esc', 'sc1')}" + (f"\ns_add_u32 s{sT4}, s{sT4}, 4096" if n in (3, 7) else "")
            W = self.wo_srd(); X = X[:-len(W)]
        self.spread(HW, X)
        if self.o.get("ae"): self.emit(W)
        a(f"""s_waitcnt lgkmcnt(0)
        s_branch L_item
L_last:""")
        self.final(1)
        st = lambda qt: lambda ks: [f"buffer_store_dwordx4 {vr(dst[qt]+4*ks)}, v{vL16}, {sr(sO)}, s{sT2} offen offset:{ks*1024} {self.osc}"]
        assert not self.rest
        self.emit([self.rdla] + self.pack(0, dst[0], st(0)) + [f"s_add_u32 s{sT2}, s{sT2}, 4096"])
        self.lcheck(1)
        wb = self.o.get("pb2", 1); ow = self.o.get("ow", 1)
        OW = [f"ds_write_b128 v{vOW+qt}, {vr(PK[qt]+4*ks)} offset:{OWN + ks*1024}" for qt in range(3) for ks in range(4)]
        for qt in (1, 2):
            n = 0 if qt < wb or not ow else 1 if qt > wb else qt + 1
            P = self.pack(qt, dst[qt], lambda ks: st(qt)(ks) + [OW.pop(0) for _ in range(n)])
            if qt == wb:
                a(f"s_waitcnt lgkmcnt(0)\n{self.cmpla}")
                self.await_(pre=False)
                self.spread(P[:30], self.pulls(WB_) + [self.incpr]); P = P[30:]
            self.emit(P + ([f"s_add_u32 s{sT2}, s{sT2}, 4096"] if qt == 1 else []) + ([self.rdla] if qt == 1 and wb == 2 else []))
        self.stamp("it1")
        a(f"""v_mov_b32 v3, {MISC+16}
        s_cmp_eq_u32 s{sT4}, 1
        s_cbranch_scc1 L_ok1
        ds_write_b32 v3, v2
L_ok1:""")
        self.emit(["ds_read_b64 v[2:3], v3 offset:16", f"v_mov_b32 v{vPL}, {OOB:#x}"] + self.rd(0) + self.rd(1) + OW)
        self.b1("L_redo")
        a(f"v_readfirstlane_b32 s{sTK}, v2\nv_readfirstlane_b32 s{sTK+1}, v3\ns_branch L_tail")
        a(f"""L_redo:
        s_waitcnt vmcnt(0)
        s_barrier
        v_mov_b32 v2, 0
        v_lshlrev_b32 v3, 2, v1
        v_add_u32 v3, {MISC}, v3
        ds_write_b32 v3, v2
        s_mul_i32 s{sT0}, s{sIT}, {32 + NW}
        s_add_u32 s{sT0}, s{sT0}, 16
        v_mov_b32 v{vPR}, s{sT0}
        v_mov_b32 v{vRK}, v{vRKb}
        {self.wrpr}
        s_mov_b32 s{sCNT}, 0
        s_mov_b32 s{sREDO}, 1
        s_mov_b32 s{sRG}, {RING}
        s_mov_b32 s{sR1}, {RING}
        v_mov_b32 v{vMS}, 0xff800000
        v_mov_b32 v{vMS+1}, 0xff800000
        v_mov_b32 v{vMS+2}, 0xff800000
L_mloop:
        s_barrier""")
        self.emit(self.kreads(0))
        a("s_waitcnt lgkmcnt(0)\ns_barrier")
        self.emit(self.qk(0, 0, True) + self.qk(1, 0, True) + self.qk(2, 0, True))
        a("s_nop 7")
        for qt in range(3):
            s = S(qt); m = vMS + qt
            for i in range(4): a(f"v_max3_f32 v{m}, v{s+2*i}, v{s+2*i+1}, v{m}")
        a(f"""s_add_u32 s{sCNT}, s{sCNT}, 1
        s_cmp_lt_u32 s{sCNT}, 32
        s_cbranch_scc1 L_mloop
        s_mul_i32 s{sSL}, s{sIT}, {6 * SLOT}""")
        self.emit(self.slotregs())
        self.await_()
        self.emit(self.kreads(0) + [self.incpr, self.wrpr] + self.nextslot() + self.slotregs())
        self.await_()
        a("s_branch L_item")
    def cstamp(self, name, it):
        if self.o.get("stamps"):
            l = self.lab("cs")
            self.a(f"s_cmp_lg_u32 s{sIT}, {it}\ns_cbranch_scc1 {l}")
            self.stamp(name)
            self.a(l + ":")
    def stampq(self):
        if self.o.get("stamps"):
            self.a(f"s_cmp_lg_u32 s{sCNT}, 1\ns_cbranch_scc1 L_nost1")
            self.stamp("c2")
            self.a(f"L_nost1:\ns_cmp_lg_u32 s{sCNT}, 4\ns_cbranch_scc1 L_nost2")
            self.stamp("c8")
            self.a(f"L_nost2:\ns_cmp_lg_u32 s{sCNT}, 2\ns_cbranch_scc1 L_nost3")
            self.stamp("c4")
            self.a(f"L_nost3:\ns_cmp_lg_u32 s{sCNT}, 6\ns_cbranch_scc1 L_nost4")
            self.stamp("c12")
            self.a("L_nost4:")
    def b1(self, lab):
        self.a(f"""s_waitcnt lgkmcnt(0)
        s_barrier
        v_mov_b32 v4, {MISC+16}
        ds_read_b32 v4, v4
        s_waitcnt lgkmcnt(0)
        v_cmp_ne_u32 vcc, 0, v4
        s_cbranch_vccnz {lab}""")
        self.stamp("b1")

    def q_push(self, L, tag):
        self.q += [tag] * sum(map(isvm, L))
        return L
    def q_wait(self, loc, tag, part=0):
        if self.dry:
            idx = [i for i, t in enumerate(self.q) if (t in tag if isinstance(tag, list) else t == tag)]
            n = len(self.q) - 1 - idx[-1] if idx else 63
            if part:
                idx = [i for i, t in enumerate(self.q) if t == ("g", tag[1] + 1)]
                n = len(self.q) - 1 - idx[part - 1]
            self.cnt[loc] = min(self.cnt.get(loc, 63), n)
            return []
        return [f"s_waitcnt vmcnt({self.cnt[loc]})"]
    def pub_abs(self, val):
        self.pub = val
        return [f"v_mov_b32 v{vPB}, {val}", f"ds_write_b32 v{vLA}, v{vPB}"]
    def hpull(self, m):
        return [f"v_add_u32 v{250+i}, {self.slot[self.witem[m]] * SLOT}, v{252+i}" for i in range(2)] + self.wpull(m)
    def pub_inc(self, val, n=1):
        if self.dry: assert self.pub is None or val - self.pub == n, (val, self.pub)
        self.pub = val
        if not self.o.get("gate", 1): return [f"s_add_u32 s{sLD}, s{sLD}, {n}", f"v_mov_b32 v{vPB}, s{sLD}", f"ds_write_b32 v{vLA}, v{vPB}"]
        return [f"v_readfirstlane_b32 s{sPX}, v{vPV}", f"s_add_u32 s{sLD}, s{sLD}, {n}", f"s_lshl4_add_u32 s{sPX}, s{sPX}, {self.o.get('clip', 32)}",
                f"s_min_u32 s{sAL}, s{sAL}, s{sPX}", f"s_add_u32 s{sAL}, s{sAL}, s{sRT}"] + ([f"s_add_u32 s{sAL}, s{sAL}, 16"] if n > 1 else []) + \
               [f"s_lshr_b32 s{sPX}, s{sAL}, 4", f"s_min_u32 s{sPX}, s{sPX}, s{sLD}", f"v_mov_b32 v{vPB}, s{sPX}", f"ds_write_b32 v{vLA}, v{vPB}"]
    rdpr = f"ds_read_b32 v{vPV}, v{vPA}"
    def pcheck(self, need, redo=False, rel=False):
        if self.dry:
            assert not rel or need <= self.pub, (need, self.pub)
            return []
        l = self.lab("pc")
        o = [f"{l}:"] + self.budget(l + "r")
        if rel and self.o.get("gate", 1): o += [f"s_max_u32 s{sAL}, s{sAL}, {16*need}", f"v_max_u32 v{vPB}, {need}, v{vPB}", f"ds_write_b32 v{vLA}, v{vPB}"]
        if redo: o += [f"v_and_b32 v30, 3, v1", f"v_lshlrev_b32 v30, 2, v30", f"v_add_u32 v30, {MISC}, v30", "ds_read_b32 v30, v30"]
        o += [self.rdpr, "s_waitcnt lgkmcnt(0)"]
        if redo: o += ["v_cmp_eq_u32 vcc, 2, v30", "s_cbranch_vccnz L_hredo"]
        o += [f"v_cmp_gt_u32 vcc, {need}, v{vPV}", f"s_cbranch_vccnz {l}", f"s_branch {l}r"]
        self.ool += o
        return ["s_waitcnt lgkmcnt(0)", f"v_cmp_gt_u32 vcc, {need}, v{vPV}", f"s_cbranch_vccnz {l}", f"{l}r:"]
    def kv_m0(self, j): return f"s_add_u32 m0, s{sSL}, {j*4096}"
    def kv_so(self, j): return f"s_add_u32 s{sT0}, s{sOFF}, {j*4096}" if j < 2 else f"s_sub_u32 s{sT0}, s{sOFF}, {16384 - j*4096}"
    def kv_d(self, j): return [self.dma(vKV + (i & 1), sK if j < 2 else sV, sT0, i * 1024, self.pol) for i in range(4)]
    def w_cg(self, G):
        L = []
        for n in self.ride.get(G, []):
            m, j, i = n >> 4, n >> 2 & 3, n & 3
            if not n & 15: L += [self.rdpr] + self.pcheck(self.need[self.witem[m]], rel=True)
            if not L or not i: L += [f"s_mov_b32 m0, {self.slot[self.witem[m]] * SLOT + j*4096}"]
            if not i: L += [f"s_add_u32 s{sT1}, s{sH[m >> 1]}, {((m & 1) << 16) + (j >> 1 << 15) + (j & 1)*8192}"]
            L += self.q_push([self.dma(vDW1 + i, sEA, sT1, i * 1024, self.P("wpol"))], ("wg", m))
        return L
    def kv_adv(self): return [f"s_add_u32 s{sOFF}, s{sOFF}, {0 if self.o.get('kvfix') else 8192}", f"s_add_u32 s{sB}, s{sB}, 1"] + self.nextslot()
    def position(self, loc, cg=None, tag=None, pre=[], fill=None, check=True, late=[], fill2=None, pace=True, fix=False):
        G = self.G; j = G & 3; nj = (G + 1) & 3
        if G in (4, 8, 12, 16, 128, 136, 144) and (G < 20 or loc[0] in ("f0", ("pl", 34), ("pl", 36))): self.stamp(f"G{G}")
        g = [[] for _ in range(12)]
        g[0] += pre
        D = self.q_push(self.kv_d(j), ("g", G))
        for i in range(4): g[i].append(D[i])
        if fix: g[3] += self.w_cg(G)
        small = self.kv_adv()[:1 if fix else 5] if j == 3 else []
        if cg:
            if cg[0]: g[3] += cg[0] if isinstance(cg[0], list) else [cg[0]]
            for i, x in enumerate(self.q_push(cg[1], tag)): g[4 + i].append(x)
        self.G += 1
        at = [0, 1, 2, 5, 5, 6, 6, 7, 7]
        for x in small: g[at.pop(0)].append(x)
        g[6].append(self.kv_so(nj))
        if nj == 0 and check: g[8].append(self.rdpr)
        if nj == 0 and check and self.o.get("tl"): g[8].append(f"s_memrealtime s[{sSTAMP+2}:{sSTAMP+3}]")
        g[8].append(self.kv_m0(nj) if not fix else f"s_mov_b32 m0, {self.slot[self.item[min(G + 1 >> 2, 64)]] * SLOT + nj*4096}")
        g[8] += late
        fb = self.o.get("fb") and self.o.get("fa2", 177) <= G < 400
        gd = G - self.D - (min(self.o.get("fbd", 1), 1 + (G - self.o.get("fa2", 177)) // 4) if fb else 0); gate = []
        if fb and G - self.o.get("fa2", 177) in range(0, 4 * self.o.get("fbd", 1), 4): assert gd & 3 != 3
        if fb and nj == 0 and check: g[8].append("ds_read_b32 v65, v64")
        if fb and j == 0 and G > self.o.get("fa2", 177) + 3: g[0].insert(0, f"v_readfirstlane_b32 s{sP5}, v65")
        if gd >= 0 and pace:
            isw = gd & 3 == 3 and gd >> 2 in self.WB and G < 400
            g[9] += self.q_wait(loc, [("g", gd), ("wg", self.WB.index(gd >> 2))] if isw else ("g", gd), 0 if isw else self.o.get("dx", 0) if self.o.get("dxa", 0) <= G < self.o.get("dxb", 999) else 0)
            v = 17 + (self.item[gd >> 2] + isw if G < 400 else gd >> 2)
            if isw: g[10] += self.hpull(self.WB.index(gd >> 2))
            if G < 20 and self.pubok and 16 + ((gd + 1) >> 2) > self.pub:
                P = self.pub_abs(16 + ((gd + 1) >> 2)); g[9].append(P[0]); g[10].append(P[1])
            elif gd & 3 == 3 and self.pubok and G >= 20:
                P = self.pub_inc(v, 1 + isw)
                gate = P[:-2]
                g[9].append(P[-2]); g[10].insert(0, P[-1])
        if fb:
            l = self.lab("fb")
            for t, n in ((0, self.o.get("q0", 0)), (self.o.get("t2", 192), self.o.get("q1", 4)), (self.o.get("t1", 64), self.o.get("q2", 8)), (self.o.get("t3", 32), self.o.get("q3", 0))):
                if not n: continue
                idx = [i for i, x in enumerate(self.q) if x[0] == "g" and x[1] > gd] if self.dry else None
                if self.dry: self.cnt[(loc, n)] = len(self.q) - 1 - idx[n - 1]
                g[10] += ([f"s_cmp_ge_u32 s{sP5}, {t}", f"s_cbranch_scc1 {l}"] if t else []) + [f"s_waitcnt vmcnt({self.cnt[(loc, n)]})"]
            g[10].append(l + ":")
        if fix and check: check = self.need[self.item[G + 1 >> 2]]
        if nj == 0 and check: g[11] += self.pcheck(f"s{sB}" if check in (True, "redo") else check, redo=check == "redo", rel=fix) + ([f"v_cmpx_eq_u32 vcc, s{sB}, v15", f"v_mov_b32 v18, s{sSTAMP+2}", "s_mov_b64 exec, -1"] if self.o.get("tl") else [])
        for fill in (fill, fill2):
            for i in range(11 if nj == 0 and check else 12):
                while fill and len(g[i]) < 2:
                    x = fill.pop(0)
                    if x.startswith("ds_") and g[i] and not g[i][0].startswith(("ds_", "buffer_", "s_waitcnt")): g[i].insert(0, x)
                    else: g[i].append(x)
        for i, x in zip((0, 1, 2, 4, 5, 6, 7, 7, 7), gate): g[i].append(x)
        return g
    def flat(self, G):
        L = []
        for x in (x for g in G for x in g):
            if isvm(x) and L and " m0," in L[-1]: L.append("s_nop 0")
            L.append(x)
        return L + (["s_nop 0"] if L and " m0," in L[-1] else [])
    def plain(self, loc, extra=[], check=True, cg={}, tag="pf", fix=False):
        for j, x in enumerate(self.split(extra, 4)):
            self.emit(self.flat(self.position((loc, j), cg.get(j), tag, check=check, late=x, fix=fix)))
    def split(self, L, n):
        c = [k * len(L) // n for k in range(n + 1)]
        for k in range(1, n):
            while c[k] < len(L) and L[c[k]].startswith(("s_addc", "s_cselect", "v_cndmask")): c[k] += 1
        return [L[c[k]:max(c[k], c[k + 1])] for k in range(n)]
    def chunk_addr(self, h):
        a_ = sXA + h
        L = [f"s_add_u32 s{sT4}, s{sROT}, s{sKS}", f"s_bfe_u32 s{sT3}, s{sT4}, 0x20002", f"s_and_b32 s{sT4}, s{sT4}, 3"]
        if h == 0: L += [f"s_mul_i32 s{sXB}, s{sT3}, s{sP1}", f"s_mul_i32 s{sT1}, s{sT4}, s{sP2}", f"s_add_u32 s{sXB}, s{sXB}, s{sT1}"]
        L += [f"s_mul_i32 s{a_}, s{sT3}, s{sP3}", f"s_mul_i32 s{sT1}, s{sT4}, s{sP4}", f"s_add_u32 s{a_}, s{a_}, s{sT1}",
              f"s_add_u32 s{a_}, s{a_}, s{sP5}", f"s_add_u32 s{sKS}, s{sKS}, 1"]
        if self.o.get("noeng", 0) & 1 and h == 0: L.append(f"s_mov_b32 s{sXB}, {OOB:#x}")
        if self.o.get("noeng", 0) & 2: L.append(f"s_mov_b32 s{a_}, {OOB:#x}")
        return L
    def bgroups(self, base, so, pol):
        return [(f"s_mov_b32 m0, {base + gi*4096}", [self.dma(vDX + i, sEB, so, i * 1024, pol) for i in range(4 if gi < 4 else 2)]) for gi in range(5)]
    def bgroup(self, gi):
        return self.bgroups(CBX, sXB + 1, self.P("bpol"))[gi], [f"s_add_u32 s{sXB+1}, s{sXB}, s{sG[gi]}"]
    def agroups(self, m0, so, pol, so1=None, vDW=vDW):
        return [(m0(h), [self.dma(vDW + i, sEA, so1 if h and so1 else so, i * 1024, pol) for i in range(4)]) for h in range(2)]
    def hacc(self, t, qt):
        return ar(aHACC + 36 * t + 4 * qt) if t < 2 else vr(vHACC + 36 * (t - 2) + 4 * qt)
    def areads(self, p):
        F = aHF + 68 * p; L = []
        for t in range(8):
            L.append(f"ds_read_b64_tr_b16 {ar(F+4*t,2)}, v{vW0} offset:{p*8192+(t>>1)*256+8*(t&1)}")
            L.append(f"ds_read_b64_tr_b16 {ar(F+4*t+2,2)}, v{vW1} offset:{p*8192+(t>>1)*256+8*(t&1)}")
        return L
    def breads(self, qts):
        return [f"ds_read_b128 {ar((aB2 if e else aHF+32)+4*qt)}, v{vXR1 if e else vXR} offset:{qt*2048}" for qt in qts for e in range(2)]
    def hmf(self, p):
        F = aHF + 68 * p
        return [f"{MF} {self.hacc(t,qt)}, {ar(F+4*t)}, {ar(F+32+4*qt)}, {self.hacc(t,qt)}" for t in range(8) for qt in range(9)]
    def half(self, loc, k, tail=[]):
        h = k & 1
        self.e("s_waitcnt lgkmcnt(0)")
        if loc == "b0" and self.o.get("sm") in ("g", "s", "r", "e", "p", "o", "k", "l") and not self.dry:
            self.e(f"s_lshl_b32 s{sT4}, s{sIT}, 4\ns_add_u32 s{sT4}, s{sT4}, s{sCNT}")
            for ph in range(1):
                for n in (0, 3, 6):
                    self.e(f"s_cmp_lg_u32 s{sT4}, {16*ph+n}\ns_cbranch_scc1 L_gs{ph}{n}")
                    self.stamp(f"g{ph}{n}")
                    self.e(f"L_gs{ph}{n}:")
        G = [None] * 6; T = [None] * 6; X = [[] for _ in range(6)]
        if k < 16:
            A_ = self.agroups(lambda x: f"s_mov_b32 m0, {CBW + h*8192 + x*4096}", sXA + h, self.P("apol"), sT4)
            for x, p in enumerate((2, 4) if h == 0 else (0, 2)):
                G[p] = A_[x]; T[p] = ("ca", self.ph, k)
                if x: X[p] = [f"s_add_u32 s{sT4}, s{sXA+h}, s{sP6}"]
            for p, gi in ((0, 2), (1, 3), (3, 4)) if h == 0 else ((4, 0), (5, 1)):
                G[p], X[p] = self.bgroup(gi); T[p] = ("xa" if gi < 3 else "xb", self.ph, (k + 1) >> 1)
        F = self.chunk_addr(1 - h) if k < 16 else []
        F2 = [f"v_accvgpr_mov_b32 a{aHF+68+32+i}, a{aB2+i}" for i in range(36)] if h == 0 and k >= 2 else []
        gaps = []
        for p in range(6):
            pre = X[p]; late = []
            if p == 2: assert not F
            if h and k < 16 and p in (2, 3):
                t = "xa" if p == 2 else "xb"
                pre += self.q_wait((loc, t), (t, self.ph, k >> 1)); F += self.breads(range(6) if p == 2 else range(6, 9))
            if p == 4 and 1 <= k <= 16:
                assert not F
                if h: gaps[-1] += ["s_waitcnt lgkmcnt(0)"]
                pre += self.q_wait((loc, "r"), ("ca", self.ph, k - 1)); F += self.areads(1 - h)
            if loc in ("p0", "p1") and self.o.get("sm") in ("p", "o") and self.o.get("stamps") and not self.dry and f"{loc}{p}" in self.STM["p"]:
                i = self.STM["p"].split().index(f"{loc}{p}"); l = self.lab("hs")
                pre = [f"s_cmp_lg_u32 s{sIT}, {int(self.o['sm'] == 'o')}", f"s_cbranch_scc1 {l}", f"{'s_memtime' if self.o['stamps'] == 2 else 's_memrealtime'} s[{sSTAMP+2*i}:{sSTAMP+2*i+1}]", l + ":"] + pre
            gaps += self.position((loc, p), G[p], T[p], pre, F, late=late, fill2=F2)
        gaps[-2] += F + F2
        gaps[-1] += tail
        if k >= 2 and not self.o.get("nomf"): self.weave(self.hmf(h), dict(enumerate(gaps)))
        else: self.emit(self.flat(gaps))
    def engine(self):
        self.e(f"s_mov_b32 s{sKS}, 0")
        self.emit(self.chunk_addr(0))
        for gi in range(2):
            (m0, D), X = self.bgroup(gi)
            self.emit([m0] + X + self.q_push(D, ("xa", self.ph, 0)))
        self.e(self.kv_m0(0))
        self.half("p0", 0)
        self.half("p1", 1, tail=[f"s_mov_b32 s{sCNT}, 0"])
        self.e(".p2align 3\nL_eloop:")
        for it in range(7 if self.dry else 1):
            self.half("b0", 2 + 2 * it)
            self.half("b1", 3 + 2 * it, tail=[f"s_add_u32 s{sCNT}, s{sCNT}, 1", f"s_cmp_lt_u32 s{sCNT}, 7"])
        self.e("s_cbranch_scc1 L_eloop")
        if not self.dry: self.G += 72; self.pub = None
        self.half("e0", 16)
        self.half("e1", 17)

    def helper(self):
        D = self.D
        self.q = []; self.G = 0; self.pubok = False; self.ph = 0; self.pub = 0
        e = self.e
        def q0w(c):
            ad = [f"s_add_u32 s{sT3}, s{sT3}, {1 << 19}", f"s_cmp_eq_u32 s{sT3}, {8 << 19}", f"s_cselect_b32 s{sT3}, {1 << 19}, s{sT3}"] if c > 2 and not c & 1 else []
            G = self.agroups(lambda x: f"s_mov_b32 m0, {QC[(c >> 1) % 3] + 18432 + (c & 1)*8192 + x*4096}", sT4, self.P("cpol"))
            return [(("w", c), (ad if x == 0 else []) + [G[x][0], f"s_add_u32 s{sT4}, s{sT3}, {((c & 1) << 18) + x*131072}"] + G[x][1]) for x in range(2)]
        self.q += [("w", 0)] * 6
        self.emit(self.q_push([self.dma(vDW + i, sEA, sT1, i * 1024, self.P("cpol")) for i in (2, 3)], ("w", 0)) + [f"s_mov_b32 s{sT3}, 0"])
        for t, g in q0w(1): self.emit(self.q_push(g, t))
        e(f"""s_lshl_b32 s{sT3}, s{sXS}, 19
        s_mov_b32 s{sP6}, 131072
        v_lshlrev_b32 v{vL16}, 4, v1
        v_mov_b32 v248, 0
        v_mov_b32 v249, 0
        v_mov_b32 v250, 0
        v_mov_b32 v251, 0
        v_add_u32 v30, {SYNC+256}, v{vL16}
        v_lshlrev_b32 v{vLA}, 2, v1
        v_add_u32 v{vLA}, {LAND}, v{vLA}
        ds_write_b128 v30, v[248:251]
        ds_write_b32 v{vLA}, v248""")
        e(f"s_lshl_b32 s{sT0}, s{sWID}, 19")
        if self.o.get("kvr"):
            e(f"""s_mul_i32 s{sT1}, s2, {self.o["kvr"]}
            s_lshr_b32 s{sT1}, s{sT1}, {self.o.get("kvs", 0)}
            s_and_b32 s{sT1}, s{sT1}, 31
            s_lshl_b32 s{sT1}, s{sT1}, 13
            s_cmp_eq_u32 s{sWID}, 255
            s_cselect_b32 s{sT1}, 0, s{sT1}
            s_add_u32 s{sT0}, s{sT0}, s{sT1}""")
        self.emit(self.srd(sK, 6, f"s{sT0}", 524288) + self.srd(sV, 8, f"s{sT0}", 524288))
        e(f"""v_lshlrev_b32 v30, 8, v3
        v_lshl_add_u32 v30, v2, 6, v30
        v_xor_b32 v31, 2, v4
        v_min_u32 v{vPA}, 2, v4
        v_lshl_add_u32 v{vKV+1}, v31, 4, v30
        v_lshl_add_u32 v{vKV}, v4, 4, v30
        v_lshlrev_b32 v{vPA}, 8, v{vPA}
        v_add_u32 v{vPA}, {PROG}, v{vPA}
        s_mov_b32 s{sOFF}, 0
        s_mov_b32 s{sSL}, 0
        s_mov_b32 s{sB}, 10
        {"v_cmp_gt_u32 vcc, 12, v1" if self.o.get("tl") else ""}
        {"v_add_u32 v15, 64, v1" if self.o.get("tl") else ""}
        {"s_nop 0" if self.o.get("tl") else ""}
        {"v_cndmask_b32 v15, v1, v15, vcc" if self.o.get("tl") else ""}
        {["s_mov_b32 s%d, 0" % sROT, "", "s_lshl_b32 s%d, s%d, 2" % (sROT, sC), "s_lshl_b32 s%d, s%d, 1" % (sROT, sBB)][self.o.get("er", 0)]}""")
        setup = [f"s_mul_i32 s{sT0}, s{sBB}, 147456"] + self.srd(sEB, 4, f"s{sT0}", 147456) + self.xsrc(30, 31, vDX) + \
                [f"s_mov_b32 s{sP1}, 256", f"s_mov_b32 s{sP2}, 64", f"s_mov_b32 s{sP3}, {1 << 20}", f"s_mov_b32 s{sP4}, {1 << 18}"] + self.common_srds() + self.xpat(30, 31, vXR, vXR1, CBX) + self.wpat(30, 31, vW0, vW1, CBW) + \
                [f"v_mov_b32 v{vSC}, s{sCS}", f"v_mov_b32 v{vSC+1}, s{sCS}"]
        self.emit(setup + [self.kv_m0(0), self.kv_so(0), f"s_mov_b32 s{sP5}, 256"] + [f"s_mov_b32 s{sG[i]}, {i*32768}" for i in range(5)])
        self.stamp("iss")
        e("s_waitcnt lgkmcnt(0)\ns_barrier")
        self.stamp("bar")
        done = [0]
        def q0pub(n):
            while done[0] < min(n, 16):
                c = done[0]
                last = max(i for i, t in enumerate(self.q) if t == ("w", c))
                nb = sum(1 for t in self.q[:last] if t[0] == "g") // 16 if c == 15 else 0
                self.emit(self.q_wait(("q0", c), ("w", c)) + self.pub_abs(c + 1 + nb))
                self.stamp(f"c{c}")
                done[0] += 1
        Z = [f"v_accvgpr_write_b32 a{aHACC+i}, 0" for i in range(72)] + [f"v_mov_b32 v{vHACC+i}, 0" for i in range(216)]
        LAG = self.o.get("lag", 3); KN_ = self.o.get("kn", 10)
        q0pub(1)
        for c in range(2, 16):
            if c >= 6:
                assert done[0] >= c - 5
                self.emit([self.rdpr] + self.pcheck(c - 5))
            for t, g in q0w(c): self.emit(self.q_push(g, t))
            for i in range(self.KG if c >= self.KS else 0):
                if self.G < KN_: self.emit(([] if i else [self.kv_m0(self.G & 3), "s_nop 0"]) + self.flat(self.position(("q0p", self.G), check=False, pace=False)))
            q0pub(2 if c == 2 else c - LAG + 1)
            if c >= 6 and not self.o.get("zp"): self.emit(Z[(c - 6) * 29:(c - 5) * 29])
        self.stamp("c15i")
        q0pub(self.o.get("pb", 14))
        self.emit([self.kv_m0(self.G & 3), "s_nop 0"])
        if self.G == 12: self.emit([self.rdpr] + self.pcheck(12))
        while self.G < 20:
            n = self.G - 12
            self.emit(self.flat(self.position(("q0p", self.G), check=12 if self.G == 11 else False, late=Z[n * 36:n * 36 + 36] if n >= 0 and self.o.get("zp") else [])))
            q0pub(done[0] + 1)
            if done[0] == 16 and not self.pubok:
                self.pubok = True; self.stamp("q0")
        assert self.pubok
        self.stamp("G20")
        self.emit([self.rdpr, f"s_mov_b32 s{sLD}, {self.pub}", f"s_mov_b32 s{sAL}, 4096", f"s_mov_b32 s{sRT}, {self.o.get('r0', 18)}"] + self.pcheck(16))
        self.engine()
        assert self.G == 128
        F = [f"v_add_u32 v30, {HAND1}, v{vL16}", "s_nop 3"]
        n = 0
        for ks in (1, 2, 3, 0):
            for qt in range(9):
                if ks:
                    b0 = vHACC + 36 * (2 * ks - 2) + 4 * qt; b1 = b0 + 36
                else:
                    b0 = vHACC + 8 * (qt % 2); b1 = b0 + 4
                    for i in range(4): F += [f"v_accvgpr_read_b32 v{b0+i}, a{aHACC+4*qt+i}", f"v_accvgpr_read_b32 v{b1+i}, a{aHACC+36+4*qt+i}"]
                F += [f"v_pk_mul_f32 v[{b}:{b+1}], v[{b}:{b+1}], v[{vSC}:{vSC+1}]" for b in (b0, b0 + 2, b1, b1 + 2)]
                t = vHT + 4 * (n % 2); n += 1
                F += [f"v_cvt_pk_bf16_f32 v{t+i}, v{b}, v{b+1}" for i, b in enumerate((b0, b0 + 2, b1, b1 + 2))]
                F += [f"ds_write_b128 v30, {vr(t)} offset:{(qt*4+ks)*1024}"]
        assert D >= 1
        NF = self.o.get("nf", 3)
        for m in range(NF): self.plain(f"f{m}", F[m * len(F) // NF:(m + 1) * len(F) // NF])
        SW = self.wo_srd() + self.srd(sDB, 16, 0, 256) + \
             ["v_bfe_u32 v30, v1, 2, 2", "v_lshlrev_b32 v30, 10, v30", "v_lshrrev_b32 v31, 4, v1", "v_lshl_add_u32 v30, v31, 6, v30",
              "v_and_b32 v31, 3, v1", f"v_lshl_add_u32 v{vDW1}, v31, 4, v30", "v_xor_b32 v31, 2, v31", f"v_lshl_add_u32 v{vDW1+1}, v31, 4, v30",
              f"v_add_u32 v{vDW1+2}, 2048, v{vDW1}", f"v_add_u32 v{vDW1+3}, 17408, v{vDW1+1}", f"v_add_u32 v{vDW1+1}, 15360, v{vDW1+1}",
              f"s_mov_b32 s{sRT}, {self.o.get('r1', 18)}"] + ([f"s_mov_b32 s{sEA+2}, 0"] if self.o.get("now") else [])
        for i in range(4): SW += [f"s_add_u32 s{sT1}, s{sC}, {i}", f"s_and_b32 s{sT1}, s{sT1}, 3", f"s_lshl_b32 s{sH[i]}, s{sT1}, 18"]
        SW += ["v_bfe_u32 v30, v1, 2, 2", "v_min_u32 v30, 2, v30", f"v_add_u32 v30, s{sC}, v30", "v_add_u32 v30, 1, v30", "v_and_b32 v30, 3, v30",
               "v_and_b32 v31, 3, v1", f"v_min_u32 v31, {3 if self.o.get('de') else 2}, v31", f"v_lshl_add_u32 v31, v30, 2, v31", f"v_lshlrev_b32 v{vPL}, 7, v31",
               "v_lshlrev_b32 v53, 9, v30", "v_add_u32 v53, 384, v53", "v_mov_b32 v54, 0"]
        if self.o.get("fb"): SW += [f"v_mov_b32 v64, {MISC+64}", f"s_mov_b32 s{sP5}, {self.o.get('t0', 128)}", f"v_mov_b32 v65, s{sP5}", "ds_write_b32 v64, v65"]
        SW += self.tail_wregs(sT1) + self.tail_src() + self.tail_own(False); nb = 40 - 32 - NF
        for m, x in enumerate(self.split(SW, nb)): self.plain(("pl", m + 32 + NF), x, check="redo" if m == nb - 1 else True)
        def share(r):
            return [f"s_bfe_u32 s{sT3}, s2, 0x30003", f"s_lshr_b32 s{sT4}, s{sT3}, 1", f"s_and_b32 s{sT3}, s{sT3}, 1", f"s_lshl_b32 s{sT4}, s{sT4}, 18", f"s_lshl_b32 s{sT3}, s{sT3}, 16",
                    f"s_add_u32 s{sT3}, s{sT3}, s{sT4}", f"s_add_u32 s{sT3}, s{sT3}, {131072*r}", f"v_lshrrev_b32 v30, 1, v1", f"v_and_b32 v31, 1, v1", "v_lshlrev_b32 v30, 10, v30",
                    "v_lshl_add_u32 v30, v31, 7, v30", f"s_add_u32 s{sT4}, s{sT3}, 32768"], [f"buffer_load_dword v52, v30, {sr(sEA)}, s{x} offen" for x in (sT3, sT4)]
        self.plain(("pl", 40), check=False, cg={0: share(0)} if self.o.get("pfe", 1) else {})
        self.stamp("s0")
        e(f"L_s0:\n{self.rdpr}\ns_mov_b32 s{sIT}, 1")
        self.emit(self.pcheck(f"s{sB}"))
        self.stamp("it0")
        tok = f"buffer_load_dwordx2 v[56:57], v54, {sr(sDB)}, 0 offen sc1"
        self.plain(("pl", 41), [f"v_add_u32 v30, {HAND1}, v{vL16}"] + [f"ds_read_b128 {vr(vEO+4*i)}, v30 offset:{i*1024}" for i in range(36)], cg={0: (None, [tok])}, tag="tok", fix=True)
        e("s_waitcnt lgkmcnt(0)")
        self.plain(("pl", 42), fix=True)
        self.emit(self.q_wait("tok", "tok"))
        e(f"""L_tok:
        v_readfirstlane_b32 s{sTK+1}, v57
        v_readfirstlane_b32 s{sTK}, v56
        s_cmp_eq_u32 s{sTK+1}, 0
        s_cbranch_scc1 L_tok2
L_tokok:""")
        if not self.dry: self.ool += ["L_tok2:"] + self.budget("L_tokok") + [tok, "s_waitcnt vmcnt(0)", "s_branch L_tok"]
        ES = []
        if self.o.get("ae"): e(f"v_mov_b32 v31, {MISC+32}\nds_write_b64 v31, v[56:57]")
        for t in range(0 if self.o.get("ae") else 9):
            de = self.o.get("de") and t < 8
            ES += [[[f"s_add_u32 s{sT2}, s{sT2}, 4096" if t else f"s_mul_i32 s{sT2}, s{sC}, 73728" if not self.o.get("noes") else f"s_mov_b32 s{sT2}, {OOB:#x}"] +
                    ([f"s_cmp_eq_u32 s{sKQ}, {t >> 1}", f"s_cselect_b32 s{sP6}, {OOB:#x}, s{sT2}"] if de else [])] +
                   [f"buffer_store_dwordx4 {vr(vEO+16*t+4*k)}, v55, {sr(sOB)}, s{sP6 if de else sT2} offen offset:{k*1024} {self.P('esc', 'sc1')}" for k in range(4)]]
        es = self.o.get("es", 9); bk = self.o.get("bk", 62)
        back = [f"ds_write_b128 v62, {vr(vEO+4*i)} offset:{i*1024}" for i in range(36)]
        e(f"v_add_u32 v55, {O_OFF}, v{vL16}\nv_add_u32 v62, {HAND1}, v{vL16}")
        for m in range(43, 65):
            cg = {j: (ES[0][0], ES.pop(0)[1:]) for j in range(4) if 4 * (65 - m) - j <= es and ES}
            if m >= self.o.get("et", 99) and ES:
                n = self.o.get("en", 1)
                for j in range(4):
                    if not ES: break
                    pre = ES[0].pop(0) if isinstance(ES[0][0], list) else None
                    cg[j] = (pre, [ES[0].pop(0) for _ in range(n)])
                    if not ES[0]: ES.pop(0)
            if self.o.get("pf", 2) == 3 and m == self.o.get("pfb", 58):
                pj = self.o.get("pfj", 0); x = cg.get(pj, (None, []))
                cg[pj] = (share(1)[0] + (x[0] or []), share(1)[1] + x[1])
            if m in (44, 50, 58): self.stamp({44: "g10", 50: "g13", 58: "g16"}[m])
            if m == bk: self.emit([self.rdpr] + self.pcheck(78, rel=True))
            self.plain(("pl", m), back[12*(m - bk):12*(m - bk + 1)] if m >= bk else [], cg=cg, tag="e", check=m < 64, fix=True)
        assert self.G == 260
        self.stamp("G260")
        def wchunk(n):
            G = self.agroups(lambda h: f"s_mov_b32 m0, {WC[n] + h*4096}", sT3, self.P("wpol"), sT4, vDW1)
            o = ((n & 3) << 15) + 131072
            return self.q_push([G[0][0], f"s_add_u32 s{sT3}, s{sH[n >> 2]}, {o}"] + G[0][1] + [G[1][0], f"s_add_u32 s{sT4}, s{sH[n >> 2]}, {o + 8192}"] + G[1][1], ("w1", n))
        def wblock(p): return wchunk(2 * p) + wchunk(2 * p + 1)
        def chk(n): return [self.rdpr] + self.pcheck(n)
        def estore():
            L = self.q_push(sum((x[0] + x[1:] for x in ES), []), "e"); ES.clear()
            return L
        PB_ = 75 + NW
        if self.o.get("now") == 1: e(f"s_lshl_b32 s{sT3}, s{sC}, 8\ns_sub_u32 s{sEA+2}, 1048576, s{sT3}")
        if self.o.get("ea", 0) == 0: self.emit(estore())
        if self.o.get("pf", 2) == 2:
            self.emit(share(1)[0] + self.q_push(share(1)[1], "pf"))
        GL = 259; N0 = PB_
        late = [m for m in range(NW) if 4 * self.WB[m] + 3 + D + (self.o.get("fbd", 1) if self.o.get("fb") else 0) > GL]
        ea = self.o.get("ea", 0); w1 = self.o.get("w1", 2)
        self.emit(self.q_wait("w80", [("g", GL - 4), ("wg", NW - 1)]) + self.pub_abs(PB_ + 5) + sum((self.hpull(m) for m in late), []))
        for p in range(w1): self.emit(chk(N0 + p) + wblock(p))
        self.emit(self.q_wait("w81", ("g", GL)) + self.pub_abs(PB_ + 6))
        self.stamp("l81")
        for p in range(w1, self.o.get("w2", 3)): self.emit(chk(N0 + p) + wblock(p))
        poll = f"buffer_load_dwordx2 v[58:59], v{vPL if self.o.get('ae') else 53}, {sr(sFL)}, s{sP4} offen sc1"
        self.emit(self.q_wait("w83", ("w1", 3)))
        e("L_wdone:")
        self.stamp("wd")
        eflag = lambda: [] if self.o.get("ae") else self.q_push(self.oflag(0, (self.q_wait("eack", "e") or ["s_nop 0"])[0]), "ef")
        self.emit(self.pub_abs(PB_ + 7) + (eflag() if not ea and not self.o.get("efl") else []) + [f"v_mov_b32 v31, {MISC+32}", "ds_write_b64 v31, v[56:57]", f"s_lshl_b32 s{sP4}, s{sWID}, 13"])
        spe = ["v_lshlrev_b32 v62, 7, v1", f"s_mul_i32 s{sP5}, s{sC}, 73728", f"s_add_u32 s{sP5}, s{sP5}, {O_OFF}"]
        for i in range(5): spe += (["s_mov_b32 exec_hi, 0"] if i == 4 else []) + [f"buffer_load_dword v63, v62, {sr(sOB)}, s{sP5} offen sc1", f"s_add_u32 s{sP5}, s{sP5}, 8192"]
        spe[-1] = "s_mov_b32 exec_hi, -1"
        if self.o.get("spe") == 2: self.emit(self.q_push(spe, "spe"))
        for p in range(self.o.get("w2", 3), 4): self.emit(chk(N0 + p) + wblock(p))
        if self.o.get("efl"): self.emit(eflag())
        self.emit(self.q_push([poll], "p0"))
        if self.o.get("spe") == 4: self.emit(self.q_push(spe, "spe"))
        self.stamp("w3")
        self.emit(self.pulls(WA) + chk(PB_ + 7) + self.q_wait("w84", ("w1", 7)) + self.pub_abs(PB_ + 8))
        self.emit(estore())
        self.stamp("w4")
        DE = [f"ds_read_b128 {vr(96+4*i)}, v{vE+3} offset:{i*1024}" for i in range(8)] + [f"s_mul_i32 s{sT2}, s{sC}, 73728", f"s_lshl_b32 s{sP6}, s{sKQ}, 13", f"s_add_u32 s{sT2}, s{sT2}, s{sP6}",
              f"s_add_u32 s{sP6}, s{sT2}, 4096"]
        for i in range(8): DE += [f"s_waitcnt lgkmcnt({7-i})", f"buffer_store_dwordx4 {vr(96+4*i)}, v55, {sr(sOB)}, s{sP6 if i > 3 else sT2} offen offset:{(i & 3)*1024} {self.P('esc', 'sc1')}"]
        if self.o.get("de") == 1: self.emit(self.q_push(DE, "de"))
        self.emit(self.pulls(WB_))
        if self.o.get("de") == 2: self.emit(self.q_push(DE, "de"))
        self.stamp("w6")
        self.emit(self.rd(0) + self.rd(1))
        self.stamp("c15")
        self.emit((eflag() if ea else []) + self.q_wait("p0", "p0"))
        e(f"""L_poll0:
        v_cmp_ne_u64 vcc, s[{sTK}:{sTK+1}], v[58:59]
        s_cbranch_vccnz L_poll0b
L_poll0r:""")
        if not self.dry and self.o.get("spe") in (1, 5):
            self.ool += ["L_poll0b:"] + ([poll, "s_waitcnt vmcnt(0)", f"v_cmp_ne_u64 vcc, s[{sTK}:{sTK+1}], v[58:59]", "s_cbranch_vccz L_poll0r"] if self.o["spe"] == 5 else []) + spe + ["L_poll0c:"] + self.budget("L_poll0r") + [poll, "s_waitcnt vmcnt(0)", f"v_cmp_ne_u64 vcc, s[{sTK}:{sTK+1}], v[58:59]", "s_cbranch_vccnz L_poll0c", "s_branch L_poll0r"]
        elif not self.dry: self.ool += ["L_poll0b:"] + self.budget("L_poll0r") + [poll, "s_waitcnt vmcnt(0)", "s_branch L_poll0"]
        self.stamp("pe")
        self.stamp("it1")
        if not self.dry:
            self.b1("L_hredo")
            e("s_branch L_tail")
        e(f"""L_hredo:
        s_waitcnt vmcnt(0)
        s_barrier
        s_mul_i32 s{sB}, s{sIT}, {32 + NW}
        s_add_u32 s{sB}, s{sB}, 10
        s_add_u32 s{sT0}, s{sB}, {6 - (D + 3) // 4}
        v_mov_b32 v{vPB}, s{sT0}
        s_mov_b32 s{sLD}, s{sT0}
        s_add_u32 s{sT0}, s{sB}, 6
        v_mov_b32 v{vPV}, s{sT0}
        s_lshl_b32 s{sAL}, s{sT0}, 4
        ds_write_b32 v{vLA}, v{vPB}
        s_mov_b32 s{sCNT}, 0
        s_lshl_b32 s{sOFF}, s{sIT}, 18
        s_mov_b32 s{sSL}, 0
L_hmloop:""")
        for j in range(2): self.emit([self.kv_m0(j), self.kv_so(j)] + self.kv_d(j))
        e(f"""s_add_u32 s{sOFF}, s{sOFF}, 8192
        s_waitcnt vmcnt(0) lgkmcnt(0)
        s_barrier
        s_barrier
        s_add_u32 s{sCNT}, s{sCNT}, 1
        s_cmp_lt_u32 s{sCNT}, 32
        s_cbranch_scc1 L_hmloop
        s_lshl_b32 s{sOFF}, s{sIT}, 18
        s_mul_i32 s{sSL}, s{sIT}, {6 * SLOT}
        s_cmp_eq_u32 s{sIT}, 0
        s_cselect_b32 s{sCNT}, {self.S0 + 10}, {75 + NW}
        {self.kv_m0(0)}
        {self.kv_so(0)}
L_hploop:""")
        self.G = 400; self.q = [("g", g) for g in range(380, 400) for _ in range(4)]; self.pub = None
        self.plain("rp")
        e(f"""s_cmp_lt_u32 s{sB}, s{sCNT}
        s_cbranch_scc1 L_hploop
        s_cmp_eq_u32 s{sIT}, 0
        s_cbranch_scc1 L_s0
        s_waitcnt vmcnt(0)""")
        self.emit(self.pub_abs(PB_ + 6) + chk(PB_ + 6))
        for p in range(self.o.get("w2", 3)): self.emit(wblock(p) + ["s_waitcnt vmcnt(16)"])
        self.emit(["s_waitcnt vmcnt(0)", "s_branch L_wdone"])

    def tail_wregs(self, sT0=sT0):
        return [f"s_lshl_b32 s{sT0}, s{sWAVE}, 8"] + self.wpat(250, 251, 252, 253, f"s{sT0}") + [f"v_add_u32 v254, 65536, v252", f"v_add_u32 v255, 65536, v253"]
    def pull(self, b, r, o):
        return [f"ds_read_b64_tr_b16 {ar(b+4*u+2*h,2)}, v{r+h} offset:{o+8*u}" for u in range(2) for h in range(2)]
    def pulls(self, ns):
        return sum((self.pull(aW[1] + 8 * n, 252 + 2 * (WC[n] >> 16), WC[n] & 65535) for n in ns), [])
    def wpull(self, m): return self.pull(aW[0] + 16 * m, 250, 0) + self.pull(aW[0] + 16 * m + 8, 250, 8192)
    def wdisp(self, l):
        L = [l + ":"]; T = [(b - 35) // 2 for b in self.WB] + [64]
        m8 = [m for m in range(NW) if 62 <= self.witem[m] < 69][0]
        for m in range(NW):
            if m < NW - 1: L += [f"s_cmp_lg_u32 s{sTGT}, {T[m]}", f"s_cbranch_scc1 {l}{m+1}"]
            if self.o.get("ae") and m == self.o.get("hk", 1):
                F = [x.replace("v4,", "v59,") for x in self.oflag(0, "s_waitcnt vmcnt(0) lgkmcnt(0)")]
                L += [f"v_mov_b32 v3, {MISC+32}", "ds_read_b64 v[60:61], v3"] + F[:8] + F[10:]
            L += self.rank(m, l) + self.wpull(m) + [f"s_mov_b32 s{sTGT}, {T[m+1]}"] + ([f"s_mov_b32 s{sRG}, {RING}"] if m == m8 else [])
            if m < NW - 1: L += [f"s_branch {l}x", f"{l}{m+1}:"]
        return L + [l + "x:"]
    def rank(self, m, l):
        if not self.o.get("fb"): return []
        lag = self.o.get("fl2", 1); L = [f"s_cmp_lg_u32 s{sWAVE}, {m % lag}", f"s_cbranch_scc1 {l}k{m}", "s_mov_b64 exec, 1"]
        if m >= lag: L += [f"v_mov_b32 v3, {MISC+64}", f"s_waitcnt vmcnt({1 if self.o.get('ae') and m == self.o.get('hk', 1) else 0})", "ds_write_b32 v3, v2"]
        ng = self.o.get("ng", 8)
        if m + lag < NW: L += [f"s_and_b32 s{sT0}, s{sBB}, {ng - 1}", f"s_lshl_b32 s{sT0}, s{sT0}, 10", f"s_add_u32 s{sT0}, s{sT0}, {2 << 20}", f"v_mov_b32 v2, {ng}",
                               f"buffer_atomic_add v2, v4, {sr(sFL)}, s{sT0} offen offset:{128*m} sc0 sc1"]
        return L + ["s_mov_b64 exec, -1", f"{l}k{m}:"]
    def wo_srd(self):
        return [f"s_lshl_b32 s{sT2}, s{sKQ}, 20", f"s_lshl_b32 s{sT3}, s{sC}, 8", f"s_add_u32 s{sT2}, s{sT2}, s{sT3}"] + self.srd(sEA, 12, f"s{sT2}", 1048576) + [f"s_sub_u32 s{sEA+2}, s{sEA+2}, s{sT3}"]
    def tail_w2(self):
        return [f"s_lshl_b32 s{sCNT}, s{sWAVE}, 11", f"s_add_u32 s{sT0}, s{sC}, 2", f"s_and_b32 s{sT0}, s{sT0}, 3", f"s_lshl_b32 s{sSL}, s{sT0}, 18",
                f"s_add_u32 s{sT0}, s{sC}, 3", f"s_and_b32 s{sT0}, s{sT0}, 3", f"s_lshl_b32 s{sB}, s{sT0}, 18"]
    def tail_src(self):
        L = []
        for x in range(3):
            L += [f"s_mul_i32 s{sT1}, s{sWAVE}, 3", f"s_add_u32 s{sT1}, s{sT1}, {x+4}", f"s_lshr_b32 s{sT2}, s{sT1}, 2", f"s_add_u32 s{sT2}, s{sT2}, s{sC}",
                  f"s_and_b32 s{sT2}, s{sT2}, 3", f"s_mul_i32 s{sT2}, s{sT2}, 73728", f"s_and_b32 s{sT1}, s{sT1}, 3", f"s_lshl_b32 s{sT1}, s{sT1}, 10",
                  f"s_add_u32 s{sT1}, s{sT1}, s{sT2}", f"s_add_u32 s{sT1}, s{sT1}, {O_OFF - x*1024}", f"v_add_u32 v{vF[x]}, s{sT1}, v{vL16}"]
        return L
    def tail_own(self, att=True):
        L = [f"s_lshl_b32 s{sT1}, s{sWAVE}, 12", f"s_add_u32 s{sT1}, s{sT1}, 131072", f"v_bfe_u32 v{vTB}, v1, 2, 2", f"v_lshlrev_b32 v{vTB}, 10, v{vTB}", f"v_lshrrev_b32 v{vTC}, 4, v1",
             f"v_lshl_add_u32 v{vTB}, v{vTC}, 6, v{vTB}", f"v_add_u32 v{vTB}, s{sT1}, v{vTB}", f"v_and_b32 v{vTC}, 3, v1", f"v_lshl_add_u32 v{vW2}, v{vTC}, 4, v{vTB}",
             f"v_xor_b32 v{vTC}, 2, v{vTC}", f"v_lshl_add_u32 v{vTB}, v{vTC}, 4, v{vTB}", f"v_add_u32 v{vW2+1}, 15360, v{vTB}",
             f"v_add_u32 v{vTB}, 65536, v{vL16}", f"v_add_u32 v{vTC}, 131072, v{vL16}"]
        for p in range(4):
            L += [f"s_add_u32 s{sT1}, s{sKQ}, {p+1}", f"s_and_b32 s{sT1}, s{sT1}, 3", f"s_lshl_b32 s{sT1}, s{sT1}, 13", f"s_add_u32 s{sT1}, s{sT1}, {HAND1}", f"v_add_u32 v{vE+p}, s{sT1}, v{vL16}"]
        if att:
            L += [f"s_mul_i32 s{sT0}, s{sWAVE}, 3", f"s_lshl_b32 s{sT1}, s{sKQ}, 1", f"s_sub_u32 s{sT1}, s{sT0}, s{sT1}"]
            for qt in range(3):
                L += [f"s_add_u32 s{sT2}, s{sT1}, {qt+6}", f"s_and_b32 s{sT2}, s{sT2}, 7"]
                if qt == 2: L += [f"s_cmp_eq_u32 s{sWAVE}, 2", f"s_cselect_b32 s{sT2}, 8, s{sT2}"]
                L += [f"s_lshl_b32 s{sT2}, s{sT2}, 12", f"v_add_u32 v{vOW+qt}, s{sT2}, v{vL16}"]
        return L
    ORDER = (8, 0, 1, 2, 3, 4, 5, 6, 7)
    STEPS = [(0, i, 0) for i in range(9)] + [(1, i, 0) for i in range(9)] + \
            [(r, i, s) for U in ((8, 0, 1, 2, 3, 4, 5), (6, 7)) for r in range(2) for i in U for s in (1, 2, 3)]
    def rd(self, j):
        r, i, s = self.STEPS[j]
        o = (OU if r else EU)[self.ORDER.index(i)] + (s - 1) * 4096 if s else OWN + i * 4096 if r else HAND1 + 32768
        v, o = (vE + (i >> 1), (i & 1) * 4096) if not r and not s and i < 8 else ((vL16, vTB, vTC)[o >> 16], o & 65535)
        return [f"ds_read_b128 {vr(vBF[j % 3]+4*k)}, v{v} offset:{o+k*1024}" for k in range(4)]
    def acc(self, u, i): return vTA + 36 * u + 4 * i
    def fetch(self, r, n):
        L = [f"s_add_u32 s{sT2}, s{sOFF}, {n*4096}", f"s_and_b32 s{sT2}, s{sT2}, 0x7fff"] if n else []
        if r: L += [f"s_add_u32 s{sT3}, s{sT2}, 36864" if n else f"s_mov_b32 s{sT3}, {32768 + 36864}"]
        return L + [f"s_add_u32 m0, s{sT4}, {(OU if r else EU)[n]}"], [self.dma(vF[x], sOB, sT3 if r or not n else sT2, x * 1024, self.olp) for x in range(3)]
    def tstep(self, j, who, at={}, R=[], tags={}):
        r, i, s = self.STEPS[j]
        if not self.o.get("nord"): self.a(f"s_waitcnt lgkmcnt({self.lwait(j)})")
        mf = [f"{MF} {vr(self.acc(u,i))}, {ar(aW[r]+8*(4*s+k)+4*u)}, {vr(vBF[j % 3]+4*k)}, {vr(self.acc(u,i)) if j >= 9 or k else 0}" for k in range(4) for u in range(2)]
        f = {g: [] for g in range(8)}
        if j + 2 < 72:
            for g, x in zip([int(c) for c in str(self.o.get("rg", 10134))[1:]], self.rd(j + 2)): f[g].append(x if not self.o.get("nord") else "s_nop 0")
        busy = any(map(isvm, at.get(6, []) + at.get(7, [])))
        for g in ((2, 5) if busy else (2, 6)) if self.rate(j) == 2 else (2,) if busy else (5,):
            if self.fq:
                X, y, t = self.fq.pop(0)
                for n, x in enumerate(reversed(X)): f[max(0, g - 1 - n // 2)].insert(len(f[max(0, g - 1 - n // 2)]) - n % 2, x)
                f[g].append(y); tags = {**tags, y + str(g): t}
        for g, L in at.items(): f[g] += L
        for g in range(8):
            while R and (len(f[g]) + sum(map(isvm, f[g])) < 2 or R[0].startswith("s_cselect")): f[g].append(R.pop(0))
        for g in range(8):
            for n, x in enumerate(f[g]):
                if x == "@o": f[g][n] = f"s_waitcnt vmcnt({self.vwait(['o'])})"
                if x.startswith("ds_"): self.ql.append(j + 2 if x.startswith("ds_read_b128") else "w")
                if isvm(x):
                    for w in who: self.qt[w].append(tags.get(x, tags.get(x + str(g))))
        self.weave(mf, f)
    def rate(self, j): return 2 if j < self.o.get("r2", 10) or 10 <= j < 10 + self.o.get("r4", 4) or self.B3 <= j < self.B3 + self.o.get("r3", 6) else 1
    def fpush(self, r, n):
        if r == 2:
            X, Y = [f"s_add_u32 m0, s{sCNT}, {WC[n]}", f"s_add_u32 s{sT3}, s{sB if n >= 12 else sSL}, {(n & 3) << 15}"], [self.dma(vW2 + k, sEA, sT3, k * 1024, self.P("wpol")) for k in range(2)]
        else: X, Y = self.fetch(r, n)
        self.fq += [(X if not k else [], y, ("EOW"[r], n)) for k, y in enumerate(Y)]
    def lwait(self, t):
        return min(15, len(self.ql) - 1 - max(n for n, x in enumerate(self.ql) if x == t))
    def vwait(self, ts, who=(True, False)):
        return min([63] + [len(self.qt[w]) - 1 - n for w in who for n, x in enumerate(self.qt[w]) if x in ts and x not in self.qt[w][n+1:]])
    def tail_regs(self):
        L = []
        for j, s in enumerate((sS0, sS1, sS2)):
            L += [f"s_add_u32 s{sT0}, s{sWID}, {4*(j+1)}", f"s_and_b32 s{sT0}, s{sT0}, 15", f"s_and_b32 s{sT1}, s{sWID}, 0xf0", f"s_add_u32 s{sT0}, s{sT0}, s{sT1}",
                  f"s_mul_i32 s{sT0}, s{sT0}, 49152", f"s_add_u32 s{sT1}, s{sWAVE}, {4*j}", f"s_lshl_b32 s{sT1}, s{sT1}, 12", f"s_add_u32 s{s}, s{sT0}, s{sT1}"]
        L += [f"s_sub_u32 s{sT0}, s{sWAVE}, s{sKQ}", f"s_and_b32 s{sT0}, s{sT0}, 3", f"s_cmp_eq_u32 s{sT0}, 1", f"s_cselect_b32 s{sS8}, s{sS0}, s{sS1}",
              f"s_cmp_eq_u32 s{sT0}, 3", f"s_cselect_b32 s{sS8}, s{sS2}, s{sS8}", f"s_add_u32 s{sS8}, s{sS8}, 3072",
              f"s_cmp_eq_u32 s{sT0}, 0", f"s_cselect_b32 s{sS8}, {OOB:#x}, s{sS8}"]
        L += ["v_bfe_u32 v19, v1, 2, 2", "v_lshrrev_b32 v20, 4, v1", "v_cmp_eq_u32 vcc, v19, v20", "v_and_b32 v19, 1, v1", "v_lshlrev_b32 v19, 4, v19",
              "v_mov_b32 v20, 0x3f80", "v_lshlrev_b32 v19, v19, v20", "v_cndmask_b32 v19, 0, v19, vcc", "v_and_b32 v20, 2, v1", "v_cmp_eq_u32 vcc, 0, v20",
              f"v_mov_b32 v{vSEL+2}, 0", f"v_mov_b32 v{vSEL+3}, 0", f"v_cndmask_b32 v{vSEL}, 0, v19, vcc", f"v_sub_u32 v{vSEL+1}, v19, v{vSEL}",
              f"v_mov_b32 v{vSEL+4}, 0", f"v_mov_b32 v{vSEL+5}, 0", f"v_mov_b32 v{vSEL+6}, v{vSEL}", f"v_mov_b32 v{vSEL+7}, v{vSEL+1}"]
        L += [f"v_mov_b32 v{vRC+4*k+3}, s{sTK}" for k in range(3)]
        L += ["v_and_b32 v19, 3, v1", "v_min_u32 v19, 2, v19", f"v_lshlrev_b32 v19, 14, v19", f"v_add_u32 v{vP2}, 3068, v19",
              "v_and_b32 v19, 15, v1", "v_lshlrev_b32 v19, 10, v19", "v_lshrrev_b32 v20, 4, v1", "v_lshl_add_u32 v19, v20, 4, v19",
              f"s_lshl_b32 s{sT0}, s{sWAVE}, 6", f"v_add_u32 v{vOUT}, s{sT0}, v19"]
        return [x.replace("v19", "v13").replace("v20", "v14") for x in L]
    def tail(self):
        a = self.a
        a("L_tail:")
        acc = self.acc
        def send(i, n):
            t = vRC + 4 * (n & 1); c = vRC + 8
            so = sS8 if i == 8 else (sS0, sS1, sS2)[i >> 1]
            st = lambda t, o: f"buffer_store_dwordx4 {vr(t)}, v{vL16}, {sr(sPT)}, s{so} offen offset:{o} {self.P('psc', 'sc1')}"
            return [f"v_cvt_pk_bf16_f32 v{t+2*u+x if u + x < 2 else c + (2 if i == 8 else i & 1)}, v{acc(u,i)+2*x}, v{acc(u,i)+2*x+1}" for u in range(2) for x in range(2)] + \
                   [st(t, 0 if i == 8 else (i & 1) * 1024)] + ([st(c, 2048)] if i & 1 else [])
        B3 = self.B3; PA = self.o.get("pa", 7); FL = self.o.get("fl", 5); FS = self.o.get("fs", 66); PB2 = self.o.get("p2", 56)
        a(f"""s_mul_i32 s{sT4}, s{sWAVE}, 3072
        s_lshl_b32 s{sOFF}, s{sKQ}, 13
        s_add_u32 s{sOFF}, s{sOFF}, 4096
        s_mov_b32 s{sT3}, 32768""")
        if self.o.get("hit") == 1: a(f"s_mov_b32 s{sOB}, s{sEA}\ns_mov_b32 s{sOB+1}, s{sEA+1}")
        if self.o.get("hit") == 2: a(f"s_mov_b32 s{sOB+2}, 0")
        if self.o.get("hit") == 3: a(f"s_mov_b32 s{sOB+2}, 0\ns_mov_b32 s{sEA+2}, 0")
        self.ql = [0] * 4 + [1] * 4; self.fq = []
        self.qt = {True: ["o"] * 12, False: ["o"] * (8 if self.o.get("de") else 0)}
        first = lambda r, n: self.STEPS.index((r, self.ORDER[n], 1))
        todo = [(0, n) for n in range(7)] + [(1, n) for n in range(7)] + [(0, 7), (0, 8), (1, 7), (1, 8)]
        bar = {B3: [], 10: []}
        cutsE = [int(c) for c in str(self.o.get("eg", 101245))[1:]]; cutsO = [int(c) for c in str(self.o.get("og", 10135))[1:]]
        cuts = [(0, n) for n in cutsE] + [(1, n) for n in cutsO] + [(0, 7)] + ([(1, 7)] if self.o.get("lg", 1) else [])
        for k, x in enumerate(cuts): bar[first(*x) - 2] = [("EO"[r], n) for r, n in todo[:todo.index(cuts[k + 1]) if k + 1 < len(cuts) else 18]]
        pul = {16: WD, 22: WE}
        held = []
        for j, L in pul.items():
            bar[j] = bar.get(j, []) + [("W", n) for n in L]
            held += [(WC[n], 8192, j + 5) for n in L]
        for j, (r, i, s) in enumerate(self.STEPS):
            held.append(((OU if r else EU)[self.ORDER.index(i)], 12288, j) if s else (OWN + i * 4096, 4096, j) if r else (HAND1, 36864, j))
        todo[1:1] = [(2, n) for n in WD + WE]
        poll = f"buffer_load_dwordx2 v[2:3], v{vPL}, {sr(sFL)}, s{sIT} offen offset:2048 sc1"
        nst = 0; R = self.tail_w2(); nw2 = len(R); R += [f"s_lshl_b32 s{sIT}, s{sWID}, 13"] + self.tail_regs(); nw2 = len(R) - nw2; seen = 0; W2 = (True, False); P = []
        def nextf(j):
            if not todo: return None
            r, n = todo[0]
            if r == 2: return todo.pop(0) if len(R) <= nw2 else None
            o = (OU if r else EU)[n]
            if r and seen < B3 or max([-1] + [x for p, l, x in held if x < first(r, n) and p < o + 12288 and o < p + l]) >= seen: return None
            return todo.pop(0)
        pre2 = [f"s_mul_i32 s{sROT}, s{sWID}, 49152", f"s_lshl_b32 s{sT1}, s{sWAVE}, 12", f"s_add_u32 s{sROT}, s{sROT}, s{sT1}", f"s_lshl_b32 s{sT2}, s{sKQ}, 15",
                f"s_cmp_eq_u32 s{sWAVE}, s{sKQ}", f"s_cselect_b32 s{sT3}, 0, {OOB:#x}", f"s_cselect_b32 s{sREDO}, s{sTK}, 0"]
        pol2 = f"buffer_load_dword v2, v{vP2}, {sr(sPT)}, s{sROT} offen sc1"
        get = [[f"s_add_u32 s{sT0}, s{sROT}, {16384*k}", f"s_or_b32 s{sT1}, s{sT0}, s{sT3}"] +
               [f"buffer_load_dwordx4 {vr(vRC+16*k+4*u)}, v{vL16}, {sr(sPT)}, s{sT1 if u == 3 else sT0} offen offset:{u*1024} {self.P('plpol', 'sc1')}" for u in range(4)] for k in range(3)]
        for j in range(72):
            r, i, s = self.STEPS[j]
            if j == B3:
                assert not R
                self.stamp("pq")
                a(f"""s_cmp_lg_u32 s{sWAVE}, 3
                s_cbranch_scc1 L_p1ok
                s_waitcnt vmcnt({self.vwait(["p"])})
L_p1:
                v_cmp_ne_u64 vcc, s[{sTK}:{sTK+1}], v[2:3]
                s_cbranch_vccnz L_p1b
L_p1ok:""")
                self.ool += ["L_p1b:"] + self.budget("L_p1ok") + [poll, "s_waitcnt vmcnt(0)", "s_branch L_p1"]
                self.stamp("pk")
            if j in bar:
                assert not any(t in bar[j] for X, y, t in self.fq) and not any(("EOW"[r_], n) in bar[j] for r_, n in todo), j
                if bar[j]: a(f"s_waitcnt vmcnt({self.vwait(bar[j])})")
                if j == B3: self.stamp("pv")
                if not self.o.get("nobar"): a("s_barrier")
                seen = j
            self.stamp("p1" if j == B3 else "d0" if j == 37 else f"j{j}")
            while True:
                fe = nextf(j)
                if not fe: break
                self.fpush(*fe)
            if self.o.get("v"): print(j, "B" if j in bar else " ", [t for X, y, t in self.fq[:self.rate(j)]])
            at = {}
            if j == B3 - PA: at[7] = [poll]
            if j == FL:
                F = self.oflag(1, "", sREDO, sROT)
                G = F[:7] + [f"s_cmp_eq_u32 s{sWAVE}, 3", f"s_cselect_b32 s{sREDO}, {OOB:#x}, s{sREDO}"] + F[7:10]
                at = {g: x for g, x in zip((0, 1, 3, 4, 5), self.split(G, 5))}
                at[7] = [f"s_cmp_eq_u32 s{sWAVE}, 3", "s_cbranch_scc1 L_nw", "@o", "L_nw:"] + F[11:]
                if self.o.get("de"):
                    at = {g: x for g, x in zip((0, 1, 3, 4, 5), self.split(F[:10], 5))}
                    at[7] = ["@o"] + F[11:]
            if j == FL + self.o.get("spo", -99):
                ld = lambda s_: f"buffer_load_dword v63, v62, {sr(sOB)}, s{s_} offen sc1"
                for g, x in zip((0, 0, 1, 1, 3, 4, 4, 5) if j > FL else (2, 2, 2, 6, 6, 6, 6, 6), ["v_lshlrev_b32 v62, 7, v1", f"s_mul_i32 s{sP5}, s{sC}, 73728", f"s_mul_i32 s{sP6}, s{sWAVE}, 12288", f"s_add_u32 s{sP5}, s{sP5}, s{sP6}",
                                f"s_add_u32 s{sP5}, s{sP5}, {O_OFF + 36864}", f"s_cmp_eq_u32 s{sWAVE}, 3", f"s_cselect_b32 s{sP5}, {OOB:#x}, s{sP5}", f"s_add_u32 s{sP6}, s{sP5}, 6144"]):
                    at[g] = at.get(g, []) + [x]
                at[7] = at.get(7, []) + ["s_mov_b32 exec_hi, 0xffff", ld(sP5), ld(sP6), "s_mov_b32 exec_hi, -1"]
            assert PB2 % 3 and PB2 > 54
            if j == PB2: at = {**{g: x for g, x in zip((0, 1, 2, 3, 4, 5), self.split(pre2, 6))}, 7: [pol2]}
            if j == FS:
                self.emit([f"s_waitcnt vmcnt({self.vwait(['p2'])})", f"v_cmp_ne_u32 vcc, s{sTK}, v2", "s_cbranch_vccz L_get", pol2, "L_got:"])
                self.ool += ["L_get:"] + sum(get, []) + ["s_branch L_got"]
                self.stamp("fs")
            if 42 <= j <= 60 and s == 1:
                X = send(self.STEPS[j - 1][1], nst); nst += 1
                at = {4: X[:1], 5: X[1:3], 6: X[3:5], 7: X[5:]}
            if j - 5 in pul: assert not P
            if j in pul: P = self.pulls(pul[j])
            self.tstep(j, W2, at, P if P else R if j not in (FL, FL + self.o.get("spo", 0)) else [], {poll: "p", pol2: "p2"})
            if j == FL: self.stamp("ack")
        assert not R and nst == 7 and not todo
        self.stamp("mf")
        a("s_cbranch_vccz L_have\nL_poll2:\ns_waitcnt vmcnt(0)")
        a(f"v_cmp_ne_u32 vcc, s{sTK}, v2\ns_cbranch_vccnz L_poll2b\nL_poll2r:")
        self.ool += ["L_poll2b:"] + self.budget("L_poll2r") + [pol2, "s_branch L_poll2"]
        self.emit(sum(get, []))
        a("L_have:")
        self.stamp("p2")
        for k in range(3):
            b = vRC + 16 * k
            a(f"""s_waitcnt vmcnt({8-4*k})
L_ck{k}:
            v_xor_b32 v2, s{sTK}, v{b+3}
            v_xor_b32 v3, s{sTK}, v{b+7}
            v_xor_b32 v4, s{sTK}, v{b+11}
            v_xor_b32 v13, s{sREDO}, v{b+15}
            v_or3_b32 v2, v2, v3, v4
            v_or_b32 v2, v2, v13
            v_cmp_ne_u32 vcc, 0, v2
            s_cbranch_vccnz L_re{k}
L_ok{k}r:
            v_mov_b32 v{b+3}, v{b+8}
            v_mov_b32 v{b+7}, v{b+9}
            v_mov_b32 v{b+15}, v{b+10}
            s_nop 0""")
            self.ool += [f"L_re{k}:"] + self.budget(f"L_ok{k}r") + get[k] + ["s_waitcnt vmcnt(0)", f"s_branch L_ck{k}"]
            for u, i in ((0, 6), (1, 7), (3, 8)):
                for x in range(2):
                    a(f"{MF} {vr(acc(x,i))}, {vr(vSEL+4*x)}, {vr(b+4*u)}, {vr(acc(x,i))}")
        a(f"""s_add_u32 s{sT1}, s{sT2}, 16384
        s_or_b32 s{sT3}, s{sT3}, 131072
        s_nop 1""")
        for n, (i, so) in enumerate(((6, sT2), (7, sT1), (8, sT3))):
            t = vBF[0] + 4 * n
            if n == 2: a("s_nop 1")
            for u in range(2):
                for x in range(2): a(f"v_cvt_pk_bf16_f32 v{t+2*u+x}, v{acc(u,i)+2*x}, v{acc(u,i)+2*x+1}")
            a(f"buffer_store_dwordx4 {vr(t)}, v{vOUT}, {sr(sOUT)}, s{so} offen {self.P('opol')}")
        if self.o.get("stamps"):
            a("s_waitcnt vmcnt(0)")
            if self.o.get("sm") not in ("s", "r", "c", "p", "o"): self.inh = self.inh and self.o.get("sm") != "h"; self.stamp("end")
            if self.o.get("amp"):
                i = self.o["amp"]
                a(f"""s_waitcnt lgkmcnt(0)
                s_cmp_lg_u32 s{sWAVE}, {self.o.get("ampw", 0)}
                s_cbranch_scc1 L_noamp
                s_and_b32 s{sT0}, s2, {self.o.get("ampm", 0)}
                s_cmp_lg_u32 s{sT0}, {self.o.get("ampv", 0)}
                s_cbranch_scc1 L_noamp
                s_sub_u32 s{sT0}, s{sSTAMP+2*i}, s{sSTAMP+2*self.o.get("amp0", 0)}
                s_min_u32 s{sT0}, s{sT0}, 20000
                s_mul_i32 s{sT0}, s{sT0}, {self.o.get("ampk", 10)}
                s_add_u32 s{sT0}, s{sT0}, 10000
L_amp:
                s_memrealtime s[{sT2}:{sT2+1}]
                s_waitcnt lgkmcnt(0)
                s_sub_u32 s{sT1}, s{sT2}, s{sSTAMP}
                s_cmp_lt_u32 s{sT1}, s{sT0}
                s_cbranch_scc1 L_amp
L_noamp:
                s_endpgm""")
            if self.o.get("dbg"):
                a("s_waitcnt lgkmcnt(0)")
                self.emit(self.srd(sDB, 16, 0, 256))
                a(f"""s_cmp_eq_u32 s{sWAVE}, 3
                s_cselect_b32 s{sT0}, 28, 0
                s_mov_b64 exec, 1
                v_mov_b32 v5, 0
                s_add_u32 s{sT1}, s{sWAVE}, 1
                s_and_b32 s{sT1}, s{sT1}, 2
                s_cbranch_scc1 L_nodbg""")
                for i in range(1, 8):
                    a(f"s_sub_u32 s{sT1}, s{sSTAMP+2*i}, s{sSTAMP}\nv_mov_b32 v6, s{sT1}\nbuffer_atomic_add v6, v5, {sr(sDB)}, s{sT0} offen offset:{4*i} sc1")
                a(f"""s_not_b32 s{sT1}, s{sSTAMP}
                v_mov_b32 v6, s{sT1}
                v_mov_b32 v7, s{sSTAMP+14}
                buffer_atomic_umax v6, v5, {sr(sDB)}, 0 offen offset:60 sc1
                s_waitcnt vmcnt(0)
L_nodbg:
                s_endpgm""")
            a(f"""s_waitcnt lgkmcnt(0)
            s_mov_b32 s{sO}, s18
            s_and_b32 s{sO+1}, s19, 0xffff
            s_mov_b32 s{sO+2}, 536870912
            s_mov_b32 s{sO+3}, 0x00020000
            s_lshl_b32 s{sT0}, s2, 8
            s_lshl_b32 s{sT1}, s{sWAVE}, 6
            s_add_u32 s{sT0}, s{sT0}, s{sT1}
            s_add_u32 s{sT0}, s{sT0}, {256<<20}
            v_mov_b32 v5, 0""")
            a("v_mov_b32 v15, v18")
            for i in range(16): a(f"v_mov_b32 v{16+i}, s{sSTAMP+i}")
            a("s_mov_b64 exec, 1")
            for i in range(4): a(f"buffer_store_dwordx4 {vr(16+4*i)}, v5, {sr(sO)}, s{sT0} offen offset:{16*i}")
            if self.o.get("tl"):
                a(f"""s_mov_b64 exec, -1
                s_cmp_lg_u32 s{sWAVE}, 3
                s_cbranch_scc1 L_notl
                s_lshl_b32 s{sT0}, s2, 8
                s_add_u32 s{sT0}, s{sT0}, {257<<20}
                v_lshlrev_b32 v5, 2, v1
                buffer_store_dword v15, v5, {sr(sO)}, s{sT0} offen
L_notl:""")
        a("s_endpgm")

    def kernel(self):
        self.inh = True
        self.dry = True; self.helper(); self.dry = False
        self.prologue()
        self.helper()
        self.inh = False; self.attention(); self.inh = self.o.get("sm") in ("g", "s", "r", "c", "p", "o", "h") and self.o.get("gh", 1)
        self.tail()
        self.emit(self.ool)
        self.a("L_end:\ns_endpgm")
        return self.a.text()

def build(opt):
    g = Gen(opt)
    t = g.kernel()
    if opt.get("v"): print(g.cnt)
    src = open("standalone__gqa_block_cached__near_ridge.s.ref").read().split("; Override launch")[0]
    return src + header([(KN, 256, 256, LDS)]) + kstart(KN) + t + rodata([kdesc(KN, 256, 256)])

if __name__ == "__main__":
    opt = {}
    out = sys.argv[1]
    for x in sys.argv[2:]:
        k, _, v = x.partition("=")
        opt[k] = int(v) if v.lstrip("-").isdigit() else (v if v else True)
    t = build(opt)
    open(out, "w").write(t)
    print("hazards:", hazard.check(t), "bytes:", len(t))
```
